```python
import torch

def _softmax(x, axis=-1):
    return torch.softmax(x, dim=axis)
def _gelu(x):
    return torch.nn.functional.gelu(x, approximate="tanh")
def _silu(x):
    return torch.nn.functional.silu(x)
def _sigmoid(x):
    return torch.sigmoid(x)
def _layernorm(x, axis=-1, eps=1e-5):
    m = x.mean(dim=axis, keepdim=True)
    v = x.var(dim=axis, keepdim=True, unbiased=False)
    return (x - m) / torch.sqrt(v + eps)
def _scatter_add(tgt, idx, src, axis=0):
    return tgt.clone().index_add_(axis, idx, src)
def _segment_sum(src, seg, n):
    out = torch.zeros((n,) + src.shape[1:], dtype=src.dtype)
    return out.index_add_(0, seg, src)
def _pad(x, pw):
    flat = tuple(v for pair in reversed(pw) for v in pair)
    return torch.nn.functional.pad(x, flat)

kernel_name = 'parallel_sum__gqa_block_cached__mixer_channel_mlp__decode'

def setup_inputs():

    _w = (lambda a: (lambda t: t.to(torch.bfloat16) if t.is_floating_point() else t)(torch.as_tensor(a)))
    def _A_setup():
        B, Sq, D = 8, 1, 640
        Hq, Hkv, Sk, Dh = 32, 32, 4096, 128
        assert Hq % Hkv == 0, (Hq, Hkv)
        return {
            "x": _w((lambda *s: torch.randn(*s, dtype=torch.bfloat16) * 0.05)(B, Sq, D)),
            "k_cache": _w((lambda *s: torch.randn(*s, dtype=torch.bfloat16) * 3.2)(B, Hkv, Sk, Dh)),
            "v_cache": _w((lambda *s: torch.randn(*s, dtype=torch.bfloat16) * 0.4)(B, Hkv, Sk, Dh)),
            "wq": _w((lambda *s: torch.randn(*s, dtype=torch.bfloat16) * 3.2)(D, Hq * Dh) * (D ** -0.5)),
            "wo": _w((lambda *s: torch.randn(*s, dtype=torch.bfloat16) * 0.4)(Hq * Dh, D) * ((Hq * Dh) ** -0.5)),
        }
    _A_in = _A_setup()

    def _B_setup():
        B, S, D, F = 8, 1, 640, 1728
        return {
            "x": _w((lambda *s: torch.randn(*s, dtype=torch.bfloat16) * 0.05)(B, S, D)),
            "w1": _w((lambda *s: torch.randn(*s, dtype=torch.bfloat16) * 1.6)(D, F) * (D ** -0.5)),
            "b1": _w((lambda *s: torch.randn(*s, dtype=torch.bfloat16) * 1.6)(F)),
            "w2": _w((lambda *s: torch.randn(*s, dtype=torch.bfloat16) * 0.1)(F, D) * (F ** -0.5)),
            "b2": _w((lambda *s: torch.randn(*s, dtype=torch.bfloat16) * 0.1)(D)),
        }
    _B_in = _B_setup()

    return {
        "A_x": _A_in["x"],
        "A_k_cache": _A_in["k_cache"],
        "A_v_cache": _A_in["v_cache"],
        "A_wq": _A_in["wq"],
        "A_wo": _A_in["wo"],
        "B_x": _B_in["x"],
        "B_w1": _B_in["w1"],
        "B_b1": _B_in["b1"],
        "B_w2": _B_in["w2"],
        "B_b2": _B_in["b2"],
    }

def reference(A_x, A_k_cache, A_v_cache, A_wq, A_wo, B_x, B_w1, B_b1, B_w2, B_b2):
    def _A_ref(x, k_cache, v_cache, wq, wo):
        B, Sq, D = x.shape
        Hq, Dh = 32, 128
        Hkv = k_cache.shape[1]
        rep = Hq // Hkv
        q = (lambda x, *d: x.permute(*d))((x @ wq).reshape(B, Sq, Hq, Dh), 0, 2, 1, 3)
        k = (lambda x, n, axis: torch.repeat_interleave(x, n, dim=axis))(k_cache, rep, axis=1)
        v = (lambda x, n, axis: torch.repeat_interleave(x, n, dim=axis))(v_cache, rep, axis=1)
        scores = torch.einsum("bhqd,bhkd->bhqk", q, k) * (Dh ** -0.5)
        p = _softmax(scores, axis=-1)
        o = torch.einsum("bhqk,bhkd->bhqd", p, v)
        return (lambda x, *d: x.permute(*d))(o, 0, 2, 1, 3).reshape(B, Sq, Hq * Dh) @ wo

    def _B_ref(x, w1, b1, w2, b2):
        y = _layernorm(x, axis=-1)
        h = _gelu(torch.einsum("bsd,df->bsf", y, w1) + b1)
        return torch.einsum("bsf,fd->bsd", h, w2) + b2

    x = A_x
    xn = _layernorm(x, axis=-1)
    return x + _A_ref(xn, A_k_cache, A_v_cache, A_wq, A_wo) + _B_ref(xn, B_w1, B_b1, B_w2, B_b2)
```

```python
import struct, sys

NAME = "parallel_sum__gqa_block_cached__mixer_channel_mlp__decode"
HEADER = open("cdna_kernels/" + NAME + ".s.ref").read().split("; Override launch geometry")[0]

def f2u(x): return struct.unpack("<I", struct.pack("<f", x))[0]
SCALE = f2u(128 ** -0.5)
LOG2E = f2u(1.4426950408889634)
INV640 = f2u(1.0 / 640)
EPS = f2u(1e-5)

L_XN = 0
L_Y = 5120
L_QP = 6400
L_T = 8448
L_HV = 8960
L_OP = 9216
L_ML = 11264
L_OUTP = 11520
L_FLAG = 21760
LDS_BYTES = 22016

class Asm:
    def __init__(self):
        self.L = []
        self.vm = []
        self.landed = set()
        self.nlabel = 0
    def __call__(self, s): self.L.append("    " + s)
    def label(self, s): self.L.append(s + ":")
    def c(self, s): self.L.append("    ; " + s)
    def issue(self, tag, ins):
        self(ins); self.vm.append(tag)
        assert len(self.vm) <= 63, "too many outstanding vmem ops"
    def wait(self, tag):
        if tag not in self.vm: return
        i = self.vm.index(tag)
        n = len(self.vm) - 1 - i
        self(f"s_waitcnt vmcnt({n})")
        self.vm = self.vm[i + 1:]
    def waitall(self):
        if self.vm: self("s_waitcnt vmcnt(0)")
        self.vm = []
    def nop(self, n):
        while n > 0:
            k = min(n, 16); self(f"s_nop {k-1}"); n -= k

def allreduce(A, op, t, u):
    for ror in (8, 4, 2, 1):
        A.nop(2)
        A(f"v_{op}_f32_dpp v{t}, v{t}, v{t} row_ror:{ror} row_mask:0xf bank_mask:0xf")
    for sw in ("v_permlane16_swap_b32", "v_permlane32_swap_b32"):
        A(f"v_mov_b32 v{u}, v{t}")
        A.nop(2)
        A(f"{sw} v{t}, v{u}")
        A.nop(1)
        A(f"v_{op}_f32 v{t}, v{t}, v{u}")

def bf16r(A, d, s):
    A(f"v_cvt_pk_bf16_f32 v{d}, v{s}, v{s}")
    A(f"v_and_b32 v{d}, 0xffff0000, v{d}")

def layernorm(A, X, F, T, OUT):
    for k in range(5):
        A(f"v_lshlrev_b32 v{F+2*k}, 16, v{X+k}")
        A(f"v_and_b32 v{F+2*k+1}, 0xffff0000, v{X+k}")
    t, u, m, r = T, T + 1, T + 2, T + 3
    A(f"v_add_f32 v{t}, v{F}, v{F+1}")
    for k in range(2, 10): A(f"v_add_f32 v{t}, v{t}, v{F+k}")
    allreduce(A, "add", t, u)
    A(f"v_mul_f32 v{m}, {INV640:#x}, v{t}")
    A(f"v_sub_f32 v{u}, v{F}, v{m}")
    A(f"v_mul_f32 v{t}, v{u}, v{u}")
    for k in range(1, 10):
        A(f"v_sub_f32 v{u}, v{F+k}, v{m}")
        A(f"v_fmac_f32 v{t}, v{u}, v{u}")
    allreduce(A, "add", t, u)
    A(f"v_mul_f32 v{t}, {INV640:#x}, v{t}")
    bf16r(A, t, t)
    A(f"v_add_f32 v{t}, {EPS:#x}, v{t}")
    bf16r(A, t, t)
    A(f"v_sqrt_f32 v{t}, v{t}")
    A.nop(1)
    bf16r(A, t, t)
    A(f"v_rcp_f32 v{r}, v{t}")
    bf16r(A, m, m)
    for k in range(5):
        A(f"v_sub_f32 v{F+2*k}, v{F+2*k}, v{m}")
        A(f"v_sub_f32 v{F+2*k+1}, v{F+2*k+1}, v{m}")
        A(f"v_cvt_pk_bf16_f32 v{u}, v{F+2*k}, v{F+2*k+1}")
        A(f"v_lshlrev_b32 v{F+2*k}, 16, v{u}")
        A(f"v_and_b32 v{F+2*k+1}, 0xffff0000, v{u}")
        A(f"v_mul_f32 v{F+2*k}, v{F+2*k}, v{r}")
        A(f"v_mul_f32 v{F+2*k+1}, v{F+2*k+1}, v{r}")
        A(f"v_cvt_pk_bf16_f32 v{OUT+k}, v{F+2*k}, v{F+2*k+1}")

def srd(A, d, lo, hi, off_s, size):
    if off_s is None:
        A(f"s_mov_b32 s{d}, s{lo}"); A(f"s_mov_b32 s{d+1}, s{hi}")
    else:
        A(f"s_add_u32 s{d}, s{lo}, s{off_s}"); A(f"s_addc_u32 s{d+1}, s{hi}, 0")
    A(f"s_mov_b32 s{d+2}, {size}")
    A(f"s_mov_b32 s{d+3}, 0x20000")

class Prof:
    def __init__(self, A, on, reg): self.A, self.on, self.reg, self.n = A, on, reg, 0
    def stamp(self):
        if not self.on: return
        A = self.A
        A("s_memrealtime s[92:93]"); A("s_waitcnt lgkmcnt(0)")
        A(f"v_writelane_b32 v{self.reg}, s92, {self.n}"); self.n += 1
    def flush(self):
        if not self.on: return
        A = self.A
        A("s_mov_b64 exec, -1")
        A("s_lshl_b32 s94, s2, 3"); A("s_add_u32 s94, s94, s3"); A("s_lshl_b32 s94, s94, 8"); A("s_add_u32 s94, s94, 0x2000000")
        A(f"v_lshlrev_b32 v1, 2, v0"); A("v_add_u32 v1, s94, v1")
        A(f"global_store_dword v1, v{self.reg}, s[40:41]")

def gen(N=5, C=8, S0=24, R=32, catch=2, Ntail=None, tail_from=None, NA=4, wpol="", kvpol="nt", prof=0, fused=0, prio=1):
    A = Asm()
    P = Prof(A, prof, 63)
    kname = NAME + "_kernel"
    out = []
    out.append(HEADER.rstrip("\n"))
    if fused:
        out.append(f"; @launch kernel={kname} grid=(256,1,1) block=(512,1,1) lds={LDS_BYTES}")
    else:
        out.append(f"; @launch kernel={kname} grid=(256,1,1) block=(512,1,1) lds={LDS_BYTES}")
        out.append(f"; @launch kernel=reduce_kernel grid=(160,1,1) block=(64,1,1) lds=0")
    out.append('.amdgcn_target "amdgcn-amd-amdhsa--gfx950"')
    out.append(".text"); out.append(f".globl {kname}"); out.append(".p2align 8"); out.append(f".type {kname},@function")
    A.label(kname)
    A("s_cmp_ge_u32 s2, 256"); A("s_cbranch_scc1 L_end")
    A("s_load_dwordx16 s[16:31], s[0:1], 0")
    A("s_load_dwordx8 s[32:39], s[0:1], 64")
    A("s_load_dwordx2 s[40:41], s[0:1], 96")
    A("v_lshrrev_b32 v1, 6, v0")
    A("v_and_b32 v0, 63, v0")
    A("v_readfirstlane_b32 s3, v1")
    A("v_and_b32 v2, 15, v0")
    A("v_lshrrev_b32 v3, 4, v0")
    A("s_lshr_b32 s4, s2, 5")
    A("s_and_b32 s5, s2, 31")
    if prof: A("v_mov_b32 v63, 0")
    A("s_cmp_ge_u32 s3, 4"); A("s_cbranch_scc1 L_aux")
    vK, vV = 4, 5
    MASK = 8
    AT = 12
    D = 20
    O = 28
    S = 32
    TM = 48
    BQ = 64
    RING = 128
    assert R * 4 + RING <= 256
    if prio: A(f"s_setprio {prio}")
    A("v_bfe_u32 v6, v2, 1, 1"); A("v_lshlrev_b32 v6, 10, v6")
    A("v_lshrrev_b32 v7, 2, v2"); A("v_lshl_add_u32 v6, v7, 8, v6")
    A("v_and_b32 v7, 1, v2"); A("v_lshl_add_u32 v6, v7, 6, v6")
    A(f"v_lshl_add_u32 v{vK}, v3, 4, v6")
    A(f"v_lshlrev_b32 v{vV}, 4, v0")
    A("s_lshl_b32 s6, s2, 20"); A("s_lshr_b32 s7, s2, 12")
    A(f"s_mul_i32 s42, s3, {C*1024}")
    A("s_waitcnt lgkmcnt(0)")
    A("s_add_u32 s8, s18, s6"); A("s_addc_u32 s9, s19, s7"); A("s_mov_b32 s10, 0x100000"); A("s_mov_b32 s11, 0x20000")
    A("s_add_u32 s12, s20, s6"); A("s_addc_u32 s13, s21, s7"); A("s_mov_b32 s14, 0x100000"); A("s_mov_b32 s15, 0x20000")
    P.stamp()
    cur_page = [None]
    def kv_load(n):
        isv = n >= 256; m = n % 256
        vi, wi = m // C, m % C
        byte = vi * 4 * C * 1024 + (wi // 2) * 2048 + ((wi % 2) * (1024 if isv else 128))
        page, imm = byte // 4096 * 4096, byte % 4096
        if cur_page[0] != page:
            A(f"s_add_u32 s43, s42, {page}"); cur_page[0] = page
        v = RING + (n % R) * 4
        A.issue(("kv", n), f"buffer_load_dwordx4 v[{v}:{v+3}], v{vV if isv else vK}, s[{'12:15' if isv else '8:11'}], s43 offen offset:{imm} {kvpol}")
    def win(n):
        if Ntail is not None and n >= tail_from: return Ntail
        return N
    issued = [0]
    def pace():
        n = issued[0]
        if n >= 512: return False
        w = win(n)
        if n - w >= 0: A.wait(("kv", n - w))
        kv_load(n); issued[0] += 1
        return True
    for _ in range(N): pace()
    A("v_and_b32 v6, 1, v2"); A("v_lshlrev_b32 v6, 4, v6")
    A("v_mov_b32 v7, 0xffff"); A("v_lshlrev_b32 v7, v6, v7")
    A("v_bfe_u32 v6, v2, 1, 2")
    for r in range(4):
        A(f"v_cmp_eq_u32 vcc, {r}, v6"); A.nop(2); A(f"v_cndmask_b32 v{MASK+r}, 0, v7, vcc")
    A("v_lshrrev_b32 v6, 1, v2")
    for t in range(8): A(f"v_cmp_eq_u32 s[{48+2*t}:{49+2*t}], {t}, v6")
    A("v_and_b32 v6, 1, v2"); A("v_cmp_eq_u32 s[64:65], 0, v6")
    A(f"v_lshl_add_u32 v6, v6, 2, v3"); A(f"v_lshlrev_b32 v6, 5, v6")
    while issued[0] < S0: pace()
    P.stamp()
    A("s_barrier")
    P.stamp()
    for a in range(4):
        for half in range(2):
            for q in range(2):
                v = BQ + a * 16 + half * 8 + q * 4
                A(f"ds_read_b128 v[{v}:{v+3}], v6 offset:{L_QP + a*512 + half*256 + q*16}")
    if issued[0] < R: pace()
    A("s_waitcnt lgkmcnt(0)")
    for k in range(16):
        A(f"v_add_f32 v{TM-16+k}, v{BQ+k}, v{BQ+16+k}")
        A(f"v_add_f32 v{BQ+32+k}, v{BQ+32+k}, v{BQ+48+k}")
    if issued[0] < R: pace()
    for k in range(16):
        A(f"v_add_f32 v{S+k}, v{S+k}, v{BQ+32+k}")
    for k in range(8):
        A(f"v_cvt_pk_bf16_f32 v{TM+k}, v{S+2*k}, v{S+2*k+1}")
    if issued[0] < R: pace()
    for t in range(8):
        for k in range(8):
            A(f"v_cndmask_b32 v{BQ+t*8+k}, 0, v{TM+k}, s[{48+2*t}:{49+2*t}]")
        if t % 2 == 1 and issued[0] < R: pace()
    P.stamp()
    deferred = []
    unit = [0]
    def run_deferred(force=False):
        k = 0
        while k < len(deferred):
            if force or deferred[k][0] <= unit[0]:
                deferred.pop(k)[1]()
            else: k += 1
    def merge(t16):
        d = D + (t16 % 2) * 4
        a, b = TM + 8, TM + 9
        A(f"v_cndmask_b32 v{a}, v{d+3}, v{d}, s[64:65]")
        A(f"v_cndmask_b32 v{b}, v{d+1}, v{d+2}, s[64:65]")
        A.nop(2)
        A(f"v_add_f32_dpp v{a}, v{b}, v{a} quad_perm:[1,0,3,2] row_mask:0xf bank_mask:0xf")
        bf16r(A, a, a)
        A(f"v_mul_f32 v{a}, {SCALE:#x}, v{a}")
        bf16r(A, S + t16, a)
    def k_consume(c):
        t16, tt, half = c // 16, (c % 16) // 2, c % 2
        d = D + (t16 % 2) * 4
        v = RING + (c % R) * 4
        A.wait(("kv", c))
        b = BQ + tt * 8 + half * 4
        cs = "0" if c % 16 == 0 else f"v[{d}:{d+3}]"
        A(f"v_mfma_f32_16x16x32_bf16 v[{d}:{d+3}], v[{v}:{v+3}], v[{b}:{b+3}], {cs}")
        if c % 16 == 15: deferred.append((unit[0] + 9, lambda t=t16: merge(t)))
    def pexp(t16):
        a = TM + 10
        A(f"v_sub_f32 v{a}, v{S+t16}, v{TM}")
        A(f"v_mul_f32 v{a}, {LOG2E:#x}, v{a}")
        A(f"v_exp_f32 v{a}, v{a}")
        A.nop(1)
        A(f"v_add_f32 v{TM+1}, v{TM+1}, v{a}")
        A(f"v_cvt_pk_bf16_f32 v{S+t16}, v{a}, v{a}")
    def abuild(c):
        at = AT + (c % 2) * 4
        for r in range(4):
            A(f"v_and_b32_dpp v{at+r}, v{S + c//16}, v{MASK+r} row_newbcast:{c%16} row_mask:0xf bank_mask:0xf")
    def v_consume(c):
        at = AT + (c % 2) * 4
        v = RING + ((256 + c) % R) * 4
        if c + 1 < 256: abuild(c + 1)
        else: A.nop(2)
        A.wait(("kv", 256 + c))
        cs = "0" if c == 0 else f"v[{O}:{O+3}]"
        A(f"v_mfma_f32_16x16x32_bf16 v[{O}:{O+3}], v[{at}:{at+3}], v[{v}:{v+3}], {cs}")
        if c % 16 == 4 and c // 16 + 1 < 16: pexp(c // 16 + 1)
    c = 0
    while c < 256:
        can_issue = issued[0] < 512 and issued[0] - R < c
        if can_issue: pace()
        lag = issued[0] - win(max(issued[0]-1,0)) - c
        k = catch if lag > 1 else 1
        for _ in range(k):
            if c < 256:
                k_consume(c); c += 1
                unit[0] += 1; run_deferred()
    A.nop(8)
    run_deferred(force=True)
    P.stamp()
    def pace_ok():
        if issued[0] < 512 and issued[0] - R < 256: pace()
    A(f"v_max3_f32 v{TM}, v{S}, v{S+1}, v{S+2}")
    for k in range(3, 15, 2): A(f"v_max3_f32 v{TM}, v{TM}, v{S+k}, v{S+k+1}")
    A(f"v_max_f32 v{TM}, v{TM}, v{S+15}")
    pace_ok()
    allreduce(A, "max", TM, TM + 2)
    pace_ok()
    A(f"v_mov_b32 v{TM+1}, 0")
    pexp(0)
    A.nop(2)
    abuild(0)
    P.stamp()
    c = 0
    while c < 256:
        can_issue = issued[0] < 512 and issued[0] - R < 256 + c
        if can_issue: pace()
        lag = issued[0] - win(max(issued[0]-1,0)) - (256 + c)
        k = catch if (lag > 1 or issued[0] >= 512) else 1
        for _ in range(k):
            if c < 256:
                v_consume(c); c += 1
    P.stamp()
    allreduce(A, "add", TM + 1, TM + 2)
    A("v_lshlrev_b32 v6, 5, v2"); A("v_lshl_add_u32 v6, v3, 4, v6")
    A("s_lshl_b32 s44, s3, 9"); A("v_add_u32 v6, s44, v6")
    A("s_lshl_b32 s44, s3, 3"); A("v_mov_b32 v7, s44")
    A(f"v_mov_b32 v{TM+2}, v{TM}"); A(f"v_mov_b32 v{TM+3}, v{TM+1}")
    assert (TM + 2) % 2 == 0
    A("s_mov_b32 exec_hi, 0")
    A(f"ds_write_b128 v6, v[{O}:{O+3}] offset:{L_OP}")
    A("s_mov_b32 exec_lo, 1")
    A(f"ds_write_b64 v7, v[{TM+2}:{TM+3}] offset:{L_ML}")
    A("s_waitcnt lgkmcnt(0)")
    A("s_barrier")
    P.stamp()
    P.flush()
    A("s_endpgm")
    A.vm = []
    P = Prof(A, prof, 63)
    A.label("L_aux")
    SEL = 8
    AT = 16
    DO = 24
    DQ = 44
    X = 48
    F = 53
    T = 4
    PP = 64
    BUF = 96
    A("s_sub_u32 s42, s3, 4")
    A("s_mul_i32 s43, s42, 160"); A("v_mul_u32_u24 v4, 40, v3"); A("v_add_u32 v4, s43, v4")
    A("v_lshlrev_b32 v4, 13, v4"); A("v_lshl_add_u32 v4, v2, 4, v4")
    A("v_lshlrev_b32 v5, 2, v0")
    A("s_mul_i32 s6, s4, 1280"); A("s_lshl_b32 s7, s5, 8")
    A("s_sub_u32 s44, 5242880, s7")
    A("s_waitcnt lgkmcnt(0)")
    srd(A, 8, 16, 17, 6, 1280)
    srd(A, 12, 22, 23, 7, "s44")
    P.stamp()
    for k in range(5):
        A.issue(("x", k), f"buffer_load_dword v{X+k}, v5, s[8:11], 0 offen offset:{k*256}")
    for j in range(40):
        v = BUF + 4 * j
        A(f"s_mov_b32 s45, {j*8192}")
        A.issue(("wq", j), f"buffer_load_dwordx4 v[{v}:{v+3}], v4, s[12:15], s45 offen {wpol}")
    A("v_and_b32 v6, 1, v2")
    A("v_cmp_eq_u32 vcc, 0, v6")
    A("v_mov_b32 v4, 0x01000c0c"); A("v_mov_b32 v5, 0x0c0c0100")
    A("v_cndmask_b32 v4, v4, v5, vcc")
    A("v_mov_b32 v6, 0x03020c0c"); A("v_mov_b32 v5, 0x0c0c0302")
    A("v_cndmask_b32 v5, v6, v5, vcc")
    A("v_bfe_u32 v6, v2, 1, 2"); A("v_mov_b32 v7, 0x0c0c0c0c")
    for r in range(4):
        A(f"v_cmp_eq_u32 vcc, {r}, v6"); A.nop(2)
        A(f"v_cndmask_b32 v{SEL+r}, v7, v4, vcc"); A(f"v_cndmask_b32 v{SEL+4+r}, v7, v5, vcc")
    for k in range(20): A(f"v_mov_b32 v{DO+k}, 0")
    A.wait(("x", 4))
    P.stamp()
    layernorm(A, X, F, T, X)
    A("s_mul_i32 s43, s42, 1280")
    A("v_lshlrev_b32 v4, 2, v0"); A("v_add_u32 v4, s43, v4")
    for k in range(5): A(f"ds_write_b32 v4, v{X+k} offset:{L_XN + 256*k}")
    A("s_mul_i32 s43, s42, 1600"); A("v_mul_u32_u24 v5, 80, v3"); A("v_add_u32 v5, s43, v5")
    A("s_waitcnt lgkmcnt(0)")
    for k in range(5): A(f"ds_read_b128 v[{PP+4*k}:{PP+4*k+3}], v5 offset:{L_XN + 16*k}")
    A("s_waitcnt lgkmcnt(0)")
    P.stamp()
    def abuild_p(preg, par, st):
        at = AT + st * 4
        for r in range(4): A(f"v_perm_b32 v{at+r}, v{preg}, v{preg}, v{SEL + par*4 + r}")
    abuild_p(PP, 0, 0)
    for j in range(40):
        if j + 1 < 40: abuild_p(PP + (j + 1) // 2, (j + 1) % 2, (j + 1) % 2)
        else: A.nop(2)
        A.wait(("wq", j))
        at = AT + (j % 2) * 4; v = BUF + 4 * j
        cs = "0" if j == 0 else f"v[{DQ}:{DQ+3}]"
        A(f"v_mfma_f32_16x16x32_bf16 v[{DQ}:{DQ+3}], v[{at}:{at+3}], v[{v}:{v+3}], {cs}")
    A("v_lshlrev_b32 v6, 5, v2"); A("v_lshl_add_u32 v6, v3, 4, v6")
    A("s_lshl_b32 s43, s42, 9"); A("v_add_u32 v7, s43, v6")
    A.nop(6)
    A("s_mov_b32 exec_hi, 0")
    A(f"ds_write_b128 v7, v[{DQ}:{DQ+3}] offset:{L_QP}")
    A("s_mov_b32 exec_hi, -1")
    A("s_waitcnt lgkmcnt(0)")
    P.stamp()
    A("s_barrier")
    A("s_cmp_lg_u32 s42, 0"); A("s_cbranch_scc1 L_wo")
    A("s_cmp_ge_u32 s5, 27"); A("s_cbranch_scc1 L_wo")
    layernorm(A, X, F, T, X)
    A("v_lshlrev_b32 v4, 2, v0")
    for k in range(5): A(f"ds_write_b32 v4, v{X+k} offset:{L_Y + 256*k}")
    A("s_lshl_b32 s6, s5, 7")
    A(f"s_sub_u32 s44, {640*3456}, s6")
    srd(A, 8, 28, 29, 6, "s44")
    srd(A, 12, 30, 31, 6, 128)
    A("v_lshlrev_b32 v5, 1, v0")
    A.issue(("b1", 0), f"buffer_load_ushort v{F}, v5, s[12:15], 0 offen")
    A("v_lshrrev_b32 v5, 3, v2"); A("v_lshl_add_u32 v5, v3, 1, v5")
    A("v_mul_u32_u24 v6, 160, v5")
    A(f"s_mov_b32 s45, {80*3456}"); A("v_mul_lo_u32 v5, s45, v5")
    A("v_and_b32 v7, 7, v2"); A("v_lshl_add_u32 v5, v7, 4, v5")
    A("s_waitcnt lgkmcnt(0)")
    PY = BUF
    for k in range(10): A(f"ds_read_b128 v[{PY+4*k}:{PY+4*k+3}], v6 offset:{L_Y + 16*k}")
    RB, RN = BUF + 40, 30
    def w1_load(j):
        v = RB + (j % RN) * 4
        A(f"s_mov_b32 s45, {j*3456}")
        A.issue(("w1", j), f"buffer_load_dwordx4 v[{v}:{v+3}], v5, s[8:11], s45 offen {wpol}")
    NW = 8
    for j in range(NW): w1_load(j)
    A("s_waitcnt lgkmcnt(0)")
    abuild_p(PY, 0, 0)
    for j in range(80):
        if j + 1 < 80: abuild_p(PY + (j + 1) // 2, (j + 1) % 2, (j + 1) % 2)
        else: A.nop(2)
        A.wait(("w1", j))
        at = AT + (j % 2) * 4; v = RB + (j % RN) * 4
        cs = "0" if j == 0 else f"v[{DQ}:{DQ+3}]"
        A(f"v_mfma_f32_16x16x32_bf16 v[{DQ}:{DQ+3}], v[{at}:{at+3}], v[{v}:{v+3}], {cs}")
        if j + NW < 80: w1_load(j + NW)
    A("s_mul_i32 s6, s5, 81920")
    A(f"s_sub_u32 s44, {1728*1280}, s6")
    srd(A, 8, 32, 33, 6, "s44")
    A("v_mul_u32_u24 v5, 20480, v3"); A("v_lshl_add_u32 v5, v2, 4, v5")
    def w2_load(n):
        jj, cb = n // 5, n % 5
        v = RB + (n % RN) * 4
        if cb == 0: A(f"s_mov_b32 s45, {jj*1280}")
        A.issue(("w2", n), f"buffer_load_dwordx4 v[{v}:{v+3}], v5, s[8:11], s45 offen offset:{cb*256} {wpol}")
    for n in range(10): w2_load(n)
    A("v_lshrrev_b32 v6, 1, v3"); A("v_lshrrev_b32 v7, 3, v2")
    A("v_cmp_eq_u32 vcc, v6, v7")
    A("v_lshlrev_b32 v6, 8, v6"); A("v_and_b32 v7, 7, v2"); A("v_lshl_add_u32 v6, v7, 5, v6")
    A("v_and_b32 v7, 1, v3"); A("v_lshl_add_u32 v6, v7, 4, v6")
    A("s_and_saveexec_b64 s[46:47], vcc")
    A(f"ds_write_b128 v6, v[{DQ}:{DQ+3}] offset:{L_T}")
    A("s_mov_b64 exec, s[46:47]")
    A("v_lshlrev_b32 v6, 2, v0")
    A("s_waitcnt lgkmcnt(0)")
    A(f"ds_read_b32 v{F+1}, v6 offset:{L_T}"); A(f"ds_read_b32 v{F+2}, v6 offset:{L_T+256}")
    A("s_waitcnt lgkmcnt(0)")
    A(f"v_add_f32 v{F+1}, v{F+1}, v{F+2}")
    bf16r(A, F + 1, F + 1)
    A.wait(("b1", 0))
    A(f"v_lshlrev_b32 v{F}, 16, v{F}")
    A(f"v_add_f32 v{F+1}, v{F+1}, v{F}")
    bf16r(A, F + 1, F + 1)
    x_, u_, e_ = F + 1, F + 2, F + 3
    A(f"v_mul_f32 v{u_}, v{x_}, v{x_}"); A(f"v_mul_f32 v{u_}, v{u_}, v{x_}")
    A(f"v_mov_b32 v{e_}, {f2u(0.044715):#x}"); A(f"v_fma_f32 v{u_}, v{u_}, v{e_}, v{x_}")
    A(f"v_mul_f32 v{u_}, {f2u(-2*0.7978845608028654*1.4426950408889634):#x}, v{u_}")
    A(f"v_exp_f32 v{u_}, v{u_}"); A.nop(1)
    A(f"v_add_f32 v{u_}, 1.0, v{u_}"); A(f"v_rcp_f32 v{u_}, v{u_}"); A.nop(1)
    A(f"v_mul_f32 v{u_}, v{x_}, v{u_}")
    A(f"v_cvt_pk_bf16_f32 v{u_}, v{u_}, v{u_}")
    A("v_lshlrev_b32 v6, 1, v0")
    A(f"ds_write_b16 v6, v{u_} offset:{L_HV}")
    A("v_lshlrev_b32 v6, 5, v3")
    A("s_waitcnt lgkmcnt(0)")
    for k in range(2): A(f"ds_read_b128 v[{PP+4*k}:{PP+4*k+3}], v6 offset:{L_HV + 16*k}")
    A("s_waitcnt lgkmcnt(0)")
    abuild_p(PP, 0, 0)
    nl = 10
    for jj in range(16):
        if jj + 1 < 16: abuild_p(PP + (jj + 1) // 2, (jj + 1) % 2, (jj + 1) % 2)
        else: A.nop(2)
        at = AT + (jj % 2) * 4
        for cb in range(5):
            n = jj * 5 + cb
            A.wait(("w2", n))
            v = RB + (n % RN) * 4; d = DO + 4 * cb
            A(f"v_mfma_f32_16x16x32_bf16 v[{d}:{d+3}], v[{at}:{at+3}], v[{v}:{v+3}], v[{d}:{d+3}]")
            if nl < 80: w2_load(nl); nl += 1
    A.waitall()
    A.label("L_wo")
    A.vm = []
    A("s_mul_i32 s6, s5, 163840")
    srd(A, 8, 24, 25, 6, 163840)
    A("s_lshl_b32 s43, s42, 5"); A("v_lshlrev_b32 v5, 3, v3"); A("v_add_u32 v5, s43, v5")
    A("v_mul_u32_u24 v5, 1280, v5"); A("v_lshl_add_u32 v5, v2, 4, v5")
    for n in range(40):
        jj, cb = n // 5, n % 5
        v = BUF + 4 * n
        if cb == 0: A(f"s_mov_b32 s45, {jj*1280}")
        if n >= NA: A.wait(("wo", n - NA))
        A.issue(("wo", n), f"buffer_load_dwordx4 v[{v}:{v+3}], v5, s[8:11], s45 offen offset:{cb*256} {wpol}")
    A("v_lshlrev_b32 v4, 5, v3"); A("s_lshl_b32 s43, s42, 7"); A("v_add_u32 v4, s43, v4")
    A("v_mov_b32 v5, 0")
    A.waitall()
    P.stamp()
    A("s_barrier")
    P.stamp()
    ML = PP
    OV = PP + 8
    A(f"ds_read_b128 v[{ML}:{ML+3}], v5 offset:{L_ML}"); A(f"ds_read_b128 v[{ML+4}:{ML+7}], v5 offset:{L_ML+16}")
    OVR = [72, 80, 88, 48]
    for w in range(4):
        for q in range(2):
            v = OVR[w] + 4 * q
            A(f"ds_read_b128 v[{v}:{v+3}], v4 offset:{L_OP + w*512 + q*16}")
    A("s_waitcnt lgkmcnt(8)")
    A(f"v_max3_f32 v6, v{ML}, v{ML+2}, v{ML+4}"); A(f"v_max_f32 v6, v6, v{ML+6}")
    for w in range(4):
        A(f"v_sub_f32 v{ML+2*w}, v{ML+2*w}, v6"); A(f"v_mul_f32 v{ML+2*w}, {LOG2E:#x}, v{ML+2*w}"); A(f"v_exp_f32 v{ML+2*w}, v{ML+2*w}")
    A.nop(1)
    A(f"v_mul_f32 v7, v{ML}, v{ML+1}")
    for w in range(1, 4): A(f"v_fmac_f32 v7, v{ML+2*w}, v{ML+2*w+1}")
    A("v_rcp_f32 v7, v7"); A.nop(1)
    A("s_waitcnt lgkmcnt(0)")
    for k in range(8):
        A(f"v_mul_f32 v{OVR[0]+k}, v{OVR[0]+k}, v{ML}")
        for w in range(1, 4): A(f"v_fmac_f32 v{OVR[0]+k}, v{OVR[w]+k}, v{ML+2*w}")
        A(f"v_mul_f32 v{OVR[0]+k}, v{OVR[0]+k}, v7")
    PO = 56
    for k in range(4): A(f"v_cvt_pk_bf16_f32 v{PO+k}, v{OVR[0]+2*k}, v{OVR[0]+2*k+1}")
    abuild_p(PO, 0, 0)
    for jj in range(8):
        if jj + 1 < 8: abuild_p(PO + (jj + 1) // 2, (jj + 1) % 2, (jj + 1) % 2)
        else: A.nop(2)
        at = AT + (jj % 2) * 4
        if jj == 0: A.nop(2)
        for cb in range(5):
            v = BUF + 4 * (jj * 5 + cb); d = DO + 4 * cb
            A(f"v_mfma_f32_16x16x32_bf16 v[{d}:{d+3}], v[{at}:{at+3}], v[{v}:{v+3}], v[{d}:{d+3}]")
    A("v_lshlrev_b32 v6, 5, v2"); A("v_lshl_add_u32 v6, v3, 4, v6")
    A("s_mul_i32 s43, s42, 2560"); A("v_add_u32 v6, s43, v6")
    A.nop(4)
    A("s_mov_b32 exec_hi, 0")
    for cb in range(5):
        A(f"ds_write_b128 v6, v[{DO+4*cb}:{DO+4*cb+3}] offset:{L_OUTP + cb*512}")
    A("s_mov_b32 exec_hi, -1")
    A("s_waitcnt lgkmcnt(0)")
    P.stamp()
    A("s_barrier")
    A("s_lshl_b32 s43, s42, 6"); A("v_add_u32 v4, s43, v0")
    A("v_cmp_gt_u32 vcc, 160, v4")
    A("v_lshlrev_b32 v4, 4, v4")
    A("s_and_saveexec_b64 s[46:47], vcc")
    A("s_cbranch_execz L_aux_done")
    for w in range(4): A(f"ds_read_b128 v[{72+4*w}:{75+4*w}], v4 offset:{L_OUTP + w*2560}")
    A("s_mul_i32 s6, s2, 2560")
    srd(A, 8, 40, 41, 6, 2560)
    A("s_waitcnt lgkmcnt(0)")
    for k in range(4):
        A(f"v_add_f32 v{72+k}, v{72+k}, v{76+k}"); A(f"v_add_f32 v{80+k}, v{80+k}, v{84+k}"); A(f"v_add_f32 v{72+k}, v{72+k}, v{80+k}")
    A("buffer_store_dwordx4 v[72:75], v4, s[8:11], 0 offen")
    A.label("L_aux_done")
    P.stamp()
    P.flush()
    A.label("L_end")
    A("s_endpgm")
    out += A.L
    kernels = [(kname, 256, 102)]
    if not fused:
        B = Asm()
        out.append(".globl reduce_kernel"); out.append(".p2align 8"); out.append(".type reduce_kernel,@function")
        B.label("reduce_kernel")
        B("s_cmp_ge_u32 s2, 160"); B("s_cbranch_scc1 R_end")
        B("s_load_dwordx2 s[4:5], s[0:1], 0")
        B("s_load_dwordx4 s[8:11], s[0:1], 72")
        B("s_load_dwordx2 s[6:7], s[0:1], 96")
        B("s_mul_hi_u32 s12, s2, 0xccccccd")
        B("s_mul_i32 s13, s12, 20"); B("s_sub_u32 s13, s2, s13")
        B("v_and_b32 v1, 7, v0"); B("v_lshrrev_b32 v2, 3, v0")
        B("v_mul_u32_u24 v3, 10240, v2"); B("v_lshl_add_u32 v3, v1, 4, v3")
        B("s_lshl_b32 s14, s13, 7"); B("v_add_u32 v3, s14, v3")
        B("s_mul_i32 s15, s12, 81920")
        B("s_waitcnt lgkmcnt(0)")
        B("s_add_u32 s16, s6, s15"); B("s_addc_u32 s17, s7, 0"); B("s_mov_b32 s18, 81920"); B("s_mov_b32 s19, 0x20000")
        B("s_mov_b32 s20, 2560"); B("s_mov_b32 s21, 5120"); B("s_mov_b32 s22, 7680")
        B("buffer_load_dwordx4 v[4:7], v3, s[16:19], 0 offen")
        B("buffer_load_dwordx4 v[8:11], v3, s[16:19], s20 offen")
        B("buffer_load_dwordx4 v[12:15], v3, s[16:19], s21 offen")
        B("buffer_load_dwordx4 v[16:19], v3, s[16:19], s22 offen")
        B("s_mul_i32 s15, s12, 1280"); B("s_lshl_b32 s14, s13, 6")
        B("v_lshlrev_b32 v20, 3, v1"); B("v_add_u32 v20, s14, v20")
        B("s_add_u32 s24, s4, s15"); B("s_addc_u32 s25, s5, 0"); B("s_mov_b32 s26, 1280"); B("s_mov_b32 s27, 0x20000")
        B("s_mov_b32 s28, s8"); B("s_mov_b32 s29, s9"); B("s_mov_b32 s30, 1280"); B("s_mov_b32 s31, 0x20000")
        B("s_add_u32 s32, s10, s15"); B("s_addc_u32 s33, s11, 0"); B("s_mov_b32 s34, 1280"); B("s_mov_b32 s35, 0x20000")
        B("buffer_load_dwordx2 v[22:23], v20, s[24:27], 0 offen")
        B("buffer_load_dwordx2 v[24:25], v20, s[28:31], 0 offen")
        B("s_waitcnt vmcnt(2)")
        for k in range(4):
            B(f"v_add_f32 v{4+k}, v{4+k}, v{8+k}"); B(f"v_add_f32 v{12+k}, v{12+k}, v{16+k}"); B(f"v_add_f32 v{4+k}, v{4+k}, v{12+k}")
        B.nop(2)
        for k in range(4): B(f"v_add_f32_dpp v{4+k}, v{4+k}, v{4+k} row_ror:8 row_mask:0xf bank_mask:0xf")
        for sw in ("v_permlane16_swap_b32", "v_permlane32_swap_b32"):
            for k in range(4): B(f"v_mov_b32 v{8+k}, v{4+k}")
            B.nop(2)
            for k in range(4): B(f"{sw} v{4+k}, v{8+k}")
            B.nop(1)
            for k in range(4): B(f"v_add_f32 v{4+k}, v{4+k}, v{8+k}")
        B("s_waitcnt vmcnt(0)")
        for k in range(2):
            B(f"v_lshlrev_b32 v8, 16, v{22+k}"); B(f"v_and_b32 v9, 0xffff0000, v{22+k}")
            B(f"v_lshlrev_b32 v10, 16, v{24+k}"); B(f"v_and_b32 v11, 0xffff0000, v{24+k}")
            B(f"v_add_f32 v{4+2*k}, v{4+2*k}, v10"); B(f"v_add_f32 v{5+2*k}, v{5+2*k}, v11")
            B(f"v_add_f32 v{4+2*k}, v{4+2*k}, v8"); B(f"v_add_f32 v{5+2*k}, v{5+2*k}, v9")
        B("v_cvt_pk_bf16_f32 v4, v4, v5"); B("v_cvt_pk_bf16_f32 v5, v6, v7")
        B("v_cmp_gt_u32 vcc, 8, v0"); B("s_and_saveexec_b64 s[36:37], vcc")
        B("buffer_store_dwordx2 v[4:5], v20, s[32:35], 0 offen")
        B.label("R_end"); B("s_endpgm")
        out += B.L
        kernels.append(("reduce_kernel", 32, 48))
    out.append('.section .rodata,"a"')
    for kn, nv, ns in kernels:
        out += [".p2align 6", f".amdhsa_kernel {kn}", f"  .amdhsa_next_free_vgpr {nv}", f"  .amdhsa_next_free_sgpr {ns}",
                f"  .amdhsa_accum_offset {nv}", "  .amdhsa_group_segment_fixed_size 0", "  .amdhsa_kernarg_size 104",
                "  .amdhsa_user_sgpr_count 2", "  .amdhsa_user_sgpr_kernarg_segment_ptr 1", "  .amdhsa_system_sgpr_workgroup_id_x 1",
                "  .amdhsa_float_denorm_mode_32 3", ".end_amdhsa_kernel"]
    return "\n".join(out) + "\n"

if __name__ == "__main__":
    kw = eval("dict(" + (sys.argv[2] if len(sys.argv) > 2 else "") + ")")
    open(sys.argv[1], "w").write(gen(**kw))
```

```python
import struct, sys

NAME = "parallel_sum__gqa_block_cached__mixer_channel_mlp__decode"
HEADER = open("cdna_kernels/" + NAME + ".s.ref").read().split("; Override launch geometry")[0]

def f2u(x): return struct.unpack("<I", struct.pack("<f", x))[0]
SCALE = f2u(128 ** -0.5)
LOG2E = f2u(1.4426950408889634)
INV640 = f2u(1.0 / 640)
EPS = f2u(1e-5)

L_XN = 0
L_Y = 5120
L_QP = 6400
L_T = 8448
L_HV = 8960
L_OP = 9216
L_ML = 11264
L_OUTP = 11520
L_FLAG = 21760
LDS_BYTES = 22528

class Asm:
    def __init__(self):
        self.L = []
        self.vm = []
        self.landed = set()
        self.nlabel = 0
    def __call__(self, s): self.L.append("    " + s)
    def label(self, s): self.L.append(s + ":")
    def c(self, s): self.L.append("    ; " + s)
    def issue(self, tag, ins):
        self(ins); self.vm.append(tag)
        assert len(self.vm) <= 63, "too many outstanding vmem ops"
    def wait(self, tag):
        if tag not in self.vm: return
        i = self.vm.index(tag)
        n = len(self.vm) - 1 - i
        self(f"s_waitcnt vmcnt({n})")
        self.vm = self.vm[i + 1:]
    def waitall(self):
        if self.vm: self("s_waitcnt vmcnt(0)")
        self.vm = []
    def nop(self, n):
        while n > 0:
            k = min(n, 16); self(f"s_nop {k-1}"); n -= k

def allreduce(A, op, t, u):
    for ror in (8, 4, 2, 1):
        A.nop(2)
        A(f"v_{op}_f32_dpp v{t}, v{t}, v{t} row_ror:{ror} row_mask:0xf bank_mask:0xf")
    for sw in ("v_permlane16_swap_b32", "v_permlane32_swap_b32"):
        A(f"v_mov_b32 v{u}, v{t}")
        A.nop(2)
        A(f"{sw} v{t}, v{u}")
        A.nop(1)
        A(f"v_{op}_f32 v{t}, v{t}, v{u}")

def bf16r(A, d, s):
    A(f"v_cvt_pk_bf16_f32 v{d}, v{s}, v{s}")
    A(f"v_and_b32 v{d}, 0xffff0000, v{d}")

def layernorm(A, X, F, T, OUT):
    if isinstance(T, int): T = (T, T+1, T+2, T+3)
    for k in range(5):
        A(f"v_lshlrev_b32 v{F+2*k}, 16, v{X+k}")
        A(f"v_and_b32 v{F+2*k+1}, 0xffff0000, v{X+k}")
    t, u, m, r = T
    A(f"v_add_f32 v{t}, v{F}, v{F+1}")
    for k in range(2, 10): A(f"v_add_f32 v{t}, v{t}, v{F+k}")
    allreduce(A, "add", t, u)
    A(f"v_mul_f32 v{m}, {INV640:#x}, v{t}")
    A(f"v_sub_f32 v{u}, v{F}, v{m}")
    A(f"v_mul_f32 v{t}, v{u}, v{u}")
    for k in range(1, 10):
        A(f"v_sub_f32 v{u}, v{F+k}, v{m}")
        A(f"v_fmac_f32 v{t}, v{u}, v{u}")
    allreduce(A, "add", t, u)
    A(f"v_mul_f32 v{t}, {INV640:#x}, v{t}")
    bf16r(A, t, t)
    A(f"v_add_f32 v{t}, {EPS:#x}, v{t}")
    bf16r(A, t, t)
    A(f"v_sqrt_f32 v{t}, v{t}")
    A.nop(1)
    bf16r(A, t, t)
    A(f"v_rcp_f32 v{r}, v{t}")
    bf16r(A, m, m)
    for k in range(5):
        A(f"v_sub_f32 v{F+2*k}, v{F+2*k}, v{m}")
        A(f"v_sub_f32 v{F+2*k+1}, v{F+2*k+1}, v{m}")
        A(f"v_cvt_pk_bf16_f32 v{u}, v{F+2*k}, v{F+2*k+1}")
        A(f"v_lshlrev_b32 v{F+2*k}, 16, v{u}")
        A(f"v_and_b32 v{F+2*k+1}, 0xffff0000, v{u}")
        A(f"v_mul_f32 v{F+2*k}, v{F+2*k}, v{r}")
        A(f"v_mul_f32 v{F+2*k+1}, v{F+2*k+1}, v{r}")
        A(f"v_cvt_pk_bf16_f32 v{OUT+k}, v{F+2*k}, v{F+2*k+1}")

def srd(A, d, lo, hi, off_s, size):
    if off_s is None:
        A(f"s_mov_b32 s{d}, s{lo}"); A(f"s_mov_b32 s{d+1}, s{hi}")
    else:
        A(f"s_add_u32 s{d}, s{lo}, s{off_s}"); A(f"s_addc_u32 s{d+1}, s{hi}, 0")
    A(f"s_mov_b32 s{d+2}, {size}")
    A(f"s_mov_b32 s{d+3}, 0x20000")

class Prof:
    def __init__(self, A, on, reg): self.A, self.on, self.reg, self.n = A, on, reg, 0
    def stamp(self):
        if not self.on: return
        A = self.A
        A("s_memrealtime s[92:93]"); A("s_waitcnt lgkmcnt(0)")
        A(f"v_writelane_b32 v{self.reg}, s92, {self.n}"); self.n += 1
    def flush(self):
        if not self.on: return
        A = self.A
        A("s_mov_b64 exec, -1")
        A("s_lshl_b32 s94, s2, 3"); A("s_add_u32 s94, s94, s3"); A("s_lshl_b32 s94, s94, 8"); A("s_add_u32 s94, s94, 0x2000000")
        A(f"v_lshlrev_b32 v1, 2, v0"); A("v_add_u32 v1, s94, v1")
        A(f"global_store_dword v1, v{self.reg}, s[40:41]")

def gen(N=5, C=8, S0=24, R=32, catch=2, Ntail=None, tail_from=None, NA=4, wpol="", kvpol="nt", prof=0, fused=0, prio=1, hmap=1, nomlp=0, nowo=0, NW=8, diag=0, nostream=0, WQ0=16, NQ=0, bar0=0, K0=5):
    A = Asm()
    P = Prof(A, prof, 63)
    kname = NAME + "_kernel"
    out = []
    out.append(HEADER.rstrip("\n"))
    if fused:
        out.append(f"; @launch grid=(256,1,1) block=(512,1,1) lds={LDS_BYTES}")
    else:
        out.append(f"; @launch kernel={kname} grid=(256,1,1) block=(512,1,1) lds={LDS_BYTES}")
        out.append(f"; @launch kernel=reduce_kernel grid=(160,1,1) block=(64,1,1) lds=0")
    out.append('.amdgcn_target "amdgcn-amd-amdhsa--gfx950"')
    out.append(".text"); out.append(f".globl {kname}"); out.append(".p2align 8"); out.append(f".type {kname},@function")
    A.label(kname)
    A("s_cmp_ge_u32 s2, 256"); A("s_cbranch_scc1 L_end")
    A("s_load_dwordx16 s[16:31], s[0:1], 0")
    A("s_load_dwordx8 s[32:39], s[0:1], 64")
    A("s_load_dwordx2 s[40:41], s[0:1], 96")
    A("v_lshrrev_b32 v1, 6, v0")
    A("v_and_b32 v0, 63, v0")
    A("v_readfirstlane_b32 s3, v1")
    A("v_and_b32 v2, 15, v0")
    A("v_lshrrev_b32 v3, 4, v0")
    if hmap == 0:
        A("s_lshr_b32 s4, s2, 5")
        A("s_and_b32 s5, s2, 31")
    else:
        A("s_and_b32 s5, s2, 7"); A("s_lshl_b32 s5, s5, 2"); A("s_bfe_u32 s4, s2, 0x20003"); A("s_add_u32 s5, s5, s4")
        A("s_lshr_b32 s4, s2, 5")
    A("s_lshl_b32 s66, s4, 5"); A("s_add_u32 s66, s66, s5")
    if prof: A("v_mov_b32 v63, 0")
    A("s_cmp_ge_u32 s3, 4"); A("s_cbranch_scc1 L_aux")
    vK, vV = 4, 5
    MASK = 8
    AT = 12
    D = 20
    O = 28
    S = 32
    TM = 48
    BQ = 64
    RING = 128
    assert R * 4 + RING <= 256
    if prio: A(f"s_setprio {prio}")
    A("v_bfe_u32 v6, v2, 1, 1"); A("v_lshlrev_b32 v6, 10, v6")
    A("v_lshrrev_b32 v7, 2, v2"); A("v_lshl_add_u32 v6, v7, 8, v6")
    A("v_and_b32 v7, 1, v2"); A("v_lshl_add_u32 v6, v7, 6, v6")
    A(f"v_lshl_add_u32 v{vK}, v3, 4, v6")
    A(f"v_lshlrev_b32 v{vV}, 4, v0")
    A("s_lshl_b32 s6, s66, 20"); A("s_lshr_b32 s7, s66, 12")
    A(f"s_mul_i32 s42, s3, {C*1024}")
    A("s_waitcnt lgkmcnt(0)")
    A("s_add_u32 s8, s18, s6"); A("s_addc_u32 s9, s19, s7"); A("s_mov_b32 s10, 0x100000"); A("s_mov_b32 s11, 0x20000")
    A("s_add_u32 s12, s20, s6"); A("s_addc_u32 s13, s21, s7"); A("s_mov_b32 s14, 0x100000"); A("s_mov_b32 s15, 0x20000")
    P.stamp()
    cur_page = [None]
    def kv_load(n):
        isv = n >= 256; m = n % 256
        vi, wi = m // C, m % C
        byte = vi * 4 * C * 1024 + (wi // 2) * 2048 + ((wi % 2) * (1024 if isv else 128))
        page, imm = byte // 4096 * 4096, byte % 4096
        if cur_page[0] != page:
            A(f"s_add_u32 s43, s42, {page}"); cur_page[0] = page
        v = RING + (n % R) * 4
        A.issue(("kv", n), f"buffer_load_dwordx4 v[{v}:{v+3}], v{vV if isv else vK}, s[{'12:15' if isv else '8:11'}], s43 offen offset:{imm} {kvpol}")
    def win(n):
        if Ntail is not None and n >= tail_from: return Ntail
        return N
    issued = [0]
    def pace():
        n = issued[0]
        if n >= 512: return False
        w = win(n)
        if n - w >= 0: A.wait(("kv", n - w))
        kv_load(n); issued[0] += 1
        return True
    if nostream:
        A("s_barrier"); A("s_barrier"); A("s_endpgm")
    for _ in range(K0 if bar0 else N): pace()
    A("v_and_b32 v6, 1, v2"); A("v_lshlrev_b32 v6, 4, v6")
    A("v_mov_b32 v7, 0xffff"); A("v_lshlrev_b32 v7, v6, v7")
    A("v_bfe_u32 v6, v2, 1, 2")
    for r in range(4):
        A(f"v_cmp_eq_u32 vcc, {r}, v6"); A.nop(2); A(f"v_cndmask_b32 v{MASK+r}, 0, v7, vcc")
    A("v_lshrrev_b32 v6, 1, v2")
    for t in range(8): A(f"v_cmp_eq_u32 s[{48+2*t}:{49+2*t}], {t}, v6")
    A("v_and_b32 v6, 1, v2"); A("v_cmp_eq_u32 s[64:65], 0, v6")
    A(f"v_lshl_add_u32 v6, v6, 2, v3"); A(f"v_lshlrev_b32 v6, 5, v6")
    if bar0:
        A("s_barrier")
        P.stamp()
    while issued[0] < S0:
        pace()
        if diag == 3: P.stamp()
    P.stamp()
    A("s_barrier")
    P.stamp()
    for a in range(4):
        for half in range(2):
            for q in range(2):
                v = BQ + a * 16 + half * 8 + q * 4
                A(f"ds_read_b128 v[{v}:{v+3}], v6 offset:{L_QP + a*512 + half*256 + q*16}")
    if issued[0] < R: pace()
    A("s_waitcnt lgkmcnt(0)")
    for k in range(16):
        A(f"v_add_f32 v{TM-16+k}, v{BQ+k}, v{BQ+16+k}")
        A(f"v_add_f32 v{BQ+32+k}, v{BQ+32+k}, v{BQ+48+k}")
    if issued[0] < R: pace()
    for k in range(16):
        A(f"v_add_f32 v{S+k}, v{S+k}, v{BQ+32+k}")
    for k in range(8):
        A(f"v_cvt_pk_bf16_f32 v{TM+k}, v{S+2*k}, v{S+2*k+1}")
    if issued[0] < R: pace()
    for t in range(8):
        for k in range(8):
            A(f"v_cndmask_b32 v{BQ+t*8+k}, 0, v{TM+k}, s[{48+2*t}:{49+2*t}]")
        if t % 2 == 1 and issued[0] < R: pace()
    P.stamp()
    deferred = []
    unit = [0]
    def run_deferred(force=False):
        k = 0
        while k < len(deferred):
            if force or deferred[k][0] <= unit[0]:
                deferred.pop(k)[1]()
            else: k += 1
    def merge(t16):
        d = D + (t16 % 2) * 4
        a, b = TM + 8, TM + 9
        A(f"v_cndmask_b32 v{a}, v{d+3}, v{d}, s[64:65]")
        A(f"v_cndmask_b32 v{b}, v{d+1}, v{d+2}, s[64:65]")
        A.nop(2)
        A(f"v_add_f32_dpp v{a}, v{b}, v{a} quad_perm:[1,0,3,2] row_mask:0xf bank_mask:0xf")
        bf16r(A, a, a)
        A(f"v_mul_f32 v{a}, {SCALE:#x}, v{a}")
        bf16r(A, S + t16, a)
    def k_consume(c):
        t16, tt, half = c // 16, (c % 16) // 2, c % 2
        d = D + (t16 % 2) * 4
        v = RING + (c % R) * 4
        A.wait(("kv", c))
        b = BQ + tt * 8 + half * 4
        cs = "0" if c % 16 == 0 else f"v[{d}:{d+3}]"
        A(f"v_mfma_f32_16x16x32_bf16 v[{d}:{d+3}], v[{v}:{v+3}], v[{b}:{b+3}], {cs}")
        if c % 16 == 15: deferred.append((unit[0] + 9, lambda t=t16: merge(t)))
    def pexp(t16):
        a = TM + 10
        A(f"v_sub_f32 v{a}, v{S+t16}, v{TM}")
        A(f"v_mul_f32 v{a}, {LOG2E:#x}, v{a}")
        A(f"v_exp_f32 v{a}, v{a}")
        A.nop(1)
        A(f"v_add_f32 v{TM+1}, v{TM+1}, v{a}")
        A(f"v_cvt_pk_bf16_f32 v{S+t16}, v{a}, v{a}")
    def abuild(c):
        at = AT + (c % 2) * 4
        for r in range(4):
            A(f"v_and_b32_dpp v{at+r}, v{S + c//16}, v{MASK+r} row_newbcast:{c%16} row_mask:0xf bank_mask:0xf")
    def v_consume(c):
        at = AT + (c % 2) * 4
        v = RING + ((256 + c) % R) * 4
        if c + 1 < 256: abuild(c + 1)
        else: A.nop(2)
        A.wait(("kv", 256 + c))
        cs = "0" if c == 0 else f"v[{O}:{O+3}]"
        A(f"v_mfma_f32_16x16x32_bf16 v[{O}:{O+3}], v[{at}:{at+3}], v[{v}:{v+3}], {cs}")
        if c % 16 == 4 and c // 16 + 1 < 16: pexp(c // 16 + 1)
    c = 0
    while c < 256:
        can_issue = issued[0] < 512 and issued[0] - R < c
        if can_issue: pace()
        lag = issued[0] - win(max(issued[0]-1,0)) - c
        k = catch if lag > 1 else 1
        for _ in range(k):
            if c < 256:
                k_consume(c); c += 1
                unit[0] += 1; run_deferred()
    A.nop(8)
    run_deferred(force=True)
    P.stamp()
    def pace_ok():
        if issued[0] < 512 and issued[0] - R < 256: pace()
    A(f"v_max3_f32 v{TM}, v{S}, v{S+1}, v{S+2}")
    for k in range(3, 15, 2): A(f"v_max3_f32 v{TM}, v{TM}, v{S+k}, v{S+k+1}")
    A(f"v_max_f32 v{TM}, v{TM}, v{S+15}")
    pace_ok()
    allreduce(A, "max", TM, TM + 2)
    pace_ok()
    A(f"v_mov_b32 v{TM+1}, 0")
    pexp(0)
    A.nop(2)
    abuild(0)
    P.stamp()
    c = 0
    while c < 256:
        can_issue = issued[0] < 512 and issued[0] - R < 256 + c
        if can_issue: pace()
        lag = issued[0] - win(max(issued[0]-1,0)) - (256 + c)
        k = catch if (lag > 1 or issued[0] >= 512) else 1
        for _ in range(k):
            if c < 256:
                v_consume(c); c += 1
    P.stamp()
    allreduce(A, "add", TM + 1, TM + 2)
    A("v_lshlrev_b32 v6, 5, v2"); A("v_lshl_add_u32 v6, v3, 4, v6")
    A("s_lshl_b32 s44, s3, 9"); A("v_add_u32 v6, s44, v6")
    A("s_lshl_b32 s44, s3, 3"); A("v_mov_b32 v7, s44")
    A(f"v_mov_b32 v{TM+2}, v{TM}"); A(f"v_mov_b32 v{TM+3}, v{TM+1}")
    assert (TM + 2) % 2 == 0
    A("s_mov_b32 exec_hi, 0")
    A(f"ds_write_b128 v6, v[{O}:{O+3}] offset:{L_OP}")
    A("s_mov_b32 exec_lo, 1")
    A(f"ds_write_b64 v7, v[{TM+2}:{TM+3}] offset:{L_ML}")
    A("s_waitcnt lgkmcnt(0)")
    A("s_barrier")
    P.stamp()
    P.flush()
    A("s_endpgm")
    A.vm = []
    P = Prof(A, prof, 63)
    A.label("L_aux")
    SEL = 8
    AT = 16
    DO = 24
    DQ = 44
    X = 48
    F = 53
    T = 4
    PP = 64
    BUF = 96
    A("s_sub_u32 s42, s3, 4")
    A("s_mul_i32 s43, s42, 160"); A("v_mul_u32_u24 v4, 40, v3"); A("v_add_u32 v4, s43, v4")
    A("v_lshlrev_b32 v4, 13, v4"); A("v_lshl_add_u32 v4, v2, 4, v4")
    A("v_lshlrev_b32 v5, 2, v0")
    A("s_mul_i32 s6, s4, 1280"); A("s_lshl_b32 s7, s5, 8")
    A("s_sub_u32 s44, 5242880, s7")
    A("s_waitcnt lgkmcnt(0)")
    srd(A, 8, 16, 17, 6, 1280)
    srd(A, 12, 22, 23, 7, "s44")
    P.stamp()
    for k in range(5):
        A.issue(("x", k), f"buffer_load_dword v{X+k}, v5, s[8:11], 0 offen offset:{k*256}")
    A("s_lshl_b32 s45, s4, 15")
    def wq_load(j):
        v = BUF + 4 * j
        if NQ and j >= NQ: A.wait(("wq", j - NQ))
        A.issue(("wq", j), f"buffer_load_dwordx4 v[{v}:{v+3}], v4, s[12:15], s45 offen {wpol}")
        if j < 39:
            A("s_add_u32 s45, s45, 8192"); A(f"s_cmp_eq_u32 s45, {40*8192}"); A("s_cselect_b32 s45, 0, s45")
    if bar0 == 2: WQ0 = 40
    for j in range(WQ0): wq_load(j)
    if bar0 == 2: A("s_barrier")
    A("v_and_b32 v6, 1, v2")
    A("v_cmp_eq_u32 vcc, 0, v6")
    A("v_mov_b32 v60, 0x01000c0c"); A("v_mov_b32 v61, 0x0c0c0100")
    A("v_cndmask_b32 v60, v60, v61, vcc")
    A("v_mov_b32 v6, 0x03020c0c"); A("v_mov_b32 v61, 0x0c0c0302")
    A("v_cndmask_b32 v61, v6, v61, vcc")
    A("v_bfe_u32 v6, v2, 1, 2"); A("v_mov_b32 v7, 0x0c0c0c0c")
    for r in range(4):
        A(f"v_cmp_eq_u32 vcc, {r}, v6"); A.nop(2)
        A(f"v_cndmask_b32 v{SEL+r}, v7, v60, vcc"); A(f"v_cndmask_b32 v{SEL+4+r}, v7, v61, vcc")
    for k in range(20): A(f"v_mov_b32 v{DO+k}, 0")
    A.wait(("x", 4))
    P.stamp()
    LN = Asm(); layernorm(LN, X, F, (84, 85, 86, 87), X)
    rem = list(range(WQ0, 40)); step = max(1, len(LN.L) // (len(rem) + 1))
    for i, ins in enumerate(LN.L):
        A.L.append(ins)
        if rem and i % step == step - 1: wq_load(rem.pop(0))
    for j in rem: wq_load(j)
    if bar0 == 1: A("s_barrier")
    A("s_mul_i32 s43, s42, 1280")
    A("v_lshlrev_b32 v5, 2, v0"); A("v_add_u32 v5, s43, v5")
    for k in range(5): A(f"ds_write_b32 v5, v{X+k} offset:{L_XN + 256*k}")
    A("s_mul_i32 s43, s42, 1600"); A("v_mul_u32_u24 v5, 80, v3"); A("v_add_u32 v5, s43, v5")
    A("s_lshl_b32 s46, s4, 3")
    A("s_waitcnt lgkmcnt(0)")
    for k in range(10):
        A(f"v_add_u32 v6, s46, v5")
        A(f"ds_read_b64 v[{PP+2*k}:{PP+2*k+1}], v6 offset:{L_XN}")
        A("s_add_u32 s46, s46, 8"); A("s_cmp_eq_u32 s46, 80"); A("s_cselect_b32 s46, 0, s46")
    A("s_waitcnt lgkmcnt(0)")
    P.stamp()
    def abuild_p(preg, par, st):
        at = AT + st * 4
        for r in range(4): A(f"v_perm_b32 v{at+r}, v{preg}, v{preg}, v{SEL + par*4 + r}")
    abuild_p(PP, 0, 0)
    for j in range(40):
        if j + 1 < 40: abuild_p(PP + (j + 1) // 2, (j + 1) % 2, (j + 1) % 2)
        else: A.nop(2)
        A.wait(("wq", j))
        at = AT + (j % 2) * 4; v = BUF + 4 * j
        cs = "0" if j == 0 else f"v[{DQ}:{DQ+3}]"
        A(f"v_mfma_f32_16x16x32_bf16 v[{DQ}:{DQ+3}], v[{at}:{at+3}], v[{v}:{v+3}], {cs}")
    A("v_lshlrev_b32 v6, 5, v2"); A("v_lshl_add_u32 v6, v3, 4, v6")
    A("s_lshl_b32 s43, s42, 9"); A("v_add_u32 v7, s43, v6")
    A.nop(6)
    A("s_mov_b32 exec_hi, 0")
    A(f"ds_write_b128 v7, v[{DQ}:{DQ+3}] offset:{L_QP}")
    A("s_mov_b32 exec_hi, -1")
    A("s_waitcnt lgkmcnt(0)")
    P.stamp()
    A("s_barrier")
    A("s_cmp_lg_u32 s42, 0"); A("s_cbranch_scc1 L_wo")
    A("s_cmp_ge_u32 s5, %d" % (0 if nomlp else 27)); A("s_cbranch_scc1 L_wo")
    layernorm(A, X, F, T, X)
    A("v_lshlrev_b32 v4, 2, v0")
    for k in range(5): A(f"ds_write_b32 v4, v{X+k} offset:{L_Y + 256*k}")
    A("s_lshl_b32 s6, s5, 7")
    A(f"s_sub_u32 s44, {640*3456}, s6")
    srd(A, 8, 28, 29, 6, "s44")
    srd(A, 12, 30, 31, 6, 128)
    A("v_lshlrev_b32 v5, 1, v0")
    A.issue(("b1", 0), f"buffer_load_ushort v{F}, v5, s[12:15], 0 offen")
    A("v_lshrrev_b32 v5, 3, v2"); A("v_lshl_add_u32 v5, v3, 1, v5")
    A("v_mul_u32_u24 v6, 160, v5")
    A(f"s_mov_b32 s45, {80*3456}"); A("v_mul_lo_u32 v5, s45, v5")
    A("v_and_b32 v7, 7, v2"); A("v_lshl_add_u32 v5, v7, 4, v5")
    A("s_waitcnt lgkmcnt(0)")
    PY = BUF
    for k in range(10): A(f"ds_read_b128 v[{PY+4*k}:{PY+4*k+3}], v6 offset:{L_Y + 16*k}")
    RB, RN = BUF + 40, 30
    def w1_load(j):
        v = RB + (j % RN) * 4
        A(f"s_mov_b32 s45, {j*3456}")
        A.issue(("w1", j), f"buffer_load_dwordx4 v[{v}:{v+3}], v5, s[8:11], s45 offen {wpol}")
    for j in range(NW): w1_load(j)
    A("s_waitcnt lgkmcnt(0)")
    abuild_p(PY, 0, 0)
    for j in range(80):
        if j + 1 < 80: abuild_p(PY + (j + 1) // 2, (j + 1) % 2, (j + 1) % 2)
        else: A.nop(2)
        A.wait(("w1", j))
        at = AT + (j % 2) * 4; v = RB + (j % RN) * 4
        cs = "0" if j == 0 else f"v[{DQ}:{DQ+3}]"
        A(f"v_mfma_f32_16x16x32_bf16 v[{DQ}:{DQ+3}], v[{at}:{at+3}], v[{v}:{v+3}], {cs}")
        if j + NW < 80: w1_load(j + NW)
    A("s_mul_i32 s6, s5, 81920")
    A(f"s_sub_u32 s44, {1728*1280}, s6")
    srd(A, 8, 32, 33, 6, "s44")
    A("v_mul_u32_u24 v5, 20480, v3"); A("v_lshl_add_u32 v5, v2, 4, v5")
    def w2_load(n):
        jj, cb = n // 5, n % 5
        v = RB + (n % RN) * 4
        if cb == 0: A(f"s_mov_b32 s45, {jj*1280}")
        A.issue(("w2", n), f"buffer_load_dwordx4 v[{v}:{v+3}], v5, s[8:11], s45 offen offset:{cb*256} {wpol}")
    for n in range(10): w2_load(n)
    A("v_lshrrev_b32 v6, 1, v3"); A("v_lshrrev_b32 v7, 3, v2")
    A("v_cmp_eq_u32 vcc, v6, v7")
    A("v_lshlrev_b32 v6, 8, v6"); A("v_and_b32 v7, 7, v2"); A("v_lshl_add_u32 v6, v7, 5, v6")
    A("v_and_b32 v7, 1, v3"); A("v_lshl_add_u32 v6, v7, 4, v6")
    A("s_and_saveexec_b64 s[46:47], vcc")
    A(f"ds_write_b128 v6, v[{DQ}:{DQ+3}] offset:{L_T}")
    A("s_mov_b64 exec, s[46:47]")
    A("v_lshlrev_b32 v6, 2, v0")
    A("s_waitcnt lgkmcnt(0)")
    A(f"ds_read_b32 v{F+1}, v6 offset:{L_T}"); A(f"ds_read_b32 v{F+2}, v6 offset:{L_T+256}")
    A("s_waitcnt lgkmcnt(0)")
    A(f"v_add_f32 v{F+1}, v{F+1}, v{F+2}")
    bf16r(A, F + 1, F + 1)
    A.wait(("b1", 0))
    A(f"v_lshlrev_b32 v{F}, 16, v{F}")
    A(f"v_add_f32 v{F+1}, v{F+1}, v{F}")
    bf16r(A, F + 1, F + 1)
    x_, u_, e_ = F + 1, F + 2, F + 3
    A(f"v_mul_f32 v{u_}, v{x_}, v{x_}"); A(f"v_mul_f32 v{u_}, v{u_}, v{x_}")
    A(f"v_mov_b32 v{e_}, {f2u(0.044715):#x}"); A(f"v_fma_f32 v{u_}, v{u_}, v{e_}, v{x_}")
    A(f"v_mul_f32 v{u_}, {f2u(-2*0.7978845608028654*1.4426950408889634):#x}, v{u_}")
    A(f"v_exp_f32 v{u_}, v{u_}"); A.nop(1)
    A(f"v_add_f32 v{u_}, 1.0, v{u_}"); A(f"v_rcp_f32 v{u_}, v{u_}"); A.nop(1)
    A(f"v_mul_f32 v{u_}, v{x_}, v{u_}")
    A(f"v_cvt_pk_bf16_f32 v{u_}, v{u_}, v{u_}")
    A("v_lshlrev_b32 v6, 1, v0")
    A(f"ds_write_b16 v6, v{u_} offset:{L_HV}")
    A("v_lshlrev_b32 v6, 5, v3")
    A("s_waitcnt lgkmcnt(0)")
    for k in range(2): A(f"ds_read_b128 v[{PP+4*k}:{PP+4*k+3}], v6 offset:{L_HV + 16*k}")
    A("s_waitcnt lgkmcnt(0)")
    abuild_p(PP, 0, 0)
    nl = 10
    for jj in range(16):
        if jj + 1 < 16: abuild_p(PP + (jj + 1) // 2, (jj + 1) % 2, (jj + 1) % 2)
        else: A.nop(2)
        at = AT + (jj % 2) * 4
        for cb in range(5):
            n = jj * 5 + cb
            A.wait(("w2", n))
            v = RB + (n % RN) * 4; d = DO + 4 * cb
            A(f"v_mfma_f32_16x16x32_bf16 v[{d}:{d+3}], v[{at}:{at+3}], v[{v}:{v+3}], v[{d}:{d+3}]")
            if nl < 80: w2_load(nl); nl += 1
    A.waitall()
    A.label("L_wo")
    A.vm = []
    A("s_mul_i32 s6, s5, 163840")
    srd(A, 8, 24, 25, 6, 163840)
    A("s_lshl_b32 s43, s42, 5"); A("v_lshlrev_b32 v5, 3, v3"); A("v_add_u32 v5, s43, v5")
    A("v_mul_u32_u24 v5, 1280, v5"); A("v_lshl_add_u32 v5, v2, 4, v5")
    for n in range(0 if nowo else 40):
        jj, cb = n // 5, n % 5
        v = BUF + 4 * n
        if cb == 0: A(f"s_mov_b32 s45, {jj*1280}")
        if n >= NA: A.wait(("wo", n - NA))
        A.issue(("wo", n), f"buffer_load_dwordx4 v[{v}:{v+3}], v5, s[8:11], s45 offen offset:{cb*256} {wpol}")
    XB = 60
    XB = 92
    if fused:
        A("s_lshl_b32 s43, s42, 6"); A("v_add_u32 v4, s43, v0"); A("v_lshlrev_b32 v4, 3, v4")
        A("s_mul_i32 s6, s4, 1280")
        srd(A, 12, 16, 17, 6, 1280)
        A.issue(("xf", 0), f"buffer_load_dwordx2 v[{XB}:{XB+1}], v4, s[12:15], 0 offen")
        srd(A, 68, 34, 35, None, 1280)
        A.issue(("xf", 1), f"buffer_load_dwordx2 v[{XB+2}:{XB+3}], v4, s[68:71], 0 offen")
    A("v_lshlrev_b32 v4, 5, v3"); A("s_lshl_b32 s43, s42, 7"); A("v_add_u32 v4, s43, v4")
    A("v_mov_b32 v5, 0")
    A.waitall()
    P.stamp()
    A("s_barrier")
    P.stamp()
    ML = PP
    OV = PP + 8
    A(f"ds_read_b128 v[{ML}:{ML+3}], v5 offset:{L_ML}"); A(f"ds_read_b128 v[{ML+4}:{ML+7}], v5 offset:{L_ML+16}")
    OVR = [72, 80, 48, 16]
    for w in range(4):
        for q in range(2):
            v = OVR[w] + 4 * q
            A(f"ds_read_b128 v[{v}:{v+3}], v4 offset:{L_OP + w*512 + q*16}")
    A("s_waitcnt lgkmcnt(8)")
    A(f"v_max3_f32 v6, v{ML}, v{ML+2}, v{ML+4}"); A(f"v_max_f32 v6, v6, v{ML+6}")
    for w in range(4):
        A(f"v_sub_f32 v{ML+2*w}, v{ML+2*w}, v6"); A(f"v_mul_f32 v{ML+2*w}, {LOG2E:#x}, v{ML+2*w}"); A(f"v_exp_f32 v{ML+2*w}, v{ML+2*w}")
    A.nop(1)
    A(f"v_mul_f32 v7, v{ML}, v{ML+1}")
    for w in range(1, 4): A(f"v_fmac_f32 v7, v{ML+2*w}, v{ML+2*w+1}")
    A("v_rcp_f32 v7, v7"); A.nop(1)
    A("s_waitcnt lgkmcnt(0)")
    for k in range(8):
        A(f"v_mul_f32 v{OVR[0]+k}, v{OVR[0]+k}, v{ML}")
        for w in range(1, 4): A(f"v_fmac_f32 v{OVR[0]+k}, v{OVR[w]+k}, v{ML+2*w}")
        A(f"v_mul_f32 v{OVR[0]+k}, v{OVR[0]+k}, v7")
    PO = 56
    for k in range(4): A(f"v_cvt_pk_bf16_f32 v{PO+k}, v{OVR[0]+2*k}, v{OVR[0]+2*k+1}")
    abuild_p(PO, 0, 0)
    for jj in range(8):
        if jj + 1 < 8: abuild_p(PO + (jj + 1) // 2, (jj + 1) % 2, (jj + 1) % 2)
        else: A.nop(2)
        at = AT + (jj % 2) * 4
        if jj == 0: A.nop(2)
        for cb in range(5):
            v = BUF + 4 * (jj * 5 + cb); d = DO + 4 * cb
            A(f"v_mfma_f32_16x16x32_bf16 v[{d}:{d+3}], v[{at}:{at+3}], v[{v}:{v+3}], v[{d}:{d+3}]")
    A("v_lshlrev_b32 v6, 5, v2"); A("v_lshl_add_u32 v6, v3, 4, v6")
    A("s_mul_i32 s43, s42, 2560"); A("v_add_u32 v6, s43, v6")
    A.nop(4)
    A("s_mov_b32 exec_hi, 0")
    for cb in range(5):
        A(f"ds_write_b128 v6, v[{DO+4*cb}:{DO+4*cb+3}] offset:{L_OUTP + cb*512}")
    A("s_mov_b32 exec_hi, -1")
    A("s_waitcnt lgkmcnt(0)")
    P.stamp()
    A("s_barrier")
    if not fused:
        A("s_lshl_b32 s43, s42, 6"); A("v_add_u32 v4, s43, v0")
        A("v_cmp_gt_u32 vcc, 160, v4")
        A("v_lshlrev_b32 v4, 4, v4")
        A("s_and_saveexec_b64 s[46:47], vcc")
        A("s_cbranch_execz L_aux_done")
        for w in range(4): A(f"ds_read_b128 v[{72+4*w}:{75+4*w}], v4 offset:{L_OUTP + w*2560}")
        A("s_mul_i32 s6, s66, 2560")
        srd(A, 8, 40, 41, 6, 2560)
        A("s_waitcnt lgkmcnt(0)")
        for k in range(4):
            A(f"v_add_f32 v{72+k}, v{72+k}, v{76+k}"); A(f"v_add_f32 v{80+k}, v{80+k}, v{84+k}"); A(f"v_add_f32 v{72+k}, v{72+k}, v{80+k}")
        A("buffer_store_dwordx4 v[72:75], v4, s[8:11], 0 offen")
    else:
        A("v_lshlrev_b32 v4, 4, v0")
        A("s_cmp_lg_u32 s42, 0"); A("s_cbranch_scc1 L_wait_flag")
        for i in range(3):
            for w in range(4):
                v = BUF + 16 * i + 4 * w
                A(f"ds_read_b128 v[{v}:{v+3}], v4 offset:{L_OUTP + w*2560 + i*1024}")
        A("s_mul_i32 s6, s66, 2560")
        srd(A, 8, 40, 41, 6, 2560)
        for i in range(3):
            A(f"s_waitcnt lgkmcnt({8-4*i})")
            v = BUF + 16 * i
            for k in range(4):
                A(f"v_add_f32 v{v+k}, v{v+k}, v{v+4+k}"); A(f"v_add_f32 v{v+8+k}, v{v+8+k}, v{v+12+k}"); A(f"v_add_f32 v{v+k}, v{v+k}, v{v+8+k}")
            A(f"buffer_store_dwordx4 v[{v}:{v+3}], v4, s[8:11], 0 offen offset:{i*1024} sc1")
        A("s_lshl_b32 s6, s4, 5")
        A("v_mov_b32 v6, s6"); A("v_mov_b32 v7, 1")
        A("s_waitcnt vmcnt(0)")
        P.stamp()
        A("s_mov_b64 s[46:47], exec"); A("s_mov_b64 exec, 1")
        A("global_atomic_add v5, v6, v7, s[38:39] sc0")
        A("s_waitcnt vmcnt(0)")
        A("v_mov_b32 v6, 0")
        A(f"ds_write_b32 v6, v5 offset:{L_FLAG}")
        A("s_mov_b64 exec, s[46:47]")
        A("s_waitcnt lgkmcnt(0)")
        A.label("L_wait_flag")
        P.stamp()
        A("s_barrier")
        A("v_mov_b32 v6, 0")
        A(f"ds_read_b32 v5, v6 offset:{L_FLAG}")
        A("s_waitcnt lgkmcnt(0)")
        A("v_readfirstlane_b32 s43, v5")
        A("s_cmp_lg_u32 s43, 31"); A("s_cbranch_scc1 L_aux_done")
        A("s_mul_i32 s6, s4, 81920"); A("s_mul_i32 s43, s42, 20480"); A("s_add_u32 s6, s6, s43")
        srd(A, 8, 40, 41, 6, 20480)
        for i in range(3):
            for sl in range(8):
                v = BUF + (i * 8 + sl) * 4
                if i == 2:
                    if sl == 0: A("s_mov_b32 exec_hi, 0")
                A(f"s_mov_b32 s45, {sl*2560}")
                A.issue(("g", i, sl), f"buffer_load_dwordx4 v[{v}:{v+3}], v4, s[8:11], s45 offen offset:{i*1024} sc1")
        A("s_mov_b32 exec_hi, -1")
        A("s_mul_i32 s43, s42, 2560"); A("v_add_u32 v6, s43, v4")
        for i in range(3):
            A.wait(("g", i, 7))
            v = BUF + i * 32
            for k in range(4):
                A(f"v_add_f32 v{v+k}, v{v+k}, v{v+4+k}"); A(f"v_add_f32 v{v+8+k}, v{v+8+k}, v{v+12+k}")
                A(f"v_add_f32 v{v+16+k}, v{v+16+k}, v{v+20+k}"); A(f"v_add_f32 v{v+24+k}, v{v+24+k}, v{v+28+k}")
                A(f"v_add_f32 v{v+k}, v{v+k}, v{v+8+k}"); A(f"v_add_f32 v{v+16+k}, v{v+16+k}, v{v+24+k}")
                A(f"v_add_f32 v{v+k}, v{v+k}, v{v+16+k}")
            if i == 2: A("s_mov_b32 exec_hi, 0")
            A(f"ds_write_b128 v6, v[{v}:{v+3}] offset:{L_OUTP + i*1024}")
        A("s_mov_b32 exec_hi, -1")
        A("s_waitcnt lgkmcnt(0)")
        P.stamp()
        A("s_barrier")
        A("s_lshl_b32 s43, s42, 6"); A("v_add_u32 v4, s43, v0")
        A("v_cmp_gt_u32 vcc, 160, v4")
        A("v_lshlrev_b32 v5, 3, v4")
        A("v_lshlrev_b32 v4, 4, v4")
        A("s_and_saveexec_b64 s[46:47], vcc")
        A("s_cbranch_execz L_aux_done")
        for w in range(4): A(f"ds_read_b128 v[{72+4*w}:{75+4*w}], v4 offset:{L_OUTP + w*2560}")
        A("s_mul_i32 s6, s4, 1280")
        srd(A, 8, 36, 37, 6, 1280)
        A("s_waitcnt lgkmcnt(0)")
        for k in range(4):
            A(f"v_add_f32 v{72+k}, v{72+k}, v{76+k}"); A(f"v_add_f32 v{80+k}, v{80+k}, v{84+k}"); A(f"v_add_f32 v{72+k}, v{72+k}, v{80+k}")
        for k in range(2):
            A(f"v_lshlrev_b32 v76, 16, v{XB+2+k}"); A(f"v_and_b32 v77, 0xffff0000, v{XB+2+k}")
            A(f"v_add_f32 v{72+2*k}, v{72+2*k}, v76"); A(f"v_add_f32 v{73+2*k}, v{73+2*k}, v77")
            A(f"v_lshlrev_b32 v76, 16, v{XB+k}"); A(f"v_and_b32 v77, 0xffff0000, v{XB+k}")
            A(f"v_add_f32 v{72+2*k}, v{72+2*k}, v76"); A(f"v_add_f32 v{73+2*k}, v{73+2*k}, v77")
        A("v_cvt_pk_bf16_f32 v72, v72, v73"); A("v_cvt_pk_bf16_f32 v73, v74, v75")
        A("buffer_store_dwordx2 v[72:73], v5, s[8:11], 0 offen")
    A.label("L_aux_done")
    P.stamp()
    P.flush()
    A.label("L_end")
    A("s_endpgm")
    out += A.L
    kernels = [(kname, 256, 102)]
    if not fused:
        B = Asm()
        out.append(".globl reduce_kernel"); out.append(".p2align 8"); out.append(".type reduce_kernel,@function")
        B.label("reduce_kernel")
        B("s_cmp_ge_u32 s2, 160"); B("s_cbranch_scc1 R_end")
        B("s_load_dwordx2 s[4:5], s[0:1], 0")
        B("s_load_dwordx4 s[8:11], s[0:1], 72")
        B("s_load_dwordx2 s[6:7], s[0:1], 96")
        B("s_mul_hi_u32 s12, s2, 0xccccccd")
        B("s_mul_i32 s13, s12, 20"); B("s_sub_u32 s13, s2, s13")
        B("v_and_b32 v1, 7, v0"); B("v_lshrrev_b32 v2, 3, v0")
        B("v_mul_u32_u24 v3, 10240, v2"); B("v_lshl_add_u32 v3, v1, 4, v3")
        B("s_lshl_b32 s14, s13, 7"); B("v_add_u32 v3, s14, v3")
        B("s_mul_i32 s15, s12, 81920")
        B("s_waitcnt lgkmcnt(0)")
        B("s_add_u32 s16, s6, s15"); B("s_addc_u32 s17, s7, 0"); B("s_mov_b32 s18, 81920"); B("s_mov_b32 s19, 0x20000")
        B("s_mov_b32 s20, 2560"); B("s_mov_b32 s21, 5120"); B("s_mov_b32 s22, 7680")
        B("buffer_load_dwordx4 v[4:7], v3, s[16:19], 0 offen")
        B("buffer_load_dwordx4 v[8:11], v3, s[16:19], s20 offen")
        B("buffer_load_dwordx4 v[12:15], v3, s[16:19], s21 offen")
        B("buffer_load_dwordx4 v[16:19], v3, s[16:19], s22 offen")
        B("s_mul_i32 s15, s12, 1280"); B("s_lshl_b32 s14, s13, 6")
        B("v_lshlrev_b32 v20, 3, v1"); B("v_add_u32 v20, s14, v20")
        B("s_add_u32 s24, s4, s15"); B("s_addc_u32 s25, s5, 0"); B("s_mov_b32 s26, 1280"); B("s_mov_b32 s27, 0x20000")
        B("s_mov_b32 s28, s8"); B("s_mov_b32 s29, s9"); B("s_mov_b32 s30, 1280"); B("s_mov_b32 s31, 0x20000")
        B("s_add_u32 s32, s10, s15"); B("s_addc_u32 s33, s11, 0"); B("s_mov_b32 s34, 1280"); B("s_mov_b32 s35, 0x20000")
        B("buffer_load_dwordx2 v[22:23], v20, s[24:27], 0 offen")
        B("buffer_load_dwordx2 v[24:25], v20, s[28:31], 0 offen")
        B("s_waitcnt vmcnt(2)")
        for k in range(4):
            B(f"v_add_f32 v{4+k}, v{4+k}, v{8+k}"); B(f"v_add_f32 v{12+k}, v{12+k}, v{16+k}"); B(f"v_add_f32 v{4+k}, v{4+k}, v{12+k}")
        B.nop(2)
        for k in range(4): B(f"v_add_f32_dpp v{4+k}, v{4+k}, v{4+k} row_ror:8 row_mask:0xf bank_mask:0xf")
        for sw in ("v_permlane16_swap_b32", "v_permlane32_swap_b32"):
            for k in range(4): B(f"v_mov_b32 v{8+k}, v{4+k}")
            B.nop(2)
            for k in range(4): B(f"{sw} v{4+k}, v{8+k}")
            B.nop(1)
            for k in range(4): B(f"v_add_f32 v{4+k}, v{4+k}, v{8+k}")
        B("s_waitcnt vmcnt(0)")
        for k in range(2):
            B(f"v_lshlrev_b32 v8, 16, v{22+k}"); B(f"v_and_b32 v9, 0xffff0000, v{22+k}")
            B(f"v_lshlrev_b32 v10, 16, v{24+k}"); B(f"v_and_b32 v11, 0xffff0000, v{24+k}")
            B(f"v_add_f32 v{4+2*k}, v{4+2*k}, v10"); B(f"v_add_f32 v{5+2*k}, v{5+2*k}, v11")
            B(f"v_add_f32 v{4+2*k}, v{4+2*k}, v8"); B(f"v_add_f32 v{5+2*k}, v{5+2*k}, v9")
        B("v_cvt_pk_bf16_f32 v4, v4, v5"); B("v_cvt_pk_bf16_f32 v5, v6, v7")
        B("v_cmp_gt_u32 vcc, 8, v0"); B("s_and_saveexec_b64 s[36:37], vcc")
        B("buffer_store_dwordx2 v[4:5], v20, s[32:35], 0 offen")
        B.label("R_end"); B("s_endpgm")
        out += B.L
        kernels.append(("reduce_kernel", 32, 48))
    out.append('.section .rodata,"a"')
    for kn, nv, ns in kernels:
        out += [".p2align 6", f".amdhsa_kernel {kn}", f"  .amdhsa_next_free_vgpr {nv}", f"  .amdhsa_next_free_sgpr {ns}",
                f"  .amdhsa_accum_offset {nv}", "  .amdhsa_group_segment_fixed_size 0", "  .amdhsa_kernarg_size 104",
                "  .amdhsa_user_sgpr_count 2", "  .amdhsa_user_sgpr_kernarg_segment_ptr 1", "  .amdhsa_system_sgpr_workgroup_id_x 1",
                "  .amdhsa_float_denorm_mode_32 3", ".end_amdhsa_kernel"]
    return "\n".join(out) + "\n"

if __name__ == "__main__":
    kw = eval("dict(" + (sys.argv[2] if len(sys.argv) > 2 else "") + ")")
    open(sys.argv[1], "w").write(gen(**kw))
```

```python
import struct, sys

NAME = "parallel_sum__gqa_block_cached__mixer_channel_mlp__decode"
HEADER = open("cdna_kernels/" + NAME + ".s.ref").read().split("; Override launch geometry")[0]

def f2u(x): return struct.unpack("<I", struct.pack("<f", x))[0]
SCALE = f2u(128 ** -0.5)
LOG2E = f2u(1.4426950408889634)
INV640 = f2u(1.0 / 640)
EPS = f2u(1e-5)

L_XN = 0
L_Y = 5120
L_QP = 6400
L_T = 8448
L_HV = 8960
L_OP = 9216
L_ML = 11264
L_OUTP = 11520
L_FLAG = 21760
L_PROG = 22528
L_MODE = 22544
LDS_BYTES = 22784

class Asm:
    def __init__(self):
        self.L = []
        self.vm = []
        self.landed = set()
        self.nlabel = 0
    def __call__(self, s): self.L.append("    " + s)
    def label(self, s): self.L.append(s + ":")
    def c(self, s): self.L.append("    ; " + s)
    def issue(self, tag, ins):
        self(ins); self.vm.append(tag)
        assert len(self.vm) <= 63, "too many outstanding vmem ops"
    def wait(self, tag):
        if tag not in self.vm: return
        i = self.vm.index(tag)
        n = len(self.vm) - 1 - i
        self(f"s_waitcnt vmcnt({n})")
        self.vm = self.vm[i + 1:]
    def waitall(self):
        if self.vm: self("s_waitcnt vmcnt(0)")
        self.vm = []
    def nop(self, n):
        while n > 0:
            k = min(n, 16); self(f"s_nop {k-1}"); n -= k

def allreduce(A, op, t, u):
    for ror in (8, 4, 2, 1):
        A.nop(2)
        A(f"v_{op}_f32_dpp v{t}, v{t}, v{t} row_ror:{ror} row_mask:0xf bank_mask:0xf")
    for sw in ("v_permlane16_swap_b32", "v_permlane32_swap_b32"):
        A(f"v_mov_b32 v{u}, v{t}")
        A.nop(2)
        A(f"{sw} v{t}, v{u}")
        A.nop(1)
        A(f"v_{op}_f32 v{t}, v{t}, v{u}")

def bf16r(A, d, s):
    A(f"v_cvt_pk_bf16_f32 v{d}, v{s}, v{s}")
    A(f"v_and_b32 v{d}, 0xffff0000, v{d}")

def layernorm(A, X, F, T, OUT):
    if isinstance(T, int): T = (T, T+1, T+2, T+3)
    for k in range(5):
        A(f"v_lshlrev_b32 v{F+2*k}, 16, v{X+k}")
        A(f"v_and_b32 v{F+2*k+1}, 0xffff0000, v{X+k}")
    t, u, m, r = T
    A(f"v_add_f32 v{t}, v{F}, v{F+1}")
    for k in range(2, 10): A(f"v_add_f32 v{t}, v{t}, v{F+k}")
    allreduce(A, "add", t, u)
    A(f"v_mul_f32 v{m}, {INV640:#x}, v{t}")
    A(f"v_sub_f32 v{u}, v{F}, v{m}")
    A(f"v_mul_f32 v{t}, v{u}, v{u}")
    for k in range(1, 10):
        A(f"v_sub_f32 v{u}, v{F+k}, v{m}")
        A(f"v_fmac_f32 v{t}, v{u}, v{u}")
    allreduce(A, "add", t, u)
    A(f"v_mul_f32 v{t}, {INV640:#x}, v{t}")
    bf16r(A, t, t)
    A(f"v_add_f32 v{t}, {EPS:#x}, v{t}")
    bf16r(A, t, t)
    A(f"v_sqrt_f32 v{t}, v{t}")
    A.nop(1)
    bf16r(A, t, t)
    A(f"v_rcp_f32 v{r}, v{t}")
    bf16r(A, m, m)
    for k in range(5):
        A(f"v_sub_f32 v{F+2*k}, v{F+2*k}, v{m}")
        A(f"v_sub_f32 v{F+2*k+1}, v{F+2*k+1}, v{m}")
        A(f"v_cvt_pk_bf16_f32 v{u}, v{F+2*k}, v{F+2*k+1}")
        A(f"v_lshlrev_b32 v{F+2*k}, 16, v{u}")
        A(f"v_and_b32 v{F+2*k+1}, 0xffff0000, v{u}")
        A(f"v_mul_f32 v{F+2*k}, v{F+2*k}, v{r}")
        A(f"v_mul_f32 v{F+2*k+1}, v{F+2*k+1}, v{r}")
        A(f"v_cvt_pk_bf16_f32 v{OUT+k}, v{F+2*k}, v{F+2*k+1}")

def srd(A, d, lo, hi, off_s, size):
    if off_s is None:
        A(f"s_mov_b32 s{d}, s{lo}"); A(f"s_mov_b32 s{d+1}, s{hi}")
    else:
        A(f"s_add_u32 s{d}, s{lo}, s{off_s}"); A(f"s_addc_u32 s{d+1}, s{hi}, 0")
    A(f"s_mov_b32 s{d+2}, {size}")
    A(f"s_mov_b32 s{d+3}, 0x20000")

class Prof:
    def __init__(self, A, on, reg): self.A, self.on, self.reg, self.n = A, on, reg, 0
    def stamp(self):
        if not self.on: return
        A = self.A
        A("s_memrealtime s[92:93]"); A("s_waitcnt lgkmcnt(0)")
        A(f"v_writelane_b32 v{self.reg}, s92, {self.n}"); self.n += 1
    def flush(self):
        if not self.on: return
        A = self.A
        A("s_mov_b64 exec, -1")
        A("s_lshl_b32 s94, s2, 3"); A("s_add_u32 s94, s94, s3"); A("s_lshl_b32 s94, s94, 8"); A("s_add_u32 s94, s94, 0x2000000")
        A(f"v_lshlrev_b32 v1, 2, v0"); A("v_add_u32 v1, s94, v1")
        A(f"global_store_dword v1, v{self.reg}, s[40:41]")

def gen(N=5, C=8, S0=24, R=32, catch=2, Ntail=None, tail_from=None, NA=4, wpol="", kvpol="nt", prof=0, fused=0, prio=1, hmap=1, nomlp=0, nowo=0, NW=8, diag=0, nostream=0, WQ0=16, NQ=0, bar0=0, K0=5, dyn=0, NH=8, dyn_from=32, CK0=4, CKS=4, TH=(128,192,232), BO=(1,2,3), CKEXIT=30, sleep=3, even_boost=(16,20), T2=720, TK=226, TV=217, MARG=0):
    A = Asm()
    P = Prof(A, prof, 63)
    kname = NAME + "_kernel"
    out = []
    out.append(HEADER.rstrip("\n"))
    if fused:
        out.append(f"; @launch grid=(256,1,1) block=(512,1,1) lds={LDS_BYTES}")
    else:
        out.append(f"; @launch kernel={kname} grid=(256,1,1) block=(512,1,1) lds={LDS_BYTES}")
        out.append(f"; @launch kernel=reduce_kernel grid=(160,1,1) block=(64,1,1) lds=0")
    out.append('.amdgcn_target "amdgcn-amd-amdhsa--gfx950"')
    out.append(".text"); out.append(f".globl {kname}"); out.append(".p2align 8"); out.append(f".type {kname},@function")
    A.label(kname)
    A("s_cmp_ge_u32 s2, 256"); A("s_cbranch_scc1 L_end")
    A("s_load_dwordx16 s[16:31], s[0:1], 0")
    A("s_load_dwordx8 s[32:39], s[0:1], 64")
    A("s_load_dwordx2 s[40:41], s[0:1], 96")
    A("v_lshrrev_b32 v1, 6, v0")
    A("v_and_b32 v0, 63, v0")
    A("v_readfirstlane_b32 s3, v1")
    A("v_and_b32 v2, 15, v0")
    A("v_lshrrev_b32 v3, 4, v0")
    if hmap == 0:
        A("s_lshr_b32 s4, s2, 5")
        A("s_and_b32 s5, s2, 31")
    else:
        A("s_and_b32 s5, s2, 7"); A("s_lshl_b32 s5, s5, 2"); A("s_bfe_u32 s4, s2, 0x20003"); A("s_add_u32 s5, s5, s4")
        A("s_lshr_b32 s4, s2, 5")
    A("s_lshl_b32 s66, s4, 5"); A("s_add_u32 s66, s66, s5")
    if prof: A("v_mov_b32 v63, 0")
    A("s_cmp_ge_u32 s3, 4"); A("s_cbranch_scc1 L_aux")
    vK, vV = 4, 5
    MASK = 8
    AT = 12
    D = 20
    O = 28
    S = 32
    TM = 48
    BQ = 64
    RING = 128
    assert R * 4 + RING <= 256
    if prio: A(f"s_setprio {prio}")
    A("v_bfe_u32 v6, v2, 1, 1"); A("v_lshlrev_b32 v6, 10, v6")
    A("v_lshrrev_b32 v7, 2, v2"); A("v_lshl_add_u32 v6, v7, 8, v6")
    A("v_and_b32 v7, 1, v2"); A("v_lshl_add_u32 v6, v7, 6, v6")
    A(f"v_lshl_add_u32 v{vK}, v3, 4, v6")
    A(f"v_lshlrev_b32 v{vV}, 4, v0")
    A("s_lshl_b32 s6, s66, 20"); A("s_lshr_b32 s7, s66, 12")
    A(f"s_mul_i32 s42, s3, {C*1024}")
    A("s_waitcnt lgkmcnt(0)")
    A("s_add_u32 s8, s18, s6"); A("s_addc_u32 s9, s19, s7"); A("s_mov_b32 s10, 0x100000"); A("s_mov_b32 s11, 0x20000")
    A("s_add_u32 s12, s20, s6"); A("s_addc_u32 s13, s21, s7"); A("s_mov_b32 s14, 0x100000"); A("s_mov_b32 s15, 0x20000")
    P.stamp()
    if dyn == 4: A("s_memrealtime s[70:71]")
    cur_page = [None]
    def kv_load(n):
        isv = n >= 256; m = n % 256
        vi, wi = m // C, m % C
        byte = vi * 4 * C * 1024 + (wi // 2) * 2048 + ((wi % 2) * (1024 if isv else 128))
        page, imm = byte // 4096 * 4096, byte % 4096
        if cur_page[0] != page:
            A(f"s_add_u32 s43, s42, {page}"); cur_page[0] = page
        v = RING + (n % R) * 4
        A.issue(("kv", n), f"buffer_load_dwordx4 v[{v}:{v+3}], v{vV if isv else vK}, s[{'12:15' if isv else '8:11'}], s43 offen offset:{imm} {kvpol}")
    def win(n):
        if dyn and n >= dyn_from: return NH
        if Ntail is not None and n >= tail_from: return Ntail
        return N
    issued = [0]
    def pace():
        n = issued[0]
        if n >= 512: return False
        w = win(n)
        if dyn and n >= dyn_from:
            lab = f"Lw{n}"
            A(f"s_cbranch_vccnz {lab}"); A(f"s_waitcnt vmcnt({N-1})"); A.label(lab)
            A.wait(("kv", n - NH))
        elif n - w >= 0: A.wait(("kv", n - w))
        kv_load(n); issued[0] += 1
        return True
    if nostream:
        A("s_barrier"); A("s_barrier"); A("s_endpgm")
    for _ in range(K0 if bar0 else N): pace()
    A("v_and_b32 v6, 1, v2"); A("v_lshlrev_b32 v6, 4, v6")
    A("v_mov_b32 v7, 0xffff"); A("v_lshlrev_b32 v7, v6, v7")
    A("v_bfe_u32 v6, v2, 1, 2")
    for r in range(4):
        A(f"v_cmp_eq_u32 vcc, {r}, v6"); A.nop(2); A(f"v_cndmask_b32 v{MASK+r}, 0, v7, vcc")
    A("v_lshrrev_b32 v6, 1, v2")
    for t in range(8): A(f"v_cmp_eq_u32 s[{48+2*t}:{49+2*t}], {t}, v6")
    A("v_and_b32 v6, 1, v2"); A("v_cmp_eq_u32 s[64:65], 0, v6")
    A(f"v_lshl_add_u32 v6, v6, 2, v3"); A(f"v_lshlrev_b32 v6, 5, v6")
    if bar0:
        A("s_barrier")
        P.stamp()
    while issued[0] < S0:
        pace()
        if diag == 3: P.stamp()
    P.stamp()
    A("s_barrier")
    P.stamp()
    for a in range(4):
        for half in range(2):
            for q in range(2):
                v = BQ + a * 16 + half * 8 + q * 4
                A(f"ds_read_b128 v[{v}:{v+3}], v6 offset:{L_QP + a*512 + half*256 + q*16}")
    if issued[0] < R: pace()
    A("s_waitcnt lgkmcnt(0)")
    for k in range(16):
        A(f"v_add_f32 v{TM-16+k}, v{BQ+k}, v{BQ+16+k}")
        A(f"v_add_f32 v{BQ+32+k}, v{BQ+32+k}, v{BQ+48+k}")
    if issued[0] < R: pace()
    for k in range(16):
        A(f"v_add_f32 v{S+k}, v{S+k}, v{BQ+32+k}")
    for k in range(8):
        A(f"v_cvt_pk_bf16_f32 v{TM+k}, v{S+2*k}, v{S+2*k+1}")
    if issued[0] < R: pace()
    for t in range(8):
        for k in range(8):
            A(f"v_cndmask_b32 v{BQ+t*8+k}, 0, v{TM+k}, s[{48+2*t}:{49+2*t}]")
        if t % 2 == 1 and issued[0] < R: pace()
    P.stamp()
    if dyn:
        A("s_mov_b64 vcc, 0")
        A("s_lshl_b32 s67, s3, 2"); A(f"v_mov_b32 v{TM+12}, s67"); A(f"v_mov_b32 v{TM+14}, 0")
    deferred = []
    unit = [0]
    def run_deferred(force=False):
        k = 0
        while k < len(deferred):
            if force or deferred[k][0] <= unit[0]:
                deferred.pop(k)[1]()
            else: k += 1
    def merge(t16):
        d = D + (t16 % 2) * 4
        a, b = TM + 8, TM + 9
        A(f"v_cndmask_b32 v{a}, v{d+3}, v{d}, s[64:65]")
        A(f"v_cndmask_b32 v{b}, v{d+1}, v{d+2}, s[64:65]")
        A.nop(2)
        A(f"v_add_f32_dpp v{a}, v{b}, v{a} quad_perm:[1,0,3,2] row_mask:0xf bank_mask:0xf")
        bf16r(A, a, a)
        A(f"v_mul_f32 v{a}, {SCALE:#x}, v{a}")
        bf16r(A, S + t16, a)
    def hooks(step, cc):
        if not dyn: return
        if dyn == 4:
            if cc == 2: A("s_memrealtime s[68:69]")
            if cc == 6 and step >= 2:
                tref = T2 + (min(step, 16) - 2) * TK + max(step - 16, 0) * TV + MARG
                A("s_waitcnt lgkmcnt(0)"); A("s_sub_u32 s68, s68, s70")
                A(f"s_cmp_gt_u32 s68, {tref}"); A("s_cselect_b64 vcc, -1, 0")
            return
        if cc == 2:
            A(f"v_mov_b32 v{TM+11}, {step}")
            A(f"ds_write_b32 v{TM+12}, v{TM+11} offset:{L_PROG}")
            if dyn == 3: A(f"ds_read_b32 v{TM+13}, v{TM+14} offset:{L_MODE}")
        if cc == 6:
            if dyn == 3:
                A("s_waitcnt lgkmcnt(0)"); A(f"v_readfirstlane_b32 s67, v{TM+13}")
                A("s_cmp_lg_u32 s67, 0"); A("s_cselect_b64 vcc, -1, 0")
            elif dyn == 2:
                if step == even_boost[0]: A("s_bitcmp0_b32 s2, 0"); A("s_cselect_b64 vcc, -1, 0")
                if step == even_boost[1]: A("s_mov_b64 vcc, 0")
    def k_consume(c):
        hooks(c // 16, c % 16)
        if diag == 4 and c % 32 == 0 and c: P.stamp()
        t16, tt, half = c // 16, (c % 16) // 2, c % 2
        d = D + (t16 % 2) * 4
        v = RING + (c % R) * 4
        A.wait(("kv", c))
        b = BQ + tt * 8 + half * 4
        cs = "0" if c % 16 == 0 else f"v[{d}:{d+3}]"
        A(f"v_mfma_f32_16x16x32_bf16 v[{d}:{d+3}], v[{v}:{v+3}], v[{b}:{b+3}], {cs}")
        if c % 16 == 15: deferred.append((unit[0] + 9, lambda t=t16: merge(t)))
    def pexp(t16):
        a = TM + 10
        A(f"v_sub_f32 v{a}, v{S+t16}, v{TM}")
        A(f"v_mul_f32 v{a}, {LOG2E:#x}, v{a}")
        A(f"v_exp_f32 v{a}, v{a}")
        A.nop(1)
        A(f"v_add_f32 v{TM+1}, v{TM+1}, v{a}")
        A(f"v_cvt_pk_bf16_f32 v{S+t16}, v{a}, v{a}")
    def abuild(c):
        at = AT + (c % 2) * 4
        for r in range(4):
            A(f"v_and_b32_dpp v{at+r}, v{S + c//16}, v{MASK+r} row_newbcast:{c%16} row_mask:0xf bank_mask:0xf")
    def v_consume(c):
        hooks(16 + c // 16, c % 16)
        if diag == 4 and c % 64 == 0 and c: P.stamp()
        at = AT + (c % 2) * 4
        v = RING + ((256 + c) % R) * 4
        if c + 1 < 256: abuild(c + 1)
        else: A.nop(2)
        A.wait(("kv", 256 + c))
        cs = "0" if c == 0 else f"v[{O}:{O+3}]"
        A(f"v_mfma_f32_16x16x32_bf16 v[{O}:{O+3}], v[{at}:{at+3}], v[{v}:{v+3}], {cs}")
        if c % 16 == 4 and c // 16 + 1 < 16: pexp(c // 16 + 1)
    c = 0
    while c < 256:
        can_issue = issued[0] < 512 and issued[0] - R < c
        if can_issue: pace()
        lag = issued[0] - win(max(issued[0]-1,0)) - c
        k = catch if lag > 1 else 1
        for _ in range(k):
            if c < 256:
                k_consume(c); c += 1
                unit[0] += 1; run_deferred()
    A.nop(8)
    run_deferred(force=True)
    P.stamp()
    def pace_ok():
        if issued[0] < 512 and issued[0] - R < 256: pace()
    A(f"v_max3_f32 v{TM}, v{S}, v{S+1}, v{S+2}")
    for k in range(3, 15, 2): A(f"v_max3_f32 v{TM}, v{TM}, v{S+k}, v{S+k+1}")
    A(f"v_max_f32 v{TM}, v{TM}, v{S+15}")
    pace_ok()
    allreduce(A, "max", TM, TM + 2)
    pace_ok()
    A(f"v_mov_b32 v{TM+1}, 0")
    pexp(0)
    A.nop(2)
    abuild(0)
    P.stamp()
    c = 0
    while c < 256:
        can_issue = issued[0] < 512 and issued[0] - R < 256 + c
        if can_issue: pace()
        lag = issued[0] - win(max(issued[0]-1,0)) - (256 + c)
        k = catch if (lag > 1 or issued[0] >= 512) else 1
        for _ in range(k):
            if c < 256:
                v_consume(c); c += 1
    P.stamp()
    allreduce(A, "add", TM + 1, TM + 2)
    A("v_lshlrev_b32 v6, 5, v2"); A("v_lshl_add_u32 v6, v3, 4, v6")
    A("s_lshl_b32 s44, s3, 9"); A("v_add_u32 v6, s44, v6")
    A("s_lshl_b32 s44, s3, 3"); A("v_mov_b32 v7, s44")
    A(f"v_mov_b32 v{TM+2}, v{TM}"); A(f"v_mov_b32 v{TM+3}, v{TM+1}")
    assert (TM + 2) % 2 == 0
    A("s_mov_b32 exec_hi, 0")
    A(f"ds_write_b128 v6, v[{O}:{O+3}] offset:{L_OP}")
    A("s_mov_b32 exec_lo, 1")
    A(f"ds_write_b64 v7, v[{TM+2}:{TM+3}] offset:{L_ML}")
    A("s_waitcnt lgkmcnt(0)")
    A("s_barrier")
    P.stamp()
    P.flush()
    A("s_endpgm")
    A.vm = []
    P = Prof(A, prof, 63)
    A.label("L_aux")
    SEL = 8
    AT = 16
    DO = 24
    DQ = 44
    X = 48
    F = 53
    T = 4
    PP = 64
    BUF = 96
    A("s_sub_u32 s42, s3, 4")
    A("s_mul_i32 s43, s42, 160"); A("v_mul_u32_u24 v4, 40, v3"); A("v_add_u32 v4, s43, v4")
    A("v_lshlrev_b32 v4, 13, v4"); A("v_lshl_add_u32 v4, v2, 4, v4")
    A("v_lshlrev_b32 v5, 2, v0")
    A("s_mul_i32 s6, s4, 1280"); A("s_lshl_b32 s7, s5, 8")
    A("s_sub_u32 s44, 5242880, s7")
    A("s_waitcnt lgkmcnt(0)")
    srd(A, 8, 16, 17, 6, 1280)
    srd(A, 12, 22, 23, 7, "s44")
    P.stamp()
    for k in range(5):
        A.issue(("x", k), f"buffer_load_dword v{X+k}, v5, s[8:11], 0 offen offset:{k*256}")
    A("s_lshl_b32 s45, s4, 15")
    def wq_load(j):
        v = BUF + 4 * j
        if NQ and j >= NQ: A.wait(("wq", j - NQ))
        A.issue(("wq", j), f"buffer_load_dwordx4 v[{v}:{v+3}], v4, s[12:15], s45 offen {wpol}")
        if j < 39:
            A("s_add_u32 s45, s45, 8192"); A(f"s_cmp_eq_u32 s45, {40*8192}"); A("s_cselect_b32 s45, 0, s45")
    if bar0 == 2: WQ0 = 40
    for j in range(WQ0): wq_load(j)
    if bar0 == 2: A("s_barrier")
    A("v_and_b32 v6, 1, v2")
    A("v_cmp_eq_u32 vcc, 0, v6")
    A("v_mov_b32 v60, 0x01000c0c"); A("v_mov_b32 v61, 0x0c0c0100")
    A("v_cndmask_b32 v60, v60, v61, vcc")
    A("v_mov_b32 v6, 0x03020c0c"); A("v_mov_b32 v61, 0x0c0c0302")
    A("v_cndmask_b32 v61, v6, v61, vcc")
    A("v_bfe_u32 v6, v2, 1, 2"); A("v_mov_b32 v7, 0x0c0c0c0c")
    for r in range(4):
        A(f"v_cmp_eq_u32 vcc, {r}, v6"); A.nop(2)
        A(f"v_cndmask_b32 v{SEL+r}, v7, v60, vcc"); A(f"v_cndmask_b32 v{SEL+4+r}, v7, v61, vcc")
    for k in range(20): A(f"v_mov_b32 v{DO+k}, 0")
    A.wait(("x", 4))
    P.stamp()
    LN = Asm(); layernorm(LN, X, F, (84, 85, 86, 87), X)
    rem = list(range(WQ0, 40)); step = max(1, len(LN.L) // (len(rem) + 1))
    for i, ins in enumerate(LN.L):
        A.L.append(ins)
        if rem and i % step == step - 1: wq_load(rem.pop(0))
    for j in rem: wq_load(j)
    if bar0 == 1: A("s_barrier")
    A("s_mul_i32 s43, s42, 1280")
    A("v_lshlrev_b32 v5, 2, v0"); A("v_add_u32 v5, s43, v5")
    for k in range(5): A(f"ds_write_b32 v5, v{X+k} offset:{L_XN + 256*k}")
    A("s_mul_i32 s43, s42, 1600"); A("v_mul_u32_u24 v5, 80, v3"); A("v_add_u32 v5, s43, v5")
    A("s_lshl_b32 s46, s4, 3")
    A("s_waitcnt lgkmcnt(0)")
    for k in range(10):
        A(f"v_add_u32 v6, s46, v5")
        A(f"ds_read_b64 v[{PP+2*k}:{PP+2*k+1}], v6 offset:{L_XN}")
        A("s_add_u32 s46, s46, 8"); A("s_cmp_eq_u32 s46, 80"); A("s_cselect_b32 s46, 0, s46")
    A("s_waitcnt lgkmcnt(0)")
    P.stamp()
    def abuild_p(preg, par, st):
        at = AT + st * 4
        for r in range(4): A(f"v_perm_b32 v{at+r}, v{preg}, v{preg}, v{SEL + par*4 + r}")
    abuild_p(PP, 0, 0)
    for j in range(40):
        if j + 1 < 40: abuild_p(PP + (j + 1) // 2, (j + 1) % 2, (j + 1) % 2)
        else: A.nop(2)
        A.wait(("wq", j))
        at = AT + (j % 2) * 4; v = BUF + 4 * j
        cs = "0" if j == 0 else f"v[{DQ}:{DQ+3}]"
        A(f"v_mfma_f32_16x16x32_bf16 v[{DQ}:{DQ+3}], v[{at}:{at+3}], v[{v}:{v+3}], {cs}")
    A("v_lshlrev_b32 v6, 5, v2"); A("v_lshl_add_u32 v6, v3, 4, v6")
    A("s_lshl_b32 s43, s42, 9"); A("v_add_u32 v7, s43, v6")
    A.nop(6)
    A("s_mov_b32 exec_hi, 0")
    A(f"ds_write_b128 v7, v[{DQ}:{DQ+3}] offset:{L_QP}")
    A("s_mov_b32 exec_hi, -1")
    if dyn:
        A("v_lshlrev_b32 v6, 2, v0"); A("v_mov_b32 v7, 0")
        A("s_mov_b64 exec, 0xff")
        A(f"ds_write_b32 v6, v7 offset:{L_PROG}")
        A("s_mov_b64 exec, -1")
    A("s_waitcnt lgkmcnt(0)")
    P.stamp()
    A("s_barrier")
    A("s_cmp_lg_u32 s42, 0"); A("s_cbranch_scc1 L_wo")
    A("s_cmp_ge_u32 s5, %d" % (0 if nomlp else 27)); A("s_cbranch_scc1 L_wo")
    layernorm(A, X, F, T, X)
    A("v_lshlrev_b32 v4, 2, v0")
    for k in range(5): A(f"ds_write_b32 v4, v{X+k} offset:{L_Y + 256*k}")
    A("s_lshl_b32 s6, s5, 7")
    A(f"s_sub_u32 s44, {640*3456}, s6")
    srd(A, 8, 28, 29, 6, "s44")
    srd(A, 12, 30, 31, 6, 128)
    A("v_lshlrev_b32 v5, 1, v0")
    A.issue(("b1", 0), f"buffer_load_ushort v{F}, v5, s[12:15], 0 offen")
    A("v_lshrrev_b32 v5, 3, v2"); A("v_lshl_add_u32 v5, v3, 1, v5")
    A("v_mul_u32_u24 v6, 160, v5")
    A(f"s_mov_b32 s45, {80*3456}"); A("v_mul_lo_u32 v5, s45, v5")
    A("v_and_b32 v7, 7, v2"); A("v_lshl_add_u32 v5, v7, 4, v5")
    A("s_waitcnt lgkmcnt(0)")
    PY = BUF
    for k in range(10): A(f"ds_read_b128 v[{PY+4*k}:{PY+4*k+3}], v6 offset:{L_Y + 16*k}")
    RB, RN = BUF + 40, 30
    def w1_load(j):
        v = RB + (j % RN) * 4
        A(f"s_mov_b32 s45, {j*3456}")
        A.issue(("w1", j), f"buffer_load_dwordx4 v[{v}:{v+3}], v5, s[8:11], s45 offen {wpol}")
    for j in range(NW): w1_load(j)
    A("s_waitcnt lgkmcnt(0)")
    abuild_p(PY, 0, 0)
    for j in range(80):
        if j + 1 < 80: abuild_p(PY + (j + 1) // 2, (j + 1) % 2, (j + 1) % 2)
        else: A.nop(2)
        A.wait(("w1", j))
        at = AT + (j % 2) * 4; v = RB + (j % RN) * 4
        cs = "0" if j == 0 else f"v[{DQ}:{DQ+3}]"
        A(f"v_mfma_f32_16x16x32_bf16 v[{DQ}:{DQ+3}], v[{at}:{at+3}], v[{v}:{v+3}], {cs}")
        if j + NW < 80: w1_load(j + NW)
    A("s_mul_i32 s6, s5, 81920")
    A(f"s_sub_u32 s44, {1728*1280}, s6")
    srd(A, 8, 32, 33, 6, "s44")
    A("v_mul_u32_u24 v5, 20480, v3"); A("v_lshl_add_u32 v5, v2, 4, v5")
    def w2_load(n):
        jj, cb = n // 5, n % 5
        v = RB + (n % RN) * 4
        if cb == 0: A(f"s_mov_b32 s45, {jj*1280}")
        A.issue(("w2", n), f"buffer_load_dwordx4 v[{v}:{v+3}], v5, s[8:11], s45 offen offset:{cb*256} {wpol}")
    for n in range(10): w2_load(n)
    A("v_lshrrev_b32 v6, 1, v3"); A("v_lshrrev_b32 v7, 3, v2")
    A("v_cmp_eq_u32 vcc, v6, v7")
    A("v_lshlrev_b32 v6, 8, v6"); A("v_and_b32 v7, 7, v2"); A("v_lshl_add_u32 v6, v7, 5, v6")
    A("v_and_b32 v7, 1, v3"); A("v_lshl_add_u32 v6, v7, 4, v6")
    A("s_and_saveexec_b64 s[46:47], vcc")
    A(f"ds_write_b128 v6, v[{DQ}:{DQ+3}] offset:{L_T}")
    A("s_mov_b64 exec, s[46:47]")
    A("v_lshlrev_b32 v6, 2, v0")
    A("s_waitcnt lgkmcnt(0)")
    A(f"ds_read_b32 v{F+1}, v6 offset:{L_T}"); A(f"ds_read_b32 v{F+2}, v6 offset:{L_T+256}")
    A("s_waitcnt lgkmcnt(0)")
    A(f"v_add_f32 v{F+1}, v{F+1}, v{F+2}")
    bf16r(A, F + 1, F + 1)
    A.wait(("b1", 0))
    A(f"v_lshlrev_b32 v{F}, 16, v{F}")
    A(f"v_add_f32 v{F+1}, v{F+1}, v{F}")
    bf16r(A, F + 1, F + 1)
    x_, u_, e_ = F + 1, F + 2, F + 3
    A(f"v_mul_f32 v{u_}, v{x_}, v{x_}"); A(f"v_mul_f32 v{u_}, v{u_}, v{x_}")
    A(f"v_mov_b32 v{e_}, {f2u(0.044715):#x}"); A(f"v_fma_f32 v{u_}, v{u_}, v{e_}, v{x_}")
    A(f"v_mul_f32 v{u_}, {f2u(-2*0.7978845608028654*1.4426950408889634):#x}, v{u_}")
    A(f"v_exp_f32 v{u_}, v{u_}"); A.nop(1)
    A(f"v_add_f32 v{u_}, 1.0, v{u_}"); A(f"v_rcp_f32 v{u_}, v{u_}"); A.nop(1)
    A(f"v_mul_f32 v{u_}, v{x_}, v{u_}")
    A(f"v_cvt_pk_bf16_f32 v{u_}, v{u_}, v{u_}")
    A("v_lshlrev_b32 v6, 1, v0")
    A(f"ds_write_b16 v6, v{u_} offset:{L_HV}")
    A("v_lshlrev_b32 v6, 5, v3")
    A("s_waitcnt lgkmcnt(0)")
    for k in range(2): A(f"ds_read_b128 v[{PP+4*k}:{PP+4*k+3}], v6 offset:{L_HV + 16*k}")
    A("s_waitcnt lgkmcnt(0)")
    abuild_p(PP, 0, 0)
    nl = 10
    for jj in range(16):
        if jj + 1 < 16: abuild_p(PP + (jj + 1) // 2, (jj + 1) % 2, (jj + 1) % 2)
        else: A.nop(2)
        at = AT + (jj % 2) * 4
        for cb in range(5):
            n = jj * 5 + cb
            A.wait(("w2", n))
            v = RB + (n % RN) * 4; d = DO + 4 * cb
            A(f"v_mfma_f32_16x16x32_bf16 v[{d}:{d+3}], v[{at}:{at+3}], v[{v}:{v+3}], v[{d}:{d+3}]")
            if nl < 80: w2_load(nl); nl += 1
    A.waitall()
    A.label("L_wo")
    A.vm = []
    A("s_mul_i32 s6, s5, 163840")
    srd(A, 8, 24, 25, 6, 163840)
    A("s_lshl_b32 s43, s42, 5"); A("v_lshlrev_b32 v5, 3, v3"); A("v_add_u32 v5, s43, v5")
    A("v_mul_u32_u24 v5, 1280, v5"); A("v_lshl_add_u32 v5, v2, 4, v5")
    for n in range(0 if nowo else 40):
        jj, cb = n // 5, n % 5
        v = BUF + 4 * n
        if cb == 0: A(f"s_mov_b32 s45, {jj*1280}")
        if n >= NA: A.wait(("wo", n - NA))
        A.issue(("wo", n), f"buffer_load_dwordx4 v[{v}:{v+3}], v5, s[8:11], s45 offen offset:{cb*256} {wpol}")
    if dyn == 3:
        A("s_cmp_lg_u32 s42, 3"); A("s_cbranch_scc1 L_ctrl_done")
        A.waitall() if False else None
        A(f"s_mov_b32 s50, {CK0}"); A("s_mov_b32 s51, 16"); A("s_mov_b32 s52, 0"); A("s_mov_b32 s53, 0")
        A("v_mov_b32 v6, 0"); A("s_mov_b64 exec, 1")
        A.label("L_ctrl")
        A(f"ds_read_b32 v5, v6 offset:{L_PROG}")
        A("s_waitcnt lgkmcnt(0)")
        A("v_readfirstlane_b32 s54, v5")
        A(f"s_cmp_ge_u32 s54, {CKEXIT}"); A("s_cbranch_scc1 L_ctrl_exit")
        A("s_cmp_eq_u32 s52, 0"); A("s_cbranch_scc1 L_ctrl_a")
        A("s_cmp_lt_u32 s54, s53"); A("s_cbranch_scc1 L_ctrl_a")
        A("s_mov_b32 s52, 0"); A("v_mov_b32 v5, 0"); A(f"ds_write_b32 v6, v5 offset:{L_MODE}")
        A.label("L_ctrl_a")
        A("s_cmp_lt_u32 s54, s50"); A("s_cbranch_scc1 L_ctrl_sleep")
        A("v_mov_b32 v7, 1"); A("v_mov_b32 v4, s51")
        A("global_atomic_add v5, v4, v7, s[38:39] sc0")
        A("s_waitcnt vmcnt(0)")
        A("v_readfirstlane_b32 s55, v5")
        A(f"s_add_u32 s50, s50, {CKS}"); A("s_add_u32 s51, s51, 32")
        A("s_mov_b32 s56, 0")
        for th, bo in zip(TH, BO):
            A(f"s_cmp_ge_u32 s55, {th}"); A(f"s_cselect_b32 s56, {bo}, s56")
        A("s_cmp_eq_u32 s56, 0"); A("s_cbranch_scc1 L_ctrl_sleep")
        A(f"ds_read_b32 v5, v6 offset:{L_PROG}")
        A("s_waitcnt lgkmcnt(0)")
        A("v_readfirstlane_b32 s54, v5")
        A("s_add_u32 s53, s54, s56"); A("s_add_u32 s53, s53, 1")
        A("s_mov_b32 s52, 1"); A("v_mov_b32 v5, 1"); A(f"ds_write_b32 v6, v5 offset:{L_MODE}")
        A.label("L_ctrl_sleep")
        A(f"s_sleep {sleep}")
        A("s_branch L_ctrl")
        A.label("L_ctrl_exit")
        A("s_mov_b64 exec, -1")
        A.label("L_ctrl_done")
    XB = 60
    XB = 92
    if fused:
        A("s_lshl_b32 s43, s42, 6"); A("v_add_u32 v4, s43, v0"); A("v_lshlrev_b32 v4, 3, v4")
        A("s_mul_i32 s6, s4, 1280")
        srd(A, 12, 16, 17, 6, 1280)
        A.issue(("xf", 0), f"buffer_load_dwordx2 v[{XB}:{XB+1}], v4, s[12:15], 0 offen")
        srd(A, 68, 34, 35, None, 1280)
        A.issue(("xf", 1), f"buffer_load_dwordx2 v[{XB+2}:{XB+3}], v4, s[68:71], 0 offen")
    A("v_lshlrev_b32 v4, 5, v3"); A("s_lshl_b32 s43, s42, 7"); A("v_add_u32 v4, s43, v4")
    A("v_mov_b32 v5, 0")
    A.waitall()
    P.stamp()
    A("s_barrier")
    P.stamp()
    ML = PP
    OV = PP + 8
    A(f"ds_read_b128 v[{ML}:{ML+3}], v5 offset:{L_ML}"); A(f"ds_read_b128 v[{ML+4}:{ML+7}], v5 offset:{L_ML+16}")
    OVR = [72, 80, 48, 16]
    for w in range(4):
        for q in range(2):
            v = OVR[w] + 4 * q
            A(f"ds_read_b128 v[{v}:{v+3}], v4 offset:{L_OP + w*512 + q*16}")
    A("s_waitcnt lgkmcnt(8)")
    A(f"v_max3_f32 v6, v{ML}, v{ML+2}, v{ML+4}"); A(f"v_max_f32 v6, v6, v{ML+6}")
    for w in range(4):
        A(f"v_sub_f32 v{ML+2*w}, v{ML+2*w}, v6"); A(f"v_mul_f32 v{ML+2*w}, {LOG2E:#x}, v{ML+2*w}"); A(f"v_exp_f32 v{ML+2*w}, v{ML+2*w}")
    A.nop(1)
    A(f"v_mul_f32 v7, v{ML}, v{ML+1}")
    for w in range(1, 4): A(f"v_fmac_f32 v7, v{ML+2*w}, v{ML+2*w+1}")
    A("v_rcp_f32 v7, v7"); A.nop(1)
    A("s_waitcnt lgkmcnt(0)")
    for k in range(8):
        A(f"v_mul_f32 v{OVR[0]+k}, v{OVR[0]+k}, v{ML}")
        for w in range(1, 4): A(f"v_fmac_f32 v{OVR[0]+k}, v{OVR[w]+k}, v{ML+2*w}")
        A(f"v_mul_f32 v{OVR[0]+k}, v{OVR[0]+k}, v7")
    PO = 56
    for k in range(4): A(f"v_cvt_pk_bf16_f32 v{PO+k}, v{OVR[0]+2*k}, v{OVR[0]+2*k+1}")
    abuild_p(PO, 0, 0)
    for jj in range(8):
        if jj + 1 < 8: abuild_p(PO + (jj + 1) // 2, (jj + 1) % 2, (jj + 1) % 2)
        else: A.nop(2)
        at = AT + (jj % 2) * 4
        if jj == 0: A.nop(2)
        for cb in range(5):
            v = BUF + 4 * (jj * 5 + cb); d = DO + 4 * cb
            A(f"v_mfma_f32_16x16x32_bf16 v[{d}:{d+3}], v[{at}:{at+3}], v[{v}:{v+3}], v[{d}:{d+3}]")
    A("v_lshlrev_b32 v6, 5, v2"); A("v_lshl_add_u32 v6, v3, 4, v6")
    A("s_mul_i32 s43, s42, 2560"); A("v_add_u32 v6, s43, v6")
    A.nop(4)
    A("s_mov_b32 exec_hi, 0")
    for cb in range(5):
        A(f"ds_write_b128 v6, v[{DO+4*cb}:{DO+4*cb+3}] offset:{L_OUTP + cb*512}")
    A("s_mov_b32 exec_hi, -1")
    A("s_waitcnt lgkmcnt(0)")
    P.stamp()
    A("s_barrier")
    if not fused:
        A("s_lshl_b32 s43, s42, 6"); A("v_add_u32 v4, s43, v0")
        A("v_cmp_gt_u32 vcc, 160, v4")
        A("v_lshlrev_b32 v4, 4, v4")
        A("s_and_saveexec_b64 s[46:47], vcc")
        A("s_cbranch_execz L_aux_done")
        for w in range(4): A(f"ds_read_b128 v[{72+4*w}:{75+4*w}], v4 offset:{L_OUTP + w*2560}")
        A("s_mul_i32 s6, s66, 2560")
        srd(A, 8, 40, 41, 6, 2560)
        A("s_waitcnt lgkmcnt(0)")
        for k in range(4):
            A(f"v_add_f32 v{72+k}, v{72+k}, v{76+k}"); A(f"v_add_f32 v{80+k}, v{80+k}, v{84+k}"); A(f"v_add_f32 v{72+k}, v{72+k}, v{80+k}")
        A("buffer_store_dwordx4 v[72:75], v4, s[8:11], 0 offen")
    else:
        A("v_lshlrev_b32 v4, 4, v0")
        A("s_cmp_lg_u32 s42, 0"); A("s_cbranch_scc1 L_wait_flag")
        for i in range(3):
            for w in range(4):
                v = BUF + 16 * i + 4 * w
                A(f"ds_read_b128 v[{v}:{v+3}], v4 offset:{L_OUTP + w*2560 + i*1024}")
        A("s_mul_i32 s6, s66, 2560")
        srd(A, 8, 40, 41, 6, 2560)
        for i in range(3):
            A(f"s_waitcnt lgkmcnt({8-4*i})")
            v = BUF + 16 * i
            for k in range(4):
                A(f"v_add_f32 v{v+k}, v{v+k}, v{v+4+k}"); A(f"v_add_f32 v{v+8+k}, v{v+8+k}, v{v+12+k}"); A(f"v_add_f32 v{v+k}, v{v+k}, v{v+8+k}")
            A(f"buffer_store_dwordx4 v[{v}:{v+3}], v4, s[8:11], 0 offen offset:{i*1024} sc1")
        A("s_lshl_b32 s6, s4, 5")
        A("v_mov_b32 v6, s6"); A("v_mov_b32 v7, 1")
        A("s_waitcnt vmcnt(0)")
        P.stamp()
        A("s_mov_b64 s[46:47], exec"); A("s_mov_b64 exec, 1")
        A("global_atomic_add v5, v6, v7, s[38:39] sc0")
        A("s_waitcnt vmcnt(0)")
        A("v_mov_b32 v6, 0")
        A(f"ds_write_b32 v6, v5 offset:{L_FLAG}")
        A("s_mov_b64 exec, s[46:47]")
        A("s_waitcnt lgkmcnt(0)")
        A.label("L_wait_flag")
        P.stamp()
        A("s_barrier")
        A("v_mov_b32 v6, 0")
        A(f"ds_read_b32 v5, v6 offset:{L_FLAG}")
        A("s_waitcnt lgkmcnt(0)")
        A("v_readfirstlane_b32 s43, v5")
        A("s_cmp_lg_u32 s43, 31"); A("s_cbranch_scc1 L_aux_done")
        A("s_mul_i32 s6, s4, 81920"); A("s_mul_i32 s43, s42, 20480"); A("s_add_u32 s6, s6, s43")
        srd(A, 8, 40, 41, 6, 20480)
        for i in range(3):
            for sl in range(8):
                v = BUF + (i * 8 + sl) * 4
                if i == 2:
                    if sl == 0: A("s_mov_b32 exec_hi, 0")
                A(f"s_mov_b32 s45, {sl*2560}")
                A.issue(("g", i, sl), f"buffer_load_dwordx4 v[{v}:{v+3}], v4, s[8:11], s45 offen offset:{i*1024} sc1")
        A("s_mov_b32 exec_hi, -1")
        A("s_mul_i32 s43, s42, 2560"); A("v_add_u32 v6, s43, v4")
        for i in range(3):
            A.wait(("g", i, 7))
            v = BUF + i * 32
            for k in range(4):
                A(f"v_add_f32 v{v+k}, v{v+k}, v{v+4+k}"); A(f"v_add_f32 v{v+8+k}, v{v+8+k}, v{v+12+k}")
                A(f"v_add_f32 v{v+16+k}, v{v+16+k}, v{v+20+k}"); A(f"v_add_f32 v{v+24+k}, v{v+24+k}, v{v+28+k}")
                A(f"v_add_f32 v{v+k}, v{v+k}, v{v+8+k}"); A(f"v_add_f32 v{v+16+k}, v{v+16+k}, v{v+24+k}")
                A(f"v_add_f32 v{v+k}, v{v+k}, v{v+16+k}")
            if i == 2: A("s_mov_b32 exec_hi, 0")
            A(f"ds_write_b128 v6, v[{v}:{v+3}] offset:{L_OUTP + i*1024}")
        A("s_mov_b32 exec_hi, -1")
        A("s_waitcnt lgkmcnt(0)")
        P.stamp()
        A("s_barrier")
        A("s_lshl_b32 s43, s42, 6"); A("v_add_u32 v4, s43, v0")
        A("v_cmp_gt_u32 vcc, 160, v4")
        A("v_lshlrev_b32 v5, 3, v4")
        A("v_lshlrev_b32 v4, 4, v4")
        A("s_and_saveexec_b64 s[46:47], vcc")
        A("s_cbranch_execz L_aux_done")
        for w in range(4): A(f"ds_read_b128 v[{72+4*w}:{75+4*w}], v4 offset:{L_OUTP + w*2560}")
        A("s_mul_i32 s6, s4, 1280")
        srd(A, 8, 36, 37, 6, 1280)
        A("s_waitcnt lgkmcnt(0)")
        for k in range(4):
            A(f"v_add_f32 v{72+k}, v{72+k}, v{76+k}"); A(f"v_add_f32 v{80+k}, v{80+k}, v{84+k}"); A(f"v_add_f32 v{72+k}, v{72+k}, v{80+k}")
        for k in range(2):
            A(f"v_lshlrev_b32 v76, 16, v{XB+2+k}"); A(f"v_and_b32 v77, 0xffff0000, v{XB+2+k}")
            A(f"v_add_f32 v{72+2*k}, v{72+2*k}, v76"); A(f"v_add_f32 v{73+2*k}, v{73+2*k}, v77")
            A(f"v_lshlrev_b32 v76, 16, v{XB+k}"); A(f"v_and_b32 v77, 0xffff0000, v{XB+k}")
            A(f"v_add_f32 v{72+2*k}, v{72+2*k}, v76"); A(f"v_add_f32 v{73+2*k}, v{73+2*k}, v77")
        A("v_cvt_pk_bf16_f32 v72, v72, v73"); A("v_cvt_pk_bf16_f32 v73, v74, v75")
        A("buffer_store_dwordx2 v[72:73], v5, s[8:11], 0 offen")
    A.label("L_aux_done")
    P.stamp()
    P.flush()
    A.label("L_end")
    A("s_endpgm")
    out += A.L
    kernels = [(kname, 256, 102)]
    if not fused:
        B = Asm()
        out.append(".globl reduce_kernel"); out.append(".p2align 8"); out.append(".type reduce_kernel,@function")
        B.label("reduce_kernel")
        B("s_cmp_ge_u32 s2, 160"); B("s_cbranch_scc1 R_end")
        B("s_load_dwordx2 s[4:5], s[0:1], 0")
        B("s_load_dwordx4 s[8:11], s[0:1], 72")
        B("s_load_dwordx2 s[6:7], s[0:1], 96")
        B("s_mul_hi_u32 s12, s2, 0xccccccd")
        B("s_mul_i32 s13, s12, 20"); B("s_sub_u32 s13, s2, s13")
        B("v_and_b32 v1, 7, v0"); B("v_lshrrev_b32 v2, 3, v0")
        B("v_mul_u32_u24 v3, 10240, v2"); B("v_lshl_add_u32 v3, v1, 4, v3")
        B("s_lshl_b32 s14, s13, 7"); B("v_add_u32 v3, s14, v3")
        B("s_mul_i32 s15, s12, 81920")
        B("s_waitcnt lgkmcnt(0)")
        B("s_add_u32 s16, s6, s15"); B("s_addc_u32 s17, s7, 0"); B("s_mov_b32 s18, 81920"); B("s_mov_b32 s19, 0x20000")
        B("s_mov_b32 s20, 2560"); B("s_mov_b32 s21, 5120"); B("s_mov_b32 s22, 7680")
        B("buffer_load_dwordx4 v[4:7], v3, s[16:19], 0 offen")
        B("buffer_load_dwordx4 v[8:11], v3, s[16:19], s20 offen")
        B("buffer_load_dwordx4 v[12:15], v3, s[16:19], s21 offen")
        B("buffer_load_dwordx4 v[16:19], v3, s[16:19], s22 offen")
        B("s_mul_i32 s15, s12, 1280"); B("s_lshl_b32 s14, s13, 6")
        B("v_lshlrev_b32 v20, 3, v1"); B("v_add_u32 v20, s14, v20")
        B("s_add_u32 s24, s4, s15"); B("s_addc_u32 s25, s5, 0"); B("s_mov_b32 s26, 1280"); B("s_mov_b32 s27, 0x20000")
        B("s_mov_b32 s28, s8"); B("s_mov_b32 s29, s9"); B("s_mov_b32 s30, 1280"); B("s_mov_b32 s31, 0x20000")
        B("s_add_u32 s32, s10, s15"); B("s_addc_u32 s33, s11, 0"); B("s_mov_b32 s34, 1280"); B("s_mov_b32 s35, 0x20000")
        B("buffer_load_dwordx2 v[22:23], v20, s[24:27], 0 offen")
        B("buffer_load_dwordx2 v[24:25], v20, s[28:31], 0 offen")
        B("s_waitcnt vmcnt(2)")
        for k in range(4):
            B(f"v_add_f32 v{4+k}, v{4+k}, v{8+k}"); B(f"v_add_f32 v{12+k}, v{12+k}, v{16+k}"); B(f"v_add_f32 v{4+k}, v{4+k}, v{12+k}")
        B.nop(2)
        for k in range(4): B(f"v_add_f32_dpp v{4+k}, v{4+k}, v{4+k} row_ror:8 row_mask:0xf bank_mask:0xf")
        for sw in ("v_permlane16_swap_b32", "v_permlane32_swap_b32"):
            for k in range(4): B(f"v_mov_b32 v{8+k}, v{4+k}")
            B.nop(2)
            for k in range(4): B(f"{sw} v{4+k}, v{8+k}")
            B.nop(1)
            for k in range(4): B(f"v_add_f32 v{4+k}, v{4+k}, v{8+k}")
        B("s_waitcnt vmcnt(0)")
        for k in range(2):
            B(f"v_lshlrev_b32 v8, 16, v{22+k}"); B(f"v_and_b32 v9, 0xffff0000, v{22+k}")
            B(f"v_lshlrev_b32 v10, 16, v{24+k}"); B(f"v_and_b32 v11, 0xffff0000, v{24+k}")
            B(f"v_add_f32 v{4+2*k}, v{4+2*k}, v10"); B(f"v_add_f32 v{5+2*k}, v{5+2*k}, v11")
            B(f"v_add_f32 v{4+2*k}, v{4+2*k}, v8"); B(f"v_add_f32 v{5+2*k}, v{5+2*k}, v9")
        B("v_cvt_pk_bf16_f32 v4, v4, v5"); B("v_cvt_pk_bf16_f32 v5, v6, v7")
        B("v_cmp_gt_u32 vcc, 8, v0"); B("s_and_saveexec_b64 s[36:37], vcc")
        B("buffer_store_dwordx2 v[4:5], v20, s[32:35], 0 offen")
        B.label("R_end"); B("s_endpgm")
        out += B.L
        kernels.append(("reduce_kernel", 32, 48))
    out.append('.section .rodata,"a"')
    for kn, nv, ns in kernels:
        out += [".p2align 6", f".amdhsa_kernel {kn}", f"  .amdhsa_next_free_vgpr {nv}", f"  .amdhsa_next_free_sgpr {ns}",
                f"  .amdhsa_accum_offset {nv}", "  .amdhsa_group_segment_fixed_size 0", "  .amdhsa_kernarg_size 104",
                "  .amdhsa_user_sgpr_count 2", "  .amdhsa_user_sgpr_kernarg_segment_ptr 1", "  .amdhsa_system_sgpr_workgroup_id_x 1",
                "  .amdhsa_float_denorm_mode_32 3", ".end_amdhsa_kernel"]
    return "\n".join(out) + "\n"

if __name__ == "__main__":
    kw = eval("dict(" + (sys.argv[2] if len(sys.argv) > 2 else "") + ")")
    open(sys.argv[1], "w").write(gen(**kw))
```

```python
import struct, sys

NAME = "parallel_sum__gqa_block_cached__mixer_channel_mlp__decode"
HEADER = open("cdna_kernels/" + NAME + ".s.ref").read().split("; Override launch geometry")[0]

def f2u(x): return struct.unpack("<I", struct.pack("<f", x))[0]
SCALE = f2u(128 ** -0.5)
LOG2E = f2u(1.4426950408889634)
INV640 = f2u(1.0 / 640)
EPS = f2u(1e-5)

L_XN = 0
L_Y = 5120
L_QP = 6400
L_T = 8448
L_HV = 8960
L_OP = 9216
L_ML = 11264
L_OUTP = 11520
L_FLAG = 21760
L_PROG = 22528
L_MODE = 22544
LDS_BYTES = 22784

class Asm:
    def __init__(self):
        self.L = []
        self.vm = []
        self.landed = set()
        self.nlabel = 0
    def __call__(self, s): self.L.append("    " + s)
    def label(self, s): self.L.append(s + ":")
    def c(self, s): self.L.append("    ; " + s)
    def issue(self, tag, ins):
        self(ins); self.vm.append(tag)
        assert len(self.vm) <= 63, "too many outstanding vmem ops"
    def wait(self, tag):
        if tag not in self.vm: return
        i = self.vm.index(tag)
        n = len(self.vm) - 1 - i
        self(f"s_waitcnt vmcnt({n})")
        self.vm = self.vm[i + 1:]
    def waitall(self):
        if self.vm: self("s_waitcnt vmcnt(0)")
        self.vm = []
    def nop(self, n):
        while n > 0:
            k = min(n, 16); self(f"s_nop {k-1}"); n -= k

def allreduce(A, op, t, u):
    for ror in (8, 4, 2, 1):
        A.nop(2)
        A(f"v_{op}_f32_dpp v{t}, v{t}, v{t} row_ror:{ror} row_mask:0xf bank_mask:0xf")
    for sw in ("v_permlane16_swap_b32", "v_permlane32_swap_b32"):
        A(f"v_mov_b32 v{u}, v{t}")
        A.nop(2)
        A(f"{sw} v{t}, v{u}")
        A.nop(1)
        A(f"v_{op}_f32 v{t}, v{t}, v{u}")

def bf16r(A, d, s):
    A(f"v_cvt_pk_bf16_f32 v{d}, v{s}, v{s}")
    A(f"v_and_b32 v{d}, 0xffff0000, v{d}")

def layernorm(A, X, F, T, OUT):
    if isinstance(T, int): T = (T, T+1, T+2, T+3)
    for k in range(5):
        A(f"v_lshlrev_b32 v{F+2*k}, 16, v{X+k}")
        A(f"v_and_b32 v{F+2*k+1}, 0xffff0000, v{X+k}")
    t, u, m, r = T
    A(f"v_add_f32 v{t}, v{F}, v{F+1}")
    for k in range(2, 10): A(f"v_add_f32 v{t}, v{t}, v{F+k}")
    allreduce(A, "add", t, u)
    A(f"v_mul_f32 v{m}, {INV640:#x}, v{t}")
    A(f"v_sub_f32 v{u}, v{F}, v{m}")
    A(f"v_mul_f32 v{t}, v{u}, v{u}")
    for k in range(1, 10):
        A(f"v_sub_f32 v{u}, v{F+k}, v{m}")
        A(f"v_fmac_f32 v{t}, v{u}, v{u}")
    allreduce(A, "add", t, u)
    A(f"v_mul_f32 v{t}, {INV640:#x}, v{t}")
    bf16r(A, t, t)
    A(f"v_add_f32 v{t}, {EPS:#x}, v{t}")
    bf16r(A, t, t)
    A(f"v_sqrt_f32 v{t}, v{t}")
    A.nop(1)
    bf16r(A, t, t)
    A(f"v_rcp_f32 v{r}, v{t}")
    bf16r(A, m, m)
    for k in range(5):
        A(f"v_sub_f32 v{F+2*k}, v{F+2*k}, v{m}")
        A(f"v_sub_f32 v{F+2*k+1}, v{F+2*k+1}, v{m}")
        A(f"v_cvt_pk_bf16_f32 v{u}, v{F+2*k}, v{F+2*k+1}")
        A(f"v_lshlrev_b32 v{F+2*k}, 16, v{u}")
        A(f"v_and_b32 v{F+2*k+1}, 0xffff0000, v{u}")
        A(f"v_mul_f32 v{F+2*k}, v{F+2*k}, v{r}")
        A(f"v_mul_f32 v{F+2*k+1}, v{F+2*k+1}, v{r}")
        A(f"v_cvt_pk_bf16_f32 v{OUT+k}, v{F+2*k}, v{F+2*k+1}")

def srd(A, d, lo, hi, off_s, size):
    if off_s is None:
        A(f"s_mov_b32 s{d}, s{lo}"); A(f"s_mov_b32 s{d+1}, s{hi}")
    else:
        A(f"s_add_u32 s{d}, s{lo}, s{off_s}"); A(f"s_addc_u32 s{d+1}, s{hi}, 0")
    A(f"s_mov_b32 s{d+2}, {size}")
    A(f"s_mov_b32 s{d+3}, 0x20000")

class Prof:
    def __init__(self, A, on, reg): self.A, self.on, self.reg, self.n = A, on, reg, 0
    def stamp(self):
        if not self.on: return
        A = self.A
        A("s_memrealtime s[92:93]"); A("s_waitcnt lgkmcnt(0)")
        A(f"v_writelane_b32 v{self.reg}, s92, {self.n}"); self.n += 1
    def flush(self):
        if not self.on: return
        A = self.A
        A("s_mov_b64 exec, -1")
        A("s_lshl_b32 s94, s2, 3"); A("s_add_u32 s94, s94, s3"); A("s_lshl_b32 s94, s94, 8"); A("s_add_u32 s94, s94, 0x2000000")
        A(f"v_lshlrev_b32 v1, 2, v0"); A("v_add_u32 v1, s94, v1")
        A(f"global_store_dword v1, v{self.reg}, s[40:41]")

def gen(N=5, C=8, S0=24, R=32, catch=2, Ntail=None, tail_from=None, NA=4, wpol="", kvpol="nt", prof=0, fused=0, prio=1, hmap=1, nomlp=0, nowo=0, NW=8, diag=0, nostream=0, WQ0=16, NQ=0, bar0=0, K0=5, dyn=0, NH=8, dyn_from=32, CK0=4, CKS=4, TH=(128,192,232), BO=(1,2,3), CKEXIT=30, sleep=3, even_boost=(16,20), T2=720, TK=226, TV=217, MARG=0, wmask=0, rotm=0, CV=None):
    A = Asm()
    P = Prof(A, prof, 63)
    kname = NAME + "_kernel"
    out = []
    out.append(HEADER.rstrip("\n"))
    if fused:
        out.append(f"; @launch grid=(256,1,1) block=(512,1,1) lds={LDS_BYTES}")
    else:
        out.append(f"; @launch kernel={kname} grid=(256,1,1) block=(512,1,1) lds={LDS_BYTES}")
        out.append(f"; @launch kernel=reduce_kernel grid=(160,1,1) block=(64,1,1) lds=0")
    out.append('.amdgcn_target "amdgcn-amd-amdhsa--gfx950"')
    out.append(".text"); out.append(f".globl {kname}"); out.append(".p2align 8"); out.append(f".type {kname},@function")
    A.label(kname)
    A("s_cmp_ge_u32 s2, 256"); A("s_cbranch_scc1 L_end")
    A("s_load_dwordx16 s[16:31], s[0:1], 0")
    A("s_load_dwordx8 s[32:39], s[0:1], 64")
    A("s_load_dwordx2 s[40:41], s[0:1], 96")
    A("v_lshrrev_b32 v1, 6, v0")
    A("v_and_b32 v0, 63, v0")
    A("v_readfirstlane_b32 s3, v1")
    A("v_and_b32 v2, 15, v0")
    A("v_lshrrev_b32 v3, 4, v0")
    if hmap == 0:
        A("s_lshr_b32 s4, s2, 5")
        A("s_and_b32 s5, s2, 31")
    else:
        A("s_and_b32 s5, s2, 7"); A("s_lshl_b32 s5, s5, 2"); A("s_bfe_u32 s4, s2, 0x20003"); A("s_add_u32 s5, s5, s4")
        A("s_lshr_b32 s4, s2, 5")
    A("s_lshl_b32 s66, s4, 5"); A("s_add_u32 s66, s66, s5")
    if prof: A("v_mov_b32 v63, 0")
    A("s_cmp_ge_u32 s3, 4"); A("s_cbranch_scc1 L_aux")
    vK, vV = 4, 5
    MASK = 8
    AT = 12
    D = 20
    O = 28
    S = 32
    TM = 48
    BQ = 64
    RING = 128
    assert R * 4 + RING <= 256
    if prio: A(f"s_setprio {prio}")
    A("v_bfe_u32 v6, v2, 1, 1"); A("v_lshlrev_b32 v6, 10, v6")
    A("v_lshrrev_b32 v7, 2, v2"); A("v_lshl_add_u32 v6, v7, 8, v6")
    A("v_and_b32 v7, 1, v2"); A("v_lshl_add_u32 v6, v7, 6, v6")
    A(f"v_lshl_add_u32 v{vK}, v3, 4, v6")
    A(f"v_lshlrev_b32 v{vV}, 4, v0")
    A("s_lshl_b32 s6, s66, 20"); A("s_lshr_b32 s7, s66, 12")
    if CV is None: CV = C
    A(f"s_mul_i32 s42, s3, {C*1024}")
    if rotm:
        A(f"s_mul_i32 s45, s2, {rotm}"); A(f"s_and_b32 s45, s45, {1024 // (4*C) - 1}"); A(f"s_mul_i32 s45, s45, {4*C*1024}")
        A("s_add_u32 s42, s42, s45")
    A("s_waitcnt lgkmcnt(0)")
    A("s_add_u32 s8, s18, s6"); A("s_addc_u32 s9, s19, s7"); A("s_mov_b32 s10, 0x100000"); A("s_mov_b32 s11, 0x20000")
    A("s_add_u32 s12, s20, s6"); A("s_addc_u32 s13, s21, s7"); A("s_mov_b32 s14, 0x100000"); A("s_mov_b32 s15, 0x20000")
    P.stamp()
    if dyn == 4: A("s_memrealtime s[70:71]")
    cur_page = [None]
    def kv_load(n):
        isv = n >= 256; m = n % 256
        vi, wi = m // C, m % C
        byte = vi * 4 * C * 1024 + (wi // 2) * 2048 + ((wi % 2) * (1024 if isv else 128))
        page, imm = byte // 4096 * 4096, byte % 4096
        if cur_page[0] != page:
            A(f"s_add_u32 s43, s42, {page}"); cur_page[0] = page
            if rotm: A("s_and_b32 s43, s43, 0xfffff")
        v = RING + (n % R) * 4
        A.issue(("kv", n), f"buffer_load_dwordx4 v[{v}:{v+3}], v{vV if isv else vK}, s[{'12:15' if isv else '8:11'}], s43 offen offset:{imm} {kvpol}")
    def win(n):
        if dyn and n >= dyn_from: return NH
        if Ntail is not None and n >= tail_from: return Ntail
        return N
    issued = [0]
    def pace():
        n = issued[0]
        if n >= 512: return False
        w = win(n)
        if dyn and n >= dyn_from:
            lab = f"Lw{n}"
            A(f"s_cbranch_vccnz {lab}"); A(f"s_waitcnt vmcnt({N-1})"); A.label(lab)
            A.wait(("kv", n - NH))
        elif n - w >= 0: A.wait(("kv", n - w))
        kv_load(n); issued[0] += 1
        return True
    if nostream:
        A("s_barrier"); A("s_barrier"); A("s_endpgm")
    for _ in range(K0 if bar0 else N): pace()
    A("v_and_b32 v6, 1, v2"); A("v_lshlrev_b32 v6, 4, v6")
    A("v_mov_b32 v7, 0xffff"); A("v_lshlrev_b32 v7, v6, v7")
    A("v_bfe_u32 v6, v2, 1, 2")
    for r in range(4):
        A(f"v_cmp_eq_u32 vcc, {r}, v6"); A.nop(2); A(f"v_cndmask_b32 v{MASK+r}, 0, v7, vcc")
    A("v_lshrrev_b32 v6, 1, v2")
    for t in range(8): A(f"v_cmp_eq_u32 s[{48+2*t}:{49+2*t}], {t}, v6")
    A("v_and_b32 v6, 1, v2"); A("v_cmp_eq_u32 s[64:65], 0, v6")
    A(f"v_lshl_add_u32 v6, v6, 2, v3"); A(f"v_lshlrev_b32 v6, 5, v6")
    if bar0:
        A("s_barrier")
        P.stamp()
    while issued[0] < S0:
        pace()
        if diag == 3: P.stamp()
    P.stamp()
    A("s_barrier")
    P.stamp()
    for a in range(4):
        for half in range(2):
            for q in range(2):
                v = BQ + a * 16 + half * 8 + q * 4
                A(f"ds_read_b128 v[{v}:{v+3}], v6 offset:{L_QP + a*512 + half*256 + q*16}")
    if issued[0] < R: pace()
    A("s_waitcnt lgkmcnt(0)")
    for k in range(16):
        A(f"v_add_f32 v{TM-16+k}, v{BQ+k}, v{BQ+16+k}")
        A(f"v_add_f32 v{BQ+32+k}, v{BQ+32+k}, v{BQ+48+k}")
    if issued[0] < R: pace()
    for k in range(16):
        A(f"v_add_f32 v{S+k}, v{S+k}, v{BQ+32+k}")
    for k in range(8):
        A(f"v_cvt_pk_bf16_f32 v{TM+k}, v{S+2*k}, v{S+2*k+1}")
    if issued[0] < R: pace()
    for t in range(8):
        for k in range(8):
            A(f"v_cndmask_b32 v{BQ+t*8+k}, 0, v{TM+k}, s[{48+2*t}:{49+2*t}]")
        if t % 2 == 1 and issued[0] < R: pace()
    P.stamp()
    if dyn:
        A("s_mov_b64 vcc, 0")
        if dyn == 5:
            A(f"s_lshr_b32 s67, {wmask}, s3"); A("s_bitcmp1_b32 s67, 0"); A("s_cselect_b64 vcc, -1, 0")
        A("s_lshl_b32 s67, s3, 2"); A(f"v_mov_b32 v{TM+12}, s67"); A(f"v_mov_b32 v{TM+14}, 0")
    deferred = []
    unit = [0]
    def run_deferred(force=False):
        k = 0
        while k < len(deferred):
            if force or deferred[k][0] <= unit[0]:
                deferred.pop(k)[1]()
            else: k += 1
    def merge(t16):
        d = D + (t16 % 2) * 4
        a, b = TM + 8, TM + 9
        A(f"v_cndmask_b32 v{a}, v{d+3}, v{d}, s[64:65]")
        A(f"v_cndmask_b32 v{b}, v{d+1}, v{d+2}, s[64:65]")
        A.nop(2)
        A(f"v_add_f32_dpp v{a}, v{b}, v{a} quad_perm:[1,0,3,2] row_mask:0xf bank_mask:0xf")
        bf16r(A, a, a)
        A(f"v_mul_f32 v{a}, {SCALE:#x}, v{a}")
        bf16r(A, S + t16, a)
    def hooks(step, cc):
        if not dyn or dyn == 5: return
        if dyn == 4:
            if cc == 2: A("s_memrealtime s[68:69]")
            if cc == 6 and step >= 2:
                tref = T2 + (min(step, 16) - 2) * TK + max(step - 16, 0) * TV + MARG
                A("s_waitcnt lgkmcnt(0)"); A("s_sub_u32 s68, s68, s70")
                A(f"s_cmp_gt_u32 s68, {tref}"); A("s_cselect_b64 vcc, -1, 0")
            return
        if cc == 2:
            A(f"v_mov_b32 v{TM+11}, {step}")
            A(f"ds_write_b32 v{TM+12}, v{TM+11} offset:{L_PROG}")
            if dyn == 3: A(f"ds_read_b32 v{TM+13}, v{TM+14} offset:{L_MODE}")
        if cc == 6:
            if dyn == 3:
                A("s_waitcnt lgkmcnt(0)"); A(f"v_readfirstlane_b32 s67, v{TM+13}")
                A("s_cmp_lg_u32 s67, 0"); A("s_cselect_b64 vcc, -1, 0")
            elif dyn == 2:
                if step == even_boost[0]: A("s_bitcmp0_b32 s2, 0"); A("s_cselect_b64 vcc, -1, 0")
                if step == even_boost[1]: A("s_mov_b64 vcc, 0")
    def k_consume(c):
        hooks(c // 16, c % 16)
        if diag == 4 and c % 32 == 0 and c: P.stamp()
        t16, tt, half = c // 16, (c % 16) // 2, c % 2
        d = D + (t16 % 2) * 4
        v = RING + (c % R) * 4
        A.wait(("kv", c))
        b = BQ + tt * 8 + half * 4
        cs = "0" if c % 16 == 0 else f"v[{d}:{d+3}]"
        A(f"v_mfma_f32_16x16x32_bf16 v[{d}:{d+3}], v[{v}:{v+3}], v[{b}:{b+3}], {cs}")
        if c % 16 == 15: deferred.append((unit[0] + 9, lambda t=t16: merge(t)))
    def pexp(t16):
        a = TM + 10
        A(f"v_sub_f32 v{a}, v{S+t16}, v{TM}")
        A(f"v_mul_f32 v{a}, {LOG2E:#x}, v{a}")
        A(f"v_exp_f32 v{a}, v{a}")
        A.nop(1)
        A(f"v_add_f32 v{TM+1}, v{TM+1}, v{a}")
        A(f"v_cvt_pk_bf16_f32 v{S+t16}, v{a}, v{a}")
    def abuild(c):
        at = AT + (c % 2) * 4
        for r in range(4):
            A(f"v_and_b32_dpp v{at+r}, v{S + c//16}, v{MASK+r} row_newbcast:{c%16} row_mask:0xf bank_mask:0xf")
    def v_consume(c):
        hooks(16 + c // 16, c % 16)
        if diag == 4 and c % 64 == 0 and c: P.stamp()
        at = AT + (c % 2) * 4
        v = RING + ((256 + c) % R) * 4
        if c + 1 < 256: abuild(c + 1)
        else: A.nop(2)
        A.wait(("kv", 256 + c))
        cs = "0" if c == 0 else f"v[{O}:{O+3}]"
        A(f"v_mfma_f32_16x16x32_bf16 v[{O}:{O+3}], v[{at}:{at+3}], v[{v}:{v+3}], {cs}")
        if c % 16 == 4 and c // 16 + 1 < 16: pexp(c // 16 + 1)
    c = 0
    while c < 256:
        can_issue = issued[0] < 512 and issued[0] - R < c
        if can_issue: pace()
        lag = issued[0] - win(max(issued[0]-1,0)) - c
        k = catch if lag > 1 else 1
        for _ in range(k):
            if c < 256:
                k_consume(c); c += 1
                unit[0] += 1; run_deferred()
    A.nop(8)
    run_deferred(force=True)
    P.stamp()
    def pace_ok():
        if issued[0] < 512 and issued[0] - R < 256: pace()
    A(f"v_max3_f32 v{TM}, v{S}, v{S+1}, v{S+2}")
    for k in range(3, 15, 2): A(f"v_max3_f32 v{TM}, v{TM}, v{S+k}, v{S+k+1}")
    A(f"v_max_f32 v{TM}, v{TM}, v{S+15}")
    pace_ok()
    allreduce(A, "max", TM, TM + 2)
    pace_ok()
    A(f"v_mov_b32 v{TM+1}, 0")
    pexp(0)
    A.nop(2)
    abuild(0)
    P.stamp()
    c = 0
    while c < 256:
        can_issue = issued[0] < 512 and issued[0] - R < 256 + c
        if can_issue: pace()
        lag = issued[0] - win(max(issued[0]-1,0)) - (256 + c)
        k = catch if (lag > 1 or issued[0] >= 512) else 1
        for _ in range(k):
            if c < 256:
                v_consume(c); c += 1
    P.stamp()
    allreduce(A, "add", TM + 1, TM + 2)
    A("v_lshlrev_b32 v6, 5, v2"); A("v_lshl_add_u32 v6, v3, 4, v6")
    A("s_lshl_b32 s44, s3, 9"); A("v_add_u32 v6, s44, v6")
    A("s_lshl_b32 s44, s3, 3"); A("v_mov_b32 v7, s44")
    A(f"v_mov_b32 v{TM+2}, v{TM}"); A(f"v_mov_b32 v{TM+3}, v{TM+1}")
    assert (TM + 2) % 2 == 0
    A("s_mov_b32 exec_hi, 0")
    A(f"ds_write_b128 v6, v[{O}:{O+3}] offset:{L_OP}")
    A("s_mov_b32 exec_lo, 1")
    A(f"ds_write_b64 v7, v[{TM+2}:{TM+3}] offset:{L_ML}")
    A("s_waitcnt lgkmcnt(0)")
    A("s_barrier")
    P.stamp()
    P.flush()
    A("s_endpgm")
    A.vm = []
    P = Prof(A, prof, 63)
    A.label("L_aux")
    SEL = 8
    AT = 16
    DO = 24
    DQ = 44
    X = 48
    F = 53
    T = 4
    PP = 64
    BUF = 96
    A("s_sub_u32 s42, s3, 4")
    A("s_mul_i32 s43, s42, 160"); A("v_mul_u32_u24 v4, 40, v3"); A("v_add_u32 v4, s43, v4")
    A("v_lshlrev_b32 v4, 13, v4"); A("v_lshl_add_u32 v4, v2, 4, v4")
    A("v_lshlrev_b32 v5, 2, v0")
    A("s_mul_i32 s6, s4, 1280"); A("s_lshl_b32 s7, s5, 8")
    A("s_sub_u32 s44, 5242880, s7")
    A("s_waitcnt lgkmcnt(0)")
    srd(A, 8, 16, 17, 6, 1280)
    srd(A, 12, 22, 23, 7, "s44")
    P.stamp()
    for k in range(5):
        A.issue(("x", k), f"buffer_load_dword v{X+k}, v5, s[8:11], 0 offen offset:{k*256}")
    A("s_lshl_b32 s45, s4, 15")
    def wq_load(j):
        v = BUF + 4 * j
        if NQ and j >= NQ: A.wait(("wq", j - NQ))
        A.issue(("wq", j), f"buffer_load_dwordx4 v[{v}:{v+3}], v4, s[12:15], s45 offen {wpol}")
        if j < 39:
            A("s_add_u32 s45, s45, 8192"); A(f"s_cmp_eq_u32 s45, {40*8192}"); A("s_cselect_b32 s45, 0, s45")
    if bar0 == 2: WQ0 = 40
    for j in range(WQ0): wq_load(j)
    if bar0 == 2: A("s_barrier")
    A("v_and_b32 v6, 1, v2")
    A("v_cmp_eq_u32 vcc, 0, v6")
    A("v_mov_b32 v60, 0x01000c0c"); A("v_mov_b32 v61, 0x0c0c0100")
    A("v_cndmask_b32 v60, v60, v61, vcc")
    A("v_mov_b32 v6, 0x03020c0c"); A("v_mov_b32 v61, 0x0c0c0302")
    A("v_cndmask_b32 v61, v6, v61, vcc")
    A("v_bfe_u32 v6, v2, 1, 2"); A("v_mov_b32 v7, 0x0c0c0c0c")
    for r in range(4):
        A(f"v_cmp_eq_u32 vcc, {r}, v6"); A.nop(2)
        A(f"v_cndmask_b32 v{SEL+r}, v7, v60, vcc"); A(f"v_cndmask_b32 v{SEL+4+r}, v7, v61, vcc")
    for k in range(20): A(f"v_mov_b32 v{DO+k}, 0")
    A.wait(("x", 4))
    P.stamp()
    LN = Asm(); layernorm(LN, X, F, (84, 85, 86, 87), X)
    rem = list(range(WQ0, 40)); step = max(1, len(LN.L) // (len(rem) + 1))
    for i, ins in enumerate(LN.L):
        A.L.append(ins)
        if rem and i % step == step - 1: wq_load(rem.pop(0))
    for j in rem: wq_load(j)
    if bar0 == 1: A("s_barrier")
    A("s_mul_i32 s43, s42, 1280")
    A("v_lshlrev_b32 v5, 2, v0"); A("v_add_u32 v5, s43, v5")
    for k in range(5): A(f"ds_write_b32 v5, v{X+k} offset:{L_XN + 256*k}")
    A("s_mul_i32 s43, s42, 1600"); A("v_mul_u32_u24 v5, 80, v3"); A("v_add_u32 v5, s43, v5")
    A("s_lshl_b32 s46, s4, 3")
    A("s_waitcnt lgkmcnt(0)")
    for k in range(10):
        A(f"v_add_u32 v6, s46, v5")
        A(f"ds_read_b64 v[{PP+2*k}:{PP+2*k+1}], v6 offset:{L_XN}")
        A("s_add_u32 s46, s46, 8"); A("s_cmp_eq_u32 s46, 80"); A("s_cselect_b32 s46, 0, s46")
    A("s_waitcnt lgkmcnt(0)")
    P.stamp()
    def abuild_p(preg, par, st):
        at = AT + st * 4
        for r in range(4): A(f"v_perm_b32 v{at+r}, v{preg}, v{preg}, v{SEL + par*4 + r}")
    abuild_p(PP, 0, 0)
    for j in range(40):
        if j + 1 < 40: abuild_p(PP + (j + 1) // 2, (j + 1) % 2, (j + 1) % 2)
        else: A.nop(2)
        A.wait(("wq", j))
        at = AT + (j % 2) * 4; v = BUF + 4 * j
        cs = "0" if j == 0 else f"v[{DQ}:{DQ+3}]"
        A(f"v_mfma_f32_16x16x32_bf16 v[{DQ}:{DQ+3}], v[{at}:{at+3}], v[{v}:{v+3}], {cs}")
    A("v_lshlrev_b32 v6, 5, v2"); A("v_lshl_add_u32 v6, v3, 4, v6")
    A("s_lshl_b32 s43, s42, 9"); A("v_add_u32 v7, s43, v6")
    A.nop(6)
    A("s_mov_b32 exec_hi, 0")
    A(f"ds_write_b128 v7, v[{DQ}:{DQ+3}] offset:{L_QP}")
    A("s_mov_b32 exec_hi, -1")
    if dyn:
        A("v_lshlrev_b32 v6, 2, v0"); A("v_mov_b32 v7, 0")
        A("s_mov_b64 exec, 0xff")
        A(f"ds_write_b32 v6, v7 offset:{L_PROG}")
        A("s_mov_b64 exec, -1")
    A("s_waitcnt lgkmcnt(0)")
    P.stamp()
    A("s_barrier")
    A("s_cmp_lg_u32 s42, 0"); A("s_cbranch_scc1 L_wo")
    A("s_cmp_ge_u32 s5, %d" % (0 if nomlp else 27)); A("s_cbranch_scc1 L_wo")
    layernorm(A, X, F, T, X)
    A("v_lshlrev_b32 v4, 2, v0")
    for k in range(5): A(f"ds_write_b32 v4, v{X+k} offset:{L_Y + 256*k}")
    A("s_lshl_b32 s6, s5, 7")
    A(f"s_sub_u32 s44, {640*3456}, s6")
    srd(A, 8, 28, 29, 6, "s44")
    srd(A, 12, 30, 31, 6, 128)
    A("v_lshlrev_b32 v5, 1, v0")
    A.issue(("b1", 0), f"buffer_load_ushort v{F}, v5, s[12:15], 0 offen")
    A("v_lshrrev_b32 v5, 3, v2"); A("v_lshl_add_u32 v5, v3, 1, v5")
    A("v_mul_u32_u24 v6, 160, v5")
    A(f"s_mov_b32 s45, {80*3456}"); A("v_mul_lo_u32 v5, s45, v5")
    A("v_and_b32 v7, 7, v2"); A("v_lshl_add_u32 v5, v7, 4, v5")
    A("s_waitcnt lgkmcnt(0)")
    PY = BUF
    for k in range(10): A(f"ds_read_b128 v[{PY+4*k}:{PY+4*k+3}], v6 offset:{L_Y + 16*k}")
    RB, RN = BUF + 40, 30
    def w1_load(j):
        v = RB + (j % RN) * 4
        A(f"s_mov_b32 s45, {j*3456}")
        A.issue(("w1", j), f"buffer_load_dwordx4 v[{v}:{v+3}], v5, s[8:11], s45 offen {wpol}")
    for j in range(NW): w1_load(j)
    A("s_waitcnt lgkmcnt(0)")
    abuild_p(PY, 0, 0)
    for j in range(80):
        if j + 1 < 80: abuild_p(PY + (j + 1) // 2, (j + 1) % 2, (j + 1) % 2)
        else: A.nop(2)
        A.wait(("w1", j))
        at = AT + (j % 2) * 4; v = RB + (j % RN) * 4
        cs = "0" if j == 0 else f"v[{DQ}:{DQ+3}]"
        A(f"v_mfma_f32_16x16x32_bf16 v[{DQ}:{DQ+3}], v[{at}:{at+3}], v[{v}:{v+3}], {cs}")
        if j + NW < 80: w1_load(j + NW)
    A("s_mul_i32 s6, s5, 81920")
    A(f"s_sub_u32 s44, {1728*1280}, s6")
    srd(A, 8, 32, 33, 6, "s44")
    A("v_mul_u32_u24 v5, 20480, v3"); A("v_lshl_add_u32 v5, v2, 4, v5")
    def w2_load(n):
        jj, cb = n // 5, n % 5
        v = RB + (n % RN) * 4
        if cb == 0: A(f"s_mov_b32 s45, {jj*1280}")
        A.issue(("w2", n), f"buffer_load_dwordx4 v[{v}:{v+3}], v5, s[8:11], s45 offen offset:{cb*256} {wpol}")
    for n in range(10): w2_load(n)
    A("v_lshrrev_b32 v6, 1, v3"); A("v_lshrrev_b32 v7, 3, v2")
    A("v_cmp_eq_u32 vcc, v6, v7")
    A("v_lshlrev_b32 v6, 8, v6"); A("v_and_b32 v7, 7, v2"); A("v_lshl_add_u32 v6, v7, 5, v6")
    A("v_and_b32 v7, 1, v3"); A("v_lshl_add_u32 v6, v7, 4, v6")
    A("s_and_saveexec_b64 s[46:47], vcc")
    A(f"ds_write_b128 v6, v[{DQ}:{DQ+3}] offset:{L_T}")
    A("s_mov_b64 exec, s[46:47]")
    A("v_lshlrev_b32 v6, 2, v0")
    A("s_waitcnt lgkmcnt(0)")
    A(f"ds_read_b32 v{F+1}, v6 offset:{L_T}"); A(f"ds_read_b32 v{F+2}, v6 offset:{L_T+256}")
    A("s_waitcnt lgkmcnt(0)")
    A(f"v_add_f32 v{F+1}, v{F+1}, v{F+2}")
    bf16r(A, F + 1, F + 1)
    A.wait(("b1", 0))
    A(f"v_lshlrev_b32 v{F}, 16, v{F}")
    A(f"v_add_f32 v{F+1}, v{F+1}, v{F}")
    bf16r(A, F + 1, F + 1)
    x_, u_, e_ = F + 1, F + 2, F + 3
    A(f"v_mul_f32 v{u_}, v{x_}, v{x_}"); A(f"v_mul_f32 v{u_}, v{u_}, v{x_}")
    A(f"v_mov_b32 v{e_}, {f2u(0.044715):#x}"); A(f"v_fma_f32 v{u_}, v{u_}, v{e_}, v{x_}")
    A(f"v_mul_f32 v{u_}, {f2u(-2*0.7978845608028654*1.4426950408889634):#x}, v{u_}")
    A(f"v_exp_f32 v{u_}, v{u_}"); A.nop(1)
    A(f"v_add_f32 v{u_}, 1.0, v{u_}"); A(f"v_rcp_f32 v{u_}, v{u_}"); A.nop(1)
    A(f"v_mul_f32 v{u_}, v{x_}, v{u_}")
    A(f"v_cvt_pk_bf16_f32 v{u_}, v{u_}, v{u_}")
    A("v_lshlrev_b32 v6, 1, v0")
    A(f"ds_write_b16 v6, v{u_} offset:{L_HV}")
    A("v_lshlrev_b32 v6, 5, v3")
    A("s_waitcnt lgkmcnt(0)")
    for k in range(2): A(f"ds_read_b128 v[{PP+4*k}:{PP+4*k+3}], v6 offset:{L_HV + 16*k}")
    A("s_waitcnt lgkmcnt(0)")
    abuild_p(PP, 0, 0)
    nl = 10
    for jj in range(16):
        if jj + 1 < 16: abuild_p(PP + (jj + 1) // 2, (jj + 1) % 2, (jj + 1) % 2)
        else: A.nop(2)
        at = AT + (jj % 2) * 4
        for cb in range(5):
            n = jj * 5 + cb
            A.wait(("w2", n))
            v = RB + (n % RN) * 4; d = DO + 4 * cb
            A(f"v_mfma_f32_16x16x32_bf16 v[{d}:{d+3}], v[{at}:{at+3}], v[{v}:{v+3}], v[{d}:{d+3}]")
            if nl < 80: w2_load(nl); nl += 1
    A.waitall()
    A.label("L_wo")
    A.vm = []
    A("s_mul_i32 s6, s5, 163840")
    srd(A, 8, 24, 25, 6, 163840)
    A("s_lshl_b32 s43, s42, 5"); A("v_lshlrev_b32 v5, 3, v3"); A("v_add_u32 v5, s43, v5")
    A("v_mul_u32_u24 v5, 1280, v5"); A("v_lshl_add_u32 v5, v2, 4, v5")
    for n in range(0 if nowo else 40):
        jj, cb = n // 5, n % 5
        v = BUF + 4 * n
        if cb == 0: A(f"s_mov_b32 s45, {jj*1280}")
        if n >= NA: A.wait(("wo", n - NA))
        A.issue(("wo", n), f"buffer_load_dwordx4 v[{v}:{v+3}], v5, s[8:11], s45 offen offset:{cb*256} {wpol}")
    if dyn == 3:
        A("s_cmp_lg_u32 s42, 3"); A("s_cbranch_scc1 L_ctrl_done")
        A.waitall() if False else None
        A(f"s_mov_b32 s50, {CK0}"); A("s_mov_b32 s51, 16"); A("s_mov_b32 s52, 0"); A("s_mov_b32 s53, 0")
        A("v_mov_b32 v6, 0"); A("s_mov_b64 exec, 1")
        A.label("L_ctrl")
        A(f"ds_read_b32 v5, v6 offset:{L_PROG}")
        A("s_waitcnt lgkmcnt(0)")
        A("v_readfirstlane_b32 s54, v5")
        A(f"s_cmp_ge_u32 s54, {CKEXIT}"); A("s_cbranch_scc1 L_ctrl_exit")
        A("s_cmp_eq_u32 s52, 0"); A("s_cbranch_scc1 L_ctrl_a")
        A("s_cmp_lt_u32 s54, s53"); A("s_cbranch_scc1 L_ctrl_a")
        A("s_mov_b32 s52, 0"); A("v_mov_b32 v5, 0"); A(f"ds_write_b32 v6, v5 offset:{L_MODE}")
        A.label("L_ctrl_a")
        A("s_cmp_lt_u32 s54, s50"); A("s_cbranch_scc1 L_ctrl_sleep")
        A("v_mov_b32 v7, 1"); A("v_mov_b32 v4, s51")
        A("global_atomic_add v5, v4, v7, s[38:39] sc0")
        A("s_waitcnt vmcnt(0)")
        A("v_readfirstlane_b32 s55, v5")
        A(f"s_add_u32 s50, s50, {CKS}"); A("s_add_u32 s51, s51, 32")
        A("s_mov_b32 s56, 0")
        for th, bo in zip(TH, BO):
            A(f"s_cmp_ge_u32 s55, {th}"); A(f"s_cselect_b32 s56, {bo}, s56")
        A("s_cmp_eq_u32 s56, 0"); A("s_cbranch_scc1 L_ctrl_sleep")
        A(f"ds_read_b32 v5, v6 offset:{L_PROG}")
        A("s_waitcnt lgkmcnt(0)")
        A("v_readfirstlane_b32 s54, v5")
        A("s_add_u32 s53, s54, s56"); A("s_add_u32 s53, s53, 1")
        A("s_mov_b32 s52, 1"); A("v_mov_b32 v5, 1"); A(f"ds_write_b32 v6, v5 offset:{L_MODE}")
        A.label("L_ctrl_sleep")
        A(f"s_sleep {sleep}")
        A("s_branch L_ctrl")
        A.label("L_ctrl_exit")
        A("s_mov_b64 exec, -1")
        A.label("L_ctrl_done")
    XB = 60
    XB = 92
    if fused:
        A("s_lshl_b32 s43, s42, 6"); A("v_add_u32 v4, s43, v0"); A("v_lshlrev_b32 v4, 3, v4")
        A("s_mul_i32 s6, s4, 1280")
        srd(A, 12, 16, 17, 6, 1280)
        A.issue(("xf", 0), f"buffer_load_dwordx2 v[{XB}:{XB+1}], v4, s[12:15], 0 offen")
        srd(A, 68, 34, 35, None, 1280)
        A.issue(("xf", 1), f"buffer_load_dwordx2 v[{XB+2}:{XB+3}], v4, s[68:71], 0 offen")
    A("v_lshlrev_b32 v4, 5, v3"); A("s_lshl_b32 s43, s42, 7"); A("v_add_u32 v4, s43, v4")
    A("v_mov_b32 v5, 0")
    A.waitall()
    P.stamp()
    A("s_barrier")
    P.stamp()
    ML = PP
    OV = PP + 8
    A(f"ds_read_b128 v[{ML}:{ML+3}], v5 offset:{L_ML}"); A(f"ds_read_b128 v[{ML+4}:{ML+7}], v5 offset:{L_ML+16}")
    OVR = [72, 80, 48, 16]
    for w in range(4):
        for q in range(2):
            v = OVR[w] + 4 * q
            A(f"ds_read_b128 v[{v}:{v+3}], v4 offset:{L_OP + w*512 + q*16}")
    A("s_waitcnt lgkmcnt(8)")
    A(f"v_max3_f32 v6, v{ML}, v{ML+2}, v{ML+4}"); A(f"v_max_f32 v6, v6, v{ML+6}")
    for w in range(4):
        A(f"v_sub_f32 v{ML+2*w}, v{ML+2*w}, v6"); A(f"v_mul_f32 v{ML+2*w}, {LOG2E:#x}, v{ML+2*w}"); A(f"v_exp_f32 v{ML+2*w}, v{ML+2*w}")
    A.nop(1)
    A(f"v_mul_f32 v7, v{ML}, v{ML+1}")
    for w in range(1, 4): A(f"v_fmac_f32 v7, v{ML+2*w}, v{ML+2*w+1}")
    A("v_rcp_f32 v7, v7"); A.nop(1)
    A("s_waitcnt lgkmcnt(0)")
    for k in range(8):
        A(f"v_mul_f32 v{OVR[0]+k}, v{OVR[0]+k}, v{ML}")
        for w in range(1, 4): A(f"v_fmac_f32 v{OVR[0]+k}, v{OVR[w]+k}, v{ML+2*w}")
        A(f"v_mul_f32 v{OVR[0]+k}, v{OVR[0]+k}, v7")
    PO = 56
    for k in range(4): A(f"v_cvt_pk_bf16_f32 v{PO+k}, v{OVR[0]+2*k}, v{OVR[0]+2*k+1}")
    abuild_p(PO, 0, 0)
    for jj in range(8):
        if jj + 1 < 8: abuild_p(PO + (jj + 1) // 2, (jj + 1) % 2, (jj + 1) % 2)
        else: A.nop(2)
        at = AT + (jj % 2) * 4
        if jj == 0: A.nop(2)
        for cb in range(5):
            v = BUF + 4 * (jj * 5 + cb); d = DO + 4 * cb
            A(f"v_mfma_f32_16x16x32_bf16 v[{d}:{d+3}], v[{at}:{at+3}], v[{v}:{v+3}], v[{d}:{d+3}]")
    A("v_lshlrev_b32 v6, 5, v2"); A("v_lshl_add_u32 v6, v3, 4, v6")
    A("s_mul_i32 s43, s42, 2560"); A("v_add_u32 v6, s43, v6")
    A.nop(4)
    A("s_mov_b32 exec_hi, 0")
    for cb in range(5):
        A(f"ds_write_b128 v6, v[{DO+4*cb}:{DO+4*cb+3}] offset:{L_OUTP + cb*512}")
    A("s_mov_b32 exec_hi, -1")
    A("s_waitcnt lgkmcnt(0)")
    P.stamp()
    A("s_barrier")
    if not fused:
        A("s_lshl_b32 s43, s42, 6"); A("v_add_u32 v4, s43, v0")
        A("v_cmp_gt_u32 vcc, 160, v4")
        A("v_lshlrev_b32 v4, 4, v4")
        A("s_and_saveexec_b64 s[46:47], vcc")
        A("s_cbranch_execz L_aux_done")
        for w in range(4): A(f"ds_read_b128 v[{72+4*w}:{75+4*w}], v4 offset:{L_OUTP + w*2560}")
        A("s_mul_i32 s6, s66, 2560")
        srd(A, 8, 40, 41, 6, 2560)
        A("s_waitcnt lgkmcnt(0)")
        for k in range(4):
            A(f"v_add_f32 v{72+k}, v{72+k}, v{76+k}"); A(f"v_add_f32 v{80+k}, v{80+k}, v{84+k}"); A(f"v_add_f32 v{72+k}, v{72+k}, v{80+k}")
        A("buffer_store_dwordx4 v[72:75], v4, s[8:11], 0 offen")
    else:
        A("v_lshlrev_b32 v4, 4, v0")
        A("s_cmp_lg_u32 s42, 0"); A("s_cbranch_scc1 L_wait_flag")
        for i in range(3):
            for w in range(4):
                v = BUF + 16 * i + 4 * w
                A(f"ds_read_b128 v[{v}:{v+3}], v4 offset:{L_OUTP + w*2560 + i*1024}")
        A("s_mul_i32 s6, s66, 2560")
        srd(A, 8, 40, 41, 6, 2560)
        for i in range(3):
            A(f"s_waitcnt lgkmcnt({8-4*i})")
            v = BUF + 16 * i
            for k in range(4):
                A(f"v_add_f32 v{v+k}, v{v+k}, v{v+4+k}"); A(f"v_add_f32 v{v+8+k}, v{v+8+k}, v{v+12+k}"); A(f"v_add_f32 v{v+k}, v{v+k}, v{v+8+k}")
            A(f"buffer_store_dwordx4 v[{v}:{v+3}], v4, s[8:11], 0 offen offset:{i*1024} sc1")
        A("s_lshl_b32 s6, s4, 5")
        A("v_mov_b32 v6, s6"); A("v_mov_b32 v7, 1")
        A("s_waitcnt vmcnt(0)")
        P.stamp()
        A("s_mov_b64 s[46:47], exec"); A("s_mov_b64 exec, 1")
        A("global_atomic_add v5, v6, v7, s[38:39] sc0")
        A("s_waitcnt vmcnt(0)")
        A("v_mov_b32 v6, 0")
        A(f"ds_write_b32 v6, v5 offset:{L_FLAG}")
        A("s_mov_b64 exec, s[46:47]")
        A("s_waitcnt lgkmcnt(0)")
        A.label("L_wait_flag")
        P.stamp()
        A("s_barrier")
        A("v_mov_b32 v6, 0")
        A(f"ds_read_b32 v5, v6 offset:{L_FLAG}")
        A("s_waitcnt lgkmcnt(0)")
        A("v_readfirstlane_b32 s43, v5")
        A("s_cmp_lg_u32 s43, 31"); A("s_cbranch_scc1 L_aux_done")
        A("s_mul_i32 s6, s4, 81920"); A("s_mul_i32 s43, s42, 20480"); A("s_add_u32 s6, s6, s43")
        srd(A, 8, 40, 41, 6, 20480)
        for i in range(3):
            for sl in range(8):
                v = BUF + (i * 8 + sl) * 4
                if i == 2:
                    if sl == 0: A("s_mov_b32 exec_hi, 0")
                A(f"s_mov_b32 s45, {sl*2560}")
                A.issue(("g", i, sl), f"buffer_load_dwordx4 v[{v}:{v+3}], v4, s[8:11], s45 offen offset:{i*1024} sc1")
        A("s_mov_b32 exec_hi, -1")
        A("s_mul_i32 s43, s42, 2560"); A("v_add_u32 v6, s43, v4")
        for i in range(3):
            A.wait(("g", i, 7))
            v = BUF + i * 32
            for k in range(4):
                A(f"v_add_f32 v{v+k}, v{v+k}, v{v+4+k}"); A(f"v_add_f32 v{v+8+k}, v{v+8+k}, v{v+12+k}")
                A(f"v_add_f32 v{v+16+k}, v{v+16+k}, v{v+20+k}"); A(f"v_add_f32 v{v+24+k}, v{v+24+k}, v{v+28+k}")
                A(f"v_add_f32 v{v+k}, v{v+k}, v{v+8+k}"); A(f"v_add_f32 v{v+16+k}, v{v+16+k}, v{v+24+k}")
                A(f"v_add_f32 v{v+k}, v{v+k}, v{v+16+k}")
            if i == 2: A("s_mov_b32 exec_hi, 0")
            A(f"ds_write_b128 v6, v[{v}:{v+3}] offset:{L_OUTP + i*1024}")
        A("s_mov_b32 exec_hi, -1")
        A("s_waitcnt lgkmcnt(0)")
        P.stamp()
        A("s_barrier")
        A("s_lshl_b32 s43, s42, 6"); A("v_add_u32 v4, s43, v0")
        A("v_cmp_gt_u32 vcc, 160, v4")
        A("v_lshlrev_b32 v5, 3, v4")
        A("v_lshlrev_b32 v4, 4, v4")
        A("s_and_saveexec_b64 s[46:47], vcc")
        A("s_cbranch_execz L_aux_done")
        for w in range(4): A(f"ds_read_b128 v[{72+4*w}:{75+4*w}], v4 offset:{L_OUTP + w*2560}")
        A("s_mul_i32 s6, s4, 1280")
        srd(A, 8, 36, 37, 6, 1280)
        A("s_waitcnt lgkmcnt(0)")
        for k in range(4):
            A(f"v_add_f32 v{72+k}, v{72+k}, v{76+k}"); A(f"v_add_f32 v{80+k}, v{80+k}, v{84+k}"); A(f"v_add_f32 v{72+k}, v{72+k}, v{80+k}")
        for k in range(2):
            A(f"v_lshlrev_b32 v76, 16, v{XB+2+k}"); A(f"v_and_b32 v77, 0xffff0000, v{XB+2+k}")
            A(f"v_add_f32 v{72+2*k}, v{72+2*k}, v76"); A(f"v_add_f32 v{73+2*k}, v{73+2*k}, v77")
            A(f"v_lshlrev_b32 v76, 16, v{XB+k}"); A(f"v_and_b32 v77, 0xffff0000, v{XB+k}")
            A(f"v_add_f32 v{72+2*k}, v{72+2*k}, v76"); A(f"v_add_f32 v{73+2*k}, v{73+2*k}, v77")
        A("v_cvt_pk_bf16_f32 v72, v72, v73"); A("v_cvt_pk_bf16_f32 v73, v74, v75")
        A("buffer_store_dwordx2 v[72:73], v5, s[8:11], 0 offen")
    A.label("L_aux_done")
    P.stamp()
    P.flush()
    A.label("L_end")
    A("s_endpgm")
    out += A.L
    kernels = [(kname, 256, 102)]
    if not fused:
        B = Asm()
        out.append(".globl reduce_kernel"); out.append(".p2align 8"); out.append(".type reduce_kernel,@function")
        B.label("reduce_kernel")
        B("s_cmp_ge_u32 s2, 160"); B("s_cbranch_scc1 R_end")
        B("s_load_dwordx2 s[4:5], s[0:1], 0")
        B("s_load_dwordx4 s[8:11], s[0:1], 72")
        B("s_load_dwordx2 s[6:7], s[0:1], 96")
        B("s_mul_hi_u32 s12, s2, 0xccccccd")
        B("s_mul_i32 s13, s12, 20"); B("s_sub_u32 s13, s2, s13")
        B("v_and_b32 v1, 7, v0"); B("v_lshrrev_b32 v2, 3, v0")
        B("v_mul_u32_u24 v3, 10240, v2"); B("v_lshl_add_u32 v3, v1, 4, v3")
        B("s_lshl_b32 s14, s13, 7"); B("v_add_u32 v3, s14, v3")
        B("s_mul_i32 s15, s12, 81920")
        B("s_waitcnt lgkmcnt(0)")
        B("s_add_u32 s16, s6, s15"); B("s_addc_u32 s17, s7, 0"); B("s_mov_b32 s18, 81920"); B("s_mov_b32 s19, 0x20000")
        B("s_mov_b32 s20, 2560"); B("s_mov_b32 s21, 5120"); B("s_mov_b32 s22, 7680")
        B("buffer_load_dwordx4 v[4:7], v3, s[16:19], 0 offen")
        B("buffer_load_dwordx4 v[8:11], v3, s[16:19], s20 offen")
        B("buffer_load_dwordx4 v[12:15], v3, s[16:19], s21 offen")
        B("buffer_load_dwordx4 v[16:19], v3, s[16:19], s22 offen")
        B("s_mul_i32 s15, s12, 1280"); B("s_lshl_b32 s14, s13, 6")
        B("v_lshlrev_b32 v20, 3, v1"); B("v_add_u32 v20, s14, v20")
        B("s_add_u32 s24, s4, s15"); B("s_addc_u32 s25, s5, 0"); B("s_mov_b32 s26, 1280"); B("s_mov_b32 s27, 0x20000")
        B("s_mov_b32 s28, s8"); B("s_mov_b32 s29, s9"); B("s_mov_b32 s30, 1280"); B("s_mov_b32 s31, 0x20000")
        B("s_add_u32 s32, s10, s15"); B("s_addc_u32 s33, s11, 0"); B("s_mov_b32 s34, 1280"); B("s_mov_b32 s35, 0x20000")
        B("buffer_load_dwordx2 v[22:23], v20, s[24:27], 0 offen")
        B("buffer_load_dwordx2 v[24:25], v20, s[28:31], 0 offen")
        B("s_waitcnt vmcnt(2)")
        for k in range(4):
            B(f"v_add_f32 v{4+k}, v{4+k}, v{8+k}"); B(f"v_add_f32 v{12+k}, v{12+k}, v{16+k}"); B(f"v_add_f32 v{4+k}, v{4+k}, v{12+k}")
        B.nop(2)
        for k in range(4): B(f"v_add_f32_dpp v{4+k}, v{4+k}, v{4+k} row_ror:8 row_mask:0xf bank_mask:0xf")
        for sw in ("v_permlane16_swap_b32", "v_permlane32_swap_b32"):
            for k in range(4): B(f"v_mov_b32 v{8+k}, v{4+k}")
            B.nop(2)
            for k in range(4): B(f"{sw} v{4+k}, v{8+k}")
            B.nop(1)
            for k in range(4): B(f"v_add_f32 v{4+k}, v{4+k}, v{8+k}")
        B("s_waitcnt vmcnt(0)")
        for k in range(2):
            B(f"v_lshlrev_b32 v8, 16, v{22+k}"); B(f"v_and_b32 v9, 0xffff0000, v{22+k}")
            B(f"v_lshlrev_b32 v10, 16, v{24+k}"); B(f"v_and_b32 v11, 0xffff0000, v{24+k}")
            B(f"v_add_f32 v{4+2*k}, v{4+2*k}, v10"); B(f"v_add_f32 v{5+2*k}, v{5+2*k}, v11")
            B(f"v_add_f32 v{4+2*k}, v{4+2*k}, v8"); B(f"v_add_f32 v{5+2*k}, v{5+2*k}, v9")
        B("v_cvt_pk_bf16_f32 v4, v4, v5"); B("v_cvt_pk_bf16_f32 v5, v6, v7")
        B("v_cmp_gt_u32 vcc, 8, v0"); B("s_and_saveexec_b64 s[36:37], vcc")
        B("buffer_store_dwordx2 v[4:5], v20, s[32:35], 0 offen")
        B.label("R_end"); B("s_endpgm")
        out += B.L
        kernels.append(("reduce_kernel", 32, 48))
    out.append('.section .rodata,"a"')
    for kn, nv, ns in kernels:
        out += [".p2align 6", f".amdhsa_kernel {kn}", f"  .amdhsa_next_free_vgpr {nv}", f"  .amdhsa_next_free_sgpr {ns}",
                f"  .amdhsa_accum_offset {nv}", "  .amdhsa_group_segment_fixed_size 0", "  .amdhsa_kernarg_size 104",
                "  .amdhsa_user_sgpr_count 2", "  .amdhsa_user_sgpr_kernarg_segment_ptr 1", "  .amdhsa_system_sgpr_workgroup_id_x 1",
                "  .amdhsa_float_denorm_mode_32 3", ".end_amdhsa_kernel"]
    return "\n".join(out) + "\n"

if __name__ == "__main__":
    kw = eval("dict(" + (sys.argv[2] if len(sys.argv) > 2 else "") + ")")
    open(sys.argv[1], "w").write(gen(**kw))
```

```python
import struct, sys

NAME = "parallel_sum__gqa_block_cached__mixer_channel_mlp__decode"
HEADER = open("cdna_kernels/" + NAME + ".s.ref").read().split("; Override launch geometry")[0]

def f2u(x): return struct.unpack("<I", struct.pack("<f", x))[0]
SCALE = f2u(128 ** -0.5)
LOG2E = f2u(1.4426950408889634)
INV640 = f2u(1.0 / 640)
EPS = f2u(1e-5)

L_XN = 0
L_Y = 5120
L_QP = 6400
L_T = 8448
L_HV = 8960
L_OP = 9216
L_ML = 11264
L_OUTP = 11520
L_FLAG = 21760
L_PROG = 22528
L_MODE = 22544
L_F = 22784
LDS_BYTES = 22784 + 8 * 2560 + 1024

class Asm:
    def __init__(self):
        self.L = []
        self.vm = []
        self.landed = set()
        self.nlabel = 0
    def __call__(self, s): self.L.append("    " + s)
    def label(self, s): self.L.append(s + ":")
    def c(self, s): self.L.append("    ; " + s)
    def issue(self, tag, ins):
        self(ins); self.vm.append(tag)
        assert len(self.vm) <= 63, "too many outstanding vmem ops"
    def wait(self, tag):
        if tag not in self.vm: return
        i = self.vm.index(tag)
        n = len(self.vm) - 1 - i
        self(f"s_waitcnt vmcnt({n})")
        self.vm = self.vm[i + 1:]
    def waitall(self):
        if self.vm: self("s_waitcnt vmcnt(0)")
        self.vm = []
    def nop(self, n):
        while n > 0:
            k = min(n, 16); self(f"s_nop {k-1}"); n -= k

def allreduce(A, op, t, u):
    for ror in (8, 4, 2, 1):
        A.nop(2)
        A(f"v_{op}_f32_dpp v{t}, v{t}, v{t} row_ror:{ror} row_mask:0xf bank_mask:0xf")
    for sw in ("v_permlane16_swap_b32", "v_permlane32_swap_b32"):
        A(f"v_mov_b32 v{u}, v{t}")
        A.nop(2)
        A(f"{sw} v{t}, v{u}")
        A.nop(1)
        A(f"v_{op}_f32 v{t}, v{t}, v{u}")

def bf16r(A, d, s):
    A(f"v_cvt_pk_bf16_f32 v{d}, v{s}, v{s}")
    A(f"v_and_b32 v{d}, 0xffff0000, v{d}")

def layernorm(A, X, F, T, OUT):
    if isinstance(T, int): T = (T, T+1, T+2, T+3)
    for k in range(5):
        A(f"v_lshlrev_b32 v{F+2*k}, 16, v{X+k}")
        A(f"v_and_b32 v{F+2*k+1}, 0xffff0000, v{X+k}")
    t, u, m, r = T
    A(f"v_add_f32 v{t}, v{F}, v{F+1}")
    for k in range(2, 10): A(f"v_add_f32 v{t}, v{t}, v{F+k}")
    allreduce(A, "add", t, u)
    A(f"v_mul_f32 v{m}, {INV640:#x}, v{t}")
    A(f"v_sub_f32 v{u}, v{F}, v{m}")
    A(f"v_mul_f32 v{t}, v{u}, v{u}")
    for k in range(1, 10):
        A(f"v_sub_f32 v{u}, v{F+k}, v{m}")
        A(f"v_fmac_f32 v{t}, v{u}, v{u}")
    allreduce(A, "add", t, u)
    A(f"v_mul_f32 v{t}, {INV640:#x}, v{t}")
    bf16r(A, t, t)
    A(f"v_add_f32 v{t}, {EPS:#x}, v{t}")
    bf16r(A, t, t)
    A(f"v_sqrt_f32 v{t}, v{t}")
    A.nop(1)
    bf16r(A, t, t)
    A(f"v_rcp_f32 v{r}, v{t}")
    bf16r(A, m, m)
    for k in range(5):
        A(f"v_sub_f32 v{F+2*k}, v{F+2*k}, v{m}")
        A(f"v_sub_f32 v{F+2*k+1}, v{F+2*k+1}, v{m}")
        A(f"v_cvt_pk_bf16_f32 v{u}, v{F+2*k}, v{F+2*k+1}")
        A(f"v_lshlrev_b32 v{F+2*k}, 16, v{u}")
        A(f"v_and_b32 v{F+2*k+1}, 0xffff0000, v{u}")
        A(f"v_mul_f32 v{F+2*k}, v{F+2*k}, v{r}")
        A(f"v_mul_f32 v{F+2*k+1}, v{F+2*k+1}, v{r}")
        A(f"v_cvt_pk_bf16_f32 v{OUT+k}, v{F+2*k}, v{F+2*k+1}")

def srd(A, d, lo, hi, off_s, size):
    if off_s is None:
        A(f"s_mov_b32 s{d}, s{lo}"); A(f"s_mov_b32 s{d+1}, s{hi}")
    else:
        A(f"s_add_u32 s{d}, s{lo}, s{off_s}"); A(f"s_addc_u32 s{d+1}, s{hi}, 0")
    A(f"s_mov_b32 s{d+2}, {size}")
    A(f"s_mov_b32 s{d+3}, 0x20000")

class Prof:
    def __init__(self, A, on, reg): self.A, self.on, self.reg, self.n = A, on, reg, 0
    def stamp(self):
        if not self.on: return
        A = self.A
        A("s_memrealtime s[92:93]"); A("s_waitcnt lgkmcnt(0)")
        A(f"v_writelane_b32 v{self.reg}, s92, {self.n}"); self.n += 1
    def flush(self):
        if not self.on: return
        A = self.A
        A("s_mov_b64 exec, -1")
        A("s_lshl_b32 s94, s2, 3"); A("s_add_u32 s94, s94, s3"); A("s_lshl_b32 s94, s94, 8"); A("s_add_u32 s94, s94, 0x2000000")
        A(f"v_lshlrev_b32 v1, 2, v0"); A("v_add_u32 v1, s94, v1")
        A(f"global_store_dword v1, v{self.reg}, s[40:41]")

def gen(N=5, C=8, S0=24, R=32, catch=2, Ntail=None, tail_from=None, NA=4, wpol="", kvpol="nt", prof=0, fused=0, prio=1, hmap=1, nomlp=0, nowo=0, NW=8, diag=0, nostream=0, WQ0=16, NQ=0, bar0=0, K0=5, dyn=0, NH=8, dyn_from=32, CK0=4, CKS=4, TH=(128,192,232), BO=(1,2,3), CKEXIT=30, sleep=3, even_boost=(16,20), T2=720, TK=226, TV=217, MARG=0, wmask=0, rotm=0, CV=None, tail2=0, rg=32, sl16=0, warm=0, earlyml=1):
    A = Asm()
    P = Prof(A, prof, 63)
    kname = NAME + "_kernel"
    out = []
    out.append(HEADER.rstrip("\n"))
    if fused:
        out.append(f"; @launch grid=(256,1,1) block=(512,1,1) lds={LDS_BYTES}")
    else:
        out.append(f"; @launch kernel={kname} grid=(256,1,1) block=(512,1,1) lds={LDS_BYTES}")
        out.append(f"; @launch kernel=reduce_kernel grid=(160,1,1) block=(64,1,1) lds=0")
    out.append('.amdgcn_target "amdgcn-amd-amdhsa--gfx950"')
    out.append(".text"); out.append(f".globl {kname}"); out.append(".p2align 8"); out.append(f".type {kname},@function")
    A.label(kname)
    A("s_cmp_ge_u32 s2, 256"); A("s_cbranch_scc1 L_end")
    A("s_load_dwordx16 s[16:31], s[0:1], 0")
    A("s_load_dwordx8 s[32:39], s[0:1], 64")
    A("s_load_dwordx2 s[40:41], s[0:1], 96")
    A("v_lshrrev_b32 v1, 6, v0")
    A("v_and_b32 v0, 63, v0")
    A("v_readfirstlane_b32 s3, v1")
    A("v_and_b32 v2, 15, v0")
    A("v_lshrrev_b32 v3, 4, v0")
    if hmap == 0:
        A("s_lshr_b32 s4, s2, 5")
        A("s_and_b32 s5, s2, 31")
    else:
        A("s_and_b32 s5, s2, 7"); A("s_lshl_b32 s5, s5, 2"); A("s_bfe_u32 s4, s2, 0x20003"); A("s_add_u32 s5, s5, s4")
        A("s_lshr_b32 s4, s2, 5")
    A("s_lshl_b32 s66, s4, 5"); A("s_add_u32 s66, s66, s5")
    if prof: A("v_mov_b32 v63, 0")
    A("s_cmp_ge_u32 s3, 4"); A("s_cbranch_scc1 L_aux")
    vK, vV = 4, 5
    MASK = 8
    AT = 12
    D = 20
    O = 28
    S = 32
    TM = 48
    BQ = 64
    RING = 128
    assert R * 4 + RING <= 256
    if prio: A(f"s_setprio {prio}")
    A("v_bfe_u32 v6, v2, 1, 1"); A("v_lshlrev_b32 v6, 10, v6")
    A("v_lshrrev_b32 v7, 2, v2"); A("v_lshl_add_u32 v6, v7, 8, v6")
    A("v_and_b32 v7, 1, v2"); A("v_lshl_add_u32 v6, v7, 6, v6")
    A(f"v_lshl_add_u32 v{vK}, v3, 4, v6")
    A(f"v_lshlrev_b32 v{vV}, 4, v0")
    A("s_lshl_b32 s6, s66, 20"); A("s_lshr_b32 s7, s66, 12")
    if CV is None: CV = C
    A(f"s_mul_i32 s42, s3, {C*1024}")
    if rotm:
        A(f"s_mul_i32 s45, s2, {rotm}"); A(f"s_and_b32 s45, s45, {1024 // rg - 1}"); A(f"s_mul_i32 s45, s45, {rg*1024}")
        A("s_add_u32 s42, s42, s45")
    A("s_waitcnt lgkmcnt(0)")
    A("s_add_u32 s8, s18, s6"); A("s_addc_u32 s9, s19, s7"); A("s_mov_b32 s10, 0x100000"); A("s_mov_b32 s11, 0x20000")
    A("s_add_u32 s12, s20, s6"); A("s_addc_u32 s13, s21, s7"); A("s_mov_b32 s14, 0x100000"); A("s_mov_b32 s15, 0x20000")
    P.stamp()
    if dyn == 4: A("s_memrealtime s[70:71]")
    cur_page = [None]
    def kv_load(n):
        isv = n >= 256; m = n % 256
        vi, wi = m // C, m % C
        byte = vi * 4 * C * 1024 + (wi // 2) * 2048 + ((wi % 2) * (1024 if isv else 128))
        page, imm = byte // 4096 * 4096, byte % 4096
        if cur_page[0] != page:
            A(f"s_add_u32 s43, s42, {page}"); cur_page[0] = page
            if rotm: A("s_and_b32 s43, s43, 0xfffff")
        v = RING + (n % R) * 4
        A.issue(("kv", n), f"buffer_load_dwordx4 v[{v}:{v+3}], v{vV if isv else vK}, s[{'12:15' if isv else '8:11'}], s43 offen offset:{imm} {kvpol}")
    def win(n):
        if dyn and n >= dyn_from: return NH
        if Ntail is not None and n >= tail_from: return Ntail
        return N
    issued = [0]
    def pace():
        n = issued[0]
        if n >= 512: return False
        w = win(n)
        if dyn and n >= dyn_from:
            lab = f"Lw{n}"
            A(f"s_cbranch_vccnz {lab}"); A(f"s_waitcnt vmcnt({N-1})"); A.label(lab)
            A.wait(("kv", n - NH))
        elif n - w >= 0: A.wait(("kv", n - w))
        kv_load(n); issued[0] += 1
        return True
    if nostream:
        A("s_barrier"); A("s_barrier"); A("s_endpgm")
    for _ in range(K0 if bar0 else N): pace()
    A("v_and_b32 v6, 1, v2"); A("v_lshlrev_b32 v6, 4, v6")
    A("v_mov_b32 v7, 0xffff"); A("v_lshlrev_b32 v7, v6, v7")
    A("v_bfe_u32 v6, v2, 1, 2")
    for r in range(4):
        A(f"v_cmp_eq_u32 vcc, {r}, v6"); A.nop(2); A(f"v_cndmask_b32 v{MASK+r}, 0, v7, vcc")
    A("v_lshrrev_b32 v6, 1, v2")
    for t in range(8): A(f"v_cmp_eq_u32 s[{48+2*t}:{49+2*t}], {t}, v6")
    A("v_and_b32 v6, 1, v2"); A("v_cmp_eq_u32 s[64:65], 0, v6")
    A(f"v_lshl_add_u32 v6, v6, 2, v3"); A(f"v_lshlrev_b32 v6, 5, v6")
    if bar0:
        A("s_barrier")
        P.stamp()
    while issued[0] < S0:
        pace()
        if diag == 3: P.stamp()
    P.stamp()
    A("s_barrier")
    P.stamp()
    for a in range(4):
        for half in range(2):
            for q in range(2):
                v = BQ + a * 16 + half * 8 + q * 4
                A(f"ds_read_b128 v[{v}:{v+3}], v6 offset:{L_QP + a*512 + half*256 + q*16}")
    if issued[0] < R: pace()
    A("s_waitcnt lgkmcnt(0)")
    for k in range(16):
        A(f"v_add_f32 v{TM-16+k}, v{BQ+k}, v{BQ+16+k}")
        A(f"v_add_f32 v{BQ+32+k}, v{BQ+32+k}, v{BQ+48+k}")
    if issued[0] < R: pace()
    for k in range(16):
        A(f"v_add_f32 v{S+k}, v{S+k}, v{BQ+32+k}")
    for k in range(8):
        A(f"v_cvt_pk_bf16_f32 v{TM+k}, v{S+2*k}, v{S+2*k+1}")
    if issued[0] < R: pace()
    for t in range(8):
        for k in range(8):
            A(f"v_cndmask_b32 v{BQ+t*8+k}, 0, v{TM+k}, s[{48+2*t}:{49+2*t}]")
        if t % 2 == 1 and issued[0] < R: pace()
    P.stamp()
    if dyn:
        A("s_mov_b64 vcc, 0")
        if dyn == 5:
            A(f"s_lshr_b32 s67, {wmask}, s3"); A("s_bitcmp1_b32 s67, 0"); A("s_cselect_b64 vcc, -1, 0")
        A("s_lshl_b32 s67, s3, 2"); A(f"v_mov_b32 v{TM+12}, s67"); A(f"v_mov_b32 v{TM+14}, 0")
    deferred = []
    unit = [0]
    def run_deferred(force=False):
        k = 0
        while k < len(deferred):
            if force or deferred[k][0] <= unit[0]:
                deferred.pop(k)[1]()
            else: k += 1
    def merge(t16):
        d = D + (t16 % 2) * 4
        a, b = TM + 8, TM + 9
        A(f"v_cndmask_b32 v{a}, v{d+3}, v{d}, s[64:65]")
        A(f"v_cndmask_b32 v{b}, v{d+1}, v{d+2}, s[64:65]")
        A.nop(2)
        A(f"v_add_f32_dpp v{a}, v{b}, v{a} quad_perm:[1,0,3,2] row_mask:0xf bank_mask:0xf")
        bf16r(A, a, a)
        A(f"v_mul_f32 v{a}, {SCALE:#x}, v{a}")
        bf16r(A, S + t16, a)
    def hooks(step, cc):
        if not dyn or dyn == 5: return
        if dyn == 4:
            if cc == 2: A("s_memrealtime s[68:69]")
            if cc == 6 and step >= 2:
                tref = T2 + (min(step, 16) - 2) * TK + max(step - 16, 0) * TV + MARG
                A("s_waitcnt lgkmcnt(0)"); A("s_sub_u32 s68, s68, s70")
                A(f"s_cmp_gt_u32 s68, {tref}"); A("s_cselect_b64 vcc, -1, 0")
            return
        if cc == 2:
            A(f"v_mov_b32 v{TM+11}, {step}")
            A(f"ds_write_b32 v{TM+12}, v{TM+11} offset:{L_PROG}")
            if dyn == 3: A(f"ds_read_b32 v{TM+13}, v{TM+14} offset:{L_MODE}")
        if cc == 6:
            if dyn == 3:
                A("s_waitcnt lgkmcnt(0)"); A(f"v_readfirstlane_b32 s67, v{TM+13}")
                A("s_cmp_lg_u32 s67, 0"); A("s_cselect_b64 vcc, -1, 0")
            elif dyn == 2:
                if step == even_boost[0]: A("s_bitcmp0_b32 s2, 0"); A("s_cselect_b64 vcc, -1, 0")
                if step == even_boost[1]: A("s_mov_b64 vcc, 0")
    def k_consume(c):
        hooks(c // 16, c % 16)
        if diag == 4 and c % 32 == 0 and c: P.stamp()
        t16, tt, half = c // 16, (c % 16) // 2, c % 2
        d = D + (t16 % 2) * 4
        v = RING + (c % R) * 4
        A.wait(("kv", c))
        b = BQ + tt * 8 + half * 4
        cs = "0" if c % 16 == 0 else f"v[{d}:{d+3}]"
        A(f"v_mfma_f32_16x16x32_bf16 v[{d}:{d+3}], v[{v}:{v+3}], v[{b}:{b+3}], {cs}")
        if c % 16 == 15: deferred.append((unit[0] + 9, lambda t=t16: merge(t)))
    def pexp(t16):
        a = TM + 10
        A(f"v_sub_f32 v{a}, v{S+t16}, v{TM}")
        A(f"v_mul_f32 v{a}, {LOG2E:#x}, v{a}")
        A(f"v_exp_f32 v{a}, v{a}")
        A.nop(1)
        A(f"v_add_f32 v{TM+1}, v{TM+1}, v{a}")
        A(f"v_cvt_pk_bf16_f32 v{S+t16}, v{a}, v{a}")
    def abuild(c):
        at = AT + (c % 2) * 4
        for r in range(4):
            A(f"v_and_b32_dpp v{at+r}, v{S + c//16}, v{MASK+r} row_newbcast:{c%16} row_mask:0xf bank_mask:0xf")
    def v_consume(c):
        hooks(16 + c // 16, c % 16)
        if diag == 4 and c % 64 == 0 and c: P.stamp()
        at = AT + (c % 2) * 4
        v = RING + ((256 + c) % R) * 4
        if c + 1 < 256: abuild(c + 1)
        else: A.nop(2)
        A.wait(("kv", 256 + c))
        cs = "0" if c == 0 else f"v[{O}:{O+3}]"
        A(f"v_mfma_f32_16x16x32_bf16 v[{O}:{O+3}], v[{at}:{at+3}], v[{v}:{v+3}], {cs}")
        if c % 16 == 4 and c // 16 + 1 < 16: pexp(c // 16 + 1)
        if c == 236 and earlyml:
            allreduce(A, "add", TM + 1, TM + 2)
            A("s_lshl_b32 s44, s3, 3"); A("v_mov_b32 v7, s44")
            A(f"v_mov_b32 v{TM+2}, v{TM}"); A(f"v_mov_b32 v{TM+3}, v{TM+1}")
            A("s_mov_b64 exec, 1")
            A(f"ds_write_b64 v7, v[{TM+2}:{TM+3}] offset:{L_ML}")
            A("s_mov_b64 exec, -1")
            A("v_lshlrev_b32 v6, 5, v2"); A("v_lshl_add_u32 v6, v3, 4, v6")
            A("s_lshl_b32 s44, s3, 9"); A("v_add_u32 v6, s44, v6")
    c = 0
    while c < 256:
        can_issue = issued[0] < 512 and issued[0] - R < c
        if can_issue: pace()
        lag = issued[0] - win(max(issued[0]-1,0)) - c
        k = catch if lag > 1 else 1
        for _ in range(k):
            if c < 256:
                k_consume(c); c += 1
                unit[0] += 1; run_deferred()
    A.nop(8)
    run_deferred(force=True)
    P.stamp()
    def pace_ok():
        if issued[0] < 512 and issued[0] - R < 256: pace()
    A(f"v_max3_f32 v{TM}, v{S}, v{S+1}, v{S+2}")
    for k in range(3, 15, 2): A(f"v_max3_f32 v{TM}, v{TM}, v{S+k}, v{S+k+1}")
    A(f"v_max_f32 v{TM}, v{TM}, v{S+15}")
    pace_ok()
    allreduce(A, "max", TM, TM + 2)
    pace_ok()
    A(f"v_mov_b32 v{TM+1}, 0")
    pexp(0)
    A.nop(2)
    abuild(0)
    P.stamp()
    c = 0
    while c < 256:
        can_issue = issued[0] < 512 and issued[0] - R < 256 + c
        if can_issue: pace()
        lag = issued[0] - win(max(issued[0]-1,0)) - (256 + c)
        k = catch if (lag > 1 or issued[0] >= 512) else 1
        for _ in range(k):
            if c < 256:
                v_consume(c); c += 1
    P.stamp()
    if not earlyml:
        allreduce(A, "add", TM + 1, TM + 2)
        A("v_lshlrev_b32 v6, 5, v2"); A("v_lshl_add_u32 v6, v3, 4, v6")
        A("s_lshl_b32 s44, s3, 9"); A("v_add_u32 v6, s44, v6")
        A("s_lshl_b32 s44, s3, 3"); A("v_mov_b32 v7, s44")
        A(f"v_mov_b32 v{TM+2}, v{TM}"); A(f"v_mov_b32 v{TM+3}, v{TM+1}")
        assert (TM + 2) % 2 == 0
        A("s_mov_b32 exec_hi, 0")
        A(f"ds_write_b128 v6, v[{O}:{O+3}] offset:{L_OP}")
        A("s_mov_b32 exec_lo, 1")
        A(f"ds_write_b64 v7, v[{TM+2}:{TM+3}] offset:{L_ML}")
    else:
        A("s_mov_b32 exec_hi, 0")
        A.nop(7)
        A(f"ds_write_b128 v6, v[{O}:{O+3}] offset:{L_OP}")
    A("s_waitcnt lgkmcnt(0)")
    A("s_barrier")
    P.stamp()
    if tail2:
        A("s_mov_b64 exec, -1")
        P.flush()
        A("s_branch L_b3")
    else:
        P.flush()
        A("s_endpgm")
    A.vm = []
    P = Prof(A, prof, 63)
    A.label("L_aux")
    SEL = 8
    AT = 16
    DO = 24
    DQ = 44
    X = 48
    F = 53
    T = 4
    PP = 64
    BUF = 96
    A("s_sub_u32 s42, s3, 4")
    A("s_mul_i32 s43, s42, 160"); A("v_mul_u32_u24 v4, 40, v3"); A("v_add_u32 v4, s43, v4")
    A("v_lshlrev_b32 v4, 13, v4"); A("v_lshl_add_u32 v4, v2, 4, v4")
    A("v_lshlrev_b32 v5, 2, v0")
    A("s_mul_i32 s6, s4, 1280"); A("s_lshl_b32 s7, s5, 8")
    A("s_sub_u32 s44, 5242880, s7")
    A("s_waitcnt lgkmcnt(0)")
    srd(A, 8, 16, 17, 6, 1280)
    srd(A, 12, 22, 23, 7, "s44")
    P.stamp()
    for k in range(5):
        A.issue(("x", k), f"buffer_load_dword v{X+k}, v5, s[8:11], 0 offen offset:{k*256}")
    A("s_lshl_b32 s45, s4, 15")
    def wq_load(j):
        v = BUF + 4 * j
        if NQ and j >= NQ: A.wait(("wq", j - NQ))
        A.issue(("wq", j), f"buffer_load_dwordx4 v[{v}:{v+3}], v4, s[12:15], s45 offen {wpol}")
        if j < 39:
            A("s_add_u32 s45, s45, 8192"); A(f"s_cmp_eq_u32 s45, {40*8192}"); A("s_cselect_b32 s45, 0, s45")
    if bar0 == 2: WQ0 = 40
    for j in range(WQ0): wq_load(j)
    if bar0 == 2: A("s_barrier")
    A("v_and_b32 v6, 1, v2")
    A("v_cmp_eq_u32 vcc, 0, v6")
    A("v_mov_b32 v60, 0x01000c0c"); A("v_mov_b32 v61, 0x0c0c0100")
    A("v_cndmask_b32 v60, v60, v61, vcc")
    A("v_mov_b32 v6, 0x03020c0c"); A("v_mov_b32 v61, 0x0c0c0302")
    A("v_cndmask_b32 v61, v6, v61, vcc")
    A("v_bfe_u32 v6, v2, 1, 2"); A("v_mov_b32 v7, 0x0c0c0c0c")
    for r in range(4):
        A(f"v_cmp_eq_u32 vcc, {r}, v6"); A.nop(2)
        A(f"v_cndmask_b32 v{SEL+r}, v7, v60, vcc"); A(f"v_cndmask_b32 v{SEL+4+r}, v7, v61, vcc")
    for k in range(20): A(f"v_mov_b32 v{DO+k}, 0")
    A.wait(("x", 4))
    P.stamp()
    LN = Asm(); layernorm(LN, X, F, (84, 85, 86, 87), X)
    rem = list(range(WQ0, 40)); step = max(1, len(LN.L) // (len(rem) + 1))
    for i, ins in enumerate(LN.L):
        A.L.append(ins)
        if rem and i % step == step - 1: wq_load(rem.pop(0))
    for j in rem: wq_load(j)
    if bar0 == 1: A("s_barrier")
    A("s_mul_i32 s43, s42, 1280")
    A("v_lshlrev_b32 v5, 2, v0"); A("v_add_u32 v5, s43, v5")
    for k in range(5): A(f"ds_write_b32 v5, v{X+k} offset:{L_XN + 256*k}")
    A("s_mul_i32 s43, s42, 1600"); A("v_mul_u32_u24 v5, 80, v3"); A("v_add_u32 v5, s43, v5")
    A("s_lshl_b32 s46, s4, 3")
    A("s_waitcnt lgkmcnt(0)")
    for k in range(10):
        A(f"v_add_u32 v6, s46, v5")
        A(f"ds_read_b64 v[{PP+2*k}:{PP+2*k+1}], v6 offset:{L_XN}")
        A("s_add_u32 s46, s46, 8"); A("s_cmp_eq_u32 s46, 80"); A("s_cselect_b32 s46, 0, s46")
    A("s_waitcnt lgkmcnt(0)")
    P.stamp()
    def abuild_p(preg, par, st):
        at = AT + st * 4
        for r in range(4): A(f"v_perm_b32 v{at+r}, v{preg}, v{preg}, v{SEL + par*4 + r}")
    abuild_p(PP, 0, 0)
    for j in range(40):
        if j + 1 < 40: abuild_p(PP + (j + 1) // 2, (j + 1) % 2, (j + 1) % 2)
        else: A.nop(2)
        A.wait(("wq", j))
        at = AT + (j % 2) * 4; v = BUF + 4 * j
        cs = "0" if j == 0 else f"v[{DQ}:{DQ+3}]"
        A(f"v_mfma_f32_16x16x32_bf16 v[{DQ}:{DQ+3}], v[{at}:{at+3}], v[{v}:{v+3}], {cs}")
    A("v_lshlrev_b32 v6, 5, v2"); A("v_lshl_add_u32 v6, v3, 4, v6")
    A("s_lshl_b32 s43, s42, 9"); A("v_add_u32 v7, s43, v6")
    A.nop(6)
    A("s_mov_b32 exec_hi, 0")
    A(f"ds_write_b128 v7, v[{DQ}:{DQ+3}] offset:{L_QP}")
    A("s_mov_b32 exec_hi, -1")
    if dyn:
        A("v_lshlrev_b32 v6, 2, v0"); A("v_mov_b32 v7, 0")
        A("s_mov_b64 exec, 0xff")
        A(f"ds_write_b32 v6, v7 offset:{L_PROG}")
        A("s_mov_b64 exec, -1")
    A("s_waitcnt lgkmcnt(0)")
    P.stamp()
    A("s_barrier")
    A("s_cmp_lg_u32 s42, 0"); A("s_cbranch_scc1 L_wo")
    A("s_cmp_ge_u32 s5, %d" % (0 if nomlp else 27)); A("s_cbranch_scc1 L_wo")
    layernorm(A, X, F, T, X)
    A("v_lshlrev_b32 v4, 2, v0")
    for k in range(5): A(f"ds_write_b32 v4, v{X+k} offset:{L_Y + 256*k}")
    A("s_lshl_b32 s6, s5, 7")
    A(f"s_sub_u32 s44, {640*3456}, s6")
    srd(A, 8, 28, 29, 6, "s44")
    srd(A, 12, 30, 31, 6, 128)
    A("v_lshlrev_b32 v5, 1, v0")
    A.issue(("b1", 0), f"buffer_load_ushort v{F}, v5, s[12:15], 0 offen")
    A("v_lshrrev_b32 v5, 3, v2"); A("v_lshl_add_u32 v5, v3, 1, v5")
    A("v_mul_u32_u24 v6, 160, v5")
    A(f"s_mov_b32 s45, {80*3456}"); A("v_mul_lo_u32 v5, s45, v5")
    A("v_and_b32 v7, 7, v2"); A("v_lshl_add_u32 v5, v7, 4, v5")
    A("s_waitcnt lgkmcnt(0)")
    PY = BUF
    for k in range(10): A(f"ds_read_b128 v[{PY+4*k}:{PY+4*k+3}], v6 offset:{L_Y + 16*k}")
    RB, RN = BUF + 40, 30
    def w1_load(j):
        v = RB + (j % RN) * 4
        A(f"s_mov_b32 s45, {j*3456}")
        A.issue(("w1", j), f"buffer_load_dwordx4 v[{v}:{v+3}], v5, s[8:11], s45 offen {wpol}")
    for j in range(NW): w1_load(j)
    A("s_waitcnt lgkmcnt(0)")
    abuild_p(PY, 0, 0)
    for j in range(80):
        if j + 1 < 80: abuild_p(PY + (j + 1) // 2, (j + 1) % 2, (j + 1) % 2)
        else: A.nop(2)
        A.wait(("w1", j))
        at = AT + (j % 2) * 4; v = RB + (j % RN) * 4
        cs = "0" if j == 0 else f"v[{DQ}:{DQ+3}]"
        A(f"v_mfma_f32_16x16x32_bf16 v[{DQ}:{DQ+3}], v[{at}:{at+3}], v[{v}:{v+3}], {cs}")
        if j + NW < 80: w1_load(j + NW)
    A("s_mul_i32 s6, s5, 81920")
    A(f"s_sub_u32 s44, {1728*1280}, s6")
    srd(A, 8, 32, 33, 6, "s44")
    A("v_mul_u32_u24 v5, 20480, v3"); A("v_lshl_add_u32 v5, v2, 4, v5")
    def w2_load(n):
        jj, cb = n // 5, n % 5
        v = RB + (n % RN) * 4
        if cb == 0: A(f"s_mov_b32 s45, {jj*1280}")
        A.issue(("w2", n), f"buffer_load_dwordx4 v[{v}:{v+3}], v5, s[8:11], s45 offen offset:{cb*256} {wpol}")
    for n in range(10): w2_load(n)
    A("v_lshrrev_b32 v6, 1, v3"); A("v_lshrrev_b32 v7, 3, v2")
    A("v_cmp_eq_u32 vcc, v6, v7")
    A("v_lshlrev_b32 v6, 8, v6"); A("v_and_b32 v7, 7, v2"); A("v_lshl_add_u32 v6, v7, 5, v6")
    A("v_and_b32 v7, 1, v3"); A("v_lshl_add_u32 v6, v7, 4, v6")
    A("s_and_saveexec_b64 s[46:47], vcc")
    A(f"ds_write_b128 v6, v[{DQ}:{DQ+3}] offset:{L_T}")
    A("s_mov_b64 exec, s[46:47]")
    A("v_lshlrev_b32 v6, 2, v0")
    A("s_waitcnt lgkmcnt(0)")
    A(f"ds_read_b32 v{F+1}, v6 offset:{L_T}"); A(f"ds_read_b32 v{F+2}, v6 offset:{L_T+256}")
    A("s_waitcnt lgkmcnt(0)")
    A(f"v_add_f32 v{F+1}, v{F+1}, v{F+2}")
    bf16r(A, F + 1, F + 1)
    A.wait(("b1", 0))
    A(f"v_lshlrev_b32 v{F}, 16, v{F}")
    A(f"v_add_f32 v{F+1}, v{F+1}, v{F}")
    bf16r(A, F + 1, F + 1)
    x_, u_, e_ = F + 1, F + 2, F + 3
    A(f"v_mul_f32 v{u_}, v{x_}, v{x_}"); A(f"v_mul_f32 v{u_}, v{u_}, v{x_}")
    A(f"v_mov_b32 v{e_}, {f2u(0.044715):#x}"); A(f"v_fma_f32 v{u_}, v{u_}, v{e_}, v{x_}")
    A(f"v_mul_f32 v{u_}, {f2u(-2*0.7978845608028654*1.4426950408889634):#x}, v{u_}")
    A(f"v_exp_f32 v{u_}, v{u_}"); A.nop(1)
    A(f"v_add_f32 v{u_}, 1.0, v{u_}"); A(f"v_rcp_f32 v{u_}, v{u_}"); A.nop(1)
    A(f"v_mul_f32 v{u_}, v{x_}, v{u_}")
    A(f"v_cvt_pk_bf16_f32 v{u_}, v{u_}, v{u_}")
    A("v_lshlrev_b32 v6, 1, v0")
    A(f"ds_write_b16 v6, v{u_} offset:{L_HV}")
    A("v_lshlrev_b32 v6, 5, v3")
    A("s_waitcnt lgkmcnt(0)")
    for k in range(2): A(f"ds_read_b128 v[{PP+4*k}:{PP+4*k+3}], v6 offset:{L_HV + 16*k}")
    A("s_waitcnt lgkmcnt(0)")
    abuild_p(PP, 0, 0)
    nl = 10
    for jj in range(16):
        if jj + 1 < 16: abuild_p(PP + (jj + 1) // 2, (jj + 1) % 2, (jj + 1) % 2)
        else: A.nop(2)
        at = AT + (jj % 2) * 4
        for cb in range(5):
            n = jj * 5 + cb
            A.wait(("w2", n))
            v = RB + (n % RN) * 4; d = DO + 4 * cb
            A(f"v_mfma_f32_16x16x32_bf16 v[{d}:{d+3}], v[{at}:{at+3}], v[{v}:{v+3}], v[{d}:{d+3}]")
            if nl < 80: w2_load(nl); nl += 1
    A.waitall()
    A.label("L_wo")
    A.vm = []
    A("s_mul_i32 s6, s5, 163840")
    srd(A, 8, 24, 25, 6, 163840)
    A("s_lshl_b32 s43, s42, 5"); A("v_lshlrev_b32 v5, 3, v3"); A("v_add_u32 v5, s43, v5")
    A("v_mul_u32_u24 v5, 1280, v5"); A("v_lshl_add_u32 v5, v2, 4, v5")
    for n in range(0 if nowo else 40):
        jj, cb = n // 5, n % 5
        v = BUF + 4 * n
        if cb == 0: A(f"s_mov_b32 s45, {jj*1280}")
        if n >= NA: A.wait(("wo", n - NA))
        A.issue(("wo", n), f"buffer_load_dwordx4 v[{v}:{v+3}], v5, s[8:11], s45 offen offset:{cb*256} {wpol}")
    if dyn == 3:
        A("s_cmp_lg_u32 s42, 3"); A("s_cbranch_scc1 L_ctrl_done")
        A.waitall() if False else None
        A(f"s_mov_b32 s50, {CK0}"); A("s_mov_b32 s51, 16"); A("s_mov_b32 s52, 0"); A("s_mov_b32 s53, 0")
        A("v_mov_b32 v6, 0"); A("s_mov_b64 exec, 1")
        A.label("L_ctrl")
        A(f"ds_read_b32 v5, v6 offset:{L_PROG}")
        A("s_waitcnt lgkmcnt(0)")
        A("v_readfirstlane_b32 s54, v5")
        A(f"s_cmp_ge_u32 s54, {CKEXIT}"); A("s_cbranch_scc1 L_ctrl_exit")
        A("s_cmp_eq_u32 s52, 0"); A("s_cbranch_scc1 L_ctrl_a")
        A("s_cmp_lt_u32 s54, s53"); A("s_cbranch_scc1 L_ctrl_a")
        A("s_mov_b32 s52, 0"); A("v_mov_b32 v5, 0"); A(f"ds_write_b32 v6, v5 offset:{L_MODE}")
        A.label("L_ctrl_a")
        A("s_cmp_lt_u32 s54, s50"); A("s_cbranch_scc1 L_ctrl_sleep")
        A("v_mov_b32 v7, 1"); A("v_mov_b32 v4, s51")
        A("global_atomic_add v5, v4, v7, s[38:39] sc0")
        A("s_waitcnt vmcnt(0)")
        A("v_readfirstlane_b32 s55, v5")
        A(f"s_add_u32 s50, s50, {CKS}"); A("s_add_u32 s51, s51, 32")
        A("s_mov_b32 s56, 0")
        for th, bo in zip(TH, BO):
            A(f"s_cmp_ge_u32 s55, {th}"); A(f"s_cselect_b32 s56, {bo}, s56")
        A("s_cmp_eq_u32 s56, 0"); A("s_cbranch_scc1 L_ctrl_sleep")
        A(f"ds_read_b32 v5, v6 offset:{L_PROG}")
        A("s_waitcnt lgkmcnt(0)")
        A("v_readfirstlane_b32 s54, v5")
        A("s_add_u32 s53, s54, s56"); A("s_add_u32 s53, s53, 1")
        A("s_mov_b32 s52, 1"); A("v_mov_b32 v5, 1"); A(f"ds_write_b32 v6, v5 offset:{L_MODE}")
        A.label("L_ctrl_sleep")
        A(f"s_sleep {sleep}")
        A("s_branch L_ctrl")
        A.label("L_ctrl_exit")
        A("s_mov_b64 exec, -1")
        A.label("L_ctrl_done")
    XB = 60
    XB = 92
    if fused:
        A("s_lshl_b32 s43, s42, 6"); A("v_add_u32 v4, s43, v0"); A("v_lshlrev_b32 v4, 3, v4")
        A("s_mul_i32 s6, s4, 1280")
        srd(A, 12, 16, 17, 6, 1280)
        A.issue(("xf", 0), f"buffer_load_dwordx2 v[{XB}:{XB+1}], v4, s[12:15], 0 offen")
        srd(A, 68, 34, 35, None, 1280)
        A.issue(("xf", 1), f"buffer_load_dwordx2 v[{XB+2}:{XB+3}], v4, s[68:71], 0 offen")
    A("v_lshlrev_b32 v4, 5, v3"); A("s_lshl_b32 s43, s42, 7"); A("v_add_u32 v4, s43, v4")
    A("v_mov_b32 v5, 0")
    A.waitall()
    P.stamp()
    A("s_barrier")
    P.stamp()
    if fused == 2:
        A("s_cmp_lg_u32 s42, 0"); A("s_cbranch_scc1 L_noticket")
        A("s_lshl_b32 s6, s4, 5"); A("v_mov_b32 v90, s6"); A("v_mov_b32 v91, 1")
        A("s_mov_b64 exec, 1")
        A("global_atomic_add v88, v90, v91, s[38:39] sc0")
        A("global_load_dword v89, v90, s[38:39] offset:4 sc1")
        A("s_mov_b64 exec, -1")
        A.label("L_noticket")
    ML = PP
    OV = PP + 8
    A(f"ds_read_b128 v[{ML}:{ML+3}], v5 offset:{L_ML}"); A(f"ds_read_b128 v[{ML+4}:{ML+7}], v5 offset:{L_ML+16}")
    OVR = [72, 80, 48, 16]
    for w in range(4):
        for q in range(2):
            v = OVR[w] + 4 * q
            A(f"ds_read_b128 v[{v}:{v+3}], v4 offset:{L_OP + w*512 + q*16}")
    A("s_waitcnt lgkmcnt(8)")
    A(f"v_max3_f32 v6, v{ML}, v{ML+2}, v{ML+4}"); A(f"v_max_f32 v6, v6, v{ML+6}")
    for w in range(4):
        A(f"v_sub_f32 v{ML+2*w}, v{ML+2*w}, v6"); A(f"v_mul_f32 v{ML+2*w}, {LOG2E:#x}, v{ML+2*w}"); A(f"v_exp_f32 v{ML+2*w}, v{ML+2*w}")
    A.nop(1)
    A(f"v_mul_f32 v7, v{ML}, v{ML+1}")
    for w in range(1, 4): A(f"v_fmac_f32 v7, v{ML+2*w}, v{ML+2*w+1}")
    A("v_rcp_f32 v7, v7"); A.nop(1)
    A("s_waitcnt lgkmcnt(0)")
    for k in range(8):
        A(f"v_mul_f32 v{OVR[0]+k}, v{OVR[0]+k}, v{ML}")
        for w in range(1, 4): A(f"v_fmac_f32 v{OVR[0]+k}, v{OVR[w]+k}, v{ML+2*w}")
        A(f"v_mul_f32 v{OVR[0]+k}, v{OVR[0]+k}, v7")
    PO = 56
    for k in range(4): A(f"v_cvt_pk_bf16_f32 v{PO+k}, v{OVR[0]+2*k}, v{OVR[0]+2*k+1}")
    abuild_p(PO, 0, 0)
    for jj in range(8):
        if jj + 1 < 8: abuild_p(PO + (jj + 1) // 2, (jj + 1) % 2, (jj + 1) % 2)
        else: A.nop(2)
        at = AT + (jj % 2) * 4
        if jj == 0: A.nop(2)
        for cb in range(5):
            v = BUF + 4 * (jj * 5 + cb); d = DO + 4 * cb
            A(f"v_mfma_f32_16x16x32_bf16 v[{d}:{d+3}], v[{at}:{at+3}], v[{v}:{v+3}], v[{d}:{d+3}]")
    A("v_lshlrev_b32 v6, 5, v2"); A("v_lshl_add_u32 v6, v3, 4, v6")
    A("s_mul_i32 s43, s42, 2560"); A("v_add_u32 v6, s43, v6")
    A.nop(4)
    A("s_mov_b32 exec_hi, 0")
    for cb in range(5):
        A(f"ds_write_b128 v6, v[{DO+4*cb}:{DO+4*cb+3}] offset:{L_OUTP + cb*512}")
    A("s_mov_b32 exec_hi, -1")
    if fused == 2:
        A("s_mul_i32 s6, s4, 2560"); A("s_add_u32 s6, s6, 0x100000")
        srd(A, 8, 40, 41, 6, 2560)
        A("s_cmp_lg_u32 s42, 0"); A("s_cbranch_scc1 L_tk_done")
        A("s_waitcnt vmcnt(0)")
        A("v_readfirstlane_b32 s50, v88"); A("v_readfirstlane_b32 s51, v89")
        A("s_cmp_lg_u32 s50, 0"); A("s_cbranch_scc1 L_tk_spin")
        for k in range(4): A(f"v_mov_b32 v{72+k}, 0")
        A("v_lshlrev_b32 v7, 4, v0")
        for i in range(3): A(f"buffer_store_dwordx4 v[72:75], v7, s[8:11], 0 offen offset:{i*1024} sc1")
        A("s_waitcnt vmcnt(0)")
        A("s_mov_b64 exec, 1")
        A("global_store_dword v90, v91, s[38:39] offset:4 sc1")
        A("s_mov_b64 exec, -1")
        A("s_branch L_tk_done")
        A.label("L_tk_spin")
        A("s_cmp_lg_u32 s51, 0"); A("s_cbranch_scc1 L_tk_done")
        A("s_mov_b64 exec, 1")
        A("global_load_dword v89, v90, s[38:39] offset:4 sc1")
        A("s_waitcnt vmcnt(0)")
        A("v_readfirstlane_b32 s51, v89")
        A("s_mov_b64 exec, -1")
        A("s_branch L_tk_spin")
        A.label("L_tk_done")
    A("s_waitcnt lgkmcnt(0)")
    P.stamp()
    A.label("L_b3")
    A("s_barrier")
    if not fused:
        A("s_lshl_b32 s43, s42, 6"); A("v_add_u32 v4, s43, v0")
        A("v_cmp_gt_u32 vcc, 160, v4")
        A("v_lshlrev_b32 v4, 4, v4")
        A("s_and_saveexec_b64 s[46:47], vcc")
        A("s_cbranch_execz L_aux_done")
        for w in range(4): A(f"ds_read_b128 v[{72+4*w}:{75+4*w}], v4 offset:{L_OUTP + w*2560}")
        A("s_mul_i32 s6, s66, 2560")
        srd(A, 8, 40, 41, 6, 2560)
        A("s_waitcnt lgkmcnt(0)")
        for k in range(4):
            A(f"v_add_f32 v{72+k}, v{72+k}, v{76+k}"); A(f"v_add_f32 v{80+k}, v{80+k}, v{84+k}"); A(f"v_add_f32 v{72+k}, v{72+k}, v{80+k}")
        A("buffer_store_dwordx4 v[72:75], v4, s[8:11], 0 offen")
    elif fused == 2:
        A("s_mul_i32 s43, s42, 640"); A("v_lshlrev_b32 v4, 2, v0"); A("v_add_u32 v4, s43, v4")
        for i in range(3):
            for w in range(4):
                A(f"ds_read_b32 v{72+4*i+w}, v4 offset:{L_OUTP + w*2560 + i*256}")
        for i in range(3):
            A(f"s_waitcnt lgkmcnt({8-4*i})")
            v = 72 + 4 * i
            A(f"v_add_f32 v{v}, v{v}, v{v+1}"); A(f"v_add_f32 v{v+2}, v{v+2}, v{v+3}"); A(f"v_add_f32 v{v}, v{v}, v{v+2}")
            if i == 2: A("s_mov_b32 exec_hi, 0")
            A(f"buffer_atomic_add_f32 v{v}, v4, s[8:11], 0 offen offset:{i*256}")
        A("s_mov_b32 exec_hi, -1")
        A("s_waitcnt vmcnt(0)")
        P.stamp()
        A("s_barrier")
        A("s_cmp_lg_u32 s42, 0"); A("s_cbranch_scc1 L_wait_flag")
        A("s_mov_b64 exec, 1")
        A("global_atomic_add v5, v90, v91, s[38:39] offset:8 sc0")
        A("s_waitcnt vmcnt(0)")
        A("v_mov_b32 v6, 0")
        A(f"ds_write_b32 v6, v5 offset:{L_FLAG}")
        A("s_mov_b64 exec, -1")
        A("s_waitcnt lgkmcnt(0)")
        A.label("L_wait_flag")
        P.stamp()
        A("s_barrier")
        A("v_mov_b32 v6, 0")
        A(f"ds_read_b32 v5, v6 offset:{L_FLAG}")
        A("s_lshl_b32 s43, s42, 6"); A("v_add_u32 v4, s43, v0")
        A("v_lshlrev_b32 v7, 3, v4"); A("v_lshlrev_b32 v4, 4, v4")
        A("s_mul_i32 s6, s4, 1280")
        srd(A, 12, 36, 37, 6, 1280)
        A("s_waitcnt lgkmcnt(0)")
        A("v_readfirstlane_b32 s43, v5")
        A("s_cmp_lg_u32 s43, 31"); A("s_cbranch_scc1 L_aux_done")
        A("s_cmp_ge_u32 s42, 3"); A("s_cbranch_scc1 L_aux_done")
        A("buffer_load_dwordx4 v[72:75], v4, s[8:11], 0 offen sc1")
        A("s_waitcnt vmcnt(0)")
        for k in range(2):
            A(f"v_lshlrev_b32 v76, 16, v{XB+2+k}"); A(f"v_and_b32 v77, 0xffff0000, v{XB+2+k}")
            A(f"v_add_f32 v{72+2*k}, v{72+2*k}, v76"); A(f"v_add_f32 v{73+2*k}, v{73+2*k}, v77")
            A(f"v_lshlrev_b32 v76, 16, v{XB+k}"); A(f"v_and_b32 v77, 0xffff0000, v{XB+k}")
            A(f"v_add_f32 v{72+2*k}, v{72+2*k}, v76"); A(f"v_add_f32 v{73+2*k}, v{73+2*k}, v77")
        A("v_cvt_pk_bf16_f32 v72, v72, v73"); A("v_cvt_pk_bf16_f32 v73, v74, v75")
        A("buffer_store_dwordx2 v[72:73], v7, s[12:15], 0 offen")
    else:
        NG = 8 if tail2 else 4
        SPW = 32 // NG
        widx = "s3" if tail2 else "s42"
        A("v_lshlrev_b32 v4, 4, v0")
        A("s_cmp_lg_u32 s3, 4"); A("s_cbranch_scc1 L_wait_flag")
        for i in range(3):
            for w in range(4):
                v = BUF + 16 * i + 4 * w
                A(f"ds_read_b128 v[{v}:{v+3}], v4 offset:{L_OUTP + w*2560 + i*1024}")
        SB = 1280 if sl16 else 2560
        A(f"s_mul_i32 s6, s66, {SB}")
        srd(A, 8, 40, 41, 6, SB)
        if sl16: A("v_lshlrev_b32 v5, 3, v0")
        for i in range(3):
            A(f"s_waitcnt lgkmcnt({8-4*i})")
            v = BUF + 16 * i
            for k in range(4):
                A(f"v_add_f32 v{v+k}, v{v+k}, v{v+4+k}"); A(f"v_add_f32 v{v+8+k}, v{v+8+k}, v{v+12+k}"); A(f"v_add_f32 v{v+k}, v{v+k}, v{v+8+k}")
            if sl16:
                A(f"v_cvt_pk_bf16_f32 v{v+4}, v{v}, v{v+1}"); A(f"v_cvt_pk_bf16_f32 v{v+5}, v{v+2}, v{v+3}")
                A(f"buffer_store_dwordx2 v[{v+4}:{v+5}], v5, s[8:11], 0 offen offset:{i*512} sc1")
            else:
                A(f"buffer_store_dwordx4 v[{v}:{v+3}], v4, s[8:11], 0 offen offset:{i*1024} sc1")
        A("s_lshl_b32 s6, s4, 5")
        A("v_mov_b32 v6, s6"); A("v_mov_b32 v7, 1")
        A("s_waitcnt vmcnt(0)")
        P.stamp()
        A("s_mov_b64 s[46:47], exec"); A("s_mov_b64 exec, 1")
        A("global_atomic_add v5, v6, v7, s[38:39] sc0")
        A("s_waitcnt vmcnt(0)")
        A("v_mov_b32 v6, 0")
        A(f"ds_write_b32 v6, v5 offset:{L_FLAG}")
        A("s_mov_b64 exec, s[46:47]")
        A("s_waitcnt lgkmcnt(0)")
        A.label("L_wait_flag")
        P.stamp()
        A("s_barrier")
        A("v_mov_b32 v6, 0")
        A(f"ds_read_b32 v5, v6 offset:{L_FLAG}")
        A(f"s_mul_i32 s6, s4, {32*SB}"); A(f"s_mul_i32 s43, {widx}, {SPW*SB}"); A("s_add_u32 s6, s6, s43")
        srd(A, 8, 40, 41, 6, SPW * SB)
        if sl16: A("v_lshlrev_b32 v7, 3, v0")
        A("s_waitcnt lgkmcnt(0)")
        A("v_readfirstlane_b32 s43, v5")
        if warm:
            A("s_cmp_eq_u32 s43, 31"); A("s_cselect_b32 s10, s10, 0"); A("s_cselect_b32 s57, 1280, 0")
        else:
            A("s_cmp_lg_u32 s43, 31"); A("s_cbranch_scc1 L_aux_done")
        A.vm = []
        for i in range(3):
            for sl in range(SPW):
                v = BUF + (i * SPW + sl) * 4
                if i == 2 and sl == 0: A("s_mov_b32 exec_hi, 0")
                if sl == 0: so = "0"
                else:
                    A(f"s_mov_b32 s45, {sl*SB}"); so = "s45"
                if sl16:
                    A.issue(("g", i, sl), f"buffer_load_dwordx2 v[{v}:{v+1}], v7, s[8:11], {so} offen offset:{i*512} sc1")
                else:
                    A.issue(("g", i, sl), f"buffer_load_dwordx4 v[{v}:{v+3}], v4, s[8:11], {so} offen offset:{i*1024} sc1")
        A("s_mov_b32 exec_hi, -1")
        A(f"s_mul_i32 s43, {widx}, 2560"); A("v_add_u32 v6, s43, v4")
        LF = L_F if tail2 else L_OUTP
        for i in range(3):
            A.wait(("g", i, SPW - 1))
            v = BUF + i * SPW * 4
            if sl16:
                for sl in range(SPW):
                    q = v + 4 * sl
                    A(f"v_lshlrev_b32 v{q+2}, 16, v{q+1}"); A(f"v_and_b32 v{q+3}, 0xffff0000, v{q+1}")
                    A(f"v_and_b32 v{q+1}, 0xffff0000, v{q}"); A(f"v_lshlrev_b32 v{q}, 16, v{q}")
            n = SPW
            stride = 4
            while n > 1:
                for p in range(n // 2):
                    for k in range(4):
                        A(f"v_add_f32 v{v+2*p*stride+k}, v{v+2*p*stride+k}, v{v+(2*p+1)*stride+k}")
                n //= 2; stride *= 2
            if i == 2: A("s_mov_b32 exec_hi, 0")
            A(f"ds_write_b128 v6, v[{v}:{v+3}] offset:{LF + i*1024}")
        A("s_mov_b32 exec_hi, -1")
        A("s_waitcnt lgkmcnt(0)")
        P.stamp()
        A("s_barrier")
        A("s_cmp_lt_u32 s3, 4"); A("s_cbranch_scc1 L_aux_done")
        A("s_lshl_b32 s43, s42, 6"); A("v_add_u32 v4, s43, v0")
        A("v_cmp_gt_u32 vcc, 160, v4")
        A("v_lshlrev_b32 v5, 3, v4")
        A("v_lshlrev_b32 v4, 4, v4")
        A("s_and_saveexec_b64 s[46:47], vcc")
        A("s_cbranch_execz L_aux_done")
        for w in range(NG): A(f"ds_read_b128 v[{BUF+4*w}:{BUF+3+4*w}], v4 offset:{LF + w*2560}")
        A("s_mul_i32 s6, s4, 1280")
        srd(A, 8, 36, 37, 6, "s57" if warm else 1280)
        A("s_waitcnt lgkmcnt(0)")
        n = NG; stride = 4
        while n > 1:
            for p in range(n // 2):
                for k in range(4):
                    A(f"v_add_f32 v{BUF+2*p*stride+k}, v{BUF+2*p*stride+k}, v{BUF+(2*p+1)*stride+k}")
            n //= 2; stride *= 2
        for k in range(2):
            A(f"v_lshlrev_b32 v76, 16, v{XB+2+k}"); A(f"v_and_b32 v77, 0xffff0000, v{XB+2+k}")
            A(f"v_add_f32 v{BUF+2*k}, v{BUF+2*k}, v76"); A(f"v_add_f32 v{BUF+1+2*k}, v{BUF+1+2*k}, v77")
            A(f"v_lshlrev_b32 v76, 16, v{XB+k}"); A(f"v_and_b32 v77, 0xffff0000, v{XB+k}")
            A(f"v_add_f32 v{BUF+2*k}, v{BUF+2*k}, v76"); A(f"v_add_f32 v{BUF+1+2*k}, v{BUF+1+2*k}, v77")
        A(f"v_cvt_pk_bf16_f32 v72, v{BUF}, v{BUF+1}"); A(f"v_cvt_pk_bf16_f32 v73, v{BUF+2}, v{BUF+3}")
        A("buffer_store_dwordx2 v[72:73], v5, s[8:11], 0 offen")
    A.label("L_aux_done")
    P.stamp()
    if prof and tail2:
        A("s_cmp_lt_u32 s3, 4"); A("s_cbranch_scc1 L_end")
    P.flush()
    A.label("L_end")
    A("s_endpgm")
    out += A.L
    kernels = [(kname, 256, 102)]
    if not fused:
        B = Asm()
        out.append(".globl reduce_kernel"); out.append(".p2align 8"); out.append(".type reduce_kernel,@function")
        B.label("reduce_kernel")
        B("s_cmp_ge_u32 s2, 160"); B("s_cbranch_scc1 R_end")
        B("s_load_dwordx2 s[4:5], s[0:1], 0")
        B("s_load_dwordx4 s[8:11], s[0:1], 72")
        B("s_load_dwordx2 s[6:7], s[0:1], 96")
        B("s_mul_hi_u32 s12, s2, 0xccccccd")
        B("s_mul_i32 s13, s12, 20"); B("s_sub_u32 s13, s2, s13")
        B("v_and_b32 v1, 7, v0"); B("v_lshrrev_b32 v2, 3, v0")
        B("v_mul_u32_u24 v3, 10240, v2"); B("v_lshl_add_u32 v3, v1, 4, v3")
        B("s_lshl_b32 s14, s13, 7"); B("v_add_u32 v3, s14, v3")
        B("s_mul_i32 s15, s12, 81920")
        B("s_waitcnt lgkmcnt(0)")
        B("s_add_u32 s16, s6, s15"); B("s_addc_u32 s17, s7, 0"); B("s_mov_b32 s18, 81920"); B("s_mov_b32 s19, 0x20000")
        B("s_mov_b32 s20, 2560"); B("s_mov_b32 s21, 5120"); B("s_mov_b32 s22, 7680")
        B("buffer_load_dwordx4 v[4:7], v3, s[16:19], 0 offen")
        B("buffer_load_dwordx4 v[8:11], v3, s[16:19], s20 offen")
        B("buffer_load_dwordx4 v[12:15], v3, s[16:19], s21 offen")
        B("buffer_load_dwordx4 v[16:19], v3, s[16:19], s22 offen")
        B("s_mul_i32 s15, s12, 1280"); B("s_lshl_b32 s14, s13, 6")
        B("v_lshlrev_b32 v20, 3, v1"); B("v_add_u32 v20, s14, v20")
        B("s_add_u32 s24, s4, s15"); B("s_addc_u32 s25, s5, 0"); B("s_mov_b32 s26, 1280"); B("s_mov_b32 s27, 0x20000")
        B("s_mov_b32 s28, s8"); B("s_mov_b32 s29, s9"); B("s_mov_b32 s30, 1280"); B("s_mov_b32 s31, 0x20000")
        B("s_add_u32 s32, s10, s15"); B("s_addc_u32 s33, s11, 0"); B("s_mov_b32 s34, 1280"); B("s_mov_b32 s35, 0x20000")
        B("buffer_load_dwordx2 v[22:23], v20, s[24:27], 0 offen")
        B("buffer_load_dwordx2 v[24:25], v20, s[28:31], 0 offen")
        B("s_waitcnt vmcnt(2)")
        for k in range(4):
            B(f"v_add_f32 v{4+k}, v{4+k}, v{8+k}"); B(f"v_add_f32 v{12+k}, v{12+k}, v{16+k}"); B(f"v_add_f32 v{4+k}, v{4+k}, v{12+k}")
        B.nop(2)
        for k in range(4): B(f"v_add_f32_dpp v{4+k}, v{4+k}, v{4+k} row_ror:8 row_mask:0xf bank_mask:0xf")
        for sw in ("v_permlane16_swap_b32", "v_permlane32_swap_b32"):
            for k in range(4): B(f"v_mov_b32 v{8+k}, v{4+k}")
            B.nop(2)
            for k in range(4): B(f"{sw} v{4+k}, v{8+k}")
            B.nop(1)
            for k in range(4): B(f"v_add_f32 v{4+k}, v{4+k}, v{8+k}")
        B("s_waitcnt vmcnt(0)")
        for k in range(2):
            B(f"v_lshlrev_b32 v8, 16, v{22+k}"); B(f"v_and_b32 v9, 0xffff0000, v{22+k}")
            B(f"v_lshlrev_b32 v10, 16, v{24+k}"); B(f"v_and_b32 v11, 0xffff0000, v{24+k}")
            B(f"v_add_f32 v{4+2*k}, v{4+2*k}, v10"); B(f"v_add_f32 v{5+2*k}, v{5+2*k}, v11")
            B(f"v_add_f32 v{4+2*k}, v{4+2*k}, v8"); B(f"v_add_f32 v{5+2*k}, v{5+2*k}, v9")
        B("v_cvt_pk_bf16_f32 v4, v4, v5"); B("v_cvt_pk_bf16_f32 v5, v6, v7")
        B("v_cmp_gt_u32 vcc, 8, v0"); B("s_and_saveexec_b64 s[36:37], vcc")
        B("buffer_store_dwordx2 v[4:5], v20, s[32:35], 0 offen")
        B.label("R_end"); B("s_endpgm")
        out += B.L
        kernels.append(("reduce_kernel", 32, 48))
    out.append('.section .rodata,"a"')
    for kn, nv, ns in kernels:
        out += [".p2align 6", f".amdhsa_kernel {kn}", f"  .amdhsa_next_free_vgpr {nv}", f"  .amdhsa_next_free_sgpr {ns}",
                f"  .amdhsa_accum_offset {nv}", "  .amdhsa_group_segment_fixed_size 0", "  .amdhsa_kernarg_size 104",
                "  .amdhsa_user_sgpr_count 2", "  .amdhsa_user_sgpr_kernarg_segment_ptr 1", "  .amdhsa_system_sgpr_workgroup_id_x 1",
                "  .amdhsa_float_denorm_mode_32 3", ".end_amdhsa_kernel"]
    return "\n".join(out) + "\n"

if __name__ == "__main__":
    kw = eval("dict(" + (sys.argv[2] if len(sys.argv) > 2 else "") + ")")
    open(sys.argv[1], "w").write(gen(**kw))
```

```python
import struct, sys

NAME = "parallel_sum__gqa_block_cached__mixer_channel_mlp__decode"
HEADER = open("cdna_kernels/" + NAME + ".s.ref").read().split("; Override launch geometry")[0]

def f2u(x): return struct.unpack("<I", struct.pack("<f", x))[0]
SCALE = f2u(128 ** -0.5)
LOG2E = f2u(1.4426950408889634)
INV640 = f2u(1.0 / 640)
EPS = f2u(1e-5)

L_XN = 0
L_Y = 5120
L_QP = 6400
L_T = 8448
L_HV = 8960
L_OP = 9216
L_ML = 11264
L_OUTP = 11520
L_FLAG = 21760
L_PROG = 22528
L_MODE = 22544
L_F = 22784
LDS_BYTES = 22784 + 8 * 2560 + 1024

class Asm:
    def __init__(self):
        self.L = []
        self.vm = []
        self.landed = set()
        self.nlabel = 0
    def __call__(self, s): self.L.append("    " + s)
    def label(self, s): self.L.append(s + ":")
    def c(self, s): self.L.append("    ; " + s)
    def issue(self, tag, ins):
        self(ins); self.vm.append(tag)
        assert len(self.vm) <= 63, "too many outstanding vmem ops"
    def wait(self, tag):
        if tag not in self.vm: return
        i = self.vm.index(tag)
        n = len(self.vm) - 1 - i
        self(f"s_waitcnt vmcnt({n})")
        self.vm = self.vm[i + 1:]
    def waitall(self):
        if self.vm: self("s_waitcnt vmcnt(0)")
        self.vm = []
    def nop(self, n):
        while n > 0:
            k = min(n, 16); self(f"s_nop {k-1}"); n -= k

def allreduce(A, op, t, u):
    for ror in (8, 4, 2, 1):
        A.nop(2)
        A(f"v_{op}_f32_dpp v{t}, v{t}, v{t} row_ror:{ror} row_mask:0xf bank_mask:0xf")
    for sw in ("v_permlane16_swap_b32", "v_permlane32_swap_b32"):
        A(f"v_mov_b32 v{u}, v{t}")
        A.nop(2)
        A(f"{sw} v{t}, v{u}")
        A.nop(1)
        A(f"v_{op}_f32 v{t}, v{t}, v{u}")

def bf16r(A, d, s):
    A(f"v_cvt_pk_bf16_f32 v{d}, v{s}, v{s}")
    A(f"v_and_b32 v{d}, 0xffff0000, v{d}")

def layernorm(A, X, F, T, OUT):
    if isinstance(T, int): T = (T, T+1, T+2, T+3)
    for k in range(5):
        A(f"v_lshlrev_b32 v{F+2*k}, 16, v{X+k}")
        A(f"v_and_b32 v{F+2*k+1}, 0xffff0000, v{X+k}")
    t, u, m, r = T
    A(f"v_add_f32 v{t}, v{F}, v{F+1}")
    for k in range(2, 10): A(f"v_add_f32 v{t}, v{t}, v{F+k}")
    allreduce(A, "add", t, u)
    A(f"v_mul_f32 v{m}, {INV640:#x}, v{t}")
    A(f"v_sub_f32 v{u}, v{F}, v{m}")
    A(f"v_mul_f32 v{t}, v{u}, v{u}")
    for k in range(1, 10):
        A(f"v_sub_f32 v{u}, v{F+k}, v{m}")
        A(f"v_fmac_f32 v{t}, v{u}, v{u}")
    allreduce(A, "add", t, u)
    A(f"v_mul_f32 v{t}, {INV640:#x}, v{t}")
    bf16r(A, t, t)
    A(f"v_add_f32 v{t}, {EPS:#x}, v{t}")
    bf16r(A, t, t)
    A(f"v_sqrt_f32 v{t}, v{t}")
    A.nop(1)
    bf16r(A, t, t)
    A(f"v_rcp_f32 v{r}, v{t}")
    bf16r(A, m, m)
    for k in range(5):
        A(f"v_sub_f32 v{F+2*k}, v{F+2*k}, v{m}")
        A(f"v_sub_f32 v{F+2*k+1}, v{F+2*k+1}, v{m}")
        A(f"v_cvt_pk_bf16_f32 v{u}, v{F+2*k}, v{F+2*k+1}")
        A(f"v_lshlrev_b32 v{F+2*k}, 16, v{u}")
        A(f"v_and_b32 v{F+2*k+1}, 0xffff0000, v{u}")
        A(f"v_mul_f32 v{F+2*k}, v{F+2*k}, v{r}")
        A(f"v_mul_f32 v{F+2*k+1}, v{F+2*k+1}, v{r}")
        A(f"v_cvt_pk_bf16_f32 v{OUT+k}, v{F+2*k}, v{F+2*k+1}")

def srd(A, d, lo, hi, off_s, size):
    if off_s is None:
        A(f"s_mov_b32 s{d}, s{lo}"); A(f"s_mov_b32 s{d+1}, s{hi}")
    else:
        A(f"s_add_u32 s{d}, s{lo}, s{off_s}"); A(f"s_addc_u32 s{d+1}, s{hi}, 0")
    A(f"s_mov_b32 s{d+2}, {size}")
    A(f"s_mov_b32 s{d+3}, 0x20000")

class Prof:
    def __init__(self, A, on, reg): self.A, self.on, self.reg, self.n = A, on, reg, 0
    def stamp(self):
        if not self.on: return
        A = self.A
        A("s_memrealtime s[92:93]"); A("s_waitcnt lgkmcnt(0)")
        A(f"v_writelane_b32 v{self.reg}, s92, {self.n}"); self.n += 1
    def flush(self):
        if not self.on: return
        A = self.A
        A("s_mov_b64 exec, -1")
        A("s_lshl_b32 s94, s2, 3"); A("s_add_u32 s94, s94, s3"); A("s_lshl_b32 s94, s94, 8"); A("s_add_u32 s94, s94, 0x2000000")
        A(f"v_lshlrev_b32 v1, 2, v0"); A("v_add_u32 v1, s94, v1")
        A(f"global_store_dword v1, v{self.reg}, s[40:41]")

def gen(N=5, C=8, S0=24, R=32, catch=2, Ntail=None, tail_from=None, NA=4, wpol="", kvpol="nt", prof=0, fused=0, prio=1, hmap=1, nomlp=0, nowo=0, NW=8, diag=0, nostream=0, WQ0=16, NQ=0, bar0=0, K0=5, dyn=0, NH=8, dyn_from=32, CK0=4, CKS=4, TH=(128,192,232), BO=(1,2,3), CKEXIT=30, sleep=3, even_boost=(16,20), T2=720, TK=226, TV=217, MARG=0, wmask=0, rotm=0, CV=None, tail2=0, rg=32, sl16=0, warm=0, earlyml=1, rotx=0):
    A = Asm()
    P = Prof(A, prof, 63)
    kname = NAME + "_kernel"
    out = []
    out.append(HEADER.rstrip("\n"))
    if fused:
        out.append(f"; @launch grid=(256,1,1) block=(512,1,1) lds={LDS_BYTES}")
    else:
        out.append(f"; @launch kernel={kname} grid=(256,1,1) block=(512,1,1) lds={LDS_BYTES}")
        out.append(f"; @launch kernel=reduce_kernel grid=(160,1,1) block=(64,1,1) lds=0")
    out.append('.amdgcn_target "amdgcn-amd-amdhsa--gfx950"')
    out.append(".text"); out.append(f".globl {kname}"); out.append(".p2align 8"); out.append(f".type {kname},@function")
    A.label(kname)
    A("s_cmp_ge_u32 s2, 256"); A("s_cbranch_scc1 L_end")
    A("s_load_dwordx16 s[16:31], s[0:1], 0")
    A("s_load_dwordx8 s[32:39], s[0:1], 64")
    A("s_load_dwordx2 s[40:41], s[0:1], 96")
    A("v_lshrrev_b32 v1, 6, v0")
    A("v_and_b32 v0, 63, v0")
    A("v_readfirstlane_b32 s3, v1")
    A("v_and_b32 v2, 15, v0")
    A("v_lshrrev_b32 v3, 4, v0")
    if hmap == 0:
        A("s_lshr_b32 s4, s2, 5")
        A("s_and_b32 s5, s2, 31")
    else:
        A("s_and_b32 s5, s2, 7"); A("s_lshl_b32 s5, s5, 2"); A("s_bfe_u32 s4, s2, 0x20003"); A("s_add_u32 s5, s5, s4")
        A("s_lshr_b32 s4, s2, 5")
    A("s_lshl_b32 s66, s4, 5"); A("s_add_u32 s66, s66, s5")
    if prof: A("v_mov_b32 v63, 0")
    A("s_cmp_ge_u32 s3, 4"); A("s_cbranch_scc1 L_aux")
    vK, vV = 4, 5
    MASK = 8
    AT = 12
    D = 20
    O = 28
    S = 32
    TM = 48
    BQ = 64
    RING = 128
    assert R * 4 + RING <= 256
    if prio: A(f"s_setprio {prio}")
    A("v_bfe_u32 v6, v2, 1, 1"); A("v_lshlrev_b32 v6, 10, v6")
    A("v_lshrrev_b32 v7, 2, v2"); A("v_lshl_add_u32 v6, v7, 8, v6")
    A("v_and_b32 v7, 1, v2"); A("v_lshl_add_u32 v6, v7, 6, v6")
    A(f"v_lshl_add_u32 v{vK}, v3, 4, v6")
    A(f"v_lshlrev_b32 v{vV}, 4, v0")
    A("s_lshl_b32 s6, s66, 20"); A("s_lshr_b32 s7, s66, 12")
    if CV is None: CV = C
    A(f"s_mul_i32 s42, s3, {C*1024}")
    if rotx:
        rotm = 1
        if rotx == 2: A("s_lshr_b32 s45, s2, 5"); A("s_lshl_b32 s45, s45, 2")
        if rotx == 3: A("s_lshr_b32 s45, s2, 5"); A("s_lshl_b32 s45, s45, 2"); A("s_add_u32 s45, s45, s2")
        if rotx == 5: A("s_and_b32 s45, s2, 7"); A("s_lshl_b32 s45, s45, 2")
        if rotx == 6: A("s_lshr_b32 s45, s2, 3")
        if rotx == 7: A("s_and_b32 s45, s2, 7")
        if rotx == 8: A("s_lshr_b32 s45, s2, 3"); A("s_and_b32 s45, s45, 3"); A("s_lshl_b32 s45, s45, 3")
        A(f"s_and_b32 s45, s45, {1024 // rg - 1}"); A(f"s_mul_i32 s45, s45, {rg*1024}")
        A("s_add_u32 s42, s42, s45")
    elif rotm:
        A(f"s_mul_i32 s45, s2, {rotm}"); A(f"s_and_b32 s45, s45, {1024 // rg - 1}"); A(f"s_mul_i32 s45, s45, {rg*1024}")
        A("s_add_u32 s42, s42, s45")
    A("s_waitcnt lgkmcnt(0)")
    A("s_add_u32 s8, s18, s6"); A("s_addc_u32 s9, s19, s7"); A("s_mov_b32 s10, 0x100000"); A("s_mov_b32 s11, 0x20000")
    A("s_add_u32 s12, s20, s6"); A("s_addc_u32 s13, s21, s7"); A("s_mov_b32 s14, 0x100000"); A("s_mov_b32 s15, 0x20000")
    P.stamp()
    if dyn == 4: A("s_memrealtime s[70:71]")
    cur_page = [None]
    def kv_load(n):
        isv = n >= 256; m = n % 256
        vi, wi = m // C, m % C
        byte = vi * 4 * C * 1024 + (wi // 2) * 2048 + ((wi % 2) * (1024 if isv else 128))
        page, imm = byte // 4096 * 4096, byte % 4096
        if cur_page[0] != page:
            A(f"s_add_u32 s43, s42, {page}"); cur_page[0] = page
            if rotm: A("s_and_b32 s43, s43, 0xfffff")
        v = RING + (n % R) * 4
        A.issue(("kv", n), f"buffer_load_dwordx4 v[{v}:{v+3}], v{vV if isv else vK}, s[{'12:15' if isv else '8:11'}], s43 offen offset:{imm} {kvpol}")
    def win(n):
        if dyn and n >= dyn_from: return NH
        if Ntail is not None and n >= tail_from: return Ntail
        return N
    issued = [0]
    def pace():
        n = issued[0]
        if n >= 512: return False
        w = win(n)
        if dyn and n >= dyn_from:
            lab = f"Lw{n}"
            A(f"s_cbranch_vccnz {lab}"); A(f"s_waitcnt vmcnt({N-1})"); A.label(lab)
            A.wait(("kv", n - NH))
        elif n - w >= 0: A.wait(("kv", n - w))
        kv_load(n); issued[0] += 1
        return True
    if nostream:
        A("s_barrier"); A("s_barrier"); A("s_endpgm")
    for _ in range(K0 if bar0 else N): pace()
    A("v_and_b32 v6, 1, v2"); A("v_lshlrev_b32 v6, 4, v6")
    A("v_mov_b32 v7, 0xffff"); A("v_lshlrev_b32 v7, v6, v7")
    A("v_bfe_u32 v6, v2, 1, 2")
    for r in range(4):
        A(f"v_cmp_eq_u32 vcc, {r}, v6"); A.nop(2); A(f"v_cndmask_b32 v{MASK+r}, 0, v7, vcc")
    A("v_lshrrev_b32 v6, 1, v2")
    for t in range(8): A(f"v_cmp_eq_u32 s[{48+2*t}:{49+2*t}], {t}, v6")
    A("v_and_b32 v6, 1, v2"); A("v_cmp_eq_u32 s[64:65], 0, v6")
    A(f"v_lshl_add_u32 v6, v6, 2, v3"); A(f"v_lshlrev_b32 v6, 5, v6")
    if bar0:
        A("s_barrier")
        P.stamp()
    while issued[0] < S0:
        pace()
        if diag == 3: P.stamp()
    P.stamp()
    A("s_barrier")
    P.stamp()
    for a in range(4):
        for half in range(2):
            for q in range(2):
                v = BQ + a * 16 + half * 8 + q * 4
                A(f"ds_read_b128 v[{v}:{v+3}], v6 offset:{L_QP + a*512 + half*256 + q*16}")
    if issued[0] < R: pace()
    A("s_waitcnt lgkmcnt(0)")
    for k in range(16):
        A(f"v_add_f32 v{TM-16+k}, v{BQ+k}, v{BQ+16+k}")
        A(f"v_add_f32 v{BQ+32+k}, v{BQ+32+k}, v{BQ+48+k}")
    if issued[0] < R: pace()
    for k in range(16):
        A(f"v_add_f32 v{S+k}, v{S+k}, v{BQ+32+k}")
    for k in range(8):
        A(f"v_cvt_pk_bf16_f32 v{TM+k}, v{S+2*k}, v{S+2*k+1}")
    if issued[0] < R: pace()
    for t in range(8):
        for k in range(8):
            A(f"v_cndmask_b32 v{BQ+t*8+k}, 0, v{TM+k}, s[{48+2*t}:{49+2*t}]")
        if t % 2 == 1 and issued[0] < R: pace()
    P.stamp()
    if dyn:
        A("s_mov_b64 vcc, 0")
        if dyn == 5:
            A(f"s_lshr_b32 s67, {wmask}, s3"); A("s_bitcmp1_b32 s67, 0"); A("s_cselect_b64 vcc, -1, 0")
        A("s_lshl_b32 s67, s3, 2"); A(f"v_mov_b32 v{TM+12}, s67"); A(f"v_mov_b32 v{TM+14}, 0")
    deferred = []
    unit = [0]
    def run_deferred(force=False):
        k = 0
        while k < len(deferred):
            if force or deferred[k][0] <= unit[0]:
                deferred.pop(k)[1]()
            else: k += 1
    def merge(t16):
        d = D + (t16 % 2) * 4
        a, b = TM + 8, TM + 9
        A(f"v_cndmask_b32 v{a}, v{d+3}, v{d}, s[64:65]")
        A(f"v_cndmask_b32 v{b}, v{d+1}, v{d+2}, s[64:65]")
        A.nop(2)
        A(f"v_add_f32_dpp v{a}, v{b}, v{a} quad_perm:[1,0,3,2] row_mask:0xf bank_mask:0xf")
        bf16r(A, a, a)
        A(f"v_mul_f32 v{a}, {SCALE:#x}, v{a}")
        bf16r(A, S + t16, a)
    def hooks(step, cc):
        if not dyn or dyn == 5: return
        if dyn == 4:
            if cc == 2: A("s_memrealtime s[68:69]")
            if cc == 6 and step >= 2:
                tref = T2 + (min(step, 16) - 2) * TK + max(step - 16, 0) * TV + MARG
                A("s_waitcnt lgkmcnt(0)"); A("s_sub_u32 s68, s68, s70")
                A(f"s_cmp_gt_u32 s68, {tref}"); A("s_cselect_b64 vcc, -1, 0")
            return
        if cc == 2:
            A(f"v_mov_b32 v{TM+11}, {step}")
            A(f"ds_write_b32 v{TM+12}, v{TM+11} offset:{L_PROG}")
            if dyn == 3: A(f"ds_read_b32 v{TM+13}, v{TM+14} offset:{L_MODE}")
        if cc == 6:
            if dyn == 3:
                A("s_waitcnt lgkmcnt(0)"); A(f"v_readfirstlane_b32 s67, v{TM+13}")
                A("s_cmp_lg_u32 s67, 0"); A("s_cselect_b64 vcc, -1, 0")
            elif dyn == 2:
                if step == even_boost[0]: A("s_bitcmp0_b32 s2, 0"); A("s_cselect_b64 vcc, -1, 0")
                if step == even_boost[1]: A("s_mov_b64 vcc, 0")
    def k_consume(c):
        hooks(c // 16, c % 16)
        if diag == 4 and c % 32 == 0 and c: P.stamp()
        t16, tt, half = c // 16, (c % 16) // 2, c % 2
        d = D + (t16 % 2) * 4
        v = RING + (c % R) * 4
        A.wait(("kv", c))
        b = BQ + tt * 8 + half * 4
        cs = "0" if c % 16 == 0 else f"v[{d}:{d+3}]"
        A(f"v_mfma_f32_16x16x32_bf16 v[{d}:{d+3}], v[{v}:{v+3}], v[{b}:{b+3}], {cs}")
        if c % 16 == 15: deferred.append((unit[0] + 9, lambda t=t16: merge(t)))
    def pexp(t16):
        a = TM + 10
        A(f"v_sub_f32 v{a}, v{S+t16}, v{TM}")
        A(f"v_mul_f32 v{a}, {LOG2E:#x}, v{a}")
        A(f"v_exp_f32 v{a}, v{a}")
        A.nop(1)
        A(f"v_add_f32 v{TM+1}, v{TM+1}, v{a}")
        A(f"v_cvt_pk_bf16_f32 v{S+t16}, v{a}, v{a}")
    def abuild(c):
        at = AT + (c % 2) * 4
        for r in range(4):
            A(f"v_and_b32_dpp v{at+r}, v{S + c//16}, v{MASK+r} row_newbcast:{c%16} row_mask:0xf bank_mask:0xf")
    def v_consume(c):
        hooks(16 + c // 16, c % 16)
        if diag == 4 and c % 64 == 0 and c: P.stamp()
        at = AT + (c % 2) * 4
        v = RING + ((256 + c) % R) * 4
        if c + 1 < 256: abuild(c + 1)
        else: A.nop(2)
        A.wait(("kv", 256 + c))
        cs = "0" if c == 0 else f"v[{O}:{O+3}]"
        A(f"v_mfma_f32_16x16x32_bf16 v[{O}:{O+3}], v[{at}:{at+3}], v[{v}:{v+3}], {cs}")
        if c % 16 == 4 and c // 16 + 1 < 16: pexp(c // 16 + 1)
        if c == 236 and earlyml:
            allreduce(A, "add", TM + 1, TM + 2)
            A("s_lshl_b32 s44, s3, 3"); A("v_mov_b32 v7, s44")
            A(f"v_mov_b32 v{TM+2}, v{TM}"); A(f"v_mov_b32 v{TM+3}, v{TM+1}")
            A("s_mov_b64 exec, 1")
            A(f"ds_write_b64 v7, v[{TM+2}:{TM+3}] offset:{L_ML}")
            A("s_mov_b64 exec, -1")
            A("v_lshlrev_b32 v6, 5, v2"); A("v_lshl_add_u32 v6, v3, 4, v6")
            A("s_lshl_b32 s44, s3, 9"); A("v_add_u32 v6, s44, v6")
    c = 0
    while c < 256:
        can_issue = issued[0] < 512 and issued[0] - R < c
        if can_issue: pace()
        lag = issued[0] - win(max(issued[0]-1,0)) - c
        k = catch if lag > 1 else 1
        for _ in range(k):
            if c < 256:
                k_consume(c); c += 1
                unit[0] += 1; run_deferred()
    A.nop(8)
    run_deferred(force=True)
    P.stamp()
    def pace_ok():
        if issued[0] < 512 and issued[0] - R < 256: pace()
    A(f"v_max3_f32 v{TM}, v{S}, v{S+1}, v{S+2}")
    for k in range(3, 15, 2): A(f"v_max3_f32 v{TM}, v{TM}, v{S+k}, v{S+k+1}")
    A(f"v_max_f32 v{TM}, v{TM}, v{S+15}")
    pace_ok()
    allreduce(A, "max", TM, TM + 2)
    pace_ok()
    A(f"v_mov_b32 v{TM+1}, 0")
    pexp(0)
    A.nop(2)
    abuild(0)
    P.stamp()
    c = 0
    while c < 256:
        can_issue = issued[0] < 512 and issued[0] - R < 256 + c
        if can_issue: pace()
        lag = issued[0] - win(max(issued[0]-1,0)) - (256 + c)
        k = catch if (lag > 1 or issued[0] >= 512) else 1
        for _ in range(k):
            if c < 256:
                v_consume(c); c += 1
    P.stamp()
    if not earlyml:
        allreduce(A, "add", TM + 1, TM + 2)
        A("v_lshlrev_b32 v6, 5, v2"); A("v_lshl_add_u32 v6, v3, 4, v6")
        A("s_lshl_b32 s44, s3, 9"); A("v_add_u32 v6, s44, v6")
        A("s_lshl_b32 s44, s3, 3"); A("v_mov_b32 v7, s44")
        A(f"v_mov_b32 v{TM+2}, v{TM}"); A(f"v_mov_b32 v{TM+3}, v{TM+1}")
        assert (TM + 2) % 2 == 0
        A("s_mov_b32 exec_hi, 0")
        A(f"ds_write_b128 v6, v[{O}:{O+3}] offset:{L_OP}")
        A("s_mov_b32 exec_lo, 1")
        A(f"ds_write_b64 v7, v[{TM+2}:{TM+3}] offset:{L_ML}")
    else:
        A("s_mov_b32 exec_hi, 0")
        A.nop(7)
        A(f"ds_write_b128 v6, v[{O}:{O+3}] offset:{L_OP}")
    A("s_waitcnt lgkmcnt(0)")
    A("s_barrier")
    P.stamp()
    if tail2:
        A("s_mov_b64 exec, -1")
        P.flush()
        A("s_branch L_b3")
    else:
        P.flush()
        A("s_endpgm")
    A.vm = []
    P = Prof(A, prof, 63)
    A.label("L_aux")
    SEL = 8
    AT = 16
    DO = 24
    DQ = 44
    X = 48
    F = 53
    T = 4
    PP = 64
    BUF = 96
    A("s_sub_u32 s42, s3, 4")
    A("s_mul_i32 s43, s42, 160"); A("v_mul_u32_u24 v4, 40, v3"); A("v_add_u32 v4, s43, v4")
    A("v_lshlrev_b32 v4, 13, v4"); A("v_lshl_add_u32 v4, v2, 4, v4")
    A("v_lshlrev_b32 v5, 2, v0")
    A("s_mul_i32 s6, s4, 1280"); A("s_lshl_b32 s7, s5, 8")
    A("s_sub_u32 s44, 5242880, s7")
    A("s_waitcnt lgkmcnt(0)")
    srd(A, 8, 16, 17, 6, 1280)
    srd(A, 12, 22, 23, 7, "s44")
    P.stamp()
    for k in range(5):
        A.issue(("x", k), f"buffer_load_dword v{X+k}, v5, s[8:11], 0 offen offset:{k*256}")
    A("s_lshl_b32 s45, s4, 15")
    def wq_load(j):
        v = BUF + 4 * j
        if NQ and j >= NQ: A.wait(("wq", j - NQ))
        A.issue(("wq", j), f"buffer_load_dwordx4 v[{v}:{v+3}], v4, s[12:15], s45 offen {wpol}")
        if j < 39:
            A("s_add_u32 s45, s45, 8192"); A(f"s_cmp_eq_u32 s45, {40*8192}"); A("s_cselect_b32 s45, 0, s45")
    if bar0 == 2: WQ0 = 40
    for j in range(WQ0): wq_load(j)
    if bar0 == 2: A("s_barrier")
    A("v_and_b32 v6, 1, v2")
    A("v_cmp_eq_u32 vcc, 0, v6")
    A("v_mov_b32 v60, 0x01000c0c"); A("v_mov_b32 v61, 0x0c0c0100")
    A("v_cndmask_b32 v60, v60, v61, vcc")
    A("v_mov_b32 v6, 0x03020c0c"); A("v_mov_b32 v61, 0x0c0c0302")
    A("v_cndmask_b32 v61, v6, v61, vcc")
    A("v_bfe_u32 v6, v2, 1, 2"); A("v_mov_b32 v7, 0x0c0c0c0c")
    for r in range(4):
        A(f"v_cmp_eq_u32 vcc, {r}, v6"); A.nop(2)
        A(f"v_cndmask_b32 v{SEL+r}, v7, v60, vcc"); A(f"v_cndmask_b32 v{SEL+4+r}, v7, v61, vcc")
    for k in range(20): A(f"v_mov_b32 v{DO+k}, 0")
    A.wait(("x", 4))
    P.stamp()
    LN = Asm(); layernorm(LN, X, F, (84, 85, 86, 87), X)
    rem = list(range(WQ0, 40)); step = max(1, len(LN.L) // (len(rem) + 1))
    for i, ins in enumerate(LN.L):
        A.L.append(ins)
        if rem and i % step == step - 1: wq_load(rem.pop(0))
    for j in rem: wq_load(j)
    if bar0 == 1: A("s_barrier")
    A("s_mul_i32 s43, s42, 1280")
    A("v_lshlrev_b32 v5, 2, v0"); A("v_add_u32 v5, s43, v5")
    for k in range(5): A(f"ds_write_b32 v5, v{X+k} offset:{L_XN + 256*k}")
    A("s_mul_i32 s43, s42, 1600"); A("v_mul_u32_u24 v5, 80, v3"); A("v_add_u32 v5, s43, v5")
    A("s_lshl_b32 s46, s4, 3")
    A("s_waitcnt lgkmcnt(0)")
    for k in range(10):
        A(f"v_add_u32 v6, s46, v5")
        A(f"ds_read_b64 v[{PP+2*k}:{PP+2*k+1}], v6 offset:{L_XN}")
        A("s_add_u32 s46, s46, 8"); A("s_cmp_eq_u32 s46, 80"); A("s_cselect_b32 s46, 0, s46")
    A("s_waitcnt lgkmcnt(0)")
    P.stamp()
    def abuild_p(preg, par, st):
        at = AT + st * 4
        for r in range(4): A(f"v_perm_b32 v{at+r}, v{preg}, v{preg}, v{SEL + par*4 + r}")
    abuild_p(PP, 0, 0)
    for j in range(40):
        if j + 1 < 40: abuild_p(PP + (j + 1) // 2, (j + 1) % 2, (j + 1) % 2)
        else: A.nop(2)
        A.wait(("wq", j))
        at = AT + (j % 2) * 4; v = BUF + 4 * j
        cs = "0" if j == 0 else f"v[{DQ}:{DQ+3}]"
        A(f"v_mfma_f32_16x16x32_bf16 v[{DQ}:{DQ+3}], v[{at}:{at+3}], v[{v}:{v+3}], {cs}")
    A("v_lshlrev_b32 v6, 5, v2"); A("v_lshl_add_u32 v6, v3, 4, v6")
    A("s_lshl_b32 s43, s42, 9"); A("v_add_u32 v7, s43, v6")
    A.nop(6)
    A("s_mov_b32 exec_hi, 0")
    A(f"ds_write_b128 v7, v[{DQ}:{DQ+3}] offset:{L_QP}")
    A("s_mov_b32 exec_hi, -1")
    if dyn:
        A("v_lshlrev_b32 v6, 2, v0"); A("v_mov_b32 v7, 0")
        A("s_mov_b64 exec, 0xff")
        A(f"ds_write_b32 v6, v7 offset:{L_PROG}")
        A("s_mov_b64 exec, -1")
    A("s_waitcnt lgkmcnt(0)")
    P.stamp()
    A("s_barrier")
    A("s_cmp_lg_u32 s42, 0"); A("s_cbranch_scc1 L_wo")
    A("s_cmp_ge_u32 s5, %d" % (0 if nomlp else 27)); A("s_cbranch_scc1 L_wo")
    layernorm(A, X, F, T, X)
    A("v_lshlrev_b32 v4, 2, v0")
    for k in range(5): A(f"ds_write_b32 v4, v{X+k} offset:{L_Y + 256*k}")
    A("s_lshl_b32 s6, s5, 7")
    A(f"s_sub_u32 s44, {640*3456}, s6")
    srd(A, 8, 28, 29, 6, "s44")
    srd(A, 12, 30, 31, 6, 128)
    A("v_lshlrev_b32 v5, 1, v0")
    A.issue(("b1", 0), f"buffer_load_ushort v{F}, v5, s[12:15], 0 offen")
    A("v_lshrrev_b32 v5, 3, v2"); A("v_lshl_add_u32 v5, v3, 1, v5")
    A("v_mul_u32_u24 v6, 160, v5")
    A(f"s_mov_b32 s45, {80*3456}"); A("v_mul_lo_u32 v5, s45, v5")
    A("v_and_b32 v7, 7, v2"); A("v_lshl_add_u32 v5, v7, 4, v5")
    A("s_waitcnt lgkmcnt(0)")
    PY = BUF
    for k in range(10): A(f"ds_read_b128 v[{PY+4*k}:{PY+4*k+3}], v6 offset:{L_Y + 16*k}")
    RB, RN = BUF + 40, 30
    def w1_load(j):
        v = RB + (j % RN) * 4
        A(f"s_mov_b32 s45, {j*3456}")
        A.issue(("w1", j), f"buffer_load_dwordx4 v[{v}:{v+3}], v5, s[8:11], s45 offen {wpol}")
    for j in range(NW): w1_load(j)
    A("s_waitcnt lgkmcnt(0)")
    abuild_p(PY, 0, 0)
    for j in range(80):
        if j + 1 < 80: abuild_p(PY + (j + 1) // 2, (j + 1) % 2, (j + 1) % 2)
        else: A.nop(2)
        A.wait(("w1", j))
        at = AT + (j % 2) * 4; v = RB + (j % RN) * 4
        cs = "0" if j == 0 else f"v[{DQ}:{DQ+3}]"
        A(f"v_mfma_f32_16x16x32_bf16 v[{DQ}:{DQ+3}], v[{at}:{at+3}], v[{v}:{v+3}], {cs}")
        if j + NW < 80: w1_load(j + NW)
    A("s_mul_i32 s6, s5, 81920")
    A(f"s_sub_u32 s44, {1728*1280}, s6")
    srd(A, 8, 32, 33, 6, "s44")
    A("v_mul_u32_u24 v5, 20480, v3"); A("v_lshl_add_u32 v5, v2, 4, v5")
    def w2_load(n):
        jj, cb = n // 5, n % 5
        v = RB + (n % RN) * 4
        if cb == 0: A(f"s_mov_b32 s45, {jj*1280}")
        A.issue(("w2", n), f"buffer_load_dwordx4 v[{v}:{v+3}], v5, s[8:11], s45 offen offset:{cb*256} {wpol}")
    for n in range(10): w2_load(n)
    A("v_lshrrev_b32 v6, 1, v3"); A("v_lshrrev_b32 v7, 3, v2")
    A("v_cmp_eq_u32 vcc, v6, v7")
    A("v_lshlrev_b32 v6, 8, v6"); A("v_and_b32 v7, 7, v2"); A("v_lshl_add_u32 v6, v7, 5, v6")
    A("v_and_b32 v7, 1, v3"); A("v_lshl_add_u32 v6, v7, 4, v6")
    A("s_and_saveexec_b64 s[46:47], vcc")
    A(f"ds_write_b128 v6, v[{DQ}:{DQ+3}] offset:{L_T}")
    A("s_mov_b64 exec, s[46:47]")
    A("v_lshlrev_b32 v6, 2, v0")
    A("s_waitcnt lgkmcnt(0)")
    A(f"ds_read_b32 v{F+1}, v6 offset:{L_T}"); A(f"ds_read_b32 v{F+2}, v6 offset:{L_T+256}")
    A("s_waitcnt lgkmcnt(0)")
    A(f"v_add_f32 v{F+1}, v{F+1}, v{F+2}")
    bf16r(A, F + 1, F + 1)
    A.wait(("b1", 0))
    A(f"v_lshlrev_b32 v{F}, 16, v{F}")
    A(f"v_add_f32 v{F+1}, v{F+1}, v{F}")
    bf16r(A, F + 1, F + 1)
    x_, u_, e_ = F + 1, F + 2, F + 3
    A(f"v_mul_f32 v{u_}, v{x_}, v{x_}"); A(f"v_mul_f32 v{u_}, v{u_}, v{x_}")
    A(f"v_mov_b32 v{e_}, {f2u(0.044715):#x}"); A(f"v_fma_f32 v{u_}, v{u_}, v{e_}, v{x_}")
    A(f"v_mul_f32 v{u_}, {f2u(-2*0.7978845608028654*1.4426950408889634):#x}, v{u_}")
    A(f"v_exp_f32 v{u_}, v{u_}"); A.nop(1)
    A(f"v_add_f32 v{u_}, 1.0, v{u_}"); A(f"v_rcp_f32 v{u_}, v{u_}"); A.nop(1)
    A(f"v_mul_f32 v{u_}, v{x_}, v{u_}")
    A(f"v_cvt_pk_bf16_f32 v{u_}, v{u_}, v{u_}")
    A("v_lshlrev_b32 v6, 1, v0")
    A(f"ds_write_b16 v6, v{u_} offset:{L_HV}")
    A("v_lshlrev_b32 v6, 5, v3")
    A("s_waitcnt lgkmcnt(0)")
    for k in range(2): A(f"ds_read_b128 v[{PP+4*k}:{PP+4*k+3}], v6 offset:{L_HV + 16*k}")
    A("s_waitcnt lgkmcnt(0)")
    abuild_p(PP, 0, 0)
    nl = 10
    for jj in range(16):
        if jj + 1 < 16: abuild_p(PP + (jj + 1) // 2, (jj + 1) % 2, (jj + 1) % 2)
        else: A.nop(2)
        at = AT + (jj % 2) * 4
        for cb in range(5):
            n = jj * 5 + cb
            A.wait(("w2", n))
            v = RB + (n % RN) * 4; d = DO + 4 * cb
            A(f"v_mfma_f32_16x16x32_bf16 v[{d}:{d+3}], v[{at}:{at+3}], v[{v}:{v+3}], v[{d}:{d+3}]")
            if nl < 80: w2_load(nl); nl += 1
    A.waitall()
    A.label("L_wo")
    A.vm = []
    A("s_mul_i32 s6, s5, 163840")
    srd(A, 8, 24, 25, 6, 163840)
    A("s_lshl_b32 s43, s42, 5"); A("v_lshlrev_b32 v5, 3, v3"); A("v_add_u32 v5, s43, v5")
    A("v_mul_u32_u24 v5, 1280, v5"); A("v_lshl_add_u32 v5, v2, 4, v5")
    for n in range(0 if nowo else 40):
        jj, cb = n // 5, n % 5
        v = BUF + 4 * n
        if cb == 0: A(f"s_mov_b32 s45, {jj*1280}")
        if n >= NA: A.wait(("wo", n - NA))
        A.issue(("wo", n), f"buffer_load_dwordx4 v[{v}:{v+3}], v5, s[8:11], s45 offen offset:{cb*256} {wpol}")
    if dyn == 3:
        A("s_cmp_lg_u32 s42, 3"); A("s_cbranch_scc1 L_ctrl_done")
        A.waitall() if False else None
        A(f"s_mov_b32 s50, {CK0}"); A("s_mov_b32 s51, 16"); A("s_mov_b32 s52, 0"); A("s_mov_b32 s53, 0")
        A("v_mov_b32 v6, 0"); A("s_mov_b64 exec, 1")
        A.label("L_ctrl")
        A(f"ds_read_b32 v5, v6 offset:{L_PROG}")
        A("s_waitcnt lgkmcnt(0)")
        A("v_readfirstlane_b32 s54, v5")
        A(f"s_cmp_ge_u32 s54, {CKEXIT}"); A("s_cbranch_scc1 L_ctrl_exit")
        A("s_cmp_eq_u32 s52, 0"); A("s_cbranch_scc1 L_ctrl_a")
        A("s_cmp_lt_u32 s54, s53"); A("s_cbranch_scc1 L_ctrl_a")
        A("s_mov_b32 s52, 0"); A("v_mov_b32 v5, 0"); A(f"ds_write_b32 v6, v5 offset:{L_MODE}")
        A.label("L_ctrl_a")
        A("s_cmp_lt_u32 s54, s50"); A("s_cbranch_scc1 L_ctrl_sleep")
        A("v_mov_b32 v7, 1"); A("v_mov_b32 v4, s51")
        A("global_atomic_add v5, v4, v7, s[38:39] sc0")
        A("s_waitcnt vmcnt(0)")
        A("v_readfirstlane_b32 s55, v5")
        A(f"s_add_u32 s50, s50, {CKS}"); A("s_add_u32 s51, s51, 32")
        A("s_mov_b32 s56, 0")
        for th, bo in zip(TH, BO):
            A(f"s_cmp_ge_u32 s55, {th}"); A(f"s_cselect_b32 s56, {bo}, s56")
        A("s_cmp_eq_u32 s56, 0"); A("s_cbranch_scc1 L_ctrl_sleep")
        A(f"ds_read_b32 v5, v6 offset:{L_PROG}")
        A("s_waitcnt lgkmcnt(0)")
        A("v_readfirstlane_b32 s54, v5")
        A("s_add_u32 s53, s54, s56"); A("s_add_u32 s53, s53, 1")
        A("s_mov_b32 s52, 1"); A("v_mov_b32 v5, 1"); A(f"ds_write_b32 v6, v5 offset:{L_MODE}")
        A.label("L_ctrl_sleep")
        A(f"s_sleep {sleep}")
        A("s_branch L_ctrl")
        A.label("L_ctrl_exit")
        A("s_mov_b64 exec, -1")
        A.label("L_ctrl_done")
    XB = 60
    XB = 92
    if fused:
        A("s_lshl_b32 s43, s42, 6"); A("v_add_u32 v4, s43, v0"); A("v_lshlrev_b32 v4, 3, v4")
        A("s_mul_i32 s6, s4, 1280")
        srd(A, 12, 16, 17, 6, 1280)
        A.issue(("xf", 0), f"buffer_load_dwordx2 v[{XB}:{XB+1}], v4, s[12:15], 0 offen")
        srd(A, 68, 34, 35, None, 1280)
        A.issue(("xf", 1), f"buffer_load_dwordx2 v[{XB+2}:{XB+3}], v4, s[68:71], 0 offen")
    A("v_lshlrev_b32 v4, 5, v3"); A("s_lshl_b32 s43, s42, 7"); A("v_add_u32 v4, s43, v4")
    A("v_mov_b32 v5, 0")
    A.waitall()
    P.stamp()
    A("s_barrier")
    P.stamp()
    if fused == 2:
        A("s_cmp_lg_u32 s42, 0"); A("s_cbranch_scc1 L_noticket")
        A("s_lshl_b32 s6, s4, 5"); A("v_mov_b32 v90, s6"); A("v_mov_b32 v91, 1")
        A("s_mov_b64 exec, 1")
        A("global_atomic_add v88, v90, v91, s[38:39] sc0")
        A("global_load_dword v89, v90, s[38:39] offset:4 sc1")
        A("s_mov_b64 exec, -1")
        A.label("L_noticket")
    ML = PP
    OV = PP + 8
    A(f"ds_read_b128 v[{ML}:{ML+3}], v5 offset:{L_ML}"); A(f"ds_read_b128 v[{ML+4}:{ML+7}], v5 offset:{L_ML+16}")
    OVR = [72, 80, 48, 16]
    for w in range(4):
        for q in range(2):
            v = OVR[w] + 4 * q
            A(f"ds_read_b128 v[{v}:{v+3}], v4 offset:{L_OP + w*512 + q*16}")
    A("s_waitcnt lgkmcnt(8)")
    A(f"v_max3_f32 v6, v{ML}, v{ML+2}, v{ML+4}"); A(f"v_max_f32 v6, v6, v{ML+6}")
    for w in range(4):
        A(f"v_sub_f32 v{ML+2*w}, v{ML+2*w}, v6"); A(f"v_mul_f32 v{ML+2*w}, {LOG2E:#x}, v{ML+2*w}"); A(f"v_exp_f32 v{ML+2*w}, v{ML+2*w}")
    A.nop(1)
    A(f"v_mul_f32 v7, v{ML}, v{ML+1}")
    for w in range(1, 4): A(f"v_fmac_f32 v7, v{ML+2*w}, v{ML+2*w+1}")
    A("v_rcp_f32 v7, v7"); A.nop(1)
    A("s_waitcnt lgkmcnt(0)")
    for k in range(8):
        A(f"v_mul_f32 v{OVR[0]+k}, v{OVR[0]+k}, v{ML}")
        for w in range(1, 4): A(f"v_fmac_f32 v{OVR[0]+k}, v{OVR[w]+k}, v{ML+2*w}")
        A(f"v_mul_f32 v{OVR[0]+k}, v{OVR[0]+k}, v7")
    PO = 56
    for k in range(4): A(f"v_cvt_pk_bf16_f32 v{PO+k}, v{OVR[0]+2*k}, v{OVR[0]+2*k+1}")
    abuild_p(PO, 0, 0)
    for jj in range(8):
        if jj + 1 < 8: abuild_p(PO + (jj + 1) // 2, (jj + 1) % 2, (jj + 1) % 2)
        else: A.nop(2)
        at = AT + (jj % 2) * 4
        if jj == 0: A.nop(2)
        for cb in range(5):
            v = BUF + 4 * (jj * 5 + cb); d = DO + 4 * cb
            A(f"v_mfma_f32_16x16x32_bf16 v[{d}:{d+3}], v[{at}:{at+3}], v[{v}:{v+3}], v[{d}:{d+3}]")
    A("v_lshlrev_b32 v6, 5, v2"); A("v_lshl_add_u32 v6, v3, 4, v6")
    A("s_mul_i32 s43, s42, 2560"); A("v_add_u32 v6, s43, v6")
    A.nop(4)
    A("s_mov_b32 exec_hi, 0")
    for cb in range(5):
        A(f"ds_write_b128 v6, v[{DO+4*cb}:{DO+4*cb+3}] offset:{L_OUTP + cb*512}")
    A("s_mov_b32 exec_hi, -1")
    if fused == 2:
        A("s_mul_i32 s6, s4, 2560"); A("s_add_u32 s6, s6, 0x100000")
        srd(A, 8, 40, 41, 6, 2560)
        A("s_cmp_lg_u32 s42, 0"); A("s_cbranch_scc1 L_tk_done")
        A("s_waitcnt vmcnt(0)")
        A("v_readfirstlane_b32 s50, v88"); A("v_readfirstlane_b32 s51, v89")
        A("s_cmp_lg_u32 s50, 0"); A("s_cbranch_scc1 L_tk_spin")
        for k in range(4): A(f"v_mov_b32 v{72+k}, 0")
        A("v_lshlrev_b32 v7, 4, v0")
        for i in range(3): A(f"buffer_store_dwordx4 v[72:75], v7, s[8:11], 0 offen offset:{i*1024} sc1")
        A("s_waitcnt vmcnt(0)")
        A("s_mov_b64 exec, 1")
        A("global_store_dword v90, v91, s[38:39] offset:4 sc1")
        A("s_mov_b64 exec, -1")
        A("s_branch L_tk_done")
        A.label("L_tk_spin")
        A("s_cmp_lg_u32 s51, 0"); A("s_cbranch_scc1 L_tk_done")
        A("s_mov_b64 exec, 1")
        A("global_load_dword v89, v90, s[38:39] offset:4 sc1")
        A("s_waitcnt vmcnt(0)")
        A("v_readfirstlane_b32 s51, v89")
        A("s_mov_b64 exec, -1")
        A("s_branch L_tk_spin")
        A.label("L_tk_done")
    A("s_waitcnt lgkmcnt(0)")
    P.stamp()
    A.label("L_b3")
    A("s_barrier")
    if not fused:
        A("s_lshl_b32 s43, s42, 6"); A("v_add_u32 v4, s43, v0")
        A("v_cmp_gt_u32 vcc, 160, v4")
        A("v_lshlrev_b32 v4, 4, v4")
        A("s_and_saveexec_b64 s[46:47], vcc")
        A("s_cbranch_execz L_aux_done")
        for w in range(4): A(f"ds_read_b128 v[{72+4*w}:{75+4*w}], v4 offset:{L_OUTP + w*2560}")
        A("s_mul_i32 s6, s66, 2560")
        srd(A, 8, 40, 41, 6, 2560)
        A("s_waitcnt lgkmcnt(0)")
        for k in range(4):
            A(f"v_add_f32 v{72+k}, v{72+k}, v{76+k}"); A(f"v_add_f32 v{80+k}, v{80+k}, v{84+k}"); A(f"v_add_f32 v{72+k}, v{72+k}, v{80+k}")
        A("buffer_store_dwordx4 v[72:75], v4, s[8:11], 0 offen")
    elif fused == 2:
        A("s_mul_i32 s43, s42, 640"); A("v_lshlrev_b32 v4, 2, v0"); A("v_add_u32 v4, s43, v4")
        for i in range(3):
            for w in range(4):
                A(f"ds_read_b32 v{72+4*i+w}, v4 offset:{L_OUTP + w*2560 + i*256}")
        for i in range(3):
            A(f"s_waitcnt lgkmcnt({8-4*i})")
            v = 72 + 4 * i
            A(f"v_add_f32 v{v}, v{v}, v{v+1}"); A(f"v_add_f32 v{v+2}, v{v+2}, v{v+3}"); A(f"v_add_f32 v{v}, v{v}, v{v+2}")
            if i == 2: A("s_mov_b32 exec_hi, 0")
            A(f"buffer_atomic_add_f32 v{v}, v4, s[8:11], 0 offen offset:{i*256}")
        A("s_mov_b32 exec_hi, -1")
        A("s_waitcnt vmcnt(0)")
        P.stamp()
        A("s_barrier")
        A("s_cmp_lg_u32 s42, 0"); A("s_cbranch_scc1 L_wait_flag")
        A("s_mov_b64 exec, 1")
        A("global_atomic_add v5, v90, v91, s[38:39] offset:8 sc0")
        A("s_waitcnt vmcnt(0)")
        A("v_mov_b32 v6, 0")
        A(f"ds_write_b32 v6, v5 offset:{L_FLAG}")
        A("s_mov_b64 exec, -1")
        A("s_waitcnt lgkmcnt(0)")
        A.label("L_wait_flag")
        P.stamp()
        A("s_barrier")
        A("v_mov_b32 v6, 0")
        A(f"ds_read_b32 v5, v6 offset:{L_FLAG}")
        A("s_lshl_b32 s43, s42, 6"); A("v_add_u32 v4, s43, v0")
        A("v_lshlrev_b32 v7, 3, v4"); A("v_lshlrev_b32 v4, 4, v4")
        A("s_mul_i32 s6, s4, 1280")
        srd(A, 12, 36, 37, 6, 1280)
        A("s_waitcnt lgkmcnt(0)")
        A("v_readfirstlane_b32 s43, v5")
        A("s_cmp_lg_u32 s43, 31"); A("s_cbranch_scc1 L_aux_done")
        A("s_cmp_ge_u32 s42, 3"); A("s_cbranch_scc1 L_aux_done")
        A("buffer_load_dwordx4 v[72:75], v4, s[8:11], 0 offen sc1")
        A("s_waitcnt vmcnt(0)")
        for k in range(2):
            A(f"v_lshlrev_b32 v76, 16, v{XB+2+k}"); A(f"v_and_b32 v77, 0xffff0000, v{XB+2+k}")
            A(f"v_add_f32 v{72+2*k}, v{72+2*k}, v76"); A(f"v_add_f32 v{73+2*k}, v{73+2*k}, v77")
            A(f"v_lshlrev_b32 v76, 16, v{XB+k}"); A(f"v_and_b32 v77, 0xffff0000, v{XB+k}")
            A(f"v_add_f32 v{72+2*k}, v{72+2*k}, v76"); A(f"v_add_f32 v{73+2*k}, v{73+2*k}, v77")
        A("v_cvt_pk_bf16_f32 v72, v72, v73"); A("v_cvt_pk_bf16_f32 v73, v74, v75")
        A("buffer_store_dwordx2 v[72:73], v7, s[12:15], 0 offen")
    else:
        NG = 8 if tail2 else 4
        SPW = 32 // NG
        widx = "s3" if tail2 else "s42"
        A("v_lshlrev_b32 v4, 4, v0")
        A("s_cmp_lg_u32 s3, 4"); A("s_cbranch_scc1 L_wait_flag")
        for i in range(3):
            for w in range(4):
                v = BUF + 16 * i + 4 * w
                A(f"ds_read_b128 v[{v}:{v+3}], v4 offset:{L_OUTP + w*2560 + i*1024}")
        SB = 1280 if sl16 else 2560
        A(f"s_mul_i32 s6, s66, {SB}")
        srd(A, 8, 40, 41, 6, SB)
        if sl16: A("v_lshlrev_b32 v5, 3, v0")
        for i in range(3):
            A(f"s_waitcnt lgkmcnt({8-4*i})")
            v = BUF + 16 * i
            for k in range(4):
                A(f"v_add_f32 v{v+k}, v{v+k}, v{v+4+k}"); A(f"v_add_f32 v{v+8+k}, v{v+8+k}, v{v+12+k}"); A(f"v_add_f32 v{v+k}, v{v+k}, v{v+8+k}")
            if sl16:
                A(f"v_cvt_pk_bf16_f32 v{v+4}, v{v}, v{v+1}"); A(f"v_cvt_pk_bf16_f32 v{v+5}, v{v+2}, v{v+3}")
                A(f"buffer_store_dwordx2 v[{v+4}:{v+5}], v5, s[8:11], 0 offen offset:{i*512} sc1")
            else:
                A(f"buffer_store_dwordx4 v[{v}:{v+3}], v4, s[8:11], 0 offen offset:{i*1024} sc1")
        A("s_lshl_b32 s6, s4, 5")
        A("v_mov_b32 v6, s6"); A("v_mov_b32 v7, 1")
        A("s_waitcnt vmcnt(0)")
        P.stamp()
        A("s_mov_b64 s[46:47], exec"); A("s_mov_b64 exec, 1")
        A("global_atomic_add v5, v6, v7, s[38:39] sc0")
        A("s_waitcnt vmcnt(0)")
        A("v_mov_b32 v6, 0")
        A(f"ds_write_b32 v6, v5 offset:{L_FLAG}")
        A("s_mov_b64 exec, s[46:47]")
        A("s_waitcnt lgkmcnt(0)")
        A.label("L_wait_flag")
        P.stamp()
        A("s_barrier")
        A("v_mov_b32 v6, 0")
        A(f"ds_read_b32 v5, v6 offset:{L_FLAG}")
        A(f"s_mul_i32 s6, s4, {32*SB}"); A(f"s_mul_i32 s43, {widx}, {SPW*SB}"); A("s_add_u32 s6, s6, s43")
        srd(A, 8, 40, 41, 6, SPW * SB)
        if sl16: A("v_lshlrev_b32 v7, 3, v0")
        A("s_waitcnt lgkmcnt(0)")
        A("v_readfirstlane_b32 s43, v5")
        if warm:
            A("s_cmp_eq_u32 s43, 31"); A("s_cselect_b32 s10, s10, 0"); A("s_cselect_b32 s57, 1280, 0")
        else:
            A("s_cmp_lg_u32 s43, 31"); A("s_cbranch_scc1 L_aux_done")
        A.vm = []
        for i in range(3):
            for sl in range(SPW):
                v = BUF + (i * SPW + sl) * 4
                if i == 2 and sl == 0: A("s_mov_b32 exec_hi, 0")
                if sl == 0: so = "0"
                else:
                    A(f"s_mov_b32 s45, {sl*SB}"); so = "s45"
                if sl16:
                    A.issue(("g", i, sl), f"buffer_load_dwordx2 v[{v}:{v+1}], v7, s[8:11], {so} offen offset:{i*512} sc1")
                else:
                    A.issue(("g", i, sl), f"buffer_load_dwordx4 v[{v}:{v+3}], v4, s[8:11], {so} offen offset:{i*1024} sc1")
        A("s_mov_b32 exec_hi, -1")
        A(f"s_mul_i32 s43, {widx}, 2560"); A("v_add_u32 v6, s43, v4")
        LF = L_F if tail2 else L_OUTP
        for i in range(3):
            A.wait(("g", i, SPW - 1))
            v = BUF + i * SPW * 4
            if sl16:
                for sl in range(SPW):
                    q = v + 4 * sl
                    A(f"v_lshlrev_b32 v{q+2}, 16, v{q+1}"); A(f"v_and_b32 v{q+3}, 0xffff0000, v{q+1}")
                    A(f"v_and_b32 v{q+1}, 0xffff0000, v{q}"); A(f"v_lshlrev_b32 v{q}, 16, v{q}")
            n = SPW
            stride = 4
            while n > 1:
                for p in range(n // 2):
                    for k in range(4):
                        A(f"v_add_f32 v{v+2*p*stride+k}, v{v+2*p*stride+k}, v{v+(2*p+1)*stride+k}")
                n //= 2; stride *= 2
            if i == 2: A("s_mov_b32 exec_hi, 0")
            A(f"ds_write_b128 v6, v[{v}:{v+3}] offset:{LF + i*1024}")
        A("s_mov_b32 exec_hi, -1")
        A("s_waitcnt lgkmcnt(0)")
        P.stamp()
        A("s_barrier")
        A("s_cmp_lt_u32 s3, 4"); A("s_cbranch_scc1 L_aux_done")
        A("s_lshl_b32 s43, s42, 6"); A("v_add_u32 v4, s43, v0")
        A("v_cmp_gt_u32 vcc, 160, v4")
        A("v_lshlrev_b32 v5, 3, v4")
        A("v_lshlrev_b32 v4, 4, v4")
        A("s_and_saveexec_b64 s[46:47], vcc")
        A("s_cbranch_execz L_aux_done")
        for w in range(NG): A(f"ds_read_b128 v[{BUF+4*w}:{BUF+3+4*w}], v4 offset:{LF + w*2560}")
        A("s_mul_i32 s6, s4, 1280")
        srd(A, 8, 36, 37, 6, "s57" if warm else 1280)
        A("s_waitcnt lgkmcnt(0)")
        n = NG; stride = 4
        while n > 1:
            for p in range(n // 2):
                for k in range(4):
                    A(f"v_add_f32 v{BUF+2*p*stride+k}, v{BUF+2*p*stride+k}, v{BUF+(2*p+1)*stride+k}")
            n //= 2; stride *= 2
        for k in range(2):
            A(f"v_lshlrev_b32 v76, 16, v{XB+2+k}"); A(f"v_and_b32 v77, 0xffff0000, v{XB+2+k}")
            A(f"v_add_f32 v{BUF+2*k}, v{BUF+2*k}, v76"); A(f"v_add_f32 v{BUF+1+2*k}, v{BUF+1+2*k}, v77")
            A(f"v_lshlrev_b32 v76, 16, v{XB+k}"); A(f"v_and_b32 v77, 0xffff0000, v{XB+k}")
            A(f"v_add_f32 v{BUF+2*k}, v{BUF+2*k}, v76"); A(f"v_add_f32 v{BUF+1+2*k}, v{BUF+1+2*k}, v77")
        A(f"v_cvt_pk_bf16_f32 v72, v{BUF}, v{BUF+1}"); A(f"v_cvt_pk_bf16_f32 v73, v{BUF+2}, v{BUF+3}")
        A("buffer_store_dwordx2 v[72:73], v5, s[8:11], 0 offen")
    A.label("L_aux_done")
    P.stamp()
    if prof and tail2:
        A("s_cmp_lt_u32 s3, 4"); A("s_cbranch_scc1 L_end")
    P.flush()
    A.label("L_end")
    A("s_endpgm")
    out += A.L
    kernels = [(kname, 256, 102)]
    if not fused:
        B = Asm()
        out.append(".globl reduce_kernel"); out.append(".p2align 8"); out.append(".type reduce_kernel,@function")
        B.label("reduce_kernel")
        B("s_cmp_ge_u32 s2, 160"); B("s_cbranch_scc1 R_end")
        B("s_load_dwordx2 s[4:5], s[0:1], 0")
        B("s_load_dwordx4 s[8:11], s[0:1], 72")
        B("s_load_dwordx2 s[6:7], s[0:1], 96")
        B("s_mul_hi_u32 s12, s2, 0xccccccd")
        B("s_mul_i32 s13, s12, 20"); B("s_sub_u32 s13, s2, s13")
        B("v_and_b32 v1, 7, v0"); B("v_lshrrev_b32 v2, 3, v0")
        B("v_mul_u32_u24 v3, 10240, v2"); B("v_lshl_add_u32 v3, v1, 4, v3")
        B("s_lshl_b32 s14, s13, 7"); B("v_add_u32 v3, s14, v3")
        B("s_mul_i32 s15, s12, 81920")
        B("s_waitcnt lgkmcnt(0)")
        B("s_add_u32 s16, s6, s15"); B("s_addc_u32 s17, s7, 0"); B("s_mov_b32 s18, 81920"); B("s_mov_b32 s19, 0x20000")
        B("s_mov_b32 s20, 2560"); B("s_mov_b32 s21, 5120"); B("s_mov_b32 s22, 7680")
        B("buffer_load_dwordx4 v[4:7], v3, s[16:19], 0 offen")
        B("buffer_load_dwordx4 v[8:11], v3, s[16:19], s20 offen")
        B("buffer_load_dwordx4 v[12:15], v3, s[16:19], s21 offen")
        B("buffer_load_dwordx4 v[16:19], v3, s[16:19], s22 offen")
        B("s_mul_i32 s15, s12, 1280"); B("s_lshl_b32 s14, s13, 6")
        B("v_lshlrev_b32 v20, 3, v1"); B("v_add_u32 v20, s14, v20")
        B("s_add_u32 s24, s4, s15"); B("s_addc_u32 s25, s5, 0"); B("s_mov_b32 s26, 1280"); B("s_mov_b32 s27, 0x20000")
        B("s_mov_b32 s28, s8"); B("s_mov_b32 s29, s9"); B("s_mov_b32 s30, 1280"); B("s_mov_b32 s31, 0x20000")
        B("s_add_u32 s32, s10, s15"); B("s_addc_u32 s33, s11, 0"); B("s_mov_b32 s34, 1280"); B("s_mov_b32 s35, 0x20000")
        B("buffer_load_dwordx2 v[22:23], v20, s[24:27], 0 offen")
        B("buffer_load_dwordx2 v[24:25], v20, s[28:31], 0 offen")
        B("s_waitcnt vmcnt(2)")
        for k in range(4):
            B(f"v_add_f32 v{4+k}, v{4+k}, v{8+k}"); B(f"v_add_f32 v{12+k}, v{12+k}, v{16+k}"); B(f"v_add_f32 v{4+k}, v{4+k}, v{12+k}")
        B.nop(2)
        for k in range(4): B(f"v_add_f32_dpp v{4+k}, v{4+k}, v{4+k} row_ror:8 row_mask:0xf bank_mask:0xf")
        for sw in ("v_permlane16_swap_b32", "v_permlane32_swap_b32"):
            for k in range(4): B(f"v_mov_b32 v{8+k}, v{4+k}")
            B.nop(2)
            for k in range(4): B(f"{sw} v{4+k}, v{8+k}")
            B.nop(1)
            for k in range(4): B(f"v_add_f32 v{4+k}, v{4+k}, v{8+k}")
        B("s_waitcnt vmcnt(0)")
        for k in range(2):
            B(f"v_lshlrev_b32 v8, 16, v{22+k}"); B(f"v_and_b32 v9, 0xffff0000, v{22+k}")
            B(f"v_lshlrev_b32 v10, 16, v{24+k}"); B(f"v_and_b32 v11, 0xffff0000, v{24+k}")
            B(f"v_add_f32 v{4+2*k}, v{4+2*k}, v10"); B(f"v_add_f32 v{5+2*k}, v{5+2*k}, v11")
            B(f"v_add_f32 v{4+2*k}, v{4+2*k}, v8"); B(f"v_add_f32 v{5+2*k}, v{5+2*k}, v9")
        B("v_cvt_pk_bf16_f32 v4, v4, v5"); B("v_cvt_pk_bf16_f32 v5, v6, v7")
        B("v_cmp_gt_u32 vcc, 8, v0"); B("s_and_saveexec_b64 s[36:37], vcc")
        B("buffer_store_dwordx2 v[4:5], v20, s[32:35], 0 offen")
        B.label("R_end"); B("s_endpgm")
        out += B.L
        kernels.append(("reduce_kernel", 32, 48))
    out.append('.section .rodata,"a"')
    for kn, nv, ns in kernels:
        out += [".p2align 6", f".amdhsa_kernel {kn}", f"  .amdhsa_next_free_vgpr {nv}", f"  .amdhsa_next_free_sgpr {ns}",
                f"  .amdhsa_accum_offset {nv}", "  .amdhsa_group_segment_fixed_size 0", "  .amdhsa_kernarg_size 104",
                "  .amdhsa_user_sgpr_count 2", "  .amdhsa_user_sgpr_kernarg_segment_ptr 1", "  .amdhsa_system_sgpr_workgroup_id_x 1",
                "  .amdhsa_float_denorm_mode_32 3", ".end_amdhsa_kernel"]
    return "\n".join(out) + "\n"

if __name__ == "__main__":
    kw = eval("dict(" + (sys.argv[2] if len(sys.argv) > 2 else "") + ")")
    open(sys.argv[1], "w").write(gen(**kw))
```

```python
import struct, sys

NAME = "parallel_sum__gqa_block_cached__mixer_channel_mlp__decode"
HEADER = open("cdna_kernels/" + NAME + ".s.ref").read().split("; Override launch geometry")[0]

def f2u(x): return struct.unpack("<I", struct.pack("<f", x))[0]
SCALE = f2u(128 ** -0.5)
LOG2E = f2u(1.4426950408889634)
INV640 = f2u(1.0 / 640)
EPS = f2u(1e-5)

L_XN = 0
L_Y = 5120
L_QP = 6400
L_T = 8448
L_HV = 8960
L_OP = 9216
L_ML = 11264
L_OUTP = 11520
L_FLAG = 21760
L_PROG = 22528
L_MODE = 22544
L_F = 22784
LDS_BYTES = 22784 + 8 * 2560 + 1024

class Asm:
    def __init__(self):
        self.L = []
        self.vm = []
        self.landed = set()
        self.nlabel = 0
    def __call__(self, s): self.L.append("    " + s)
    def label(self, s): self.L.append(s + ":")
    def c(self, s): self.L.append("    ; " + s)
    def issue(self, tag, ins):
        self(ins); self.vm.append(tag)
        assert len(self.vm) <= 63, "too many outstanding vmem ops"
    def wait(self, tag):
        if tag not in self.vm: return
        i = self.vm.index(tag)
        n = len(self.vm) - 1 - i
        self(f"s_waitcnt vmcnt({n})")
        self.vm = self.vm[i + 1:]
    def waitall(self):
        if self.vm: self("s_waitcnt vmcnt(0)")
        self.vm = []
    def nop(self, n):
        while n > 0:
            k = min(n, 16); self(f"s_nop {k-1}"); n -= k

def allreduce(A, op, t, u):
    for ror in (8, 4, 2, 1):
        A.nop(2)
        A(f"v_{op}_f32_dpp v{t}, v{t}, v{t} row_ror:{ror} row_mask:0xf bank_mask:0xf")
    for sw in ("v_permlane16_swap_b32", "v_permlane32_swap_b32"):
        A(f"v_mov_b32 v{u}, v{t}")
        A.nop(2)
        A(f"{sw} v{t}, v{u}")
        A.nop(1)
        A(f"v_{op}_f32 v{t}, v{t}, v{u}")

def bf16r(A, d, s):
    A(f"v_cvt_pk_bf16_f32 v{d}, v{s}, v{s}")
    A(f"v_and_b32 v{d}, 0xffff0000, v{d}")

def layernorm(A, X, F, T, OUT):
    if isinstance(T, int): T = (T, T+1, T+2, T+3)
    for k in range(5):
        A(f"v_lshlrev_b32 v{F+2*k}, 16, v{X+k}")
        A(f"v_and_b32 v{F+2*k+1}, 0xffff0000, v{X+k}")
    t, u, m, r = T
    A(f"v_add_f32 v{t}, v{F}, v{F+1}")
    for k in range(2, 10): A(f"v_add_f32 v{t}, v{t}, v{F+k}")
    allreduce(A, "add", t, u)
    A(f"v_mul_f32 v{m}, {INV640:#x}, v{t}")
    A(f"v_sub_f32 v{u}, v{F}, v{m}")
    A(f"v_mul_f32 v{t}, v{u}, v{u}")
    for k in range(1, 10):
        A(f"v_sub_f32 v{u}, v{F+k}, v{m}")
        A(f"v_fmac_f32 v{t}, v{u}, v{u}")
    allreduce(A, "add", t, u)
    A(f"v_mul_f32 v{t}, {INV640:#x}, v{t}")
    bf16r(A, t, t)
    A(f"v_add_f32 v{t}, {EPS:#x}, v{t}")
    bf16r(A, t, t)
    A(f"v_sqrt_f32 v{t}, v{t}")
    A.nop(1)
    bf16r(A, t, t)
    A(f"v_rcp_f32 v{r}, v{t}")
    bf16r(A, m, m)
    for k in range(5):
        A(f"v_sub_f32 v{F+2*k}, v{F+2*k}, v{m}")
        A(f"v_sub_f32 v{F+2*k+1}, v{F+2*k+1}, v{m}")
        A(f"v_cvt_pk_bf16_f32 v{u}, v{F+2*k}, v{F+2*k+1}")
        A(f"v_lshlrev_b32 v{F+2*k}, 16, v{u}")
        A(f"v_and_b32 v{F+2*k+1}, 0xffff0000, v{u}")
        A(f"v_mul_f32 v{F+2*k}, v{F+2*k}, v{r}")
        A(f"v_mul_f32 v{F+2*k+1}, v{F+2*k+1}, v{r}")
        A(f"v_cvt_pk_bf16_f32 v{OUT+k}, v{F+2*k}, v{F+2*k+1}")

def srd(A, d, lo, hi, off_s, size):
    if off_s is None:
        A(f"s_mov_b32 s{d}, s{lo}"); A(f"s_mov_b32 s{d+1}, s{hi}")
    else:
        A(f"s_add_u32 s{d}, s{lo}, s{off_s}"); A(f"s_addc_u32 s{d+1}, s{hi}, 0")
    A(f"s_mov_b32 s{d+2}, {size}")
    A(f"s_mov_b32 s{d+3}, 0x20000")

class Prof:
    def __init__(self, A, on, reg): self.A, self.on, self.reg, self.n = A, on, reg, 0
    def stamp(self):
        if not self.on: return
        A = self.A
        A("s_memrealtime s[92:93]"); A("s_waitcnt lgkmcnt(0)")
        A(f"v_writelane_b32 v{self.reg}, s92, {self.n}"); self.n += 1
    def flush(self):
        if not self.on: return
        A = self.A
        A("s_mov_b64 exec, -1")
        A("s_lshl_b32 s94, s2, 3"); A("s_add_u32 s94, s94, s3"); A("s_lshl_b32 s94, s94, 8"); A("s_add_u32 s94, s94, 0x2000000")
        A(f"v_lshlrev_b32 v1, 2, v0"); A("v_add_u32 v1, s94, v1")
        A(f"global_store_dword v1, v{self.reg}, s[40:41]")

def gen(N=5, C=8, S0=24, R=32, catch=2, Ntail=None, tail_from=None, NA=4, wpol="", kvpol="nt", prof=0, fused=0, prio=1, hmap=1, nomlp=0, nowo=0, NW=8, diag=0, nostream=0, WQ0=16, NQ=0, bar0=0, K0=5, dyn=0, NH=8, dyn_from=32, CK0=4, CKS=4, TH=(128,192,232), BO=(1,2,3), CKEXIT=30, sleep=3, even_boost=(16,20), T2=720, TK=226, TV=217, MARG=0, wmask=0, rotm=0, CV=None, tail2=0, rg=32, sl16=0, warm=0, earlyml=1, rotx=0):
    A = Asm()
    P = Prof(A, prof, 63)
    kname = NAME + "_kernel"
    out = []
    out.append(HEADER.rstrip("\n"))
    if fused:
        out.append(f"; @launch grid=(256,1,1) block=(512,1,1) lds={LDS_BYTES}")
    else:
        out.append(f"; @launch kernel={kname} grid=(256,1,1) block=(512,1,1) lds={LDS_BYTES}")
        out.append(f"; @launch kernel=reduce_kernel grid=(160,1,1) block=(64,1,1) lds=0")
    out.append('.amdgcn_target "amdgcn-amd-amdhsa--gfx950"')
    out.append(".text"); out.append(f".globl {kname}"); out.append(".p2align 8"); out.append(f".type {kname},@function")
    A.label(kname)
    A("s_cmp_ge_u32 s2, 256"); A("s_cbranch_scc1 L_end")
    A("s_load_dwordx16 s[16:31], s[0:1], 0")
    A("s_load_dwordx8 s[32:39], s[0:1], 64")
    A("s_load_dwordx2 s[40:41], s[0:1], 96")
    A("v_lshrrev_b32 v1, 6, v0")
    A("v_and_b32 v0, 63, v0")
    A("v_readfirstlane_b32 s3, v1")
    A("v_and_b32 v2, 15, v0")
    A("v_lshrrev_b32 v3, 4, v0")
    if hmap == 0:
        A("s_lshr_b32 s4, s2, 5")
        A("s_and_b32 s5, s2, 31")
    else:
        A("s_and_b32 s5, s2, 7"); A("s_lshl_b32 s5, s5, 2"); A("s_bfe_u32 s4, s2, 0x20003"); A("s_add_u32 s5, s5, s4")
        A("s_lshr_b32 s4, s2, 5")
    A("s_lshl_b32 s66, s4, 5"); A("s_add_u32 s66, s66, s5")
    if prof: A("v_mov_b32 v63, 0")
    A("s_cmp_ge_u32 s3, 4"); A("s_cbranch_scc1 L_aux")
    vK, vV = 4, 5
    MASK = 8
    AT = 12
    D = 20
    O = 28
    S = 32
    TM = 48
    BQ = 64
    RING = 128
    assert R * 4 + RING <= 256
    if prio: A(f"s_setprio {prio}")
    A("v_bfe_u32 v6, v2, 1, 1"); A("v_lshlrev_b32 v6, 10, v6")
    A("v_lshrrev_b32 v7, 2, v2"); A("v_lshl_add_u32 v6, v7, 8, v6")
    A("v_and_b32 v7, 1, v2"); A("v_lshl_add_u32 v6, v7, 6, v6")
    A(f"v_lshl_add_u32 v{vK}, v3, 4, v6")
    A(f"v_lshlrev_b32 v{vV}, 4, v0")
    A("s_lshl_b32 s6, s66, 20"); A("s_lshr_b32 s7, s66, 12")
    if CV is None: CV = C
    A(f"s_mul_i32 s42, s3, {C*1024}")
    if rotx:
        rotm = 1
        if rotx == 2: A("s_lshr_b32 s45, s2, 5"); A("s_lshl_b32 s45, s45, 2")
        if rotx == 3: A("s_lshr_b32 s45, s2, 5"); A("s_lshl_b32 s45, s45, 2"); A("s_add_u32 s45, s45, s2")
        if rotx == 5: A("s_and_b32 s45, s2, 7"); A("s_lshl_b32 s45, s45, 2")
        if rotx == 6: A("s_lshr_b32 s45, s2, 3")
        if rotx == 7: A("s_and_b32 s45, s2, 7")
        if rotx == 8: A("s_lshr_b32 s45, s2, 3"); A("s_and_b32 s45, s45, 3"); A("s_lshl_b32 s45, s45, 3")
        A(f"s_and_b32 s45, s45, {1024 // rg - 1}"); A(f"s_mul_i32 s45, s45, {rg*1024}")
        A("s_add_u32 s42, s42, s45")
    elif rotm:
        A(f"s_mul_i32 s45, s2, {rotm}"); A(f"s_and_b32 s45, s45, {1024 // rg - 1}"); A(f"s_mul_i32 s45, s45, {rg*1024}")
        A("s_add_u32 s42, s42, s45")
    A("s_waitcnt lgkmcnt(0)")
    A("s_add_u32 s8, s18, s6"); A("s_addc_u32 s9, s19, s7"); A("s_mov_b32 s10, 0x100000"); A("s_mov_b32 s11, 0x20000")
    A("s_add_u32 s12, s20, s6"); A("s_addc_u32 s13, s21, s7"); A("s_mov_b32 s14, 0x100000"); A("s_mov_b32 s15, 0x20000")
    P.stamp()
    if dyn == 4: A("s_memrealtime s[70:71]")
    cur_page = [None]
    def kv_load(n):
        isv = n >= 256; m = n % 256
        vi, wi = m // C, m % C
        byte = vi * 4 * C * 1024 + (wi // 2) * 2048 + ((wi % 2) * (1024 if isv else 128))
        page, imm = byte // 4096 * 4096, byte % 4096
        if cur_page[0] != page:
            A(f"s_add_u32 s43, s42, {page}"); cur_page[0] = page
            if rotm: A("s_and_b32 s43, s43, 0xfffff")
        v = RING + (n % R) * 4
        A.issue(("kv", n), f"buffer_load_dwordx4 v[{v}:{v+3}], v{vV if isv else vK}, s[{'12:15' if isv else '8:11'}], s43 offen offset:{imm} {kvpol}")
    def win(n):
        if dyn and n >= dyn_from: return NH
        if Ntail is not None and n >= tail_from: return Ntail
        return N
    issued = [0]
    def pace():
        n = issued[0]
        if n >= 512: return False
        w = win(n)
        if dyn and n >= dyn_from:
            lab = f"Lw{n}"
            A(f"s_cbranch_vccnz {lab}"); A(f"s_waitcnt vmcnt({N-1})"); A.label(lab)
            A.wait(("kv", n - NH))
        elif n - w >= 0: A.wait(("kv", n - w))
        kv_load(n); issued[0] += 1
        return True
    if nostream:
        A("s_barrier"); A("s_barrier"); A("s_endpgm")
    for _ in range(K0 if bar0 else N): pace()
    A("v_and_b32 v6, 1, v2"); A("v_lshlrev_b32 v6, 4, v6")
    A("v_mov_b32 v7, 0xffff"); A("v_lshlrev_b32 v7, v6, v7")
    A("v_bfe_u32 v6, v2, 1, 2")
    for r in range(4):
        A(f"v_cmp_eq_u32 vcc, {r}, v6"); A.nop(2); A(f"v_cndmask_b32 v{MASK+r}, 0, v7, vcc")
    A("v_lshrrev_b32 v6, 1, v2")
    for t in range(8): A(f"v_cmp_eq_u32 s[{48+2*t}:{49+2*t}], {t}, v6")
    A("v_and_b32 v6, 1, v2"); A("v_cmp_eq_u32 s[64:65], 0, v6")
    A(f"v_lshl_add_u32 v6, v6, 2, v3"); A(f"v_lshlrev_b32 v6, 5, v6")
    if bar0:
        A("s_barrier")
        P.stamp()
    while issued[0] < S0:
        pace()
        if diag == 3: P.stamp()
    P.stamp()
    A("s_barrier")
    P.stamp()
    for a in range(4):
        for half in range(2):
            for q in range(2):
                v = BQ + a * 16 + half * 8 + q * 4
                A(f"ds_read_b128 v[{v}:{v+3}], v6 offset:{L_QP + a*512 + half*256 + q*16}")
    if issued[0] < R: pace()
    A("s_waitcnt lgkmcnt(0)")
    for k in range(16):
        A(f"v_add_f32 v{TM-16+k}, v{BQ+k}, v{BQ+16+k}")
        A(f"v_add_f32 v{BQ+32+k}, v{BQ+32+k}, v{BQ+48+k}")
    if issued[0] < R: pace()
    for k in range(16):
        A(f"v_add_f32 v{S+k}, v{S+k}, v{BQ+32+k}")
    for k in range(8):
        A(f"v_cvt_pk_bf16_f32 v{TM+k}, v{S+2*k}, v{S+2*k+1}")
    if issued[0] < R: pace()
    for t in range(8):
        for k in range(8):
            A(f"v_cndmask_b32 v{BQ+t*8+k}, 0, v{TM+k}, s[{48+2*t}:{49+2*t}]")
        if t % 2 == 1 and issued[0] < R: pace()
    P.stamp()
    if dyn:
        A("s_mov_b64 vcc, 0")
        if dyn == 5:
            A(f"s_lshr_b32 s67, {wmask}, s3"); A("s_bitcmp1_b32 s67, 0"); A("s_cselect_b64 vcc, -1, 0")
        A("s_lshl_b32 s67, s3, 2"); A(f"v_mov_b32 v{TM+12}, s67"); A(f"v_mov_b32 v{TM+14}, 0")
    deferred = []
    unit = [0]
    def run_deferred(force=False):
        k = 0
        while k < len(deferred):
            if force or deferred[k][0] <= unit[0]:
                deferred.pop(k)[1]()
            else: k += 1
    def merge(t16):
        d = D + (t16 % 2) * 4
        a, b = TM + 8, TM + 9
        A(f"v_cndmask_b32 v{a}, v{d+3}, v{d}, s[64:65]")
        A(f"v_cndmask_b32 v{b}, v{d+1}, v{d+2}, s[64:65]")
        A.nop(2)
        A(f"v_add_f32_dpp v{a}, v{b}, v{a} quad_perm:[1,0,3,2] row_mask:0xf bank_mask:0xf")
        bf16r(A, a, a)
        A(f"v_mul_f32 v{a}, {SCALE:#x}, v{a}")
        bf16r(A, S + t16, a)
    def hooks(step, cc):
        if not dyn or dyn == 5: return
        if dyn == 4:
            if cc == 2: A("s_memrealtime s[68:69]")
            if cc == 6 and step >= 2:
                tref = T2 + (min(step, 16) - 2) * TK + max(step - 16, 0) * TV + MARG
                A("s_waitcnt lgkmcnt(0)"); A("s_sub_u32 s68, s68, s70")
                A(f"s_cmp_gt_u32 s68, {tref}"); A("s_cselect_b64 vcc, -1, 0")
            return
        if cc == 2:
            A(f"v_mov_b32 v{TM+11}, {step}")
            A(f"ds_write_b32 v{TM+12}, v{TM+11} offset:{L_PROG}")
            if dyn == 3: A(f"ds_read_b32 v{TM+13}, v{TM+14} offset:{L_MODE}")
        if cc == 6:
            if dyn == 3:
                A("s_waitcnt lgkmcnt(0)"); A(f"v_readfirstlane_b32 s67, v{TM+13}")
                A("s_cmp_lg_u32 s67, 0"); A("s_cselect_b64 vcc, -1, 0")
            elif dyn == 2:
                if step == even_boost[0]: A("s_bitcmp0_b32 s2, 0"); A("s_cselect_b64 vcc, -1, 0")
                if step == even_boost[1]: A("s_mov_b64 vcc, 0")
    def k_consume(c):
        hooks(c // 16, c % 16)
        if diag == 4 and c % 32 == 0 and c: P.stamp()
        t16, tt, half = c // 16, (c % 16) // 2, c % 2
        d = D + (t16 % 2) * 4
        v = RING + (c % R) * 4
        A.wait(("kv", c))
        b = BQ + tt * 8 + half * 4
        cs = "0" if c % 16 == 0 else f"v[{d}:{d+3}]"
        A(f"v_mfma_f32_16x16x32_bf16 v[{d}:{d+3}], v[{v}:{v+3}], v[{b}:{b+3}], {cs}")
        if c % 16 == 15: deferred.append((unit[0] + 9, lambda t=t16: merge(t)))
    def pexp(t16):
        a = TM + 10
        A(f"v_sub_f32 v{a}, v{S+t16}, v{TM}")
        A(f"v_mul_f32 v{a}, {LOG2E:#x}, v{a}")
        A(f"v_exp_f32 v{a}, v{a}")
        A.nop(1)
        A(f"v_add_f32 v{TM+1}, v{TM+1}, v{a}")
        A(f"v_cvt_pk_bf16_f32 v{S+t16}, v{a}, v{a}")
    def abuild(c):
        at = AT + (c % 2) * 4
        for r in range(4):
            A(f"v_and_b32_dpp v{at+r}, v{S + c//16}, v{MASK+r} row_newbcast:{c%16} row_mask:0xf bank_mask:0xf")
    def v_consume(c):
        hooks(16 + c // 16, c % 16)
        if diag == 4 and c % 64 == 0 and c: P.stamp()
        at = AT + (c % 2) * 4
        v = RING + ((256 + c) % R) * 4
        if c + 1 < 256: abuild(c + 1)
        else: A.nop(2)
        A.wait(("kv", 256 + c))
        cs = "0" if c == 0 else f"v[{O}:{O+3}]"
        A(f"v_mfma_f32_16x16x32_bf16 v[{O}:{O+3}], v[{at}:{at+3}], v[{v}:{v+3}], {cs}")
        if c % 16 == 4 and c // 16 + 1 < 16: pexp(c // 16 + 1)
        if c == 236 and earlyml:
            allreduce(A, "add", TM + 1, TM + 2)
            A("s_lshl_b32 s44, s3, 3"); A("v_mov_b32 v7, s44")
            A(f"v_mov_b32 v{TM+2}, v{TM}"); A(f"v_mov_b32 v{TM+3}, v{TM+1}")
            A("s_mov_b64 exec, 1")
            A(f"ds_write_b64 v7, v[{TM+2}:{TM+3}] offset:{L_ML}")
            A("s_mov_b64 exec, -1")
            A("v_lshlrev_b32 v6, 5, v2"); A("v_lshl_add_u32 v6, v3, 4, v6")
            A("s_lshl_b32 s44, s3, 9"); A("v_add_u32 v6, s44, v6")
    c = 0
    while c < 256:
        can_issue = issued[0] < 512 and issued[0] - R < c
        if can_issue: pace()
        lag = issued[0] - win(max(issued[0]-1,0)) - c
        k = catch if lag > 1 else 1
        for _ in range(k):
            if c < 256:
                k_consume(c); c += 1
                unit[0] += 1; run_deferred()
    A.nop(8)
    run_deferred(force=True)
    P.stamp()
    def pace_ok():
        if issued[0] < 512 and issued[0] - R < 256: pace()
    A(f"v_max3_f32 v{TM}, v{S}, v{S+1}, v{S+2}")
    for k in range(3, 15, 2): A(f"v_max3_f32 v{TM}, v{TM}, v{S+k}, v{S+k+1}")
    A(f"v_max_f32 v{TM}, v{TM}, v{S+15}")
    pace_ok()
    allreduce(A, "max", TM, TM + 2)
    pace_ok()
    A(f"v_mov_b32 v{TM+1}, 0")
    pexp(0)
    A.nop(2)
    abuild(0)
    P.stamp()
    c = 0
    while c < 256:
        can_issue = issued[0] < 512 and issued[0] - R < 256 + c
        if can_issue: pace()
        lag = issued[0] - win(max(issued[0]-1,0)) - (256 + c)
        k = catch if (lag > 1 or issued[0] >= 512) else 1
        for _ in range(k):
            if c < 256:
                v_consume(c); c += 1
    P.stamp()
    if not earlyml:
        allreduce(A, "add", TM + 1, TM + 2)
        A("v_lshlrev_b32 v6, 5, v2"); A("v_lshl_add_u32 v6, v3, 4, v6")
        A("s_lshl_b32 s44, s3, 9"); A("v_add_u32 v6, s44, v6")
        A("s_lshl_b32 s44, s3, 3"); A("v_mov_b32 v7, s44")
        A(f"v_mov_b32 v{TM+2}, v{TM}"); A(f"v_mov_b32 v{TM+3}, v{TM+1}")
        assert (TM + 2) % 2 == 0
        A("s_mov_b32 exec_hi, 0")
        A(f"ds_write_b128 v6, v[{O}:{O+3}] offset:{L_OP}")
        A("s_mov_b32 exec_lo, 1")
        A(f"ds_write_b64 v7, v[{TM+2}:{TM+3}] offset:{L_ML}")
    else:
        A("s_mov_b32 exec_hi, 0")
        A.nop(7)
        A(f"ds_write_b128 v6, v[{O}:{O+3}] offset:{L_OP}")
    A("s_waitcnt lgkmcnt(0)")
    A("s_barrier")
    P.stamp()
    if tail2:
        A("s_mov_b64 exec, -1")
        P.flush()
        A("s_branch L_b3")
    else:
        P.flush()
        A("s_endpgm")
    A.vm = []
    P = Prof(A, prof, 63)
    A.label("L_aux")
    SEL = 8
    AT = 16
    DO = 24
    DQ = 44
    X = 48
    F = 53
    T = 4
    PP = 64
    BUF = 96
    A("s_sub_u32 s42, s3, 4")
    A("s_mul_i32 s43, s42, 160"); A("v_mul_u32_u24 v4, 40, v3"); A("v_add_u32 v4, s43, v4")
    A("v_lshlrev_b32 v4, 13, v4"); A("v_lshl_add_u32 v4, v2, 4, v4")
    A("v_lshlrev_b32 v5, 2, v0")
    A("s_mul_i32 s6, s4, 1280"); A("s_lshl_b32 s7, s5, 8")
    A("s_sub_u32 s44, 5242880, s7")
    A("s_waitcnt lgkmcnt(0)")
    srd(A, 8, 16, 17, 6, 1280)
    srd(A, 12, 22, 23, 7, "s44")
    P.stamp()
    for k in range(5):
        A.issue(("x", k), f"buffer_load_dword v{X+k}, v5, s[8:11], 0 offen offset:{k*256}")
    A("s_lshl_b32 s45, s4, 15")
    def wq_load(j):
        v = BUF + 4 * j
        if NQ and j >= NQ: A.wait(("wq", j - NQ))
        A.issue(("wq", j), f"buffer_load_dwordx4 v[{v}:{v+3}], v4, s[12:15], s45 offen {wpol}")
        if j < 39:
            A("s_add_u32 s45, s45, 8192"); A(f"s_cmp_eq_u32 s45, {40*8192}"); A("s_cselect_b32 s45, 0, s45")
    if bar0 == 2: WQ0 = 40
    for j in range(WQ0): wq_load(j)
    if bar0 == 2: A("s_barrier")
    A("v_and_b32 v6, 1, v2")
    A("v_cmp_eq_u32 vcc, 0, v6")
    A("v_mov_b32 v60, 0x01000c0c"); A("v_mov_b32 v61, 0x0c0c0100")
    A("v_cndmask_b32 v60, v60, v61, vcc")
    A("v_mov_b32 v6, 0x03020c0c"); A("v_mov_b32 v61, 0x0c0c0302")
    A("v_cndmask_b32 v61, v6, v61, vcc")
    A("v_bfe_u32 v6, v2, 1, 2"); A("v_mov_b32 v7, 0x0c0c0c0c")
    for r in range(4):
        A(f"v_cmp_eq_u32 vcc, {r}, v6"); A.nop(2)
        A(f"v_cndmask_b32 v{SEL+r}, v7, v60, vcc"); A(f"v_cndmask_b32 v{SEL+4+r}, v7, v61, vcc")
    for k in range(20): A(f"v_mov_b32 v{DO+k}, 0")
    A.wait(("x", 4))
    P.stamp()
    LN = Asm(); layernorm(LN, X, F, (84, 85, 86, 87), X)
    rem = list(range(WQ0, 40)); step = max(1, len(LN.L) // (len(rem) + 1))
    for i, ins in enumerate(LN.L):
        A.L.append(ins)
        if rem and i % step == step - 1: wq_load(rem.pop(0))
    for j in rem: wq_load(j)
    if bar0 == 1: A("s_barrier")
    A("s_mul_i32 s43, s42, 1280")
    A("v_lshlrev_b32 v5, 2, v0"); A("v_add_u32 v5, s43, v5")
    for k in range(5): A(f"ds_write_b32 v5, v{X+k} offset:{L_XN + 256*k}")
    A("s_mul_i32 s43, s42, 1600"); A("v_mul_u32_u24 v5, 80, v3"); A("v_add_u32 v5, s43, v5")
    A("s_lshl_b32 s46, s4, 3")
    A("s_waitcnt lgkmcnt(0)")
    for k in range(10):
        A(f"v_add_u32 v6, s46, v5")
        A(f"ds_read_b64 v[{PP+2*k}:{PP+2*k+1}], v6 offset:{L_XN}")
        A("s_add_u32 s46, s46, 8"); A("s_cmp_eq_u32 s46, 80"); A("s_cselect_b32 s46, 0, s46")
    A("s_waitcnt lgkmcnt(0)")
    P.stamp()
    def abuild_p(preg, par, st):
        at = AT + st * 4
        for r in range(4): A(f"v_perm_b32 v{at+r}, v{preg}, v{preg}, v{SEL + par*4 + r}")
    abuild_p(PP, 0, 0)
    for j in range(40):
        if j + 1 < 40: abuild_p(PP + (j + 1) // 2, (j + 1) % 2, (j + 1) % 2)
        else: A.nop(2)
        A.wait(("wq", j))
        at = AT + (j % 2) * 4; v = BUF + 4 * j
        cs = "0" if j == 0 else f"v[{DQ}:{DQ+3}]"
        A(f"v_mfma_f32_16x16x32_bf16 v[{DQ}:{DQ+3}], v[{at}:{at+3}], v[{v}:{v+3}], {cs}")
    A("v_lshlrev_b32 v6, 5, v2"); A("v_lshl_add_u32 v6, v3, 4, v6")
    A("s_lshl_b32 s43, s42, 9"); A("v_add_u32 v7, s43, v6")
    A.nop(6)
    A("s_mov_b32 exec_hi, 0")
    A(f"ds_write_b128 v7, v[{DQ}:{DQ+3}] offset:{L_QP}")
    A("s_mov_b32 exec_hi, -1")
    if dyn:
        A("v_lshlrev_b32 v6, 2, v0"); A("v_mov_b32 v7, 0")
        A("s_mov_b64 exec, 0xff")
        A(f"ds_write_b32 v6, v7 offset:{L_PROG}")
        A("s_mov_b64 exec, -1")
    A("s_waitcnt lgkmcnt(0)")
    P.stamp()
    A("s_barrier")
    A("s_cmp_lg_u32 s42, 0"); A("s_cbranch_scc1 L_wo")
    A("s_cmp_ge_u32 s5, %d" % (0 if nomlp else 27)); A("s_cbranch_scc1 L_wo")
    layernorm(A, X, F, T, X)
    A("v_lshlrev_b32 v4, 2, v0")
    for k in range(5): A(f"ds_write_b32 v4, v{X+k} offset:{L_Y + 256*k}")
    A("s_lshl_b32 s6, s5, 7")
    A(f"s_sub_u32 s44, {640*3456}, s6")
    srd(A, 8, 28, 29, 6, "s44")
    srd(A, 12, 30, 31, 6, 128)
    A("v_lshlrev_b32 v5, 1, v0")
    A.issue(("b1", 0), f"buffer_load_ushort v{F}, v5, s[12:15], 0 offen")
    A("v_lshrrev_b32 v5, 3, v2"); A("v_lshl_add_u32 v5, v3, 1, v5")
    A("v_mul_u32_u24 v6, 160, v5")
    A(f"s_mov_b32 s45, {80*3456}"); A("v_mul_lo_u32 v5, s45, v5")
    A("v_and_b32 v7, 7, v2"); A("v_lshl_add_u32 v5, v7, 4, v5")
    A("s_waitcnt lgkmcnt(0)")
    PY = BUF
    for k in range(10): A(f"ds_read_b128 v[{PY+4*k}:{PY+4*k+3}], v6 offset:{L_Y + 16*k}")
    RB, RN = BUF + 40, 30
    def w1_load(j):
        v = RB + (j % RN) * 4
        A(f"s_mov_b32 s45, {j*3456}")
        A.issue(("w1", j), f"buffer_load_dwordx4 v[{v}:{v+3}], v5, s[8:11], s45 offen {wpol}")
    for j in range(NW): w1_load(j)
    A("s_waitcnt lgkmcnt(0)")
    abuild_p(PY, 0, 0)
    for j in range(80):
        if j + 1 < 80: abuild_p(PY + (j + 1) // 2, (j + 1) % 2, (j + 1) % 2)
        else: A.nop(2)
        A.wait(("w1", j))
        at = AT + (j % 2) * 4; v = RB + (j % RN) * 4
        cs = "0" if j == 0 else f"v[{DQ}:{DQ+3}]"
        A(f"v_mfma_f32_16x16x32_bf16 v[{DQ}:{DQ+3}], v[{at}:{at+3}], v[{v}:{v+3}], {cs}")
        if j + NW < 80: w1_load(j + NW)
    A("s_mul_i32 s6, s5, 81920")
    A(f"s_sub_u32 s44, {1728*1280}, s6")
    srd(A, 8, 32, 33, 6, "s44")
    A("v_mul_u32_u24 v5, 20480, v3"); A("v_lshl_add_u32 v5, v2, 4, v5")
    def w2_load(n):
        jj, cb = n // 5, n % 5
        v = RB + (n % RN) * 4
        if cb == 0: A(f"s_mov_b32 s45, {jj*1280}")
        A.issue(("w2", n), f"buffer_load_dwordx4 v[{v}:{v+3}], v5, s[8:11], s45 offen offset:{cb*256} {wpol}")
    for n in range(10): w2_load(n)
    A("v_lshrrev_b32 v6, 1, v3"); A("v_lshrrev_b32 v7, 3, v2")
    A("v_cmp_eq_u32 vcc, v6, v7")
    A("v_lshlrev_b32 v6, 8, v6"); A("v_and_b32 v7, 7, v2"); A("v_lshl_add_u32 v6, v7, 5, v6")
    A("v_and_b32 v7, 1, v3"); A("v_lshl_add_u32 v6, v7, 4, v6")
    A("s_and_saveexec_b64 s[46:47], vcc")
    A(f"ds_write_b128 v6, v[{DQ}:{DQ+3}] offset:{L_T}")
    A("s_mov_b64 exec, s[46:47]")
    A("v_lshlrev_b32 v6, 2, v0")
    A("s_waitcnt lgkmcnt(0)")
    A(f"ds_read_b32 v{F+1}, v6 offset:{L_T}"); A(f"ds_read_b32 v{F+2}, v6 offset:{L_T+256}")
    A("s_waitcnt lgkmcnt(0)")
    A(f"v_add_f32 v{F+1}, v{F+1}, v{F+2}")
    bf16r(A, F + 1, F + 1)
    A.wait(("b1", 0))
    A(f"v_lshlrev_b32 v{F}, 16, v{F}")
    A(f"v_add_f32 v{F+1}, v{F+1}, v{F}")
    bf16r(A, F + 1, F + 1)
    x_, u_, e_ = F + 1, F + 2, F + 3
    A(f"v_mul_f32 v{u_}, v{x_}, v{x_}"); A(f"v_mul_f32 v{u_}, v{u_}, v{x_}")
    A(f"v_mov_b32 v{e_}, {f2u(0.044715):#x}"); A(f"v_fma_f32 v{u_}, v{u_}, v{e_}, v{x_}")
    A(f"v_mul_f32 v{u_}, {f2u(-2*0.7978845608028654*1.4426950408889634):#x}, v{u_}")
    A(f"v_exp_f32 v{u_}, v{u_}"); A.nop(1)
    A(f"v_add_f32 v{u_}, 1.0, v{u_}"); A(f"v_rcp_f32 v{u_}, v{u_}"); A.nop(1)
    A(f"v_mul_f32 v{u_}, v{x_}, v{u_}")
    A(f"v_cvt_pk_bf16_f32 v{u_}, v{u_}, v{u_}")
    A("v_lshlrev_b32 v6, 1, v0")
    A(f"ds_write_b16 v6, v{u_} offset:{L_HV}")
    A("v_lshlrev_b32 v6, 5, v3")
    A("s_waitcnt lgkmcnt(0)")
    for k in range(2): A(f"ds_read_b128 v[{PP+4*k}:{PP+4*k+3}], v6 offset:{L_HV + 16*k}")
    A("s_waitcnt lgkmcnt(0)")
    abuild_p(PP, 0, 0)
    nl = 10
    for jj in range(16):
        if jj + 1 < 16: abuild_p(PP + (jj + 1) // 2, (jj + 1) % 2, (jj + 1) % 2)
        else: A.nop(2)
        at = AT + (jj % 2) * 4
        for cb in range(5):
            n = jj * 5 + cb
            A.wait(("w2", n))
            v = RB + (n % RN) * 4; d = DO + 4 * cb
            A(f"v_mfma_f32_16x16x32_bf16 v[{d}:{d+3}], v[{at}:{at+3}], v[{v}:{v+3}], v[{d}:{d+3}]")
            if nl < 80: w2_load(nl); nl += 1
    A.waitall()
    A.label("L_wo")
    A.vm = []
    if fused == 3:
        A("s_cmp_lg_u32 s42, 1"); A("s_cbranch_scc1 L_zero_done")
        A("s_mul_i32 s6, s4, 2560"); A("s_mul_i32 s43, s5, 80"); A("s_add_u32 s6, s6, s43"); A("s_add_u32 s6, s6, 0x100000")
        srd(A, 8, 40, 41, 6, 80)
        A("v_lshlrev_b32 v6, 2, v0"); A("v_mov_b32 v7, 0")
        A("buffer_store_dword v7, v6, s[8:11], 0 offen sc1")
        A("s_lshl_b32 s6, s4, 5"); A("v_mov_b32 v6, s6"); A("v_mov_b32 v7, 1")
        A("s_waitcnt vmcnt(0)")
        A("s_mov_b64 exec, 1")
        A("global_atomic_add v6, v7, s[38:39] offset:4")
        A("s_mov_b64 exec, -1")
        A.label("L_zero_done")
    A("s_mul_i32 s6, s5, 163840")
    srd(A, 8, 24, 25, 6, 163840)
    A("s_lshl_b32 s43, s42, 5"); A("v_lshlrev_b32 v5, 3, v3"); A("v_add_u32 v5, s43, v5")
    A("v_mul_u32_u24 v5, 1280, v5"); A("v_lshl_add_u32 v5, v2, 4, v5")
    for n in range(0 if nowo else 40):
        jj, cb = n // 5, n % 5
        v = BUF + 4 * n
        if cb == 0: A(f"s_mov_b32 s45, {jj*1280}")
        if n >= NA: A.wait(("wo", n - NA))
        A.issue(("wo", n), f"buffer_load_dwordx4 v[{v}:{v+3}], v5, s[8:11], s45 offen offset:{cb*256} {wpol}")
    if dyn == 3:
        A("s_cmp_lg_u32 s42, 3"); A("s_cbranch_scc1 L_ctrl_done")
        A.waitall() if False else None
        A(f"s_mov_b32 s50, {CK0}"); A("s_mov_b32 s51, 16"); A("s_mov_b32 s52, 0"); A("s_mov_b32 s53, 0")
        A("v_mov_b32 v6, 0"); A("s_mov_b64 exec, 1")
        A.label("L_ctrl")
        A(f"ds_read_b32 v5, v6 offset:{L_PROG}")
        A("s_waitcnt lgkmcnt(0)")
        A("v_readfirstlane_b32 s54, v5")
        A(f"s_cmp_ge_u32 s54, {CKEXIT}"); A("s_cbranch_scc1 L_ctrl_exit")
        A("s_cmp_eq_u32 s52, 0"); A("s_cbranch_scc1 L_ctrl_a")
        A("s_cmp_lt_u32 s54, s53"); A("s_cbranch_scc1 L_ctrl_a")
        A("s_mov_b32 s52, 0"); A("v_mov_b32 v5, 0"); A(f"ds_write_b32 v6, v5 offset:{L_MODE}")
        A.label("L_ctrl_a")
        A("s_cmp_lt_u32 s54, s50"); A("s_cbranch_scc1 L_ctrl_sleep")
        A("v_mov_b32 v7, 1"); A("v_mov_b32 v4, s51")
        A("global_atomic_add v5, v4, v7, s[38:39] sc0")
        A("s_waitcnt vmcnt(0)")
        A("v_readfirstlane_b32 s55, v5")
        A(f"s_add_u32 s50, s50, {CKS}"); A("s_add_u32 s51, s51, 32")
        A("s_mov_b32 s56, 0")
        for th, bo in zip(TH, BO):
            A(f"s_cmp_ge_u32 s55, {th}"); A(f"s_cselect_b32 s56, {bo}, s56")
        A("s_cmp_eq_u32 s56, 0"); A("s_cbranch_scc1 L_ctrl_sleep")
        A(f"ds_read_b32 v5, v6 offset:{L_PROG}")
        A("s_waitcnt lgkmcnt(0)")
        A("v_readfirstlane_b32 s54, v5")
        A("s_add_u32 s53, s54, s56"); A("s_add_u32 s53, s53, 1")
        A("s_mov_b32 s52, 1"); A("v_mov_b32 v5, 1"); A(f"ds_write_b32 v6, v5 offset:{L_MODE}")
        A.label("L_ctrl_sleep")
        A(f"s_sleep {sleep}")
        A("s_branch L_ctrl")
        A.label("L_ctrl_exit")
        A("s_mov_b64 exec, -1")
        A.label("L_ctrl_done")
    if fused == 3:
        A("s_lshl_b32 s6, s4, 5"); A("v_mov_b32 v90, s6"); A("v_mov_b32 v91, 1")
        A("s_cmp_lg_u32 s42, 0"); A("s_cbranch_scc1 L_zchk_done")
        A.label("L_zchk")
        A("s_mov_b64 exec, 1")
        A("global_load_dword v89, v90, s[38:39] offset:4 sc1")
        A("s_waitcnt vmcnt(0)")
        A("v_readfirstlane_b32 s51, v89")
        A("s_mov_b64 exec, -1")
        A("s_cmp_ge_u32 s51, 32"); A("s_cbranch_scc1 L_zchk_done")
        A("s_sleep 8")
        A("s_branch L_zchk")
        A.label("L_zchk_done")
        A.vm = []
        A.vm.append("pending")
    XB = 60
    XB = 92
    if fused:
        A("s_lshl_b32 s43, s42, 6"); A("v_add_u32 v4, s43, v0"); A("v_lshlrev_b32 v4, 3, v4")
        A("s_mul_i32 s6, s4, 1280")
        srd(A, 12, 16, 17, 6, 1280)
        A.issue(("xf", 0), f"buffer_load_dwordx2 v[{XB}:{XB+1}], v4, s[12:15], 0 offen")
        srd(A, 68, 34, 35, None, 1280)
        A.issue(("xf", 1), f"buffer_load_dwordx2 v[{XB+2}:{XB+3}], v4, s[68:71], 0 offen")
    A("v_lshlrev_b32 v4, 5, v3"); A("s_lshl_b32 s43, s42, 7"); A("v_add_u32 v4, s43, v4")
    A("v_mov_b32 v5, 0")
    A.waitall()
    P.stamp()
    A("s_barrier")
    P.stamp()
    if fused == 2:
        A("s_cmp_lg_u32 s42, 0"); A("s_cbranch_scc1 L_noticket")
        A("s_lshl_b32 s6, s4, 5"); A("v_mov_b32 v90, s6"); A("v_mov_b32 v91, 1")
        A("s_mov_b64 exec, 1")
        A("global_atomic_add v88, v90, v91, s[38:39] sc0")
        A("global_load_dword v89, v90, s[38:39] offset:4 sc1")
        A("s_mov_b64 exec, -1")
        A.label("L_noticket")
    ML = PP
    OV = PP + 8
    A(f"ds_read_b128 v[{ML}:{ML+3}], v5 offset:{L_ML}"); A(f"ds_read_b128 v[{ML+4}:{ML+7}], v5 offset:{L_ML+16}")
    OVR = [72, 80, 48, 16]
    for w in range(4):
        for q in range(2):
            v = OVR[w] + 4 * q
            A(f"ds_read_b128 v[{v}:{v+3}], v4 offset:{L_OP + w*512 + q*16}")
    A("s_waitcnt lgkmcnt(8)")
    A(f"v_max3_f32 v6, v{ML}, v{ML+2}, v{ML+4}"); A(f"v_max_f32 v6, v6, v{ML+6}")
    for w in range(4):
        A(f"v_sub_f32 v{ML+2*w}, v{ML+2*w}, v6"); A(f"v_mul_f32 v{ML+2*w}, {LOG2E:#x}, v{ML+2*w}"); A(f"v_exp_f32 v{ML+2*w}, v{ML+2*w}")
    A.nop(1)
    A(f"v_mul_f32 v7, v{ML}, v{ML+1}")
    for w in range(1, 4): A(f"v_fmac_f32 v7, v{ML+2*w}, v{ML+2*w+1}")
    A("v_rcp_f32 v7, v7"); A.nop(1)
    A("s_waitcnt lgkmcnt(0)")
    for k in range(8):
        A(f"v_mul_f32 v{OVR[0]+k}, v{OVR[0]+k}, v{ML}")
        for w in range(1, 4): A(f"v_fmac_f32 v{OVR[0]+k}, v{OVR[w]+k}, v{ML+2*w}")
        A(f"v_mul_f32 v{OVR[0]+k}, v{OVR[0]+k}, v7")
    PO = 56
    for k in range(4): A(f"v_cvt_pk_bf16_f32 v{PO+k}, v{OVR[0]+2*k}, v{OVR[0]+2*k+1}")
    abuild_p(PO, 0, 0)
    for jj in range(8):
        if jj + 1 < 8: abuild_p(PO + (jj + 1) // 2, (jj + 1) % 2, (jj + 1) % 2)
        else: A.nop(2)
        at = AT + (jj % 2) * 4
        if jj == 0: A.nop(2)
        for cb in range(5):
            v = BUF + 4 * (jj * 5 + cb); d = DO + 4 * cb
            A(f"v_mfma_f32_16x16x32_bf16 v[{d}:{d+3}], v[{at}:{at+3}], v[{v}:{v+3}], v[{d}:{d+3}]")
    A("v_lshlrev_b32 v6, 5, v2"); A("v_lshl_add_u32 v6, v3, 4, v6")
    A("s_mul_i32 s43, s42, 2560"); A("v_add_u32 v6, s43, v6")
    A.nop(4)
    A("s_mov_b32 exec_hi, 0")
    for cb in range(5):
        A(f"ds_write_b128 v6, v[{DO+4*cb}:{DO+4*cb+3}] offset:{L_OUTP + cb*512}")
    A("s_mov_b32 exec_hi, -1")
    if fused == 3:
        A("s_mul_i32 s6, s4, 2560"); A("s_add_u32 s6, s6, 0x100000")
        srd(A, 8, 40, 41, 6, 2560)
    if fused == 2:
        A("s_mul_i32 s6, s4, 2560"); A("s_add_u32 s6, s6, 0x100000")
        srd(A, 8, 40, 41, 6, 2560)
        A("s_cmp_lg_u32 s42, 0"); A("s_cbranch_scc1 L_tk_done")
        A("s_waitcnt vmcnt(0)")
        A("v_readfirstlane_b32 s50, v88"); A("v_readfirstlane_b32 s51, v89")
        A("s_cmp_lg_u32 s50, 0"); A("s_cbranch_scc1 L_tk_spin")
        for k in range(4): A(f"v_mov_b32 v{72+k}, 0")
        A("v_lshlrev_b32 v7, 4, v0")
        for i in range(3): A(f"buffer_store_dwordx4 v[72:75], v7, s[8:11], 0 offen offset:{i*1024} sc1")
        A("s_waitcnt vmcnt(0)")
        A("s_mov_b64 exec, 1")
        A("global_store_dword v90, v91, s[38:39] offset:4 sc1")
        A("s_mov_b64 exec, -1")
        A("s_branch L_tk_done")
        A.label("L_tk_spin")
        A("s_cmp_lg_u32 s51, 0"); A("s_cbranch_scc1 L_tk_done")
        A("s_mov_b64 exec, 1")
        A("global_load_dword v89, v90, s[38:39] offset:4 sc1")
        A("s_waitcnt vmcnt(0)")
        A("v_readfirstlane_b32 s51, v89")
        A("s_mov_b64 exec, -1")
        A("s_branch L_tk_spin")
        A.label("L_tk_done")
    A("s_waitcnt lgkmcnt(0)")
    P.stamp()
    A.label("L_b3")
    A("s_barrier")
    if not fused:
        A("s_lshl_b32 s43, s42, 6"); A("v_add_u32 v4, s43, v0")
        A("v_cmp_gt_u32 vcc, 160, v4")
        A("v_lshlrev_b32 v4, 4, v4")
        A("s_and_saveexec_b64 s[46:47], vcc")
        A("s_cbranch_execz L_aux_done")
        for w in range(4): A(f"ds_read_b128 v[{72+4*w}:{75+4*w}], v4 offset:{L_OUTP + w*2560}")
        A("s_mul_i32 s6, s66, 2560")
        srd(A, 8, 40, 41, 6, 2560)
        A("s_waitcnt lgkmcnt(0)")
        for k in range(4):
            A(f"v_add_f32 v{72+k}, v{72+k}, v{76+k}"); A(f"v_add_f32 v{80+k}, v{80+k}, v{84+k}"); A(f"v_add_f32 v{72+k}, v{72+k}, v{80+k}")
        A("buffer_store_dwordx4 v[72:75], v4, s[8:11], 0 offen")
    elif fused in (2, 3):
        A("s_mul_i32 s43, s42, 640"); A("v_lshlrev_b32 v4, 2, v0"); A("v_add_u32 v4, s43, v4")
        for i in range(3):
            for w in range(4):
                A(f"ds_read_b32 v{72+4*i+w}, v4 offset:{L_OUTP + w*2560 + i*256}")
        for i in range(3):
            A(f"s_waitcnt lgkmcnt({8-4*i})")
            v = 72 + 4 * i
            A(f"v_add_f32 v{v}, v{v}, v{v+1}"); A(f"v_add_f32 v{v+2}, v{v+2}, v{v+3}"); A(f"v_add_f32 v{v}, v{v}, v{v+2}")
            if i == 2: A("s_mov_b32 exec_hi, 0")
            A(f"buffer_atomic_add_f32 v{v}, v4, s[8:11], 0 offen offset:{i*256}")
        A("s_mov_b32 exec_hi, -1")
        A("s_waitcnt vmcnt(0)")
        P.stamp()
        A("s_barrier")
        A("s_cmp_lg_u32 s42, 0"); A("s_cbranch_scc1 L_wait_flag")
        A("s_mov_b64 exec, 1")
        A("global_atomic_add v5, v90, v91, s[38:39] offset:8 sc0")
        A("s_waitcnt vmcnt(0)")
        A("v_mov_b32 v6, 0")
        A(f"ds_write_b32 v6, v5 offset:{L_FLAG}")
        A("s_mov_b64 exec, -1")
        A("s_waitcnt lgkmcnt(0)")
        A.label("L_wait_flag")
        P.stamp()
        A("s_barrier")
        A("v_mov_b32 v6, 0")
        A(f"ds_read_b32 v5, v6 offset:{L_FLAG}")
        A("s_lshl_b32 s43, s42, 6"); A("v_add_u32 v4, s43, v0")
        A("v_lshlrev_b32 v7, 3, v4"); A("v_lshlrev_b32 v4, 4, v4")
        A("s_mul_i32 s6, s4, 1280")
        srd(A, 12, 36, 37, 6, 1280)
        A("s_waitcnt lgkmcnt(0)")
        A("v_readfirstlane_b32 s43, v5")
        A("s_cmp_lg_u32 s43, 31"); A("s_cbranch_scc1 L_aux_done")
        A("s_cmp_ge_u32 s42, 3"); A("s_cbranch_scc1 L_aux_done")
        A("buffer_load_dwordx4 v[72:75], v4, s[8:11], 0 offen sc1")
        A("s_waitcnt vmcnt(0)")
        for k in range(2):
            A(f"v_lshlrev_b32 v76, 16, v{XB+2+k}"); A(f"v_and_b32 v77, 0xffff0000, v{XB+2+k}")
            A(f"v_add_f32 v{72+2*k}, v{72+2*k}, v76"); A(f"v_add_f32 v{73+2*k}, v{73+2*k}, v77")
            A(f"v_lshlrev_b32 v76, 16, v{XB+k}"); A(f"v_and_b32 v77, 0xffff0000, v{XB+k}")
            A(f"v_add_f32 v{72+2*k}, v{72+2*k}, v76"); A(f"v_add_f32 v{73+2*k}, v{73+2*k}, v77")
        A("v_cvt_pk_bf16_f32 v72, v72, v73"); A("v_cvt_pk_bf16_f32 v73, v74, v75")
        A("buffer_store_dwordx2 v[72:73], v7, s[12:15], 0 offen")
    else:
        NG = 8 if tail2 else 4
        SPW = 32 // NG
        widx = "s3" if tail2 else "s42"
        A("v_lshlrev_b32 v4, 4, v0")
        A("s_cmp_lg_u32 s3, 4"); A("s_cbranch_scc1 L_wait_flag")
        for i in range(3):
            for w in range(4):
                v = BUF + 16 * i + 4 * w
                A(f"ds_read_b128 v[{v}:{v+3}], v4 offset:{L_OUTP + w*2560 + i*1024}")
        SB = 1280 if sl16 else 2560
        A(f"s_mul_i32 s6, s66, {SB}")
        srd(A, 8, 40, 41, 6, SB)
        if sl16: A("v_lshlrev_b32 v5, 3, v0")
        for i in range(3):
            A(f"s_waitcnt lgkmcnt({8-4*i})")
            v = BUF + 16 * i
            for k in range(4):
                A(f"v_add_f32 v{v+k}, v{v+k}, v{v+4+k}"); A(f"v_add_f32 v{v+8+k}, v{v+8+k}, v{v+12+k}"); A(f"v_add_f32 v{v+k}, v{v+k}, v{v+8+k}")
            if sl16:
                A(f"v_cvt_pk_bf16_f32 v{v+4}, v{v}, v{v+1}"); A(f"v_cvt_pk_bf16_f32 v{v+5}, v{v+2}, v{v+3}")
                A(f"buffer_store_dwordx2 v[{v+4}:{v+5}], v5, s[8:11], 0 offen offset:{i*512} sc1")
            else:
                A(f"buffer_store_dwordx4 v[{v}:{v+3}], v4, s[8:11], 0 offen offset:{i*1024} sc1")
        A("s_lshl_b32 s6, s4, 5")
        A("v_mov_b32 v6, s6"); A("v_mov_b32 v7, 1")
        A("s_waitcnt vmcnt(0)")
        P.stamp()
        A("s_mov_b64 s[46:47], exec"); A("s_mov_b64 exec, 1")
        A("global_atomic_add v5, v6, v7, s[38:39] sc0")
        A("s_waitcnt vmcnt(0)")
        A("v_mov_b32 v6, 0")
        A(f"ds_write_b32 v6, v5 offset:{L_FLAG}")
        A("s_mov_b64 exec, s[46:47]")
        A("s_waitcnt lgkmcnt(0)")
        A.label("L_wait_flag")
        P.stamp()
        A("s_barrier")
        A("v_mov_b32 v6, 0")
        A(f"ds_read_b32 v5, v6 offset:{L_FLAG}")
        A(f"s_mul_i32 s6, s4, {32*SB}"); A(f"s_mul_i32 s43, {widx}, {SPW*SB}"); A("s_add_u32 s6, s6, s43")
        srd(A, 8, 40, 41, 6, SPW * SB)
        if sl16: A("v_lshlrev_b32 v7, 3, v0")
        A("s_waitcnt lgkmcnt(0)")
        A("v_readfirstlane_b32 s43, v5")
        if warm:
            A("s_cmp_eq_u32 s43, 31"); A("s_cselect_b32 s10, s10, 0"); A("s_cselect_b32 s57, 1280, 0")
        else:
            A("s_cmp_lg_u32 s43, 31"); A("s_cbranch_scc1 L_aux_done")
        A.vm = []
        for i in range(3):
            for sl in range(SPW):
                v = BUF + (i * SPW + sl) * 4
                if i == 2 and sl == 0: A("s_mov_b32 exec_hi, 0")
                if sl == 0: so = "0"
                else:
                    A(f"s_mov_b32 s45, {sl*SB}"); so = "s45"
                if sl16:
                    A.issue(("g", i, sl), f"buffer_load_dwordx2 v[{v}:{v+1}], v7, s[8:11], {so} offen offset:{i*512} sc1")
                else:
                    A.issue(("g", i, sl), f"buffer_load_dwordx4 v[{v}:{v+3}], v4, s[8:11], {so} offen offset:{i*1024} sc1")
        A("s_mov_b32 exec_hi, -1")
        A(f"s_mul_i32 s43, {widx}, 2560"); A("v_add_u32 v6, s43, v4")
        LF = L_F if tail2 else L_OUTP
        for i in range(3):
            A.wait(("g", i, SPW - 1))
            v = BUF + i * SPW * 4
            if sl16:
                for sl in range(SPW):
                    q = v + 4 * sl
                    A(f"v_lshlrev_b32 v{q+2}, 16, v{q+1}"); A(f"v_and_b32 v{q+3}, 0xffff0000, v{q+1}")
                    A(f"v_and_b32 v{q+1}, 0xffff0000, v{q}"); A(f"v_lshlrev_b32 v{q}, 16, v{q}")
            n = SPW
            stride = 4
            while n > 1:
                for p in range(n // 2):
                    for k in range(4):
                        A(f"v_add_f32 v{v+2*p*stride+k}, v{v+2*p*stride+k}, v{v+(2*p+1)*stride+k}")
                n //= 2; stride *= 2
            if i == 2: A("s_mov_b32 exec_hi, 0")
            A(f"ds_write_b128 v6, v[{v}:{v+3}] offset:{LF + i*1024}")
        A("s_mov_b32 exec_hi, -1")
        A("s_waitcnt lgkmcnt(0)")
        P.stamp()
        A("s_barrier")
        A("s_cmp_lt_u32 s3, 4"); A("s_cbranch_scc1 L_aux_done")
        A("s_lshl_b32 s43, s42, 6"); A("v_add_u32 v4, s43, v0")
        A("v_cmp_gt_u32 vcc, 160, v4")
        A("v_lshlrev_b32 v5, 3, v4")
        A("v_lshlrev_b32 v4, 4, v4")
        A("s_and_saveexec_b64 s[46:47], vcc")
        A("s_cbranch_execz L_aux_done")
        for w in range(NG): A(f"ds_read_b128 v[{BUF+4*w}:{BUF+3+4*w}], v4 offset:{LF + w*2560}")
        A("s_mul_i32 s6, s4, 1280")
        srd(A, 8, 36, 37, 6, "s57" if warm else 1280)
        A("s_waitcnt lgkmcnt(0)")
        n = NG; stride = 4
        while n > 1:
            for p in range(n // 2):
                for k in range(4):
                    A(f"v_add_f32 v{BUF+2*p*stride+k}, v{BUF+2*p*stride+k}, v{BUF+(2*p+1)*stride+k}")
            n //= 2; stride *= 2
        for k in range(2):
            A(f"v_lshlrev_b32 v76, 16, v{XB+2+k}"); A(f"v_and_b32 v77, 0xffff0000, v{XB+2+k}")
            A(f"v_add_f32 v{BUF+2*k}, v{BUF+2*k}, v76"); A(f"v_add_f32 v{BUF+1+2*k}, v{BUF+1+2*k}, v77")
            A(f"v_lshlrev_b32 v76, 16, v{XB+k}"); A(f"v_and_b32 v77, 0xffff0000, v{XB+k}")
            A(f"v_add_f32 v{BUF+2*k}, v{BUF+2*k}, v76"); A(f"v_add_f32 v{BUF+1+2*k}, v{BUF+1+2*k}, v77")
        A(f"v_cvt_pk_bf16_f32 v72, v{BUF}, v{BUF+1}"); A(f"v_cvt_pk_bf16_f32 v73, v{BUF+2}, v{BUF+3}")
        A("buffer_store_dwordx2 v[72:73], v5, s[8:11], 0 offen")
    A.label("L_aux_done")
    P.stamp()
    if prof and tail2:
        A("s_cmp_lt_u32 s3, 4"); A("s_cbranch_scc1 L_end")
    P.flush()
    A.label("L_end")
    A("s_endpgm")
    out += A.L
    kernels = [(kname, 256, 102)]
    if not fused:
        B = Asm()
        out.append(".globl reduce_kernel"); out.append(".p2align 8"); out.append(".type reduce_kernel,@function")
        B.label("reduce_kernel")
        B("s_cmp_ge_u32 s2, 160"); B("s_cbranch_scc1 R_end")
        B("s_load_dwordx2 s[4:5], s[0:1], 0")
        B("s_load_dwordx4 s[8:11], s[0:1], 72")
        B("s_load_dwordx2 s[6:7], s[0:1], 96")
        B("s_mul_hi_u32 s12, s2, 0xccccccd")
        B("s_mul_i32 s13, s12, 20"); B("s_sub_u32 s13, s2, s13")
        B("v_and_b32 v1, 7, v0"); B("v_lshrrev_b32 v2, 3, v0")
        B("v_mul_u32_u24 v3, 10240, v2"); B("v_lshl_add_u32 v3, v1, 4, v3")
        B("s_lshl_b32 s14, s13, 7"); B("v_add_u32 v3, s14, v3")
        B("s_mul_i32 s15, s12, 81920")
        B("s_waitcnt lgkmcnt(0)")
        B("s_add_u32 s16, s6, s15"); B("s_addc_u32 s17, s7, 0"); B("s_mov_b32 s18, 81920"); B("s_mov_b32 s19, 0x20000")
        B("s_mov_b32 s20, 2560"); B("s_mov_b32 s21, 5120"); B("s_mov_b32 s22, 7680")
        B("buffer_load_dwordx4 v[4:7], v3, s[16:19], 0 offen")
        B("buffer_load_dwordx4 v[8:11], v3, s[16:19], s20 offen")
        B("buffer_load_dwordx4 v[12:15], v3, s[16:19], s21 offen")
        B("buffer_load_dwordx4 v[16:19], v3, s[16:19], s22 offen")
        B("s_mul_i32 s15, s12, 1280"); B("s_lshl_b32 s14, s13, 6")
        B("v_lshlrev_b32 v20, 3, v1"); B("v_add_u32 v20, s14, v20")
        B("s_add_u32 s24, s4, s15"); B("s_addc_u32 s25, s5, 0"); B("s_mov_b32 s26, 1280"); B("s_mov_b32 s27, 0x20000")
        B("s_mov_b32 s28, s8"); B("s_mov_b32 s29, s9"); B("s_mov_b32 s30, 1280"); B("s_mov_b32 s31, 0x20000")
        B("s_add_u32 s32, s10, s15"); B("s_addc_u32 s33, s11, 0"); B("s_mov_b32 s34, 1280"); B("s_mov_b32 s35, 0x20000")
        B("buffer_load_dwordx2 v[22:23], v20, s[24:27], 0 offen")
        B("buffer_load_dwordx2 v[24:25], v20, s[28:31], 0 offen")
        B("s_waitcnt vmcnt(2)")
        for k in range(4):
            B(f"v_add_f32 v{4+k}, v{4+k}, v{8+k}"); B(f"v_add_f32 v{12+k}, v{12+k}, v{16+k}"); B(f"v_add_f32 v{4+k}, v{4+k}, v{12+k}")
        B.nop(2)
        for k in range(4): B(f"v_add_f32_dpp v{4+k}, v{4+k}, v{4+k} row_ror:8 row_mask:0xf bank_mask:0xf")
        for sw in ("v_permlane16_swap_b32", "v_permlane32_swap_b32"):
            for k in range(4): B(f"v_mov_b32 v{8+k}, v{4+k}")
            B.nop(2)
            for k in range(4): B(f"{sw} v{4+k}, v{8+k}")
            B.nop(1)
            for k in range(4): B(f"v_add_f32 v{4+k}, v{4+k}, v{8+k}")
        B("s_waitcnt vmcnt(0)")
        for k in range(2):
            B(f"v_lshlrev_b32 v8, 16, v{22+k}"); B(f"v_and_b32 v9, 0xffff0000, v{22+k}")
            B(f"v_lshlrev_b32 v10, 16, v{24+k}"); B(f"v_and_b32 v11, 0xffff0000, v{24+k}")
            B(f"v_add_f32 v{4+2*k}, v{4+2*k}, v10"); B(f"v_add_f32 v{5+2*k}, v{5+2*k}, v11")
            B(f"v_add_f32 v{4+2*k}, v{4+2*k}, v8"); B(f"v_add_f32 v{5+2*k}, v{5+2*k}, v9")
        B("v_cvt_pk_bf16_f32 v4, v4, v5"); B("v_cvt_pk_bf16_f32 v5, v6, v7")
        B("v_cmp_gt_u32 vcc, 8, v0"); B("s_and_saveexec_b64 s[36:37], vcc")
        B("buffer_store_dwordx2 v[4:5], v20, s[32:35], 0 offen")
        B.label("R_end"); B("s_endpgm")
        out += B.L
        kernels.append(("reduce_kernel", 32, 48))
    out.append('.section .rodata,"a"')
    for kn, nv, ns in kernels:
        out += [".p2align 6", f".amdhsa_kernel {kn}", f"  .amdhsa_next_free_vgpr {nv}", f"  .amdhsa_next_free_sgpr {ns}",
                f"  .amdhsa_accum_offset {nv}", "  .amdhsa_group_segment_fixed_size 0", "  .amdhsa_kernarg_size 104",
                "  .amdhsa_user_sgpr_count 2", "  .amdhsa_user_sgpr_kernarg_segment_ptr 1", "  .amdhsa_system_sgpr_workgroup_id_x 1",
                "  .amdhsa_float_denorm_mode_32 3", ".end_amdhsa_kernel"]
    return "\n".join(out) + "\n"

if __name__ == "__main__":
    kw = eval("dict(" + (sys.argv[2] if len(sys.argv) > 2 else "") + ")")
    open(sys.argv[1], "w").write(gen(**kw))
```

```python
import struct, sys

NAME = "parallel_sum__gqa_block_cached__mixer_channel_mlp__decode"
HEADER = open("cdna_kernels/" + NAME + ".s.ref").read().split("; Override launch geometry")[0]

def f2u(x): return struct.unpack("<I", struct.pack("<f", x))[0]
SCALE = f2u(128 ** -0.5)
LOG2E = f2u(1.4426950408889634)
INV640 = f2u(1.0 / 640)
EPS = f2u(1e-5)

L_XN = 0
L_Y = 5120
L_QP = 6400
L_T = 8448
L_HV = 8960
L_OP = 9216
L_ML = 11264
L_OUTP = 11520
L_FLAG = 21760
L_PROG = 22528
L_MODE = 22544
L_F = 22784
LDS_BYTES = 22784 + 8 * 2560 + 1024

class Asm:
    def __init__(self):
        self.L = []
        self.vm = []
        self.landed = set()
        self.nlabel = 0
    def __call__(self, s): self.L.append("    " + s)
    def label(self, s): self.L.append(s + ":")
    def c(self, s): self.L.append("    ; " + s)
    def issue(self, tag, ins):
        self(ins); self.vm.append(tag)
        assert len(self.vm) <= 63, "too many outstanding vmem ops"
    def wait(self, tag):
        if tag not in self.vm: return
        i = self.vm.index(tag)
        n = len(self.vm) - 1 - i
        self(f"s_waitcnt vmcnt({n})")
        self.vm = self.vm[i + 1:]
    def waitall(self):
        if self.vm: self("s_waitcnt vmcnt(0)")
        self.vm = []
    def nop(self, n):
        while n > 0:
            k = min(n, 16); self(f"s_nop {k-1}"); n -= k

def allreduce(A, op, t, u):
    for ror in (8, 4, 2, 1):
        A.nop(2)
        A(f"v_{op}_f32_dpp v{t}, v{t}, v{t} row_ror:{ror} row_mask:0xf bank_mask:0xf")
    for sw in ("v_permlane16_swap_b32", "v_permlane32_swap_b32"):
        A(f"v_mov_b32 v{u}, v{t}")
        A.nop(2)
        A(f"{sw} v{t}, v{u}")
        A.nop(1)
        A(f"v_{op}_f32 v{t}, v{t}, v{u}")

def bf16r(A, d, s):
    A(f"v_cvt_pk_bf16_f32 v{d}, v{s}, v{s}")
    A(f"v_and_b32 v{d}, 0xffff0000, v{d}")

def layernorm(A, X, F, T, OUT):
    if isinstance(T, int): T = (T, T+1, T+2, T+3)
    for k in range(5):
        A(f"v_lshlrev_b32 v{F+2*k}, 16, v{X+k}")
        A(f"v_and_b32 v{F+2*k+1}, 0xffff0000, v{X+k}")
    t, u, m, r = T
    A(f"v_add_f32 v{t}, v{F}, v{F+1}")
    for k in range(2, 10): A(f"v_add_f32 v{t}, v{t}, v{F+k}")
    allreduce(A, "add", t, u)
    A(f"v_mul_f32 v{m}, {INV640:#x}, v{t}")
    A(f"v_sub_f32 v{u}, v{F}, v{m}")
    A(f"v_mul_f32 v{t}, v{u}, v{u}")
    for k in range(1, 10):
        A(f"v_sub_f32 v{u}, v{F+k}, v{m}")
        A(f"v_fmac_f32 v{t}, v{u}, v{u}")
    allreduce(A, "add", t, u)
    A(f"v_mul_f32 v{t}, {INV640:#x}, v{t}")
    bf16r(A, t, t)
    A(f"v_add_f32 v{t}, {EPS:#x}, v{t}")
    bf16r(A, t, t)
    A(f"v_sqrt_f32 v{t}, v{t}")
    A.nop(1)
    bf16r(A, t, t)
    A(f"v_rcp_f32 v{r}, v{t}")
    bf16r(A, m, m)
    for k in range(5):
        A(f"v_sub_f32 v{F+2*k}, v{F+2*k}, v{m}")
        A(f"v_sub_f32 v{F+2*k+1}, v{F+2*k+1}, v{m}")
        A(f"v_cvt_pk_bf16_f32 v{u}, v{F+2*k}, v{F+2*k+1}")
        A(f"v_lshlrev_b32 v{F+2*k}, 16, v{u}")
        A(f"v_and_b32 v{F+2*k+1}, 0xffff0000, v{u}")
        A(f"v_mul_f32 v{F+2*k}, v{F+2*k}, v{r}")
        A(f"v_mul_f32 v{F+2*k+1}, v{F+2*k+1}, v{r}")
        A(f"v_cvt_pk_bf16_f32 v{OUT+k}, v{F+2*k}, v{F+2*k+1}")

def srd(A, d, lo, hi, off_s, size):
    if off_s is None:
        A(f"s_mov_b32 s{d}, s{lo}"); A(f"s_mov_b32 s{d+1}, s{hi}")
    else:
        A(f"s_add_u32 s{d}, s{lo}, s{off_s}"); A(f"s_addc_u32 s{d+1}, s{hi}, 0")
    A(f"s_mov_b32 s{d+2}, {size}")
    A(f"s_mov_b32 s{d+3}, 0x20000")

class Prof:
    def __init__(self, A, on, reg): self.A, self.on, self.reg, self.n = A, on, reg, 0
    def stamp(self):
        if not self.on: return
        A = self.A
        A("s_memrealtime s[92:93]"); A("s_waitcnt lgkmcnt(0)")
        A(f"v_writelane_b32 v{self.reg}, s92, {self.n}"); self.n += 1
    def flush(self):
        if not self.on: return
        A = self.A
        A("s_mov_b64 exec, -1")
        A("s_lshl_b32 s94, s2, 3"); A("s_add_u32 s94, s94, s3"); A("s_lshl_b32 s94, s94, 8"); A("s_add_u32 s94, s94, 0x2000000")
        A(f"v_lshlrev_b32 v1, 2, v0"); A("v_add_u32 v1, s94, v1")
        A(f"global_store_dword v1, v{self.reg}, s[40:41]")

def gen(N=5, C=8, S0=24, R=32, catch=2, Ntail=None, tail_from=None, NA=4, wpol="", kvpol="nt", prof=0, fused=0, prio=1, hmap=1, nomlp=0, nowo=0, NW=8, diag=0, nostream=0, WQ0=16, NQ=0, bar0=0, K0=5, dyn=0, NH=8, dyn_from=32, CK0=4, CKS=4, TH=(128,192,232), BO=(1,2,3), CKEXIT=30, sleep=3, even_boost=(16,20), T2=720, TK=226, TV=217, MARG=0, wmask=0, rotm=0, CV=None, tail2=0, rg=32, sl16=0, warm=0, earlyml=1, rotx=0, ktest=0, fin1=1):
    A = Asm()
    P = Prof(A, prof, 63)
    kname = NAME + "_kernel"
    out = []
    out.append(HEADER.rstrip("\n"))
    if fused:
        out.append(f"; @launch grid=(256,1,1) block=(512,1,1) lds={LDS_BYTES}")
    else:
        out.append(f"; @launch kernel={kname} grid=(256,1,1) block=(512,1,1) lds={LDS_BYTES}")
        out.append(f"; @launch kernel=reduce_kernel grid=(160,1,1) block=(64,1,1) lds=0")
    out.append('.amdgcn_target "amdgcn-amd-amdhsa--gfx950"')
    out.append(".text"); out.append(f".globl {kname}"); out.append(".p2align 8"); out.append(f".type {kname},@function")
    A.label(kname)
    A("s_cmp_ge_u32 s2, 256"); A("s_cbranch_scc1 L_end")
    A("s_load_dwordx16 s[16:31], s[0:1], 0")
    A("s_load_dwordx8 s[32:39], s[0:1], 64")
    A("s_load_dwordx2 s[40:41], s[0:1], 96")
    A("v_lshrrev_b32 v1, 6, v0")
    A("v_and_b32 v0, 63, v0")
    A("v_readfirstlane_b32 s3, v1")
    A("v_and_b32 v2, 15, v0")
    A("v_lshrrev_b32 v3, 4, v0")
    if hmap == 0:
        A("s_lshr_b32 s4, s2, 5")
        A("s_and_b32 s5, s2, 31")
    else:
        A("s_and_b32 s5, s2, 7"); A("s_lshl_b32 s5, s5, 2"); A("s_bfe_u32 s4, s2, 0x20003"); A("s_add_u32 s5, s5, s4")
        A("s_lshr_b32 s4, s2, 5")
    A("s_lshl_b32 s66, s4, 5"); A("s_add_u32 s66, s66, s5")
    if prof: A("v_mov_b32 v63, 0")
    A("s_cmp_ge_u32 s3, 4"); A("s_cbranch_scc1 L_aux")
    vK, vV = 4, 5
    MASK = 8
    AT = 12
    D = 20
    O = 28
    S = 32
    TM = 48
    BQ = 64
    RING = 128
    assert R * 4 + RING <= 256
    if prio: A(f"s_setprio {prio}")
    A("v_bfe_u32 v6, v2, 1, 1"); A("v_lshlrev_b32 v6, 10, v6")
    A("v_lshrrev_b32 v7, 2, v2"); A("v_lshl_add_u32 v6, v7, 8, v6")
    A("v_and_b32 v7, 1, v2"); A("v_lshl_add_u32 v6, v7, 6, v6")
    A(f"v_lshl_add_u32 v{vK}, v3, 4, v6")
    A(f"v_lshlrev_b32 v{vV}, 4, v0")
    if ktest == 1: A(f"v_lshlrev_b32 v{vK}, 4, v0")
    if ktest == 2:
        A("v_bfe_u32 v6, v0, 2, 2"); A("v_lshlrev_b32 v6, 8, v6"); A("v_lshl_add_u32 v6, v3, 6, v6"); A("v_and_b32 v7, 3, v0")
        A(f"v_lshl_add_u32 v{vK}, v7, 4, v6")
    A("s_lshl_b32 s6, s66, 20"); A("s_lshr_b32 s7, s66, 12")
    if CV is None: CV = C
    A(f"s_mul_i32 s42, s3, {C*1024}")
    if rotx:
        rotm = 1
        if rotx == 2: A("s_lshr_b32 s45, s2, 5"); A("s_lshl_b32 s45, s45, 2")
        if rotx == 3: A("s_lshr_b32 s45, s2, 5"); A("s_lshl_b32 s45, s45, 2"); A("s_add_u32 s45, s45, s2")
        if rotx == 5: A("s_and_b32 s45, s2, 7"); A("s_lshl_b32 s45, s45, 2")
        if rotx == 6: A("s_lshr_b32 s45, s2, 3")
        if rotx == 7: A("s_and_b32 s45, s2, 7")
        if rotx == 8: A("s_lshr_b32 s45, s2, 3"); A("s_and_b32 s45, s45, 3"); A("s_lshl_b32 s45, s45, 3")
        A(f"s_and_b32 s45, s45, {1024 // rg - 1}"); A(f"s_mul_i32 s45, s45, {rg*1024}")
        A("s_add_u32 s42, s42, s45")
    elif rotm:
        A(f"s_mul_i32 s45, s2, {rotm}"); A(f"s_and_b32 s45, s45, {1024 // rg - 1}"); A(f"s_mul_i32 s45, s45, {rg*1024}")
        A("s_add_u32 s42, s42, s45")
    A("s_waitcnt lgkmcnt(0)")
    A("s_add_u32 s8, s18, s6"); A("s_addc_u32 s9, s19, s7"); A("s_mov_b32 s10, 0x100000"); A("s_mov_b32 s11, 0x20000")
    A("s_add_u32 s12, s20, s6"); A("s_addc_u32 s13, s21, s7"); A("s_mov_b32 s14, 0x100000"); A("s_mov_b32 s15, 0x20000")
    P.stamp()
    if dyn == 4: A("s_memrealtime s[70:71]")
    cur_page = [None]
    def kv_load(n):
        isv = n >= 256; m = n % 256
        vi, wi = m // C, m % C
        byte = vi * 4 * C * 1024 + (wi // 2) * 2048 + ((wi % 2) * (1024 if (isv or ktest) else 128))
        page, imm = byte // 4096 * 4096, byte % 4096
        if cur_page[0] != page:
            A(f"s_add_u32 s43, s42, {page}"); cur_page[0] = page
            if rotm: A("s_and_b32 s43, s43, 0xfffff")
        v = RING + (n % R) * 4
        A.issue(("kv", n), f"buffer_load_dwordx4 v[{v}:{v+3}], v{vV if isv else vK}, s[{'12:15' if isv else '8:11'}], s43 offen offset:{imm} {kvpol}")
    def win(n):
        if dyn and n >= dyn_from: return NH
        if Ntail is not None and n >= tail_from: return Ntail
        return N
    issued = [0]
    def pace():
        n = issued[0]
        if n >= 512: return False
        w = win(n)
        if dyn and n >= dyn_from:
            lab = f"Lw{n}"
            A(f"s_cbranch_vccnz {lab}"); A(f"s_waitcnt vmcnt({N-1})"); A.label(lab)
            A.wait(("kv", n - NH))
        elif n - w >= 0: A.wait(("kv", n - w))
        kv_load(n); issued[0] += 1
        if diag == 5 and n < 44: P.stamp()
        return True
    if nostream:
        A("s_barrier"); A("s_barrier"); A("s_endpgm")
    for _ in range(K0 if bar0 else N): pace()
    A("v_and_b32 v6, 1, v2"); A("v_lshlrev_b32 v6, 4, v6")
    A("v_mov_b32 v7, 0xffff"); A("v_lshlrev_b32 v7, v6, v7")
    A("v_bfe_u32 v6, v2, 1, 2")
    for r in range(4):
        A(f"v_cmp_eq_u32 vcc, {r}, v6"); A.nop(2); A(f"v_cndmask_b32 v{MASK+r}, 0, v7, vcc")
    A("v_lshrrev_b32 v6, 1, v2")
    for t in range(8): A(f"v_cmp_eq_u32 s[{48+2*t}:{49+2*t}], {t}, v6")
    A("v_and_b32 v6, 1, v2"); A("v_cmp_eq_u32 s[64:65], 0, v6")
    A(f"v_lshl_add_u32 v6, v6, 2, v3"); A(f"v_lshlrev_b32 v6, 5, v6")
    if bar0:
        A("s_barrier")
        P.stamp()
    while issued[0] < S0:
        pace()
        if diag == 3: P.stamp()
    P.stamp()
    A("s_barrier")
    P.stamp()
    for a in range(4):
        for half in range(2):
            for q in range(2):
                v = BQ + a * 16 + half * 8 + q * 4
                A(f"ds_read_b128 v[{v}:{v+3}], v6 offset:{L_QP + a*512 + half*256 + q*16}")
    if issued[0] < R: pace()
    A("s_waitcnt lgkmcnt(0)")
    for k in range(16):
        A(f"v_add_f32 v{TM-16+k}, v{BQ+k}, v{BQ+16+k}")
        A(f"v_add_f32 v{BQ+32+k}, v{BQ+32+k}, v{BQ+48+k}")
    if issued[0] < R: pace()
    for k in range(16):
        A(f"v_add_f32 v{S+k}, v{S+k}, v{BQ+32+k}")
    for k in range(8):
        A(f"v_cvt_pk_bf16_f32 v{TM+k}, v{S+2*k}, v{S+2*k+1}")
    if issued[0] < R: pace()
    for t in range(8):
        for k in range(8):
            A(f"v_cndmask_b32 v{BQ+t*8+k}, 0, v{TM+k}, s[{48+2*t}:{49+2*t}]")
        if t % 2 == 1 and issued[0] < R: pace()
    P.stamp()
    if dyn:
        A("s_mov_b64 vcc, 0")
        if dyn == 5:
            A(f"s_lshr_b32 s67, {wmask}, s3"); A("s_bitcmp1_b32 s67, 0"); A("s_cselect_b64 vcc, -1, 0")
        A("s_lshl_b32 s67, s3, 2"); A(f"v_mov_b32 v{TM+12}, s67"); A(f"v_mov_b32 v{TM+14}, 0")
    deferred = []
    unit = [0]
    def run_deferred(force=False):
        k = 0
        while k < len(deferred):
            if force or deferred[k][0] <= unit[0]:
                deferred.pop(k)[1]()
            else: k += 1
    def merge(t16):
        d = D + (t16 % 2) * 4
        a, b = TM + 8, TM + 9
        A(f"v_cndmask_b32 v{a}, v{d+3}, v{d}, s[64:65]")
        A(f"v_cndmask_b32 v{b}, v{d+1}, v{d+2}, s[64:65]")
        A.nop(2)
        A(f"v_add_f32_dpp v{a}, v{b}, v{a} quad_perm:[1,0,3,2] row_mask:0xf bank_mask:0xf")
        bf16r(A, a, a)
        A(f"v_mul_f32 v{a}, {SCALE:#x}, v{a}")
        bf16r(A, S + t16, a)
    def hooks(step, cc):
        if not dyn or dyn == 5: return
        if dyn == 4:
            if cc == 2: A("s_memrealtime s[68:69]")
            if cc == 6 and step >= 2:
                tref = T2 + (min(step, 16) - 2) * TK + max(step - 16, 0) * TV + MARG
                A("s_waitcnt lgkmcnt(0)"); A("s_sub_u32 s68, s68, s70")
                A(f"s_cmp_gt_u32 s68, {tref}"); A("s_cselect_b64 vcc, -1, 0")
            return
        if cc == 2:
            A(f"v_mov_b32 v{TM+11}, {step}")
            A(f"ds_write_b32 v{TM+12}, v{TM+11} offset:{L_PROG}")
            if dyn == 3: A(f"ds_read_b32 v{TM+13}, v{TM+14} offset:{L_MODE}")
        if cc == 6:
            if dyn == 3:
                A("s_waitcnt lgkmcnt(0)"); A(f"v_readfirstlane_b32 s67, v{TM+13}")
                A("s_cmp_lg_u32 s67, 0"); A("s_cselect_b64 vcc, -1, 0")
            elif dyn == 2:
                if step == even_boost[0]: A("s_bitcmp0_b32 s2, 0"); A("s_cselect_b64 vcc, -1, 0")
                if step == even_boost[1]: A("s_mov_b64 vcc, 0")
    def k_consume(c):
        hooks(c // 16, c % 16)
        if diag == 4 and c % 32 == 0 and c: P.stamp()
        t16, tt, half = c // 16, (c % 16) // 2, c % 2
        d = D + (t16 % 2) * 4
        v = RING + (c % R) * 4
        A.wait(("kv", c))
        b = BQ + tt * 8 + half * 4
        cs = "0" if c % 16 == 0 else f"v[{d}:{d+3}]"
        A(f"v_mfma_f32_16x16x32_bf16 v[{d}:{d+3}], v[{v}:{v+3}], v[{b}:{b+3}], {cs}")
        if c % 16 == 15: deferred.append((unit[0] + 9, lambda t=t16: merge(t)))
    def pexp(t16):
        a = TM + 10
        A(f"v_sub_f32 v{a}, v{S+t16}, v{TM}")
        A(f"v_mul_f32 v{a}, {LOG2E:#x}, v{a}")
        A(f"v_exp_f32 v{a}, v{a}")
        A.nop(1)
        A(f"v_add_f32 v{TM+1}, v{TM+1}, v{a}")
        A(f"v_cvt_pk_bf16_f32 v{S+t16}, v{a}, v{a}")
    def abuild(c):
        at = AT + (c % 2) * 4
        for r in range(4):
            A(f"v_and_b32_dpp v{at+r}, v{S + c//16}, v{MASK+r} row_newbcast:{c%16} row_mask:0xf bank_mask:0xf")
    def v_consume(c):
        hooks(16 + c // 16, c % 16)
        if diag == 4 and c % 64 == 0 and c: P.stamp()
        at = AT + (c % 2) * 4
        v = RING + ((256 + c) % R) * 4
        if c + 1 < 256: abuild(c + 1)
        else: A.nop(2)
        A.wait(("kv", 256 + c))
        cs = "0" if c == 0 else f"v[{O}:{O+3}]"
        A(f"v_mfma_f32_16x16x32_bf16 v[{O}:{O+3}], v[{at}:{at+3}], v[{v}:{v+3}], {cs}")
        if c % 16 == 4 and c // 16 + 1 < 16: pexp(c // 16 + 1)
        if c == 236 and earlyml:
            allreduce(A, "add", TM + 1, TM + 2)
            A("s_lshl_b32 s44, s3, 3"); A("v_mov_b32 v7, s44")
            A(f"v_mov_b32 v{TM+2}, v{TM}"); A(f"v_mov_b32 v{TM+3}, v{TM+1}")
            A("s_mov_b64 exec, 1")
            A(f"ds_write_b64 v7, v[{TM+2}:{TM+3}] offset:{L_ML}")
            A("s_mov_b64 exec, -1")
            A("v_lshlrev_b32 v6, 5, v2"); A("v_lshl_add_u32 v6, v3, 4, v6")
            A("s_lshl_b32 s44, s3, 9"); A("v_add_u32 v6, s44, v6")
    c = 0
    while c < 256:
        can_issue = issued[0] < 512 and issued[0] - R < c
        if can_issue: pace()
        lag = issued[0] - win(max(issued[0]-1,0)) - c
        k = catch if lag > 1 else 1
        for _ in range(k):
            if c < 256:
                k_consume(c); c += 1
                unit[0] += 1; run_deferred()
    A.nop(8)
    run_deferred(force=True)
    P.stamp()
    def pace_ok():
        if issued[0] < 512 and issued[0] - R < 256: pace()
    A(f"v_max3_f32 v{TM}, v{S}, v{S+1}, v{S+2}")
    for k in range(3, 15, 2): A(f"v_max3_f32 v{TM}, v{TM}, v{S+k}, v{S+k+1}")
    A(f"v_max_f32 v{TM}, v{TM}, v{S+15}")
    pace_ok()
    allreduce(A, "max", TM, TM + 2)
    pace_ok()
    A(f"v_mov_b32 v{TM+1}, 0")
    pexp(0)
    A.nop(2)
    abuild(0)
    P.stamp()
    c = 0
    while c < 256:
        can_issue = issued[0] < 512 and issued[0] - R < 256 + c
        if can_issue: pace()
        lag = issued[0] - win(max(issued[0]-1,0)) - (256 + c)
        k = catch if (lag > 1 or issued[0] >= 512) else 1
        for _ in range(k):
            if c < 256:
                v_consume(c); c += 1
    P.stamp()
    if not earlyml:
        allreduce(A, "add", TM + 1, TM + 2)
        A("v_lshlrev_b32 v6, 5, v2"); A("v_lshl_add_u32 v6, v3, 4, v6")
        A("s_lshl_b32 s44, s3, 9"); A("v_add_u32 v6, s44, v6")
        A("s_lshl_b32 s44, s3, 3"); A("v_mov_b32 v7, s44")
        A(f"v_mov_b32 v{TM+2}, v{TM}"); A(f"v_mov_b32 v{TM+3}, v{TM+1}")
        assert (TM + 2) % 2 == 0
        A("s_mov_b32 exec_hi, 0")
        A(f"ds_write_b128 v6, v[{O}:{O+3}] offset:{L_OP}")
        A("s_mov_b32 exec_lo, 1")
        A(f"ds_write_b64 v7, v[{TM+2}:{TM+3}] offset:{L_ML}")
    else:
        A("s_mov_b32 exec_hi, 0")
        A.nop(7)
        A(f"ds_write_b128 v6, v[{O}:{O+3}] offset:{L_OP}")
    A("s_waitcnt lgkmcnt(0)")
    A("s_barrier")
    P.stamp()
    if tail2:
        A("s_mov_b64 exec, -1")
        P.flush()
        A("s_branch L_b3")
    else:
        P.flush()
        A("s_endpgm")
    A.vm = []
    P = Prof(A, prof, 63)
    A.label("L_aux")
    SEL = 8
    AT = 16
    DO = 24
    DQ = 44
    X = 48
    F = 53
    T = 4
    PP = 64
    BUF = 96
    A("s_sub_u32 s42, s3, 4")
    A("s_mul_i32 s43, s42, 160"); A("v_mul_u32_u24 v4, 40, v3"); A("v_add_u32 v4, s43, v4")
    A("v_lshlrev_b32 v4, 13, v4"); A("v_lshl_add_u32 v4, v2, 4, v4")
    A("v_lshlrev_b32 v5, 2, v0")
    A("s_mul_i32 s6, s4, 1280"); A("s_lshl_b32 s7, s5, 8")
    A("s_sub_u32 s44, 5242880, s7")
    A("s_waitcnt lgkmcnt(0)")
    srd(A, 8, 16, 17, 6, 1280)
    srd(A, 12, 22, 23, 7, "s44")
    P.stamp()
    for k in range(5):
        A.issue(("x", k), f"buffer_load_dword v{X+k}, v5, s[8:11], 0 offen offset:{k*256}")
    A("s_lshl_b32 s45, s4, 15")
    def wq_load(j):
        v = BUF + 4 * j
        if NQ and j >= NQ: A.wait(("wq", j - NQ))
        A.issue(("wq", j), f"buffer_load_dwordx4 v[{v}:{v+3}], v4, s[12:15], s45 offen {wpol}")
        if j < 39:
            A("s_add_u32 s45, s45, 8192"); A(f"s_cmp_eq_u32 s45, {40*8192}"); A("s_cselect_b32 s45, 0, s45")
    if bar0 == 2: WQ0 = 40
    for j in range(WQ0): wq_load(j)
    if bar0 == 2: A("s_barrier")
    A("v_and_b32 v6, 1, v2")
    A("v_cmp_eq_u32 vcc, 0, v6")
    A("v_mov_b32 v60, 0x01000c0c"); A("v_mov_b32 v61, 0x0c0c0100")
    A("v_cndmask_b32 v60, v60, v61, vcc")
    A("v_mov_b32 v6, 0x03020c0c"); A("v_mov_b32 v61, 0x0c0c0302")
    A("v_cndmask_b32 v61, v6, v61, vcc")
    A("v_bfe_u32 v6, v2, 1, 2"); A("v_mov_b32 v7, 0x0c0c0c0c")
    for r in range(4):
        A(f"v_cmp_eq_u32 vcc, {r}, v6"); A.nop(2)
        A(f"v_cndmask_b32 v{SEL+r}, v7, v60, vcc"); A(f"v_cndmask_b32 v{SEL+4+r}, v7, v61, vcc")
    for k in range(20): A(f"v_mov_b32 v{DO+k}, 0")
    A.wait(("x", 4))
    P.stamp()
    LN = Asm(); layernorm(LN, X, F, (84, 85, 86, 87), X)
    rem = list(range(WQ0, 40)); step = max(1, len(LN.L) // (len(rem) + 1))
    for i, ins in enumerate(LN.L):
        A.L.append(ins)
        if rem and i % step == step - 1: wq_load(rem.pop(0))
    for j in rem: wq_load(j)
    if bar0 == 1: A("s_barrier")
    A("s_mul_i32 s43, s42, 1280")
    A("v_lshlrev_b32 v5, 2, v0"); A("v_add_u32 v5, s43, v5")
    for k in range(5): A(f"ds_write_b32 v5, v{X+k} offset:{L_XN + 256*k}")
    A("s_mul_i32 s43, s42, 1600"); A("v_mul_u32_u24 v5, 80, v3"); A("v_add_u32 v5, s43, v5")
    A("s_lshl_b32 s46, s4, 3")
    A("s_waitcnt lgkmcnt(0)")
    for k in range(10):
        A(f"v_add_u32 v6, s46, v5")
        A(f"ds_read_b64 v[{PP+2*k}:{PP+2*k+1}], v6 offset:{L_XN}")
        A("s_add_u32 s46, s46, 8"); A("s_cmp_eq_u32 s46, 80"); A("s_cselect_b32 s46, 0, s46")
    A("s_waitcnt lgkmcnt(0)")
    P.stamp()
    def abuild_p(preg, par, st):
        at = AT + st * 4
        for r in range(4): A(f"v_perm_b32 v{at+r}, v{preg}, v{preg}, v{SEL + par*4 + r}")
    abuild_p(PP, 0, 0)
    for j in range(40):
        if j + 1 < 40: abuild_p(PP + (j + 1) // 2, (j + 1) % 2, (j + 1) % 2)
        else: A.nop(2)
        A.wait(("wq", j))
        at = AT + (j % 2) * 4; v = BUF + 4 * j
        cs = "0" if j == 0 else f"v[{DQ}:{DQ+3}]"
        A(f"v_mfma_f32_16x16x32_bf16 v[{DQ}:{DQ+3}], v[{at}:{at+3}], v[{v}:{v+3}], {cs}")
    A("v_lshlrev_b32 v6, 5, v2"); A("v_lshl_add_u32 v6, v3, 4, v6")
    A("s_lshl_b32 s43, s42, 9"); A("v_add_u32 v7, s43, v6")
    A.nop(6)
    A("s_mov_b32 exec_hi, 0")
    A(f"ds_write_b128 v7, v[{DQ}:{DQ+3}] offset:{L_QP}")
    A("s_mov_b32 exec_hi, -1")
    if dyn:
        A("v_lshlrev_b32 v6, 2, v0"); A("v_mov_b32 v7, 0")
        A("s_mov_b64 exec, 0xff")
        A(f"ds_write_b32 v6, v7 offset:{L_PROG}")
        A("s_mov_b64 exec, -1")
    A("s_waitcnt lgkmcnt(0)")
    P.stamp()
    A("s_barrier")
    A("s_cmp_lg_u32 s42, 0"); A("s_cbranch_scc1 L_wo")
    A("s_cmp_ge_u32 s5, %d" % (0 if nomlp else 27)); A("s_cbranch_scc1 L_wo")
    layernorm(A, X, F, T, X)
    A("v_lshlrev_b32 v4, 2, v0")
    for k in range(5): A(f"ds_write_b32 v4, v{X+k} offset:{L_Y + 256*k}")
    A("s_lshl_b32 s6, s5, 7")
    A(f"s_sub_u32 s44, {640*3456}, s6")
    srd(A, 8, 28, 29, 6, "s44")
    srd(A, 12, 30, 31, 6, 128)
    A("v_lshlrev_b32 v5, 1, v0")
    A.issue(("b1", 0), f"buffer_load_ushort v{F}, v5, s[12:15], 0 offen")
    A("v_lshrrev_b32 v5, 3, v2"); A("v_lshl_add_u32 v5, v3, 1, v5")
    A("v_mul_u32_u24 v6, 160, v5")
    A(f"s_mov_b32 s45, {80*3456}"); A("v_mul_lo_u32 v5, s45, v5")
    A("v_and_b32 v7, 7, v2"); A("v_lshl_add_u32 v5, v7, 4, v5")
    A("s_waitcnt lgkmcnt(0)")
    PY = BUF
    for k in range(10): A(f"ds_read_b128 v[{PY+4*k}:{PY+4*k+3}], v6 offset:{L_Y + 16*k}")
    RB, RN = BUF + 40, 30
    def w1_load(j):
        v = RB + (j % RN) * 4
        A(f"s_mov_b32 s45, {j*3456}")
        A.issue(("w1", j), f"buffer_load_dwordx4 v[{v}:{v+3}], v5, s[8:11], s45 offen {wpol}")
    for j in range(NW): w1_load(j)
    A("s_waitcnt lgkmcnt(0)")
    abuild_p(PY, 0, 0)
    for j in range(80):
        if j + 1 < 80: abuild_p(PY + (j + 1) // 2, (j + 1) % 2, (j + 1) % 2)
        else: A.nop(2)
        A.wait(("w1", j))
        at = AT + (j % 2) * 4; v = RB + (j % RN) * 4
        cs = "0" if j == 0 else f"v[{DQ}:{DQ+3}]"
        A(f"v_mfma_f32_16x16x32_bf16 v[{DQ}:{DQ+3}], v[{at}:{at+3}], v[{v}:{v+3}], {cs}")
        if j + NW < 80: w1_load(j + NW)
    A("s_mul_i32 s6, s5, 81920")
    A(f"s_sub_u32 s44, {1728*1280}, s6")
    srd(A, 8, 32, 33, 6, "s44")
    A("v_mul_u32_u24 v5, 20480, v3"); A("v_lshl_add_u32 v5, v2, 4, v5")
    def w2_load(n):
        jj, cb = n // 5, n % 5
        v = RB + (n % RN) * 4
        if cb == 0: A(f"s_mov_b32 s45, {jj*1280}")
        A.issue(("w2", n), f"buffer_load_dwordx4 v[{v}:{v+3}], v5, s[8:11], s45 offen offset:{cb*256} {wpol}")
    for n in range(10): w2_load(n)
    A("v_lshrrev_b32 v6, 1, v3"); A("v_lshrrev_b32 v7, 3, v2")
    A("v_cmp_eq_u32 vcc, v6, v7")
    A("v_lshlrev_b32 v6, 8, v6"); A("v_and_b32 v7, 7, v2"); A("v_lshl_add_u32 v6, v7, 5, v6")
    A("v_and_b32 v7, 1, v3"); A("v_lshl_add_u32 v6, v7, 4, v6")
    A("s_and_saveexec_b64 s[46:47], vcc")
    A(f"ds_write_b128 v6, v[{DQ}:{DQ+3}] offset:{L_T}")
    A("s_mov_b64 exec, s[46:47]")
    A("v_lshlrev_b32 v6, 2, v0")
    A("s_waitcnt lgkmcnt(0)")
    A(f"ds_read_b32 v{F+1}, v6 offset:{L_T}"); A(f"ds_read_b32 v{F+2}, v6 offset:{L_T+256}")
    A("s_waitcnt lgkmcnt(0)")
    A(f"v_add_f32 v{F+1}, v{F+1}, v{F+2}")
    bf16r(A, F + 1, F + 1)
    A.wait(("b1", 0))
    A(f"v_lshlrev_b32 v{F}, 16, v{F}")
    A(f"v_add_f32 v{F+1}, v{F+1}, v{F}")
    bf16r(A, F + 1, F + 1)
    x_, u_, e_ = F + 1, F + 2, F + 3
    A(f"v_mul_f32 v{u_}, v{x_}, v{x_}"); A(f"v_mul_f32 v{u_}, v{u_}, v{x_}")
    A(f"v_mov_b32 v{e_}, {f2u(0.044715):#x}"); A(f"v_fma_f32 v{u_}, v{u_}, v{e_}, v{x_}")
    A(f"v_mul_f32 v{u_}, {f2u(-2*0.7978845608028654*1.4426950408889634):#x}, v{u_}")
    A(f"v_exp_f32 v{u_}, v{u_}"); A.nop(1)
    A(f"v_add_f32 v{u_}, 1.0, v{u_}"); A(f"v_rcp_f32 v{u_}, v{u_}"); A.nop(1)
    A(f"v_mul_f32 v{u_}, v{x_}, v{u_}")
    A(f"v_cvt_pk_bf16_f32 v{u_}, v{u_}, v{u_}")
    A("v_lshlrev_b32 v6, 1, v0")
    A(f"ds_write_b16 v6, v{u_} offset:{L_HV}")
    A("v_lshlrev_b32 v6, 5, v3")
    A("s_waitcnt lgkmcnt(0)")
    for k in range(2): A(f"ds_read_b128 v[{PP+4*k}:{PP+4*k+3}], v6 offset:{L_HV + 16*k}")
    A("s_waitcnt lgkmcnt(0)")
    abuild_p(PP, 0, 0)
    nl = 10
    for jj in range(16):
        if jj + 1 < 16: abuild_p(PP + (jj + 1) // 2, (jj + 1) % 2, (jj + 1) % 2)
        else: A.nop(2)
        at = AT + (jj % 2) * 4
        for cb in range(5):
            n = jj * 5 + cb
            A.wait(("w2", n))
            v = RB + (n % RN) * 4; d = DO + 4 * cb
            A(f"v_mfma_f32_16x16x32_bf16 v[{d}:{d+3}], v[{at}:{at+3}], v[{v}:{v+3}], v[{d}:{d+3}]")
            if nl < 80: w2_load(nl); nl += 1
    A.waitall()
    A.label("L_wo")
    A.vm = []
    if fused == 3:
        A("s_cmp_lg_u32 s42, 1"); A("s_cbranch_scc1 L_zero_done")
        A("s_mul_i32 s6, s4, 2560"); A("s_mul_i32 s43, s5, 80"); A("s_add_u32 s6, s6, s43"); A("s_add_u32 s6, s6, 0x100000")
        srd(A, 8, 40, 41, 6, 80)
        A("v_lshlrev_b32 v6, 2, v0"); A("v_mov_b32 v7, 0")
        A("buffer_store_dword v7, v6, s[8:11], 0 offen sc1")
        A("s_lshl_b32 s6, s4, 5"); A("v_mov_b32 v6, s6"); A("v_mov_b32 v7, 1")
        A("s_waitcnt vmcnt(0)")
        A("s_mov_b64 exec, 1")
        A("global_atomic_add v6, v7, s[38:39] offset:4")
        A("s_mov_b64 exec, -1")
        A.label("L_zero_done")
    A("s_mul_i32 s6, s5, 163840")
    srd(A, 8, 24, 25, 6, 163840)
    A("s_lshl_b32 s43, s42, 5"); A("v_lshlrev_b32 v5, 3, v3"); A("v_add_u32 v5, s43, v5")
    A("v_mul_u32_u24 v5, 1280, v5"); A("v_lshl_add_u32 v5, v2, 4, v5")
    for n in range(0 if nowo else 40):
        jj, cb = n // 5, n % 5
        v = BUF + 4 * n
        if cb == 0: A(f"s_mov_b32 s45, {jj*1280}")
        if n >= NA: A.wait(("wo", n - NA))
        A.issue(("wo", n), f"buffer_load_dwordx4 v[{v}:{v+3}], v5, s[8:11], s45 offen offset:{cb*256} {wpol}")
    if dyn == 3:
        A("s_cmp_lg_u32 s42, 3"); A("s_cbranch_scc1 L_ctrl_done")
        A.waitall() if False else None
        A(f"s_mov_b32 s50, {CK0}"); A("s_mov_b32 s51, 16"); A("s_mov_b32 s52, 0"); A("s_mov_b32 s53, 0")
        A("v_mov_b32 v6, 0"); A("s_mov_b64 exec, 1")
        A.label("L_ctrl")
        A(f"ds_read_b32 v5, v6 offset:{L_PROG}")
        A("s_waitcnt lgkmcnt(0)")
        A("v_readfirstlane_b32 s54, v5")
        A(f"s_cmp_ge_u32 s54, {CKEXIT}"); A("s_cbranch_scc1 L_ctrl_exit")
        A("s_cmp_eq_u32 s52, 0"); A("s_cbranch_scc1 L_ctrl_a")
        A("s_cmp_lt_u32 s54, s53"); A("s_cbranch_scc1 L_ctrl_a")
        A("s_mov_b32 s52, 0"); A("v_mov_b32 v5, 0"); A(f"ds_write_b32 v6, v5 offset:{L_MODE}")
        A.label("L_ctrl_a")
        A("s_cmp_lt_u32 s54, s50"); A("s_cbranch_scc1 L_ctrl_sleep")
        A("v_mov_b32 v7, 1"); A("v_mov_b32 v4, s51")
        A("global_atomic_add v5, v4, v7, s[38:39] sc0")
        A("s_waitcnt vmcnt(0)")
        A("v_readfirstlane_b32 s55, v5")
        A(f"s_add_u32 s50, s50, {CKS}"); A("s_add_u32 s51, s51, 32")
        A("s_mov_b32 s56, 0")
        for th, bo in zip(TH, BO):
            A(f"s_cmp_ge_u32 s55, {th}"); A(f"s_cselect_b32 s56, {bo}, s56")
        A("s_cmp_eq_u32 s56, 0"); A("s_cbranch_scc1 L_ctrl_sleep")
        A(f"ds_read_b32 v5, v6 offset:{L_PROG}")
        A("s_waitcnt lgkmcnt(0)")
        A("v_readfirstlane_b32 s54, v5")
        A("s_add_u32 s53, s54, s56"); A("s_add_u32 s53, s53, 1")
        A("s_mov_b32 s52, 1"); A("v_mov_b32 v5, 1"); A(f"ds_write_b32 v6, v5 offset:{L_MODE}")
        A.label("L_ctrl_sleep")
        A(f"s_sleep {sleep}")
        A("s_branch L_ctrl")
        A.label("L_ctrl_exit")
        A("s_mov_b64 exec, -1")
        A.label("L_ctrl_done")
    if fused == 3:
        A("s_lshl_b32 s6, s4, 5"); A("v_mov_b32 v90, s6"); A("v_mov_b32 v91, 1")
        A("s_cmp_lg_u32 s42, 0"); A("s_cbranch_scc1 L_zchk_done")
        A.label("L_zchk")
        A("s_mov_b64 exec, 1")
        A("global_load_dword v89, v90, s[38:39] offset:4 sc1")
        A("s_waitcnt vmcnt(0)")
        A("v_readfirstlane_b32 s51, v89")
        A("s_mov_b64 exec, -1")
        A("s_cmp_ge_u32 s51, 32"); A("s_cbranch_scc1 L_zchk_done")
        A("s_sleep 8")
        A("s_branch L_zchk")
        A.label("L_zchk_done")
        A.vm = []
        A.vm.append("pending")
    XB = 60
    XB = 92
    XP = [92, 94, 88]; BP = [44, 46, 60]
    if fused == 3 and fin1:
        A("v_lshlrev_b32 v4, 3, v0")
        A("s_mul_i32 s6, s4, 1280")
        srd(A, 12, 16, 17, 6, 1280)
        srd(A, 68, 34, 35, None, 1280)
        for i in range(3):
            A.issue(("xf", i), f"buffer_load_dwordx2 v[{XP[i]}:{XP[i]+1}], v4, s[12:15], 0 offen offset:{i*512}")
            A.issue(("bf", i), f"buffer_load_dwordx2 v[{BP[i]}:{BP[i]+1}], v4, s[68:71], 0 offen offset:{i*512}")
    elif fused:
        A("s_lshl_b32 s43, s42, 6"); A("v_add_u32 v4, s43, v0"); A("v_lshlrev_b32 v4, 3, v4")
        A("s_mul_i32 s6, s4, 1280")
        srd(A, 12, 16, 17, 6, 1280)
        A.issue(("xf", 0), f"buffer_load_dwordx2 v[{XB}:{XB+1}], v4, s[12:15], 0 offen")
        srd(A, 68, 34, 35, None, 1280)
        A.issue(("xf", 1), f"buffer_load_dwordx2 v[{XB+2}:{XB+3}], v4, s[68:71], 0 offen")
    A("v_lshlrev_b32 v4, 5, v3"); A("s_lshl_b32 s43, s42, 7"); A("v_add_u32 v4, s43, v4")
    A("v_mov_b32 v5, 0")
    A.waitall()
    P.stamp()
    A("s_barrier")
    P.stamp()
    if fused == 2:
        A("s_cmp_lg_u32 s42, 0"); A("s_cbranch_scc1 L_noticket")
        A("s_lshl_b32 s6, s4, 5"); A("v_mov_b32 v90, s6"); A("v_mov_b32 v91, 1")
        A("s_mov_b64 exec, 1")
        A("global_atomic_add v88, v90, v91, s[38:39] sc0")
        A("global_load_dword v89, v90, s[38:39] offset:4 sc1")
        A("s_mov_b64 exec, -1")
        A.label("L_noticket")
    ML = PP
    OV = PP + 8
    A(f"ds_read_b128 v[{ML}:{ML+3}], v5 offset:{L_ML}"); A(f"ds_read_b128 v[{ML+4}:{ML+7}], v5 offset:{L_ML+16}")
    OVR = [72, 80, 48, 16]
    for w in range(4):
        for q in range(2):
            v = OVR[w] + 4 * q
            A(f"ds_read_b128 v[{v}:{v+3}], v4 offset:{L_OP + w*512 + q*16}")
    A("s_waitcnt lgkmcnt(8)")
    A(f"v_max3_f32 v6, v{ML}, v{ML+2}, v{ML+4}"); A(f"v_max_f32 v6, v6, v{ML+6}")
    for w in range(4):
        A(f"v_sub_f32 v{ML+2*w}, v{ML+2*w}, v6"); A(f"v_mul_f32 v{ML+2*w}, {LOG2E:#x}, v{ML+2*w}"); A(f"v_exp_f32 v{ML+2*w}, v{ML+2*w}")
    A.nop(1)
    A(f"v_mul_f32 v7, v{ML}, v{ML+1}")
    for w in range(1, 4): A(f"v_fmac_f32 v7, v{ML+2*w}, v{ML+2*w+1}")
    A("v_rcp_f32 v7, v7"); A.nop(1)
    A("s_waitcnt lgkmcnt(0)")
    for k in range(8):
        A(f"v_mul_f32 v{OVR[0]+k}, v{OVR[0]+k}, v{ML}")
        for w in range(1, 4): A(f"v_fmac_f32 v{OVR[0]+k}, v{OVR[w]+k}, v{ML+2*w}")
        A(f"v_mul_f32 v{OVR[0]+k}, v{OVR[0]+k}, v7")
    PO = 56
    for k in range(4): A(f"v_cvt_pk_bf16_f32 v{PO+k}, v{OVR[0]+2*k}, v{OVR[0]+2*k+1}")
    abuild_p(PO, 0, 0)
    for jj in range(8):
        if jj + 1 < 8: abuild_p(PO + (jj + 1) // 2, (jj + 1) % 2, (jj + 1) % 2)
        else: A.nop(2)
        at = AT + (jj % 2) * 4
        if jj == 0: A.nop(2)
        for cb in range(5):
            v = BUF + 4 * (jj * 5 + cb); d = DO + 4 * cb
            A(f"v_mfma_f32_16x16x32_bf16 v[{d}:{d+3}], v[{at}:{at+3}], v[{v}:{v+3}], v[{d}:{d+3}]")
    A("v_lshlrev_b32 v6, 5, v2"); A("v_lshl_add_u32 v6, v3, 4, v6")
    A("s_mul_i32 s43, s42, 2560"); A("v_add_u32 v6, s43, v6")
    A.nop(4)
    A("s_mov_b32 exec_hi, 0")
    for cb in range(5):
        A(f"ds_write_b128 v6, v[{DO+4*cb}:{DO+4*cb+3}] offset:{L_OUTP + cb*512}")
    A("s_mov_b32 exec_hi, -1")
    if fused == 3:
        A("s_mul_i32 s6, s4, 2560"); A("s_add_u32 s6, s6, 0x100000")
        srd(A, 8, 40, 41, 6, 2560)
    if fused == 2:
        A("s_mul_i32 s6, s4, 2560"); A("s_add_u32 s6, s6, 0x100000")
        srd(A, 8, 40, 41, 6, 2560)
        A("s_cmp_lg_u32 s42, 0"); A("s_cbranch_scc1 L_tk_done")
        A("s_waitcnt vmcnt(0)")
        A("v_readfirstlane_b32 s50, v88"); A("v_readfirstlane_b32 s51, v89")
        A("s_cmp_lg_u32 s50, 0"); A("s_cbranch_scc1 L_tk_spin")
        for k in range(4): A(f"v_mov_b32 v{72+k}, 0")
        A("v_lshlrev_b32 v7, 4, v0")
        for i in range(3): A(f"buffer_store_dwordx4 v[72:75], v7, s[8:11], 0 offen offset:{i*1024} sc1")
        A("s_waitcnt vmcnt(0)")
        A("s_mov_b64 exec, 1")
        A("global_store_dword v90, v91, s[38:39] offset:4 sc1")
        A("s_mov_b64 exec, -1")
        A("s_branch L_tk_done")
        A.label("L_tk_spin")
        A("s_cmp_lg_u32 s51, 0"); A("s_cbranch_scc1 L_tk_done")
        A("s_mov_b64 exec, 1")
        A("global_load_dword v89, v90, s[38:39] offset:4 sc1")
        A("s_waitcnt vmcnt(0)")
        A("v_readfirstlane_b32 s51, v89")
        A("s_mov_b64 exec, -1")
        A("s_branch L_tk_spin")
        A.label("L_tk_done")
    A("s_waitcnt lgkmcnt(0)")
    P.stamp()
    A.label("L_b3")
    A("s_barrier")
    if not fused:
        A("s_lshl_b32 s43, s42, 6"); A("v_add_u32 v4, s43, v0")
        A("v_cmp_gt_u32 vcc, 160, v4")
        A("v_lshlrev_b32 v4, 4, v4")
        A("s_and_saveexec_b64 s[46:47], vcc")
        A("s_cbranch_execz L_aux_done")
        for w in range(4): A(f"ds_read_b128 v[{72+4*w}:{75+4*w}], v4 offset:{L_OUTP + w*2560}")
        A("s_mul_i32 s6, s66, 2560")
        srd(A, 8, 40, 41, 6, 2560)
        A("s_waitcnt lgkmcnt(0)")
        for k in range(4):
            A(f"v_add_f32 v{72+k}, v{72+k}, v{76+k}"); A(f"v_add_f32 v{80+k}, v{80+k}, v{84+k}"); A(f"v_add_f32 v{72+k}, v{72+k}, v{80+k}")
        A("buffer_store_dwordx4 v[72:75], v4, s[8:11], 0 offen")
    elif fused in (2, 3):
        A("s_mul_i32 s43, s42, 640"); A("v_lshlrev_b32 v4, 2, v0"); A("v_add_u32 v4, s43, v4")
        for i in range(3):
            for w in range(4):
                A(f"ds_read_b32 v{72+4*i+w}, v4 offset:{L_OUTP + w*2560 + i*256}")
        for i in range(3):
            A(f"s_waitcnt lgkmcnt({8-4*i})")
            v = 72 + 4 * i
            A(f"v_add_f32 v{v}, v{v}, v{v+1}"); A(f"v_add_f32 v{v+2}, v{v+2}, v{v+3}"); A(f"v_add_f32 v{v}, v{v}, v{v+2}")
            if i == 2: A("s_mov_b32 exec_hi, 0")
            A(f"buffer_atomic_add_f32 v{v}, v4, s[8:11], 0 offen offset:{i*256}")
        A("s_mov_b32 exec_hi, -1")
        A("s_waitcnt vmcnt(0)")
        P.stamp()
        A("s_barrier")
        if fused == 3 and fin1:
            A("s_cmp_lg_u32 s42, 0"); A("s_cbranch_scc1 L_aux_done")
            A("v_lshlrev_b32 v4, 4, v0"); A("v_lshlrev_b32 v7, 3, v0")
            A("s_mul_i32 s6, s4, 1280")
            srd(A, 12, 36, 37, 6, 1280)
            A("s_mov_b64 exec, 1")
            A("global_atomic_add v5, v90, v91, s[38:39] offset:8 sc0")
            A("s_waitcnt vmcnt(0)")
            A("v_readfirstlane_b32 s43, v5")
            A("s_mov_b64 exec, -1")
            P.stamp()
            A("s_cmp_lg_u32 s43, 31"); A("s_cbranch_scc1 L_aux_done")
            for i in range(3): A(f"buffer_load_dwordx4 v[{72+4*i}:{75+4*i}], v4, s[8:11], 0 offen offset:{i*1024} sc1")
            for i in range(3):
                A(f"s_waitcnt vmcnt({2-i})" if i == 0 else f"s_waitcnt vmcnt({2-i+0})")
                v = 72 + 4 * i
                for k in range(2):
                    A(f"v_lshlrev_b32 v84, 16, v{BP[i]+k}"); A(f"v_and_b32 v85, 0xffff0000, v{BP[i]+k}")
                    A(f"v_add_f32 v{v+2*k}, v{v+2*k}, v84"); A(f"v_add_f32 v{v+1+2*k}, v{v+1+2*k}, v85")
                    A(f"v_lshlrev_b32 v84, 16, v{XP[i]+k}"); A(f"v_and_b32 v85, 0xffff0000, v{XP[i]+k}")
                    A(f"v_add_f32 v{v+2*k}, v{v+2*k}, v84"); A(f"v_add_f32 v{v+1+2*k}, v{v+1+2*k}, v85")
                A(f"v_cvt_pk_bf16_f32 v{v}, v{v}, v{v+1}"); A(f"v_cvt_pk_bf16_f32 v{v+1}, v{v+2}, v{v+3}")
            for i in range(3): A(f"buffer_store_dwordx2 v[{72+4*i}:{73+4*i}], v7, s[12:15], 0 offen offset:{i*512}")
        else:
            A("s_cmp_lg_u32 s42, 0"); A("s_cbranch_scc1 L_wait_flag")
            A("s_mov_b64 exec, 1")
            A("global_atomic_add v5, v90, v91, s[38:39] offset:8 sc0")
            A("s_waitcnt vmcnt(0)")
            A("v_mov_b32 v6, 0")
            A(f"ds_write_b32 v6, v5 offset:{L_FLAG}")
            A("s_mov_b64 exec, -1")
            A("s_waitcnt lgkmcnt(0)")
            A.label("L_wait_flag")
            P.stamp()
            A("s_barrier")
            A("v_mov_b32 v6, 0")
            A(f"ds_read_b32 v5, v6 offset:{L_FLAG}")
            A("s_lshl_b32 s43, s42, 6"); A("v_add_u32 v4, s43, v0")
            A("v_lshlrev_b32 v7, 3, v4"); A("v_lshlrev_b32 v4, 4, v4")
            A("s_mul_i32 s6, s4, 1280")
            srd(A, 12, 36, 37, 6, 1280)
            A("s_waitcnt lgkmcnt(0)")
            A("v_readfirstlane_b32 s43, v5")
            A("s_cmp_lg_u32 s43, 31"); A("s_cbranch_scc1 L_aux_done")
            A("s_cmp_ge_u32 s42, 3"); A("s_cbranch_scc1 L_aux_done")
            A("buffer_load_dwordx4 v[72:75], v4, s[8:11], 0 offen sc1")
            A("s_waitcnt vmcnt(0)")
            for k in range(2):
                A(f"v_lshlrev_b32 v76, 16, v{XB+2+k}"); A(f"v_and_b32 v77, 0xffff0000, v{XB+2+k}")
                A(f"v_add_f32 v{72+2*k}, v{72+2*k}, v76"); A(f"v_add_f32 v{73+2*k}, v{73+2*k}, v77")
                A(f"v_lshlrev_b32 v76, 16, v{XB+k}"); A(f"v_and_b32 v77, 0xffff0000, v{XB+k}")
                A(f"v_add_f32 v{72+2*k}, v{72+2*k}, v76"); A(f"v_add_f32 v{73+2*k}, v{73+2*k}, v77")
            A("v_cvt_pk_bf16_f32 v72, v72, v73"); A("v_cvt_pk_bf16_f32 v73, v74, v75")
            A("buffer_store_dwordx2 v[72:73], v7, s[12:15], 0 offen")
    else:
        NG = 8 if tail2 else 4
        SPW = 32 // NG
        widx = "s3" if tail2 else "s42"
        A("v_lshlrev_b32 v4, 4, v0")
        A("s_cmp_lg_u32 s3, 4"); A("s_cbranch_scc1 L_wait_flag")
        for i in range(3):
            for w in range(4):
                v = BUF + 16 * i + 4 * w
                A(f"ds_read_b128 v[{v}:{v+3}], v4 offset:{L_OUTP + w*2560 + i*1024}")
        SB = 1280 if sl16 else 2560
        A(f"s_mul_i32 s6, s66, {SB}")
        srd(A, 8, 40, 41, 6, SB)
        if sl16: A("v_lshlrev_b32 v5, 3, v0")
        for i in range(3):
            A(f"s_waitcnt lgkmcnt({8-4*i})")
            v = BUF + 16 * i
            for k in range(4):
                A(f"v_add_f32 v{v+k}, v{v+k}, v{v+4+k}"); A(f"v_add_f32 v{v+8+k}, v{v+8+k}, v{v+12+k}"); A(f"v_add_f32 v{v+k}, v{v+k}, v{v+8+k}")
            if sl16:
                A(f"v_cvt_pk_bf16_f32 v{v+4}, v{v}, v{v+1}"); A(f"v_cvt_pk_bf16_f32 v{v+5}, v{v+2}, v{v+3}")
                A(f"buffer_store_dwordx2 v[{v+4}:{v+5}], v5, s[8:11], 0 offen offset:{i*512} sc1")
            else:
                A(f"buffer_store_dwordx4 v[{v}:{v+3}], v4, s[8:11], 0 offen offset:{i*1024} sc1")
        A("s_lshl_b32 s6, s4, 5")
        A("v_mov_b32 v6, s6"); A("v_mov_b32 v7, 1")
        A("s_waitcnt vmcnt(0)")
        P.stamp()
        A("s_mov_b64 s[46:47], exec"); A("s_mov_b64 exec, 1")
        A("global_atomic_add v5, v6, v7, s[38:39] sc0")
        A("s_waitcnt vmcnt(0)")
        A("v_mov_b32 v6, 0")
        A(f"ds_write_b32 v6, v5 offset:{L_FLAG}")
        A("s_mov_b64 exec, s[46:47]")
        A("s_waitcnt lgkmcnt(0)")
        A.label("L_wait_flag")
        P.stamp()
        A("s_barrier")
        A("v_mov_b32 v6, 0")
        A(f"ds_read_b32 v5, v6 offset:{L_FLAG}")
        A(f"s_mul_i32 s6, s4, {32*SB}"); A(f"s_mul_i32 s43, {widx}, {SPW*SB}"); A("s_add_u32 s6, s6, s43")
        srd(A, 8, 40, 41, 6, SPW * SB)
        if sl16: A("v_lshlrev_b32 v7, 3, v0")
        A("s_waitcnt lgkmcnt(0)")
        A("v_readfirstlane_b32 s43, v5")
        if warm:
            A("s_cmp_eq_u32 s43, 31"); A("s_cselect_b32 s10, s10, 0"); A("s_cselect_b32 s57, 1280, 0")
        else:
            A("s_cmp_lg_u32 s43, 31"); A("s_cbranch_scc1 L_aux_done")
        A.vm = []
        for i in range(3):
            for sl in range(SPW):
                v = BUF + (i * SPW + sl) * 4
                if i == 2 and sl == 0: A("s_mov_b32 exec_hi, 0")
                if sl == 0: so = "0"
                else:
                    A(f"s_mov_b32 s45, {sl*SB}"); so = "s45"
                if sl16:
                    A.issue(("g", i, sl), f"buffer_load_dwordx2 v[{v}:{v+1}], v7, s[8:11], {so} offen offset:{i*512} sc1")
                else:
                    A.issue(("g", i, sl), f"buffer_load_dwordx4 v[{v}:{v+3}], v4, s[8:11], {so} offen offset:{i*1024} sc1")
        A("s_mov_b32 exec_hi, -1")
        A(f"s_mul_i32 s43, {widx}, 2560"); A("v_add_u32 v6, s43, v4")
        LF = L_F if tail2 else L_OUTP
        for i in range(3):
            A.wait(("g", i, SPW - 1))
            v = BUF + i * SPW * 4
            if sl16:
                for sl in range(SPW):
                    q = v + 4 * sl
                    A(f"v_lshlrev_b32 v{q+2}, 16, v{q+1}"); A(f"v_and_b32 v{q+3}, 0xffff0000, v{q+1}")
                    A(f"v_and_b32 v{q+1}, 0xffff0000, v{q}"); A(f"v_lshlrev_b32 v{q}, 16, v{q}")
            n = SPW
            stride = 4
            while n > 1:
                for p in range(n // 2):
                    for k in range(4):
                        A(f"v_add_f32 v{v+2*p*stride+k}, v{v+2*p*stride+k}, v{v+(2*p+1)*stride+k}")
                n //= 2; stride *= 2
            if i == 2: A("s_mov_b32 exec_hi, 0")
            A(f"ds_write_b128 v6, v[{v}:{v+3}] offset:{LF + i*1024}")
        A("s_mov_b32 exec_hi, -1")
        A("s_waitcnt lgkmcnt(0)")
        P.stamp()
        A("s_barrier")
        A("s_cmp_lt_u32 s3, 4"); A("s_cbranch_scc1 L_aux_done")
        A("s_lshl_b32 s43, s42, 6"); A("v_add_u32 v4, s43, v0")
        A("v_cmp_gt_u32 vcc, 160, v4")
        A("v_lshlrev_b32 v5, 3, v4")
        A("v_lshlrev_b32 v4, 4, v4")
        A("s_and_saveexec_b64 s[46:47], vcc")
        A("s_cbranch_execz L_aux_done")
        for w in range(NG): A(f"ds_read_b128 v[{BUF+4*w}:{BUF+3+4*w}], v4 offset:{LF + w*2560}")
        A("s_mul_i32 s6, s4, 1280")
        srd(A, 8, 36, 37, 6, "s57" if warm else 1280)
        A("s_waitcnt lgkmcnt(0)")
        n = NG; stride = 4
        while n > 1:
            for p in range(n // 2):
                for k in range(4):
                    A(f"v_add_f32 v{BUF+2*p*stride+k}, v{BUF+2*p*stride+k}, v{BUF+(2*p+1)*stride+k}")
            n //= 2; stride *= 2
        for k in range(2):
            A(f"v_lshlrev_b32 v76, 16, v{XB+2+k}"); A(f"v_and_b32 v77, 0xffff0000, v{XB+2+k}")
            A(f"v_add_f32 v{BUF+2*k}, v{BUF+2*k}, v76"); A(f"v_add_f32 v{BUF+1+2*k}, v{BUF+1+2*k}, v77")
            A(f"v_lshlrev_b32 v76, 16, v{XB+k}"); A(f"v_and_b32 v77, 0xffff0000, v{XB+k}")
            A(f"v_add_f32 v{BUF+2*k}, v{BUF+2*k}, v76"); A(f"v_add_f32 v{BUF+1+2*k}, v{BUF+1+2*k}, v77")
        A(f"v_cvt_pk_bf16_f32 v72, v{BUF}, v{BUF+1}"); A(f"v_cvt_pk_bf16_f32 v73, v{BUF+2}, v{BUF+3}")
        A("buffer_store_dwordx2 v[72:73], v5, s[8:11], 0 offen")
    A.label("L_aux_done")
    P.stamp()
    if prof and tail2:
        A("s_cmp_lt_u32 s3, 4"); A("s_cbranch_scc1 L_end")
    P.flush()
    A.label("L_end")
    A("s_endpgm")
    out += A.L
    kernels = [(kname, 256, 102)]
    if not fused:
        B = Asm()
        out.append(".globl reduce_kernel"); out.append(".p2align 8"); out.append(".type reduce_kernel,@function")
        B.label("reduce_kernel")
        B("s_cmp_ge_u32 s2, 160"); B("s_cbranch_scc1 R_end")
        B("s_load_dwordx2 s[4:5], s[0:1], 0")
        B("s_load_dwordx4 s[8:11], s[0:1], 72")
        B("s_load_dwordx2 s[6:7], s[0:1], 96")
        B("s_mul_hi_u32 s12, s2, 0xccccccd")
        B("s_mul_i32 s13, s12, 20"); B("s_sub_u32 s13, s2, s13")
        B("v_and_b32 v1, 7, v0"); B("v_lshrrev_b32 v2, 3, v0")
        B("v_mul_u32_u24 v3, 10240, v2"); B("v_lshl_add_u32 v3, v1, 4, v3")
        B("s_lshl_b32 s14, s13, 7"); B("v_add_u32 v3, s14, v3")
        B("s_mul_i32 s15, s12, 81920")
        B("s_waitcnt lgkmcnt(0)")
        B("s_add_u32 s16, s6, s15"); B("s_addc_u32 s17, s7, 0"); B("s_mov_b32 s18, 81920"); B("s_mov_b32 s19, 0x20000")
        B("s_mov_b32 s20, 2560"); B("s_mov_b32 s21, 5120"); B("s_mov_b32 s22, 7680")
        B("buffer_load_dwordx4 v[4:7], v3, s[16:19], 0 offen")
        B("buffer_load_dwordx4 v[8:11], v3, s[16:19], s20 offen")
        B("buffer_load_dwordx4 v[12:15], v3, s[16:19], s21 offen")
        B("buffer_load_dwordx4 v[16:19], v3, s[16:19], s22 offen")
        B("s_mul_i32 s15, s12, 1280"); B("s_lshl_b32 s14, s13, 6")
        B("v_lshlrev_b32 v20, 3, v1"); B("v_add_u32 v20, s14, v20")
        B("s_add_u32 s24, s4, s15"); B("s_addc_u32 s25, s5, 0"); B("s_mov_b32 s26, 1280"); B("s_mov_b32 s27, 0x20000")
        B("s_mov_b32 s28, s8"); B("s_mov_b32 s29, s9"); B("s_mov_b32 s30, 1280"); B("s_mov_b32 s31, 0x20000")
        B("s_add_u32 s32, s10, s15"); B("s_addc_u32 s33, s11, 0"); B("s_mov_b32 s34, 1280"); B("s_mov_b32 s35, 0x20000")
        B("buffer_load_dwordx2 v[22:23], v20, s[24:27], 0 offen")
        B("buffer_load_dwordx2 v[24:25], v20, s[28:31], 0 offen")
        B("s_waitcnt vmcnt(2)")
        for k in range(4):
            B(f"v_add_f32 v{4+k}, v{4+k}, v{8+k}"); B(f"v_add_f32 v{12+k}, v{12+k}, v{16+k}"); B(f"v_add_f32 v{4+k}, v{4+k}, v{12+k}")
        B.nop(2)
        for k in range(4): B(f"v_add_f32_dpp v{4+k}, v{4+k}, v{4+k} row_ror:8 row_mask:0xf bank_mask:0xf")
        for sw in ("v_permlane16_swap_b32", "v_permlane32_swap_b32"):
            for k in range(4): B(f"v_mov_b32 v{8+k}, v{4+k}")
            B.nop(2)
            for k in range(4): B(f"{sw} v{4+k}, v{8+k}")
            B.nop(1)
            for k in range(4): B(f"v_add_f32 v{4+k}, v{4+k}, v{8+k}")
        B("s_waitcnt vmcnt(0)")
        for k in range(2):
            B(f"v_lshlrev_b32 v8, 16, v{22+k}"); B(f"v_and_b32 v9, 0xffff0000, v{22+k}")
            B(f"v_lshlrev_b32 v10, 16, v{24+k}"); B(f"v_and_b32 v11, 0xffff0000, v{24+k}")
            B(f"v_add_f32 v{4+2*k}, v{4+2*k}, v10"); B(f"v_add_f32 v{5+2*k}, v{5+2*k}, v11")
            B(f"v_add_f32 v{4+2*k}, v{4+2*k}, v8"); B(f"v_add_f32 v{5+2*k}, v{5+2*k}, v9")
        B("v_cvt_pk_bf16_f32 v4, v4, v5"); B("v_cvt_pk_bf16_f32 v5, v6, v7")
        B("v_cmp_gt_u32 vcc, 8, v0"); B("s_and_saveexec_b64 s[36:37], vcc")
        B("buffer_store_dwordx2 v[4:5], v20, s[32:35], 0 offen")
        B.label("R_end"); B("s_endpgm")
        out += B.L
        kernels.append(("reduce_kernel", 32, 48))
    out.append('.section .rodata,"a"')
    for kn, nv, ns in kernels:
        out += [".p2align 6", f".amdhsa_kernel {kn}", f"  .amdhsa_next_free_vgpr {nv}", f"  .amdhsa_next_free_sgpr {ns}",
                f"  .amdhsa_accum_offset {nv}", "  .amdhsa_group_segment_fixed_size 0", "  .amdhsa_kernarg_size 104",
                "  .amdhsa_user_sgpr_count 2", "  .amdhsa_user_sgpr_kernarg_segment_ptr 1", "  .amdhsa_system_sgpr_workgroup_id_x 1",
                "  .amdhsa_float_denorm_mode_32 3", ".end_amdhsa_kernel"]
    return "\n".join(out) + "\n"

if __name__ == "__main__":
    kw = eval("dict(" + (sys.argv[2] if len(sys.argv) > 2 else "") + ")")
    open(sys.argv[1], "w").write(gen(**kw))
```

```python
import struct, sys

NAME = "parallel_sum__gqa_block_cached__mixer_channel_mlp__decode"
HEADER = open("cdna_kernels/" + NAME + ".s.ref").read().split("; Override launch geometry")[0]

def f2u(x): return struct.unpack("<I", struct.pack("<f", x))[0]
SCALE = f2u(128 ** -0.5)
LOG2E = f2u(1.4426950408889634)
INV640 = f2u(1.0 / 640)
EPS = f2u(1e-5)

L_XN = 0
L_Y = 5120
L_QP = 6400
L_T = 8448
L_HV = 8960
L_OP = 9216
L_ML = 11264
L_OUTP = 11520
L_FLAG = 21760
L_PROG = 22528
L_MODE = 22544
L_F = 22784
LDS_BYTES = 22784 + 8 * 2560 + 1024

class Asm:
    def __init__(self):
        self.L = []
        self.vm = []
        self.landed = set()
        self.nlabel = 0
    def __call__(self, s): self.L.append("    " + s)
    def label(self, s): self.L.append(s + ":")
    def c(self, s): self.L.append("    ; " + s)
    def issue(self, tag, ins):
        self(ins); self.vm.append(tag)
        assert len(self.vm) <= 63, "too many outstanding vmem ops"
    def wait(self, tag):
        if tag not in self.vm: return
        i = self.vm.index(tag)
        n = len(self.vm) - 1 - i
        self(f"s_waitcnt vmcnt({n})")
        self.vm = self.vm[i + 1:]
    def waitall(self):
        if self.vm: self("s_waitcnt vmcnt(0)")
        self.vm = []
    def nop(self, n):
        while n > 0:
            k = min(n, 16); self(f"s_nop {k-1}"); n -= k

def allreduce(A, op, t, u):
    for ror in (8, 4, 2, 1):
        A.nop(2)
        A(f"v_{op}_f32_dpp v{t}, v{t}, v{t} row_ror:{ror} row_mask:0xf bank_mask:0xf")
    for sw in ("v_permlane16_swap_b32", "v_permlane32_swap_b32"):
        A(f"v_mov_b32 v{u}, v{t}")
        A.nop(2)
        A(f"{sw} v{t}, v{u}")
        A.nop(1)
        A(f"v_{op}_f32 v{t}, v{t}, v{u}")

def bf16r(A, d, s):
    A(f"v_cvt_pk_bf16_f32 v{d}, v{s}, v{s}")
    A(f"v_and_b32 v{d}, 0xffff0000, v{d}")

def layernorm(A, X, F, T, OUT):
    if isinstance(T, int): T = (T, T+1, T+2, T+3)
    for k in range(5):
        A(f"v_lshlrev_b32 v{F+2*k}, 16, v{X+k}")
        A(f"v_and_b32 v{F+2*k+1}, 0xffff0000, v{X+k}")
    t, u, m, r = T
    A(f"v_add_f32 v{t}, v{F}, v{F+1}")
    for k in range(2, 10): A(f"v_add_f32 v{t}, v{t}, v{F+k}")
    allreduce(A, "add", t, u)
    A(f"v_mul_f32 v{m}, {INV640:#x}, v{t}")
    A(f"v_sub_f32 v{u}, v{F}, v{m}")
    A(f"v_mul_f32 v{t}, v{u}, v{u}")
    for k in range(1, 10):
        A(f"v_sub_f32 v{u}, v{F+k}, v{m}")
        A(f"v_fmac_f32 v{t}, v{u}, v{u}")
    allreduce(A, "add", t, u)
    A(f"v_mul_f32 v{t}, {INV640:#x}, v{t}")
    bf16r(A, t, t)
    A(f"v_add_f32 v{t}, {EPS:#x}, v{t}")
    bf16r(A, t, t)
    A(f"v_sqrt_f32 v{t}, v{t}")
    A.nop(1)
    bf16r(A, t, t)
    A(f"v_rcp_f32 v{r}, v{t}")
    bf16r(A, m, m)
    for k in range(5):
        A(f"v_sub_f32 v{F+2*k}, v{F+2*k}, v{m}")
        A(f"v_sub_f32 v{F+2*k+1}, v{F+2*k+1}, v{m}")
        A(f"v_cvt_pk_bf16_f32 v{u}, v{F+2*k}, v{F+2*k+1}")
        A(f"v_lshlrev_b32 v{F+2*k}, 16, v{u}")
        A(f"v_and_b32 v{F+2*k+1}, 0xffff0000, v{u}")
        A(f"v_mul_f32 v{F+2*k}, v{F+2*k}, v{r}")
        A(f"v_mul_f32 v{F+2*k+1}, v{F+2*k+1}, v{r}")
        A(f"v_cvt_pk_bf16_f32 v{OUT+k}, v{F+2*k}, v{F+2*k+1}")

def srd(A, d, lo, hi, off_s, size):
    if off_s is None:
        A(f"s_mov_b32 s{d}, s{lo}"); A(f"s_mov_b32 s{d+1}, s{hi}")
    else:
        A(f"s_add_u32 s{d}, s{lo}, s{off_s}"); A(f"s_addc_u32 s{d+1}, s{hi}, 0")
    A(f"s_mov_b32 s{d+2}, {size}")
    A(f"s_mov_b32 s{d+3}, 0x20000")

class Prof:
    def __init__(self, A, on, reg): self.A, self.on, self.reg, self.n = A, on, reg, 0
    def stamp(self):
        if not self.on: return
        A = self.A
        A("s_memrealtime s[92:93]"); A("s_waitcnt lgkmcnt(0)")
        A(f"v_writelane_b32 v{self.reg}, s92, {self.n}"); self.n += 1
    def flush(self):
        if not self.on: return
        A = self.A
        A("s_getreg_b32 s92, hwreg(HW_REG_HW_ID)"); A(f"v_writelane_b32 v{self.reg}, s92, 62")
        A("s_mov_b64 exec, -1")
        A("s_lshl_b32 s94, s2, 3"); A("s_add_u32 s94, s94, s3"); A("s_lshl_b32 s94, s94, 8"); A("s_add_u32 s94, s94, 0x2000000")
        A(f"v_lshlrev_b32 v1, 2, v0"); A("v_add_u32 v1, s94, v1")
        A(f"global_store_dword v1, v{self.reg}, s[40:41]")

def gen(N=5, C=8, S0=24, R=32, catch=2, Ntail=None, tail_from=None, NA=4, wpol="", kvpol="nt", prof=0, fused=0, prio=1, hmap=1, nomlp=0, nowo=0, NW=8, diag=0, nostream=0, WQ0=16, NQ=0, bar0=0, K0=5, dyn=0, NH=8, dyn_from=32, CK0=4, CKS=4, TH=(128,192,232), BO=(1,2,3), CKEXIT=30, sleep=3, even_boost=(16,20), T2=720, TK=226, TV=217, MARG=0, wmask=0, rotm=0, CV=None, tail2=0, rg=32, sl16=0, warm=0, earlyml=1, rotx=0, ktest=0, fin1=1, swapkv=0, zlate=0, NBE=3, LK=26, BS0=16):
    A = Asm()
    P = Prof(A, prof, 63)
    kname = NAME + "_kernel"
    out = []
    out.append(HEADER.rstrip("\n"))
    if fused:
        out.append(f"; @launch grid=(256,1,1) block=(512,1,1) lds={LDS_BYTES}")
    else:
        out.append(f"; @launch kernel={kname} grid=(256,1,1) block=(512,1,1) lds={LDS_BYTES}")
        out.append(f"; @launch kernel=reduce_kernel grid=(160,1,1) block=(64,1,1) lds=0")
    out.append('.amdgcn_target "amdgcn-amd-amdhsa--gfx950"')
    out.append(".text"); out.append(f".globl {kname}"); out.append(".p2align 8"); out.append(f".type {kname},@function")
    A.label(kname)
    A("s_cmp_ge_u32 s2, 256"); A("s_cbranch_scc1 L_end")
    A("s_load_dwordx16 s[16:31], s[0:1], 0")
    A("s_load_dwordx8 s[32:39], s[0:1], 64")
    A("s_load_dwordx2 s[40:41], s[0:1], 96")
    A("v_lshrrev_b32 v1, 6, v0")
    A("v_and_b32 v0, 63, v0")
    A("v_readfirstlane_b32 s3, v1")
    A("v_and_b32 v2, 15, v0")
    A("v_lshrrev_b32 v3, 4, v0")
    if hmap == 0:
        A("s_lshr_b32 s4, s2, 5")
        A("s_and_b32 s5, s2, 31")
    else:
        A("s_and_b32 s5, s2, 7"); A("s_lshl_b32 s5, s5, 2"); A("s_bfe_u32 s4, s2, 0x20003"); A("s_add_u32 s5, s5, s4")
        A("s_lshr_b32 s4, s2, 5")
    A("s_lshl_b32 s66, s4, 5"); A("s_add_u32 s66, s66, s5")
    if prof: A("v_mov_b32 v63, 0")
    A("s_cmp_ge_u32 s3, 4"); A("s_cbranch_scc1 L_aux")
    vK, vV = 4, 5
    MASK = 8
    AT = 12
    D = 20
    O = 28
    S = 32
    TM = 48
    BQ = 64
    RING = 128
    assert R * 4 + RING <= 256
    if prio: A(f"s_setprio {prio}")
    A("v_bfe_u32 v6, v2, 1, 1"); A("v_lshlrev_b32 v6, 10, v6")
    A("v_lshrrev_b32 v7, 2, v2"); A("v_lshl_add_u32 v6, v7, 8, v6")
    A("v_and_b32 v7, 1, v2"); A("v_lshl_add_u32 v6, v7, 6, v6")
    A(f"v_lshl_add_u32 v{vK}, v3, 4, v6")
    A(f"v_lshlrev_b32 v{vV}, 4, v0")
    if ktest == 1: A(f"v_lshlrev_b32 v{vK}, 4, v0")
    if ktest == 2:
        A("v_bfe_u32 v6, v0, 2, 2"); A("v_lshlrev_b32 v6, 8, v6"); A("v_lshl_add_u32 v6, v3, 6, v6"); A("v_and_b32 v7, 3, v0")
        A(f"v_lshl_add_u32 v{vK}, v7, 4, v6")
    A("s_lshl_b32 s6, s66, 20"); A("s_lshr_b32 s7, s66, 12")
    if CV is None: CV = C
    A(f"s_mul_i32 s42, s3, {C*1024}")
    if rotx:
        rotm = 1
        if rotx == 2: A("s_lshr_b32 s45, s2, 5"); A("s_lshl_b32 s45, s45, 2")
        if rotx == 3: A("s_lshr_b32 s45, s2, 5"); A("s_lshl_b32 s45, s45, 2"); A("s_add_u32 s45, s45, s2")
        if rotx == 5: A("s_and_b32 s45, s2, 7"); A("s_lshl_b32 s45, s45, 2")
        if rotx == 6: A("s_lshr_b32 s45, s2, 3")
        if rotx == 7: A("s_and_b32 s45, s2, 7")
        if rotx == 8: A("s_lshr_b32 s45, s2, 3"); A("s_and_b32 s45, s45, 3"); A("s_lshl_b32 s45, s45, 3")
        A(f"s_and_b32 s45, s45, {1024 // rg - 1}"); A(f"s_mul_i32 s45, s45, {rg*1024}")
        A("s_add_u32 s42, s42, s45")
    elif rotm:
        A(f"s_mul_i32 s45, s2, {rotm}"); A(f"s_and_b32 s45, s45, {1024 // rg - 1}"); A(f"s_mul_i32 s45, s45, {rg*1024}")
        A("s_add_u32 s42, s42, s45")
    A("s_waitcnt lgkmcnt(0)")
    kp, vp = (20, 18) if swapkv else (18, 20)
    A(f"s_add_u32 s8, s{kp}, s6"); A(f"s_addc_u32 s9, s{kp+1}, s7"); A("s_mov_b32 s10, 0x100000"); A("s_mov_b32 s11, 0x20000")
    A(f"s_add_u32 s12, s{vp}, s6"); A(f"s_addc_u32 s13, s{vp+1}, s7"); A("s_mov_b32 s14, 0x100000"); A("s_mov_b32 s15, 0x20000")
    P.stamp()
    if dyn == 4: A("s_memrealtime s[70:71]")
    cur_page = [None]
    def kv_load(n):
        isv = n >= 256; m = n % 256
        vi, wi = m // C, m % C
        byte = vi * 4 * C * 1024 + (wi // 2) * 2048 + ((wi % 2) * (1024 if (isv or ktest) else 128))
        page, imm = byte // 4096 * 4096, byte % 4096
        if cur_page[0] != page:
            A(f"s_add_u32 s43, s42, {page}"); cur_page[0] = page
            if rotm: A("s_and_b32 s43, s43, 0xfffff")
        v = RING + (n % R) * 4
        A.issue(("kv", n), f"buffer_load_dwordx4 v[{v}:{v+3}], v{vV if isv else vK}, s[{'12:15' if isv else '8:11'}], s43 offen offset:{imm} {kvpol}")
    def win(n):
        if dyn and n >= dyn_from: return NH
        if Ntail is not None and n >= tail_from: return Ntail
        return N
    issued = [0]
    def pace():
        n = issued[0]
        if n >= 512: return False
        w = win(n)
        if dyn and n >= dyn_from:
            lab = f"Lw{n}"
            A(f"s_cbranch_vccnz {lab}"); A(f"s_waitcnt vmcnt({N-1})"); A.label(lab)
            A.wait(("kv", n - NH))
        elif n - w >= 0: A.wait(("kv", n - w))
        kv_load(n); issued[0] += 1
        if diag == 5 and n < 44: P.stamp()
        return True
    if nostream:
        A("s_barrier"); A("s_barrier"); A("s_endpgm")
    for _ in range(K0 if bar0 else N): pace()
    A("v_and_b32 v6, 1, v2"); A("v_lshlrev_b32 v6, 4, v6")
    A("v_mov_b32 v7, 0xffff"); A("v_lshlrev_b32 v7, v6, v7")
    A("v_bfe_u32 v6, v2, 1, 2")
    for r in range(4):
        A(f"v_cmp_eq_u32 vcc, {r}, v6"); A.nop(2); A(f"v_cndmask_b32 v{MASK+r}, 0, v7, vcc")
    A("v_lshrrev_b32 v6, 1, v2")
    for t in range(8): A(f"v_cmp_eq_u32 s[{48+2*t}:{49+2*t}], {t}, v6")
    A("v_and_b32 v6, 1, v2"); A("v_cmp_eq_u32 s[64:65], 0, v6")
    A(f"v_lshl_add_u32 v6, v6, 2, v3"); A(f"v_lshlrev_b32 v6, 5, v6")
    if bar0:
        A("s_barrier")
        P.stamp()
    while issued[0] < S0:
        pace()
        if diag == 3: P.stamp()
    P.stamp()
    A("s_barrier")
    P.stamp()
    for a in range(4):
        for half in range(2):
            for q in range(2):
                v = BQ + a * 16 + half * 8 + q * 4
                A(f"ds_read_b128 v[{v}:{v+3}], v6 offset:{L_QP + a*512 + half*256 + q*16}")
    if issued[0] < R: pace()
    A("s_waitcnt lgkmcnt(0)")
    for k in range(16):
        A(f"v_add_f32 v{TM-16+k}, v{BQ+k}, v{BQ+16+k}")
        A(f"v_add_f32 v{BQ+32+k}, v{BQ+32+k}, v{BQ+48+k}")
    if issued[0] < R: pace()
    for k in range(16):
        A(f"v_add_f32 v{S+k}, v{S+k}, v{BQ+32+k}")
    for k in range(8):
        A(f"v_cvt_pk_bf16_f32 v{TM+k}, v{S+2*k}, v{S+2*k+1}")
    if issued[0] < R: pace()
    for t in range(8):
        for k in range(8):
            A(f"v_cndmask_b32 v{BQ+t*8+k}, 0, v{TM+k}, s[{48+2*t}:{49+2*t}]")
        if t % 2 == 1 and issued[0] < R: pace()
    P.stamp()
    if dyn:
        A("s_mov_b64 vcc, 0")
        if dyn == 5:
            A(f"s_lshr_b32 s67, {wmask}, s3"); A("s_bitcmp1_b32 s67, 0"); A("s_cselect_b64 vcc, -1, 0")
        A("s_lshl_b32 s67, s3, 2"); A(f"v_mov_b32 v{TM+12}, s67"); A(f"v_mov_b32 v{TM+14}, 0")
    deferred = []
    unit = [0]
    def run_deferred(force=False):
        k = 0
        while k < len(deferred):
            if force or deferred[k][0] <= unit[0]:
                deferred.pop(k)[1]()
            else: k += 1
    def merge(t16):
        d = D + (t16 % 2) * 4
        a, b = TM + 8, TM + 9
        A(f"v_cndmask_b32 v{a}, v{d+3}, v{d}, s[64:65]")
        A(f"v_cndmask_b32 v{b}, v{d+1}, v{d+2}, s[64:65]")
        A.nop(2)
        A(f"v_add_f32_dpp v{a}, v{b}, v{a} quad_perm:[1,0,3,2] row_mask:0xf bank_mask:0xf")
        bf16r(A, a, a)
        A(f"v_mul_f32 v{a}, {SCALE:#x}, v{a}")
        bf16r(A, S + t16, a)
    def hooks(step, cc):
        if not dyn or dyn == 5: return
        if dyn == 4:
            if cc == 2: A("s_memrealtime s[68:69]")
            if cc == 6 and step >= 2:
                tref = T2 + (min(step, 16) - 2) * TK + max(step - 16, 0) * TV + MARG
                A("s_waitcnt lgkmcnt(0)"); A("s_sub_u32 s68, s68, s70")
                A(f"s_cmp_gt_u32 s68, {tref}"); A("s_cselect_b64 vcc, -1, 0")
            return
        if cc == 2 and dyn == 7 and step == BS0 - 1:
            A(f"ds_read_b32 v{TM+13}, v{TM+14} offset:{L_MODE}")
        if cc == 2 and dyn not in (2, 6, 7):
            A(f"v_mov_b32 v{TM+11}, {step}")
            A(f"ds_write_b32 v{TM+12}, v{TM+11} offset:{L_PROG}")
            if dyn == 3: A(f"ds_read_b32 v{TM+13}, v{TM+14} offset:{L_MODE}")
        if cc == 6:
            if dyn == 3:
                A("s_waitcnt lgkmcnt(0)"); A(f"v_readfirstlane_b32 s67, v{TM+13}")
                A("s_cmp_lg_u32 s67, 0"); A("s_cselect_b64 vcc, -1, 0")
            elif dyn == 2:
                if step == even_boost[0]: A("s_bitcmp0_b32 s2, 0"); A("s_cselect_b64 vcc, -1, 0")
                if step == even_boost[1]: A("s_mov_b64 vcc, 0")
            elif dyn == 7:
                if step == BS0 - 1:
                    A("s_waitcnt lgkmcnt(0)"); A(f"v_readfirstlane_b32 s72, v{TM+13}")
                if BS0 <= step <= BS0 + 8:
                    A(f"s_cmp_gt_u32 s72, {step - BS0}"); A("s_cselect_b64 vcc, -1, 0")
            elif dyn == 6:
                if step == even_boost[0]:
                    A("s_getreg_b32 s67, hwreg(HW_REG_XCC_ID)"); A("s_bitcmp0_b32 s67, 0"); A("s_cselect_b64 vcc, -1, 0")
                if step == even_boost[1]: A("s_mov_b64 vcc, 0")
    def k_consume(c):
        hooks(c // 16, c % 16)
        if diag == 4 and c % 32 == 0 and c: P.stamp()
        t16, tt, half = c // 16, (c % 16) // 2, c % 2
        d = D + (t16 % 2) * 4
        v = RING + (c % R) * 4
        A.wait(("kv", c))
        b = BQ + tt * 8 + half * 4
        cs = "0" if c % 16 == 0 else f"v[{d}:{d+3}]"
        A(f"v_mfma_f32_16x16x32_bf16 v[{d}:{d+3}], v[{v}:{v+3}], v[{b}:{b+3}], {cs}")
        if c % 16 == 15: deferred.append((unit[0] + 9, lambda t=t16: merge(t)))
    def pexp(t16):
        a = TM + 10
        A(f"v_sub_f32 v{a}, v{S+t16}, v{TM}")
        A(f"v_mul_f32 v{a}, {LOG2E:#x}, v{a}")
        A(f"v_exp_f32 v{a}, v{a}")
        A.nop(1)
        A(f"v_add_f32 v{TM+1}, v{TM+1}, v{a}")
        A(f"v_cvt_pk_bf16_f32 v{S+t16}, v{a}, v{a}")
    def abuild(c):
        at = AT + (c % 2) * 4
        for r in range(4):
            A(f"v_and_b32_dpp v{at+r}, v{S + c//16}, v{MASK+r} row_newbcast:{c%16} row_mask:0xf bank_mask:0xf")
    def v_consume(c):
        hooks(16 + c // 16, c % 16)
        if diag == 4 and c % 64 == 0 and c: P.stamp()
        at = AT + (c % 2) * 4
        v = RING + ((256 + c) % R) * 4
        if c + 1 < 256: abuild(c + 1)
        else: A.nop(2)
        A.wait(("kv", 256 + c))
        cs = "0" if c == 0 else f"v[{O}:{O+3}]"
        A(f"v_mfma_f32_16x16x32_bf16 v[{O}:{O+3}], v[{at}:{at+3}], v[{v}:{v+3}], {cs}")
        if c % 16 == 4 and c // 16 + 1 < 16: pexp(c // 16 + 1)
        if c == 236 and earlyml:
            allreduce(A, "add", TM + 1, TM + 2)
            A("s_lshl_b32 s44, s3, 3"); A("v_mov_b32 v7, s44")
            A(f"v_mov_b32 v{TM+2}, v{TM}"); A(f"v_mov_b32 v{TM+3}, v{TM+1}")
            A("s_mov_b64 exec, 1")
            A(f"ds_write_b64 v7, v[{TM+2}:{TM+3}] offset:{L_ML}")
            A("s_mov_b64 exec, -1")
            A("v_lshlrev_b32 v6, 5, v2"); A("v_lshl_add_u32 v6, v3, 4, v6")
            A("s_lshl_b32 s44, s3, 9"); A("v_add_u32 v6, s44, v6")
    c = 0
    while c < 256:
        can_issue = issued[0] < 512 and issued[0] - R < c
        if can_issue: pace()
        lag = issued[0] - win(max(issued[0]-1,0)) - c
        k = catch if lag > 1 else 1
        for _ in range(k):
            if c < 256:
                k_consume(c); c += 1
                unit[0] += 1; run_deferred()
    A.nop(8)
    run_deferred(force=True)
    P.stamp()
    def pace_ok():
        if issued[0] < 512 and issued[0] - R < 256: pace()
    A(f"v_max3_f32 v{TM}, v{S}, v{S+1}, v{S+2}")
    for k in range(3, 15, 2): A(f"v_max3_f32 v{TM}, v{TM}, v{S+k}, v{S+k+1}")
    A(f"v_max_f32 v{TM}, v{TM}, v{S+15}")
    pace_ok()
    allreduce(A, "max", TM, TM + 2)
    pace_ok()
    A(f"v_mov_b32 v{TM+1}, 0")
    pexp(0)
    A.nop(2)
    abuild(0)
    P.stamp()
    c = 0
    while c < 256:
        can_issue = issued[0] < 512 and issued[0] - R < 256 + c
        if can_issue: pace()
        lag = issued[0] - win(max(issued[0]-1,0)) - (256 + c)
        k = catch if (lag > 1 or issued[0] >= 512) else 1
        for _ in range(k):
            if c < 256:
                v_consume(c); c += 1
    P.stamp()
    if not earlyml:
        allreduce(A, "add", TM + 1, TM + 2)
        A("v_lshlrev_b32 v6, 5, v2"); A("v_lshl_add_u32 v6, v3, 4, v6")
        A("s_lshl_b32 s44, s3, 9"); A("v_add_u32 v6, s44, v6")
        A("s_lshl_b32 s44, s3, 3"); A("v_mov_b32 v7, s44")
        A(f"v_mov_b32 v{TM+2}, v{TM}"); A(f"v_mov_b32 v{TM+3}, v{TM+1}")
        assert (TM + 2) % 2 == 0
        A("s_mov_b32 exec_hi, 0")
        A(f"ds_write_b128 v6, v[{O}:{O+3}] offset:{L_OP}")
        A("s_mov_b32 exec_lo, 1")
        A(f"ds_write_b64 v7, v[{TM+2}:{TM+3}] offset:{L_ML}")
    else:
        A("s_mov_b32 exec_hi, 0")
        A.nop(7)
        A(f"ds_write_b128 v6, v[{O}:{O+3}] offset:{L_OP}")
    A("s_waitcnt lgkmcnt(0)")
    A("s_barrier")
    P.stamp()
    if tail2:
        A("s_mov_b64 exec, -1")
        P.flush()
        A("s_branch L_b3")
    else:
        P.flush()
        A("s_endpgm")
    A.vm = []
    P = Prof(A, prof, 63)
    A.label("L_aux")
    if dyn == 7: A("s_memrealtime s[74:75]")
    SEL = 8
    AT = 16
    DO = 24
    DQ = 44
    X = 48
    F = 53
    T = 4
    PP = 64
    BUF = 96
    A("s_sub_u32 s42, s3, 4")
    A("s_mul_i32 s43, s42, 160"); A("v_mul_u32_u24 v4, 40, v3"); A("v_add_u32 v4, s43, v4")
    A("v_lshlrev_b32 v4, 13, v4"); A("v_lshl_add_u32 v4, v2, 4, v4")
    A("v_lshlrev_b32 v5, 2, v0")
    A("s_mul_i32 s6, s4, 1280"); A("s_lshl_b32 s7, s5, 8")
    A("s_sub_u32 s44, 5242880, s7")
    A("s_waitcnt lgkmcnt(0)")
    if dyn == 7:
        A("s_cmp_lg_u32 s42, 1"); A("s_cbranch_scc1 L_nostart")
        A("s_not_b32 s76, s74"); A("v_mov_b32 v6, s76"); A("v_mov_b32 v7, 0")
        A("s_mov_b64 exec, 1")
        A("global_atomic_umax v7, v6, s[38:39] offset:252")
        A("s_mov_b64 exec, -1")
        A.label("L_nostart")
    srd(A, 8, 16, 17, 6, 1280)
    srd(A, 12, 22, 23, 7, "s44")
    P.stamp()
    for k in range(5):
        A.issue(("x", k), f"buffer_load_dword v{X+k}, v5, s[8:11], 0 offen offset:{k*256}")
    A("s_lshl_b32 s45, s4, 15")
    def wq_load(j):
        v = BUF + 4 * j
        if NQ and j >= NQ: A.wait(("wq", j - NQ))
        A.issue(("wq", j), f"buffer_load_dwordx4 v[{v}:{v+3}], v4, s[12:15], s45 offen {wpol}")
        if j < 39:
            A("s_add_u32 s45, s45, 8192"); A(f"s_cmp_eq_u32 s45, {40*8192}"); A("s_cselect_b32 s45, 0, s45")
    if bar0 == 2: WQ0 = 40
    for j in range(WQ0): wq_load(j)
    if bar0 == 2: A("s_barrier")
    A("v_and_b32 v6, 1, v2")
    A("v_cmp_eq_u32 vcc, 0, v6")
    A("v_mov_b32 v60, 0x01000c0c"); A("v_mov_b32 v61, 0x0c0c0100")
    A("v_cndmask_b32 v60, v60, v61, vcc")
    A("v_mov_b32 v6, 0x03020c0c"); A("v_mov_b32 v61, 0x0c0c0302")
    A("v_cndmask_b32 v61, v6, v61, vcc")
    A("v_bfe_u32 v6, v2, 1, 2"); A("v_mov_b32 v7, 0x0c0c0c0c")
    for r in range(4):
        A(f"v_cmp_eq_u32 vcc, {r}, v6"); A.nop(2)
        A(f"v_cndmask_b32 v{SEL+r}, v7, v60, vcc"); A(f"v_cndmask_b32 v{SEL+4+r}, v7, v61, vcc")
    for k in range(20): A(f"v_mov_b32 v{DO+k}, 0")
    A.wait(("x", 4))
    P.stamp()
    LN = Asm(); layernorm(LN, X, F, (84, 85, 86, 87), X)
    rem = list(range(WQ0, 40)); step = max(1, len(LN.L) // (len(rem) + 1))
    for i, ins in enumerate(LN.L):
        A.L.append(ins)
        if rem and i % step == step - 1: wq_load(rem.pop(0))
    for j in rem: wq_load(j)
    if bar0 == 1: A("s_barrier")
    A("s_mul_i32 s43, s42, 1280")
    A("v_lshlrev_b32 v5, 2, v0"); A("v_add_u32 v5, s43, v5")
    for k in range(5): A(f"ds_write_b32 v5, v{X+k} offset:{L_XN + 256*k}")
    A("s_mul_i32 s43, s42, 1600"); A("v_mul_u32_u24 v5, 80, v3"); A("v_add_u32 v5, s43, v5")
    A("s_lshl_b32 s46, s4, 3")
    A("s_waitcnt lgkmcnt(0)")
    for k in range(10):
        A(f"v_add_u32 v6, s46, v5")
        A(f"ds_read_b64 v[{PP+2*k}:{PP+2*k+1}], v6 offset:{L_XN}")
        A("s_add_u32 s46, s46, 8"); A("s_cmp_eq_u32 s46, 80"); A("s_cselect_b32 s46, 0, s46")
    A("s_waitcnt lgkmcnt(0)")
    P.stamp()
    def abuild_p(preg, par, st):
        at = AT + st * 4
        for r in range(4): A(f"v_perm_b32 v{at+r}, v{preg}, v{preg}, v{SEL + par*4 + r}")
    abuild_p(PP, 0, 0)
    for j in range(40):
        if j + 1 < 40: abuild_p(PP + (j + 1) // 2, (j + 1) % 2, (j + 1) % 2)
        else: A.nop(2)
        A.wait(("wq", j))
        at = AT + (j % 2) * 4; v = BUF + 4 * j
        cs = "0" if j == 0 else f"v[{DQ}:{DQ+3}]"
        A(f"v_mfma_f32_16x16x32_bf16 v[{DQ}:{DQ+3}], v[{at}:{at+3}], v[{v}:{v+3}], {cs}")
    A("v_lshlrev_b32 v6, 5, v2"); A("v_lshl_add_u32 v6, v3, 4, v6")
    A("s_lshl_b32 s43, s42, 9"); A("v_add_u32 v7, s43, v6")
    A.nop(6)
    A("s_mov_b32 exec_hi, 0")
    A(f"ds_write_b128 v7, v[{DQ}:{DQ+3}] offset:{L_QP}")
    A("s_mov_b32 exec_hi, -1")
    if dyn:
        A("v_lshlrev_b32 v6, 2, v0"); A("v_mov_b32 v7, 0")
        A("s_mov_b64 exec, 0xff")
        A(f"ds_write_b32 v6, v7 offset:{L_PROG}")
        A("s_mov_b64 exec, -1")
    A("s_waitcnt lgkmcnt(0)")
    P.stamp()
    A("s_barrier")
    A("s_cmp_lg_u32 s42, 0"); A("s_cbranch_scc1 L_wo")
    A("s_cmp_ge_u32 s5, %d" % (0 if nomlp else 27)); A("s_cbranch_scc1 L_wo")
    layernorm(A, X, F, T, X)
    A("v_lshlrev_b32 v4, 2, v0")
    for k in range(5): A(f"ds_write_b32 v4, v{X+k} offset:{L_Y + 256*k}")
    A("s_lshl_b32 s6, s5, 7")
    A(f"s_sub_u32 s44, {640*3456}, s6")
    srd(A, 8, 28, 29, 6, "s44")
    srd(A, 12, 30, 31, 6, 128)
    A("v_lshlrev_b32 v5, 1, v0")
    A.issue(("b1", 0), f"buffer_load_ushort v{F}, v5, s[12:15], 0 offen")
    A("v_lshrrev_b32 v5, 3, v2"); A("v_lshl_add_u32 v5, v3, 1, v5")
    A("v_mul_u32_u24 v6, 160, v5")
    A(f"s_mov_b32 s45, {80*3456}"); A("v_mul_lo_u32 v5, s45, v5")
    A("v_and_b32 v7, 7, v2"); A("v_lshl_add_u32 v5, v7, 4, v5")
    A("s_waitcnt lgkmcnt(0)")
    PY = BUF
    for k in range(10): A(f"ds_read_b128 v[{PY+4*k}:{PY+4*k+3}], v6 offset:{L_Y + 16*k}")
    RB, RN = BUF + 40, 30
    def w1_load(j):
        v = RB + (j % RN) * 4
        A(f"s_mov_b32 s45, {j*3456}")
        A.issue(("w1", j), f"buffer_load_dwordx4 v[{v}:{v+3}], v5, s[8:11], s45 offen {wpol}")
    for j in range(NW): w1_load(j)
    A("s_waitcnt lgkmcnt(0)")
    abuild_p(PY, 0, 0)
    for j in range(80):
        if j + 1 < 80: abuild_p(PY + (j + 1) // 2, (j + 1) % 2, (j + 1) % 2)
        else: A.nop(2)
        A.wait(("w1", j))
        at = AT + (j % 2) * 4; v = RB + (j % RN) * 4
        cs = "0" if j == 0 else f"v[{DQ}:{DQ+3}]"
        A(f"v_mfma_f32_16x16x32_bf16 v[{DQ}:{DQ+3}], v[{at}:{at+3}], v[{v}:{v+3}], {cs}")
        if j + NW < 80: w1_load(j + NW)
    A("s_mul_i32 s6, s5, 81920")
    A(f"s_sub_u32 s44, {1728*1280}, s6")
    srd(A, 8, 32, 33, 6, "s44")
    A("v_mul_u32_u24 v5, 20480, v3"); A("v_lshl_add_u32 v5, v2, 4, v5")
    def w2_load(n):
        jj, cb = n // 5, n % 5
        v = RB + (n % RN) * 4
        if cb == 0: A(f"s_mov_b32 s45, {jj*1280}")
        A.issue(("w2", n), f"buffer_load_dwordx4 v[{v}:{v+3}], v5, s[8:11], s45 offen offset:{cb*256} {wpol}")
    for n in range(10): w2_load(n)
    A("v_lshrrev_b32 v6, 1, v3"); A("v_lshrrev_b32 v7, 3, v2")
    A("v_cmp_eq_u32 vcc, v6, v7")
    A("v_lshlrev_b32 v6, 8, v6"); A("v_and_b32 v7, 7, v2"); A("v_lshl_add_u32 v6, v7, 5, v6")
    A("v_and_b32 v7, 1, v3"); A("v_lshl_add_u32 v6, v7, 4, v6")
    A("s_and_saveexec_b64 s[46:47], vcc")
    A(f"ds_write_b128 v6, v[{DQ}:{DQ+3}] offset:{L_T}")
    A("s_mov_b64 exec, s[46:47]")
    A("v_lshlrev_b32 v6, 2, v0")
    A("s_waitcnt lgkmcnt(0)")
    A(f"ds_read_b32 v{F+1}, v6 offset:{L_T}"); A(f"ds_read_b32 v{F+2}, v6 offset:{L_T+256}")
    A("s_waitcnt lgkmcnt(0)")
    A(f"v_add_f32 v{F+1}, v{F+1}, v{F+2}")
    bf16r(A, F + 1, F + 1)
    A.wait(("b1", 0))
    A(f"v_lshlrev_b32 v{F}, 16, v{F}")
    A(f"v_add_f32 v{F+1}, v{F+1}, v{F}")
    bf16r(A, F + 1, F + 1)
    x_, u_, e_ = F + 1, F + 2, F + 3
    A(f"v_mul_f32 v{u_}, v{x_}, v{x_}"); A(f"v_mul_f32 v{u_}, v{u_}, v{x_}")
    A(f"v_mov_b32 v{e_}, {f2u(0.044715):#x}"); A(f"v_fma_f32 v{u_}, v{u_}, v{e_}, v{x_}")
    A(f"v_mul_f32 v{u_}, {f2u(-2*0.7978845608028654*1.4426950408889634):#x}, v{u_}")
    A(f"v_exp_f32 v{u_}, v{u_}"); A.nop(1)
    A(f"v_add_f32 v{u_}, 1.0, v{u_}"); A(f"v_rcp_f32 v{u_}, v{u_}"); A.nop(1)
    A(f"v_mul_f32 v{u_}, v{x_}, v{u_}")
    A(f"v_cvt_pk_bf16_f32 v{u_}, v{u_}, v{u_}")
    A("v_lshlrev_b32 v6, 1, v0")
    A(f"ds_write_b16 v6, v{u_} offset:{L_HV}")
    A("v_lshlrev_b32 v6, 5, v3")
    A("s_waitcnt lgkmcnt(0)")
    for k in range(2): A(f"ds_read_b128 v[{PP+4*k}:{PP+4*k+3}], v6 offset:{L_HV + 16*k}")
    A("s_waitcnt lgkmcnt(0)")
    abuild_p(PP, 0, 0)
    nl = 10
    for jj in range(16):
        if jj + 1 < 16: abuild_p(PP + (jj + 1) // 2, (jj + 1) % 2, (jj + 1) % 2)
        else: A.nop(2)
        at = AT + (jj % 2) * 4
        for cb in range(5):
            n = jj * 5 + cb
            A.wait(("w2", n))
            v = RB + (n % RN) * 4; d = DO + 4 * cb
            A(f"v_mfma_f32_16x16x32_bf16 v[{d}:{d+3}], v[{at}:{at+3}], v[{v}:{v+3}], v[{d}:{d+3}]")
            if nl < 80: w2_load(nl); nl += 1
    A.waitall()
    A.label("L_wo")
    A.vm = []
    def zero_init():
        A("s_cmp_lg_u32 s42, 1"); A("s_cbranch_scc1 L_zero_done")
        A("s_mul_i32 s6, s4, 2560"); A("s_mul_i32 s43, s5, 80"); A("s_add_u32 s6, s6, s43"); A("s_add_u32 s6, s6, 0x100000")
        srd(A, 8, 40, 41, 6, 80)
        A("v_lshlrev_b32 v6, 2, v0"); A("v_mov_b32 v7, 0")
        A("buffer_store_dword v7, v6, s[8:11], 0 offen sc1")
        A("s_lshl_b32 s6, s4, 5"); A("v_mov_b32 v6, s6"); A("v_mov_b32 v7, 1")
        A("s_waitcnt vmcnt(0)")
        A("s_mov_b64 exec, 1")
        A("global_atomic_add v6, v7, s[38:39] offset:4")
        A("s_mov_b64 exec, -1")
        A.label("L_zero_done")
    if fused == 3 and not zlate: zero_init()
    A("s_mul_i32 s6, s5, 163840")
    srd(A, 8, 24, 25, 6, 163840)
    A("s_lshl_b32 s43, s42, 5"); A("v_lshlrev_b32 v5, 3, v3"); A("v_add_u32 v5, s43, v5")
    A("v_mul_u32_u24 v5, 1280, v5"); A("v_lshl_add_u32 v5, v2, 4, v5")
    for n in range(0 if nowo else 40):
        jj, cb = n // 5, n % 5
        v = BUF + 4 * n
        if cb == 0: A(f"s_mov_b32 s45, {jj*1280}")
        if n >= NA: A.wait(("wo", n - NA))
        A.issue(("wo", n), f"buffer_load_dwordx4 v[{v}:{v+3}], v5, s[8:11], s45 offen offset:{cb*256} {wpol}")
    if dyn == 3:
        A("s_cmp_lg_u32 s42, 3"); A("s_cbranch_scc1 L_ctrl_done")
        A.waitall() if False else None
        A(f"s_mov_b32 s50, {CK0}"); A("s_mov_b32 s51, 16"); A("s_mov_b32 s52, 0"); A("s_mov_b32 s53, 0")
        A("v_mov_b32 v6, 0"); A("s_mov_b64 exec, 1")
        A.label("L_ctrl")
        A(f"ds_read_b32 v5, v6 offset:{L_PROG}")
        A("s_waitcnt lgkmcnt(0)")
        A("v_readfirstlane_b32 s54, v5")
        A(f"s_cmp_ge_u32 s54, {CKEXIT}"); A("s_cbranch_scc1 L_ctrl_exit")
        A("s_cmp_eq_u32 s52, 0"); A("s_cbranch_scc1 L_ctrl_a")
        A("s_cmp_lt_u32 s54, s53"); A("s_cbranch_scc1 L_ctrl_a")
        A("s_mov_b32 s52, 0"); A("v_mov_b32 v5, 0"); A(f"ds_write_b32 v6, v5 offset:{L_MODE}")
        A.label("L_ctrl_a")
        A("s_cmp_lt_u32 s54, s50"); A("s_cbranch_scc1 L_ctrl_sleep")
        A("v_mov_b32 v7, 1"); A("v_mov_b32 v4, s51")
        A("global_atomic_add v5, v4, v7, s[38:39] sc0")
        A("s_waitcnt vmcnt(0)")
        A("v_readfirstlane_b32 s55, v5")
        A(f"s_add_u32 s50, s50, {CKS}"); A("s_add_u32 s51, s51, 32")
        A("s_mov_b32 s56, 0")
        for th, bo in zip(TH, BO):
            A(f"s_cmp_ge_u32 s55, {th}"); A(f"s_cselect_b32 s56, {bo}, s56")
        A("s_cmp_eq_u32 s56, 0"); A("s_cbranch_scc1 L_ctrl_sleep")
        A(f"ds_read_b32 v5, v6 offset:{L_PROG}")
        A("s_waitcnt lgkmcnt(0)")
        A("v_readfirstlane_b32 s54, v5")
        A("s_add_u32 s53, s54, s56"); A("s_add_u32 s53, s53, 1")
        A("s_mov_b32 s52, 1"); A("v_mov_b32 v5, 1"); A(f"ds_write_b32 v6, v5 offset:{L_MODE}")
        A.label("L_ctrl_sleep")
        A(f"s_sleep {sleep}")
        A("s_branch L_ctrl")
        A.label("L_ctrl_exit")
        A("s_mov_b64 exec, -1")
        A.label("L_ctrl_done")
    if dyn == 7:
        A("s_cmp_lg_u32 s42, 3"); A("s_cbranch_scc1 L_nb_done")
        A("v_mov_b32 v6, 0")
        A("s_mov_b64 exec, 1")
        A("global_load_dword v7, v6, s[38:39] offset:252 sc1")
        A("s_waitcnt vmcnt(0)")
        A("v_readfirstlane_b32 s76, v7")
        A("s_not_b32 s76, s76")
        A("s_sub_u32 s76, s74, s76")
        A("s_min_u32 s76, s76, 300")
        A(f"s_mul_i32 s76, s76, {LK}"); A("s_add_u32 s76, s76, 512"); A("s_lshr_b32 s76, s76, 10")
        A("s_getreg_b32 s77, hwreg(HW_REG_XCC_ID)"); A("s_bitcmp0_b32 s77, 0"); A(f"s_cselect_b32 s77, {NBE}, 0")
        A("s_add_u32 s76, s76, s77"); A("s_min_u32 s76, s76, 8")
        A("v_mov_b32 v7, s76")
        A(f"ds_write_b32 v6, v7 offset:{L_MODE}")
        A("s_mov_b64 exec, -1")
        A.label("L_nb_done")
    if fused == 3 and zlate: zero_init()
    if fused == 3:
        A("s_lshl_b32 s6, s4, 5"); A("v_mov_b32 v90, s6"); A("v_mov_b32 v91, 1")
        A("s_cmp_lg_u32 s42, 0"); A("s_cbranch_scc1 L_zchk_done")
        A.label("L_zchk")
        A("s_mov_b64 exec, 1")
        A("global_load_dword v89, v90, s[38:39] offset:4 sc1")
        A("s_waitcnt vmcnt(0)")
        A("v_readfirstlane_b32 s51, v89")
        A("s_mov_b64 exec, -1")
        A("s_cmp_ge_u32 s51, 32"); A("s_cbranch_scc1 L_zchk_done")
        A("s_sleep 8")
        A("s_branch L_zchk")
        A.label("L_zchk_done")
        A.vm = []
        A.vm.append("pending")
    XB = 60
    XB = 92
    XP = [92, 94, 88]; BP = [44, 46, 60]
    if fused == 3 and fin1:
        A("v_lshlrev_b32 v4, 3, v0")
        A("s_mul_i32 s6, s4, 1280")
        srd(A, 12, 16, 17, 6, 1280)
        srd(A, 68, 34, 35, None, 1280)
        for i in range(3):
            A.issue(("xf", i), f"buffer_load_dwordx2 v[{XP[i]}:{XP[i]+1}], v4, s[12:15], 0 offen offset:{i*512}")
            A.issue(("bf", i), f"buffer_load_dwordx2 v[{BP[i]}:{BP[i]+1}], v4, s[68:71], 0 offen offset:{i*512}")
    elif fused:
        A("s_lshl_b32 s43, s42, 6"); A("v_add_u32 v4, s43, v0"); A("v_lshlrev_b32 v4, 3, v4")
        A("s_mul_i32 s6, s4, 1280")
        srd(A, 12, 16, 17, 6, 1280)
        A.issue(("xf", 0), f"buffer_load_dwordx2 v[{XB}:{XB+1}], v4, s[12:15], 0 offen")
        srd(A, 68, 34, 35, None, 1280)
        A.issue(("xf", 1), f"buffer_load_dwordx2 v[{XB+2}:{XB+3}], v4, s[68:71], 0 offen")
    A("v_lshlrev_b32 v4, 5, v3"); A("s_lshl_b32 s43, s42, 7"); A("v_add_u32 v4, s43, v4")
    A("v_mov_b32 v5, 0")
    A.waitall()
    P.stamp()
    A("s_barrier")
    P.stamp()
    if fused == 2:
        A("s_cmp_lg_u32 s42, 0"); A("s_cbranch_scc1 L_noticket")
        A("s_lshl_b32 s6, s4, 5"); A("v_mov_b32 v90, s6"); A("v_mov_b32 v91, 1")
        A("s_mov_b64 exec, 1")
        A("global_atomic_add v88, v90, v91, s[38:39] sc0")
        A("global_load_dword v89, v90, s[38:39] offset:4 sc1")
        A("s_mov_b64 exec, -1")
        A.label("L_noticket")
    ML = PP
    OV = PP + 8
    A(f"ds_read_b128 v[{ML}:{ML+3}], v5 offset:{L_ML}"); A(f"ds_read_b128 v[{ML+4}:{ML+7}], v5 offset:{L_ML+16}")
    OVR = [72, 80, 48, 16]
    for w in range(4):
        for q in range(2):
            v = OVR[w] + 4 * q
            A(f"ds_read_b128 v[{v}:{v+3}], v4 offset:{L_OP + w*512 + q*16}")
    A("s_waitcnt lgkmcnt(8)")
    A(f"v_max3_f32 v6, v{ML}, v{ML+2}, v{ML+4}"); A(f"v_max_f32 v6, v6, v{ML+6}")
    for w in range(4):
        A(f"v_sub_f32 v{ML+2*w}, v{ML+2*w}, v6"); A(f"v_mul_f32 v{ML+2*w}, {LOG2E:#x}, v{ML+2*w}"); A(f"v_exp_f32 v{ML+2*w}, v{ML+2*w}")
    A.nop(1)
    A(f"v_mul_f32 v7, v{ML}, v{ML+1}")
    for w in range(1, 4): A(f"v_fmac_f32 v7, v{ML+2*w}, v{ML+2*w+1}")
    A("v_rcp_f32 v7, v7"); A.nop(1)
    A("s_waitcnt lgkmcnt(0)")
    for k in range(8):
        A(f"v_mul_f32 v{OVR[0]+k}, v{OVR[0]+k}, v{ML}")
        for w in range(1, 4): A(f"v_fmac_f32 v{OVR[0]+k}, v{OVR[w]+k}, v{ML+2*w}")
        A(f"v_mul_f32 v{OVR[0]+k}, v{OVR[0]+k}, v7")
    PO = 56
    for k in range(4): A(f"v_cvt_pk_bf16_f32 v{PO+k}, v{OVR[0]+2*k}, v{OVR[0]+2*k+1}")
    abuild_p(PO, 0, 0)
    for jj in range(8):
        if jj + 1 < 8: abuild_p(PO + (jj + 1) // 2, (jj + 1) % 2, (jj + 1) % 2)
        else: A.nop(2)
        at = AT + (jj % 2) * 4
        if jj == 0: A.nop(2)
        for cb in range(5):
            v = BUF + 4 * (jj * 5 + cb); d = DO + 4 * cb
            A(f"v_mfma_f32_16x16x32_bf16 v[{d}:{d+3}], v[{at}:{at+3}], v[{v}:{v+3}], v[{d}:{d+3}]")
    A("v_lshlrev_b32 v6, 5, v2"); A("v_lshl_add_u32 v6, v3, 4, v6")
    A("s_mul_i32 s43, s42, 2560"); A("v_add_u32 v6, s43, v6")
    A.nop(4)
    A("s_mov_b32 exec_hi, 0")
    for cb in range(5):
        A(f"ds_write_b128 v6, v[{DO+4*cb}:{DO+4*cb+3}] offset:{L_OUTP + cb*512}")
    A("s_mov_b32 exec_hi, -1")
    if fused == 3:
        A("s_mul_i32 s6, s4, 2560"); A("s_add_u32 s6, s6, 0x100000")
        srd(A, 8, 40, 41, 6, 2560)
    if fused == 2:
        A("s_mul_i32 s6, s4, 2560"); A("s_add_u32 s6, s6, 0x100000")
        srd(A, 8, 40, 41, 6, 2560)
        A("s_cmp_lg_u32 s42, 0"); A("s_cbranch_scc1 L_tk_done")
        A("s_waitcnt vmcnt(0)")
        A("v_readfirstlane_b32 s50, v88"); A("v_readfirstlane_b32 s51, v89")
        A("s_cmp_lg_u32 s50, 0"); A("s_cbranch_scc1 L_tk_spin")
        for k in range(4): A(f"v_mov_b32 v{72+k}, 0")
        A("v_lshlrev_b32 v7, 4, v0")
        for i in range(3): A(f"buffer_store_dwordx4 v[72:75], v7, s[8:11], 0 offen offset:{i*1024} sc1")
        A("s_waitcnt vmcnt(0)")
        A("s_mov_b64 exec, 1")
        A("global_store_dword v90, v91, s[38:39] offset:4 sc1")
        A("s_mov_b64 exec, -1")
        A("s_branch L_tk_done")
        A.label("L_tk_spin")
        A("s_cmp_lg_u32 s51, 0"); A("s_cbranch_scc1 L_tk_done")
        A("s_mov_b64 exec, 1")
        A("global_load_dword v89, v90, s[38:39] offset:4 sc1")
        A("s_waitcnt vmcnt(0)")
        A("v_readfirstlane_b32 s51, v89")
        A("s_mov_b64 exec, -1")
        A("s_branch L_tk_spin")
        A.label("L_tk_done")
    A("s_waitcnt lgkmcnt(0)")
    P.stamp()
    A.label("L_b3")
    A("s_barrier")
    if not fused:
        A("s_lshl_b32 s43, s42, 6"); A("v_add_u32 v4, s43, v0")
        A("v_cmp_gt_u32 vcc, 160, v4")
        A("v_lshlrev_b32 v4, 4, v4")
        A("s_and_saveexec_b64 s[46:47], vcc")
        A("s_cbranch_execz L_aux_done")
        for w in range(4): A(f"ds_read_b128 v[{72+4*w}:{75+4*w}], v4 offset:{L_OUTP + w*2560}")
        A("s_mul_i32 s6, s66, 2560")
        srd(A, 8, 40, 41, 6, 2560)
        A("s_waitcnt lgkmcnt(0)")
        for k in range(4):
            A(f"v_add_f32 v{72+k}, v{72+k}, v{76+k}"); A(f"v_add_f32 v{80+k}, v{80+k}, v{84+k}"); A(f"v_add_f32 v{72+k}, v{72+k}, v{80+k}")
        A("buffer_store_dwordx4 v[72:75], v4, s[8:11], 0 offen")
    elif fused in (2, 3):
        A("s_mul_i32 s43, s42, 640"); A("v_lshlrev_b32 v4, 2, v0"); A("v_add_u32 v4, s43, v4")
        for i in range(3):
            for w in range(4):
                A(f"ds_read_b32 v{72+4*i+w}, v4 offset:{L_OUTP + w*2560 + i*256}")
        for i in range(3):
            A(f"s_waitcnt lgkmcnt({8-4*i})")
            v = 72 + 4 * i
            A(f"v_add_f32 v{v}, v{v}, v{v+1}"); A(f"v_add_f32 v{v+2}, v{v+2}, v{v+3}"); A(f"v_add_f32 v{v}, v{v}, v{v+2}")
            if i == 2: A("s_mov_b32 exec_hi, 0")
            A(f"buffer_atomic_add_f32 v{v}, v4, s[8:11], 0 offen offset:{i*256}")
        A("s_mov_b32 exec_hi, -1")
        A("s_waitcnt vmcnt(0)")
        P.stamp()
        A("s_barrier")
        if fused == 3 and fin1:
            A("s_cmp_lg_u32 s42, 0"); A("s_cbranch_scc1 L_aux_done")
            A("v_lshlrev_b32 v4, 4, v0"); A("v_lshlrev_b32 v7, 3, v0")
            A("s_mul_i32 s6, s4, 1280")
            srd(A, 12, 36, 37, 6, 1280)
            A("s_mov_b64 exec, 1")
            A("global_atomic_add v5, v90, v91, s[38:39] offset:8 sc0")
            A("s_waitcnt vmcnt(0)")
            A("v_readfirstlane_b32 s43, v5")
            A("s_mov_b64 exec, -1")
            P.stamp()
            A("s_cmp_lg_u32 s43, 31"); A("s_cbranch_scc1 L_aux_done")
            for i in range(3): A(f"buffer_load_dwordx4 v[{72+4*i}:{75+4*i}], v4, s[8:11], 0 offen offset:{i*1024} sc1")
            for i in range(3):
                A(f"s_waitcnt vmcnt({2-i})" if i == 0 else f"s_waitcnt vmcnt({2-i+0})")
                v = 72 + 4 * i
                for k in range(2):
                    A(f"v_lshlrev_b32 v84, 16, v{BP[i]+k}"); A(f"v_and_b32 v85, 0xffff0000, v{BP[i]+k}")
                    A(f"v_add_f32 v{v+2*k}, v{v+2*k}, v84"); A(f"v_add_f32 v{v+1+2*k}, v{v+1+2*k}, v85")
                    A(f"v_lshlrev_b32 v84, 16, v{XP[i]+k}"); A(f"v_and_b32 v85, 0xffff0000, v{XP[i]+k}")
                    A(f"v_add_f32 v{v+2*k}, v{v+2*k}, v84"); A(f"v_add_f32 v{v+1+2*k}, v{v+1+2*k}, v85")
                A(f"v_cvt_pk_bf16_f32 v{v}, v{v}, v{v+1}"); A(f"v_cvt_pk_bf16_f32 v{v+1}, v{v+2}, v{v+3}")
            for i in range(3): A(f"buffer_store_dwordx2 v[{72+4*i}:{73+4*i}], v7, s[12:15], 0 offen offset:{i*512}")
        else:
            A("s_cmp_lg_u32 s42, 0"); A("s_cbranch_scc1 L_wait_flag")
            A("s_mov_b64 exec, 1")
            A("global_atomic_add v5, v90, v91, s[38:39] offset:8 sc0")
            A("s_waitcnt vmcnt(0)")
            A("v_mov_b32 v6, 0")
            A(f"ds_write_b32 v6, v5 offset:{L_FLAG}")
            A("s_mov_b64 exec, -1")
            A("s_waitcnt lgkmcnt(0)")
            A.label("L_wait_flag")
            P.stamp()
            A("s_barrier")
            A("v_mov_b32 v6, 0")
            A(f"ds_read_b32 v5, v6 offset:{L_FLAG}")
            A("s_lshl_b32 s43, s42, 6"); A("v_add_u32 v4, s43, v0")
            A("v_lshlrev_b32 v7, 3, v4"); A("v_lshlrev_b32 v4, 4, v4")
            A("s_mul_i32 s6, s4, 1280")
            srd(A, 12, 36, 37, 6, 1280)
            A("s_waitcnt lgkmcnt(0)")
            A("v_readfirstlane_b32 s43, v5")
            A("s_cmp_lg_u32 s43, 31"); A("s_cbranch_scc1 L_aux_done")
            A("s_cmp_ge_u32 s42, 3"); A("s_cbranch_scc1 L_aux_done")
            A("buffer_load_dwordx4 v[72:75], v4, s[8:11], 0 offen sc1")
            A("s_waitcnt vmcnt(0)")
            for k in range(2):
                A(f"v_lshlrev_b32 v76, 16, v{XB+2+k}"); A(f"v_and_b32 v77, 0xffff0000, v{XB+2+k}")
                A(f"v_add_f32 v{72+2*k}, v{72+2*k}, v76"); A(f"v_add_f32 v{73+2*k}, v{73+2*k}, v77")
                A(f"v_lshlrev_b32 v76, 16, v{XB+k}"); A(f"v_and_b32 v77, 0xffff0000, v{XB+k}")
                A(f"v_add_f32 v{72+2*k}, v{72+2*k}, v76"); A(f"v_add_f32 v{73+2*k}, v{73+2*k}, v77")
            A("v_cvt_pk_bf16_f32 v72, v72, v73"); A("v_cvt_pk_bf16_f32 v73, v74, v75")
            A("buffer_store_dwordx2 v[72:73], v7, s[12:15], 0 offen")
    else:
        NG = 8 if tail2 else 4
        SPW = 32 // NG
        widx = "s3" if tail2 else "s42"
        A("v_lshlrev_b32 v4, 4, v0")
        A("s_cmp_lg_u32 s3, 4"); A("s_cbranch_scc1 L_wait_flag")
        for i in range(3):
            for w in range(4):
                v = BUF + 16 * i + 4 * w
                A(f"ds_read_b128 v[{v}:{v+3}], v4 offset:{L_OUTP + w*2560 + i*1024}")
        SB = 1280 if sl16 else 2560
        A(f"s_mul_i32 s6, s66, {SB}")
        srd(A, 8, 40, 41, 6, SB)
        if sl16: A("v_lshlrev_b32 v5, 3, v0")
        for i in range(3):
            A(f"s_waitcnt lgkmcnt({8-4*i})")
            v = BUF + 16 * i
            for k in range(4):
                A(f"v_add_f32 v{v+k}, v{v+k}, v{v+4+k}"); A(f"v_add_f32 v{v+8+k}, v{v+8+k}, v{v+12+k}"); A(f"v_add_f32 v{v+k}, v{v+k}, v{v+8+k}")
            if sl16:
                A(f"v_cvt_pk_bf16_f32 v{v+4}, v{v}, v{v+1}"); A(f"v_cvt_pk_bf16_f32 v{v+5}, v{v+2}, v{v+3}")
                A(f"buffer_store_dwordx2 v[{v+4}:{v+5}], v5, s[8:11], 0 offen offset:{i*512} sc1")
            else:
                A(f"buffer_store_dwordx4 v[{v}:{v+3}], v4, s[8:11], 0 offen offset:{i*1024} sc1")
        A("s_lshl_b32 s6, s4, 5")
        A("v_mov_b32 v6, s6"); A("v_mov_b32 v7, 1")
        A("s_waitcnt vmcnt(0)")
        P.stamp()
        A("s_mov_b64 s[46:47], exec"); A("s_mov_b64 exec, 1")
        A("global_atomic_add v5, v6, v7, s[38:39] sc0")
        A("s_waitcnt vmcnt(0)")
        A("v_mov_b32 v6, 0")
        A(f"ds_write_b32 v6, v5 offset:{L_FLAG}")
        A("s_mov_b64 exec, s[46:47]")
        A("s_waitcnt lgkmcnt(0)")
        A.label("L_wait_flag")
        P.stamp()
        A("s_barrier")
        A("v_mov_b32 v6, 0")
        A(f"ds_read_b32 v5, v6 offset:{L_FLAG}")
        A(f"s_mul_i32 s6, s4, {32*SB}"); A(f"s_mul_i32 s43, {widx}, {SPW*SB}"); A("s_add_u32 s6, s6, s43")
        srd(A, 8, 40, 41, 6, SPW * SB)
        if sl16: A("v_lshlrev_b32 v7, 3, v0")
        A("s_waitcnt lgkmcnt(0)")
        A("v_readfirstlane_b32 s43, v5")
        if warm:
            A("s_cmp_eq_u32 s43, 31"); A("s_cselect_b32 s10, s10, 0"); A("s_cselect_b32 s57, 1280, 0")
        else:
            A("s_cmp_lg_u32 s43, 31"); A("s_cbranch_scc1 L_aux_done")
        A.vm = []
        for i in range(3):
            for sl in range(SPW):
                v = BUF + (i * SPW + sl) * 4
                if i == 2 and sl == 0: A("s_mov_b32 exec_hi, 0")
                if sl == 0: so = "0"
                else:
                    A(f"s_mov_b32 s45, {sl*SB}"); so = "s45"
                if sl16:
                    A.issue(("g", i, sl), f"buffer_load_dwordx2 v[{v}:{v+1}], v7, s[8:11], {so} offen offset:{i*512} sc1")
                else:
                    A.issue(("g", i, sl), f"buffer_load_dwordx4 v[{v}:{v+3}], v4, s[8:11], {so} offen offset:{i*1024} sc1")
        A("s_mov_b32 exec_hi, -1")
        A(f"s_mul_i32 s43, {widx}, 2560"); A("v_add_u32 v6, s43, v4")
        LF = L_F if tail2 else L_OUTP
        for i in range(3):
            A.wait(("g", i, SPW - 1))
            v = BUF + i * SPW * 4
            if sl16:
                for sl in range(SPW):
                    q = v + 4 * sl
                    A(f"v_lshlrev_b32 v{q+2}, 16, v{q+1}"); A(f"v_and_b32 v{q+3}, 0xffff0000, v{q+1}")
                    A(f"v_and_b32 v{q+1}, 0xffff0000, v{q}"); A(f"v_lshlrev_b32 v{q}, 16, v{q}")
            n = SPW
            stride = 4
            while n > 1:
                for p in range(n // 2):
                    for k in range(4):
                        A(f"v_add_f32 v{v+2*p*stride+k}, v{v+2*p*stride+k}, v{v+(2*p+1)*stride+k}")
                n //= 2; stride *= 2
            if i == 2: A("s_mov_b32 exec_hi, 0")
            A(f"ds_write_b128 v6, v[{v}:{v+3}] offset:{LF + i*1024}")
        A("s_mov_b32 exec_hi, -1")
        A("s_waitcnt lgkmcnt(0)")
        P.stamp()
        A("s_barrier")
        A("s_cmp_lt_u32 s3, 4"); A("s_cbranch_scc1 L_aux_done")
        A("s_lshl_b32 s43, s42, 6"); A("v_add_u32 v4, s43, v0")
        A("v_cmp_gt_u32 vcc, 160, v4")
        A("v_lshlrev_b32 v5, 3, v4")
        A("v_lshlrev_b32 v4, 4, v4")
        A("s_and_saveexec_b64 s[46:47], vcc")
        A("s_cbranch_execz L_aux_done")
        for w in range(NG): A(f"ds_read_b128 v[{BUF+4*w}:{BUF+3+4*w}], v4 offset:{LF + w*2560}")
        A("s_mul_i32 s6, s4, 1280")
        srd(A, 8, 36, 37, 6, "s57" if warm else 1280)
        A("s_waitcnt lgkmcnt(0)")
        n = NG; stride = 4
        while n > 1:
            for p in range(n // 2):
                for k in range(4):
                    A(f"v_add_f32 v{BUF+2*p*stride+k}, v{BUF+2*p*stride+k}, v{BUF+(2*p+1)*stride+k}")
            n //= 2; stride *= 2
        for k in range(2):
            A(f"v_lshlrev_b32 v76, 16, v{XB+2+k}"); A(f"v_and_b32 v77, 0xffff0000, v{XB+2+k}")
            A(f"v_add_f32 v{BUF+2*k}, v{BUF+2*k}, v76"); A(f"v_add_f32 v{BUF+1+2*k}, v{BUF+1+2*k}, v77")
            A(f"v_lshlrev_b32 v76, 16, v{XB+k}"); A(f"v_and_b32 v77, 0xffff0000, v{XB+k}")
            A(f"v_add_f32 v{BUF+2*k}, v{BUF+2*k}, v76"); A(f"v_add_f32 v{BUF+1+2*k}, v{BUF+1+2*k}, v77")
        A(f"v_cvt_pk_bf16_f32 v72, v{BUF}, v{BUF+1}"); A(f"v_cvt_pk_bf16_f32 v73, v{BUF+2}, v{BUF+3}")
        A("buffer_store_dwordx2 v[72:73], v5, s[8:11], 0 offen")
    A.label("L_aux_done")
    P.stamp()
    if prof and tail2:
        A("s_cmp_lt_u32 s3, 4"); A("s_cbranch_scc1 L_end")
    P.flush()
    A.label("L_end")
    A("s_endpgm")
    out += A.L
    kernels = [(kname, 256, 102)]
    if not fused:
        B = Asm()
        out.append(".globl reduce_kernel"); out.append(".p2align 8"); out.append(".type reduce_kernel,@function")
        B.label("reduce_kernel")
        B("s_cmp_ge_u32 s2, 160"); B("s_cbranch_scc1 R_end")
        B("s_load_dwordx2 s[4:5], s[0:1], 0")
        B("s_load_dwordx4 s[8:11], s[0:1], 72")
        B("s_load_dwordx2 s[6:7], s[0:1], 96")
        B("s_mul_hi_u32 s12, s2, 0xccccccd")
        B("s_mul_i32 s13, s12, 20"); B("s_sub_u32 s13, s2, s13")
        B("v_and_b32 v1, 7, v0"); B("v_lshrrev_b32 v2, 3, v0")
        B("v_mul_u32_u24 v3, 10240, v2"); B("v_lshl_add_u32 v3, v1, 4, v3")
        B("s_lshl_b32 s14, s13, 7"); B("v_add_u32 v3, s14, v3")
        B("s_mul_i32 s15, s12, 81920")
        B("s_waitcnt lgkmcnt(0)")
        B("s_add_u32 s16, s6, s15"); B("s_addc_u32 s17, s7, 0"); B("s_mov_b32 s18, 81920"); B("s_mov_b32 s19, 0x20000")
        B("s_mov_b32 s20, 2560"); B("s_mov_b32 s21, 5120"); B("s_mov_b32 s22, 7680")
        B("buffer_load_dwordx4 v[4:7], v3, s[16:19], 0 offen")
        B("buffer_load_dwordx4 v[8:11], v3, s[16:19], s20 offen")
        B("buffer_load_dwordx4 v[12:15], v3, s[16:19], s21 offen")
        B("buffer_load_dwordx4 v[16:19], v3, s[16:19], s22 offen")
        B("s_mul_i32 s15, s12, 1280"); B("s_lshl_b32 s14, s13, 6")
        B("v_lshlrev_b32 v20, 3, v1"); B("v_add_u32 v20, s14, v20")
        B("s_add_u32 s24, s4, s15"); B("s_addc_u32 s25, s5, 0"); B("s_mov_b32 s26, 1280"); B("s_mov_b32 s27, 0x20000")
        B("s_mov_b32 s28, s8"); B("s_mov_b32 s29, s9"); B("s_mov_b32 s30, 1280"); B("s_mov_b32 s31, 0x20000")
        B("s_add_u32 s32, s10, s15"); B("s_addc_u32 s33, s11, 0"); B("s_mov_b32 s34, 1280"); B("s_mov_b32 s35, 0x20000")
        B("buffer_load_dwordx2 v[22:23], v20, s[24:27], 0 offen")
        B("buffer_load_dwordx2 v[24:25], v20, s[28:31], 0 offen")
        B("s_waitcnt vmcnt(2)")
        for k in range(4):
            B(f"v_add_f32 v{4+k}, v{4+k}, v{8+k}"); B(f"v_add_f32 v{12+k}, v{12+k}, v{16+k}"); B(f"v_add_f32 v{4+k}, v{4+k}, v{12+k}")
        B.nop(2)
        for k in range(4): B(f"v_add_f32_dpp v{4+k}, v{4+k}, v{4+k} row_ror:8 row_mask:0xf bank_mask:0xf")
        for sw in ("v_permlane16_swap_b32", "v_permlane32_swap_b32"):
            for k in range(4): B(f"v_mov_b32 v{8+k}, v{4+k}")
            B.nop(2)
            for k in range(4): B(f"{sw} v{4+k}, v{8+k}")
            B.nop(1)
            for k in range(4): B(f"v_add_f32 v{4+k}, v{4+k}, v{8+k}")
        B("s_waitcnt vmcnt(0)")
        for k in range(2):
            B(f"v_lshlrev_b32 v8, 16, v{22+k}"); B(f"v_and_b32 v9, 0xffff0000, v{22+k}")
            B(f"v_lshlrev_b32 v10, 16, v{24+k}"); B(f"v_and_b32 v11, 0xffff0000, v{24+k}")
            B(f"v_add_f32 v{4+2*k}, v{4+2*k}, v10"); B(f"v_add_f32 v{5+2*k}, v{5+2*k}, v11")
            B(f"v_add_f32 v{4+2*k}, v{4+2*k}, v8"); B(f"v_add_f32 v{5+2*k}, v{5+2*k}, v9")
        B("v_cvt_pk_bf16_f32 v4, v4, v5"); B("v_cvt_pk_bf16_f32 v5, v6, v7")
        B("v_cmp_gt_u32 vcc, 8, v0"); B("s_and_saveexec_b64 s[36:37], vcc")
        B("buffer_store_dwordx2 v[4:5], v20, s[32:35], 0 offen")
        B.label("R_end"); B("s_endpgm")
        out += B.L
        kernels.append(("reduce_kernel", 32, 48))
    out.append('.section .rodata,"a"')
    for kn, nv, ns in kernels:
        out += [".p2align 6", f".amdhsa_kernel {kn}", f"  .amdhsa_next_free_vgpr {nv}", f"  .amdhsa_next_free_sgpr {ns}",
                f"  .amdhsa_accum_offset {nv}", "  .amdhsa_group_segment_fixed_size 0", "  .amdhsa_kernarg_size 104",
                "  .amdhsa_user_sgpr_count 2", "  .amdhsa_user_sgpr_kernarg_segment_ptr 1", "  .amdhsa_system_sgpr_workgroup_id_x 1",
                "  .amdhsa_float_denorm_mode_32 3", ".end_amdhsa_kernel"]
    return "\n".join(out) + "\n"

if __name__ == "__main__":
    kw = eval("dict(" + (sys.argv[2] if len(sys.argv) > 2 else "") + ")")
    open(sys.argv[1], "w").write(gen(**kw))
```

```python
import struct, sys

NAME = "parallel_sum__gqa_block_cached__mixer_channel_mlp__decode"
HEADER = open("cdna_kernels/" + NAME + ".s.ref").read().split("; Override launch geometry")[0]

def f2u(x): return struct.unpack("<I", struct.pack("<f", x))[0]
SCALE = f2u(128 ** -0.5)
LOG2E = f2u(1.4426950408889634)
INV640 = f2u(1.0 / 640)
EPS = f2u(1e-5)

L_XN = 0
L_Y = 5120
L_QP = 6400
L_T = 8448
L_HV = 8960
L_OP = 9216
L_ML = 11264
L_OUTP = 11520
L_FLAG = 21760
L_PROG = 22528
L_MODE = 22544
L_F = 22784
LDS_BYTES = 22784 + 8 * 2560 + 1024

DOC = """; One workgroup per (batch b, head h); 8 waves: waves 0-3 stream the K/V cache, waves 4-7 do everything else.
;  streaming waves: 1-KiB non-temporal loads, 5 in flight per wave.  K phase: S = K q through 16x16x32 MFMAs whose B operand
;    is q placed in two columns per 8-key tile (64 scores per register); scores are rounded like the reference (bf16, *Dh^-0.5,
;    bf16).  True per-wave max, p = exp(s - max) in bf16.  V phase: O += p V through MFMAs with a one-hot-times-p A operand.
;  aux waves: LayerNorm, q = LN(x) Wq[:, h] (K-split over 4 waves, LDS reduce), MLP hidden units 64h..64h+63 (h < 27) of
;    batch b, prefetch of Wo[h], flash-style combine of the 4 wave partials, out-projection, float atomics into a per-batch
;    accumulator row in d_ws (zeroed by this launch); the last workgroup of a batch adds x + b2 and writes d_out.
;  d_debug words of batch b: +4 count of zeroed accumulator slices, +8 count of workgroups whose adds are complete.""".split("\n")

class Asm:
    def __init__(self):
        self.L = []
        self.vm = []
        self.landed = set()
        self.nlabel = 0
    def __call__(self, s): self.L.append("    " + s)
    def label(self, s): self.L.append(s + ":")
    def c(self, s): self.L.append("    ; " + s)
    def issue(self, tag, ins):
        self(ins); self.vm.append(tag)
        assert len(self.vm) <= 63, "too many outstanding vmem ops"
    def wait(self, tag):
        if tag not in self.vm: return
        i = self.vm.index(tag)
        n = len(self.vm) - 1 - i
        self(f"s_waitcnt vmcnt({n})")
        self.vm = self.vm[i + 1:]
    def waitall(self):
        if self.vm: self("s_waitcnt vmcnt(0)")
        self.vm = []
    def nop(self, n):
        while n > 0:
            k = min(n, 16); self(f"s_nop {k-1}"); n -= k

def allreduce(A, op, t, u):
    for ror in (8, 4, 2, 1):
        A.nop(2)
        A(f"v_{op}_f32_dpp v{t}, v{t}, v{t} row_ror:{ror} row_mask:0xf bank_mask:0xf")
    for sw in ("v_permlane16_swap_b32", "v_permlane32_swap_b32"):
        A(f"v_mov_b32 v{u}, v{t}")
        A.nop(2)
        A(f"{sw} v{t}, v{u}")
        A.nop(1)
        A(f"v_{op}_f32 v{t}, v{t}, v{u}")

def bf16r(A, d, s):
    A(f"v_cvt_pk_bf16_f32 v{d}, v{s}, v{s}")
    A(f"v_and_b32 v{d}, 0xffff0000, v{d}")

def layernorm(A, X, F, T, OUT):
    if isinstance(T, int): T = (T, T+1, T+2, T+3)
    for k in range(5):
        A(f"v_lshlrev_b32 v{F+2*k}, 16, v{X+k}")
        A(f"v_and_b32 v{F+2*k+1}, 0xffff0000, v{X+k}")
    t, u, m, r = T
    A(f"v_add_f32 v{t}, v{F}, v{F+1}")
    for k in range(2, 10): A(f"v_add_f32 v{t}, v{t}, v{F+k}")
    allreduce(A, "add", t, u)
    A(f"v_mul_f32 v{m}, {INV640:#x}, v{t}")
    A(f"v_sub_f32 v{u}, v{F}, v{m}")
    A(f"v_mul_f32 v{t}, v{u}, v{u}")
    for k in range(1, 10):
        A(f"v_sub_f32 v{u}, v{F+k}, v{m}")
        A(f"v_fmac_f32 v{t}, v{u}, v{u}")
    allreduce(A, "add", t, u)
    A(f"v_mul_f32 v{t}, {INV640:#x}, v{t}")
    bf16r(A, t, t)
    A(f"v_add_f32 v{t}, {EPS:#x}, v{t}")
    bf16r(A, t, t)
    A(f"v_sqrt_f32 v{t}, v{t}")
    A.nop(1)
    bf16r(A, t, t)
    A(f"v_rcp_f32 v{r}, v{t}")
    bf16r(A, m, m)
    for k in range(5):
        A(f"v_sub_f32 v{F+2*k}, v{F+2*k}, v{m}")
        A(f"v_sub_f32 v{F+2*k+1}, v{F+2*k+1}, v{m}")
        A(f"v_cvt_pk_bf16_f32 v{u}, v{F+2*k}, v{F+2*k+1}")
        A(f"v_lshlrev_b32 v{F+2*k}, 16, v{u}")
        A(f"v_and_b32 v{F+2*k+1}, 0xffff0000, v{u}")
        A(f"v_mul_f32 v{F+2*k}, v{F+2*k}, v{r}")
        A(f"v_mul_f32 v{F+2*k+1}, v{F+2*k+1}, v{r}")
        A(f"v_cvt_pk_bf16_f32 v{OUT+k}, v{F+2*k}, v{F+2*k+1}")

def srd(A, d, lo, hi, off_s, size):
    if off_s is None:
        A(f"s_mov_b32 s{d}, s{lo}"); A(f"s_mov_b32 s{d+1}, s{hi}")
    else:
        A(f"s_add_u32 s{d}, s{lo}, s{off_s}"); A(f"s_addc_u32 s{d+1}, s{hi}, 0")
    A(f"s_mov_b32 s{d+2}, {size}")
    A(f"s_mov_b32 s{d+3}, 0x20000")

class Prof:
    def __init__(self, A, on, reg): self.A, self.on, self.reg, self.n = A, on, reg, 0
    def stamp(self):
        if not self.on: return
        A = self.A
        A("s_memrealtime s[92:93]"); A("s_waitcnt lgkmcnt(0)")
        A(f"v_writelane_b32 v{self.reg}, s92, {self.n}"); self.n += 1
    def flush(self):
        if not self.on: return
        A = self.A
        A("s_getreg_b32 s92, hwreg(HW_REG_HW_ID)"); A(f"v_writelane_b32 v{self.reg}, s92, 62")
        A("s_mov_b64 exec, -1")
        A("s_lshl_b32 s94, s2, 3"); A("s_add_u32 s94, s94, s3"); A("s_lshl_b32 s94, s94, 8"); A("s_add_u32 s94, s94, 0x2000000")
        A(f"v_lshlrev_b32 v1, 2, v0"); A("v_add_u32 v1, s94, v1")
        A(f"global_store_dword v1, v{self.reg}, s[40:41]")

def gen(N=5, C=8, S0=24, R=32, catch=2, Ntail=None, tail_from=None, NA=4, wpol="", kvpol="nt", prof=0, fused=0, prio=1, hmap=1, nomlp=0, nowo=0, NW=8, diag=0, nostream=0, WQ0=16, NQ=0, bar0=0, K0=5, dyn=0, NH=8, dyn_from=32, CK0=4, CKS=4, TH=(128,192,232), BO=(1,2,3), CKEXIT=30, sleep=3, even_boost=(16,20), T2=720, TK=226, TV=217, MARG=0, wmask=0, rotm=0, CV=None, tail2=0, rg=32, sl16=0, warm=0, earlyml=1, rotx=0, ktest=0, fin1=1, swapkv=0, zlate=0, NBE=3, LK=26, BS0=16, kboost=(), tlbtest=0, dry=0):
    A = Asm()
    P = Prof(A, prof, 63)
    kname = NAME + "_kernel"
    out = []
    out.append(HEADER.rstrip("\n"))
    lds_bytes = LDS_BYTES if (tail2 or dry or fused == 1) else 22784
    out += DOC
    if fused:
        out.append(f"; @launch grid=(256,1,1) block=(512,1,1) lds={lds_bytes}")
    else:
        out.append(f"; @launch kernel={kname} grid=(256,1,1) block=(512,1,1) lds={lds_bytes}")
        out.append(f"; @launch kernel=reduce_kernel grid=(160,1,1) block=(64,1,1) lds=0")
    out.append('.amdgcn_target "amdgcn-amd-amdhsa--gfx950"')
    out.append(".text"); out.append(f".globl {kname}"); out.append(".p2align 8"); out.append(f".type {kname},@function")
    A.label(kname)
    A("s_cmp_ge_u32 s2, 256"); A("s_cbranch_scc1 L_end")
    A("s_load_dwordx16 s[16:31], s[0:1], 0")
    A("s_load_dwordx8 s[32:39], s[0:1], 64")
    A("s_load_dwordx2 s[40:41], s[0:1], 96")
    A("v_lshrrev_b32 v1, 6, v0")
    A("v_and_b32 v0, 63, v0")
    A("v_readfirstlane_b32 s3, v1")
    A("v_and_b32 v2, 15, v0")
    A("v_lshrrev_b32 v3, 4, v0")
    if hmap == 0:
        A("s_lshr_b32 s4, s2, 5")
        A("s_and_b32 s5, s2, 31")
    else:
        A("s_and_b32 s5, s2, 7"); A("s_lshl_b32 s5, s5, 2"); A("s_bfe_u32 s4, s2, 0x20003"); A("s_add_u32 s5, s5, s4")
        A("s_lshr_b32 s4, s2, 5")
    A("s_lshl_b32 s66, s4, 5"); A("s_add_u32 s66, s66, s5")
    if prof: A("v_mov_b32 v63, 0")
    A("s_cmp_ge_u32 s3, 4"); A("s_cbranch_scc1 L_aux")
    vK, vV = 4, 5
    MASK = 8
    AT = 12
    D = 20
    O = 28
    S = 32
    TM = 48
    BQ = 64
    RING = 128
    assert R * 4 + RING <= 256
    if prio: A(f"s_setprio {prio}")
    A("v_bfe_u32 v6, v2, 1, 1"); A("v_lshlrev_b32 v6, 10, v6")
    A("v_lshrrev_b32 v7, 2, v2"); A("v_lshl_add_u32 v6, v7, 8, v6")
    A("v_and_b32 v7, 1, v2"); A("v_lshl_add_u32 v6, v7, 6, v6")
    A(f"v_lshl_add_u32 v{vK}, v3, 4, v6")
    A(f"v_lshlrev_b32 v{vV}, 4, v0")
    if ktest == 1: A(f"v_lshlrev_b32 v{vK}, 4, v0")
    if ktest == 2:
        A("v_bfe_u32 v6, v0, 2, 2"); A("v_lshlrev_b32 v6, 8, v6"); A("v_lshl_add_u32 v6, v3, 6, v6"); A("v_and_b32 v7, 3, v0")
        A(f"v_lshl_add_u32 v{vK}, v7, 4, v6")
    A("s_lshl_b32 s6, s66, 20"); A("s_lshr_b32 s7, s66, 12")
    if CV is None: CV = C
    A(f"s_mul_i32 s42, s3, {C*1024}")
    if rotx:
        rotm = 1
        if rotx == 2: A("s_lshr_b32 s45, s2, 5"); A("s_lshl_b32 s45, s45, 2")
        if rotx == 3: A("s_lshr_b32 s45, s2, 5"); A("s_lshl_b32 s45, s45, 2"); A("s_add_u32 s45, s45, s2")
        if rotx == 5: A("s_and_b32 s45, s2, 7"); A("s_lshl_b32 s45, s45, 2")
        if rotx == 6: A("s_lshr_b32 s45, s2, 3")
        if rotx == 7: A("s_and_b32 s45, s2, 7")
        if rotx == 8: A("s_lshr_b32 s45, s2, 3"); A("s_and_b32 s45, s45, 3"); A("s_lshl_b32 s45, s45, 3")
        A(f"s_and_b32 s45, s45, {1024 // rg - 1}"); A(f"s_mul_i32 s45, s45, {rg*1024}")
        A("s_add_u32 s42, s42, s45")
    elif rotm:
        A(f"s_mul_i32 s45, s2, {rotm}"); A(f"s_and_b32 s45, s45, {1024 // rg - 1}"); A(f"s_mul_i32 s45, s45, {rg*1024}")
        A("s_add_u32 s42, s42, s45")
    A("s_waitcnt lgkmcnt(0)")
    kp, vp = (20, 18) if swapkv else (18, 20)
    A(f"s_add_u32 s8, s{kp}, s6"); A(f"s_addc_u32 s9, s{kp+1}, s7"); A("s_mov_b32 s10, 0x100000"); A("s_mov_b32 s11, 0x20000")
    A(f"s_add_u32 s12, s{vp}, s6"); A(f"s_addc_u32 s13, s{vp+1}, s7"); A("s_mov_b32 s14, 0x100000"); A("s_mov_b32 s15, 0x20000")
    P.stamp()
    if dyn == 4: A("s_memrealtime s[70:71]")
    cur_page = [None]
    def kv_load(n):
        isv = n >= 256; m = n % 256
        vi, wi = m // C, m % C
        byte = vi * 4 * C * 1024 + (wi // 2) * 2048 + ((wi % 2) * (1024 if (isv or ktest) else 128))
        page, imm = byte // 4096 * 4096, byte % 4096
        if cur_page[0] != page:
            A(f"s_add_u32 s43, s42, {page}"); cur_page[0] = page
            if rotm: A("s_and_b32 s43, s43, 0xfffff")
        v = RING + (n % R) * 4
        A.issue(("kv", n), f"buffer_load_dwordx4 v[{v}:{v+3}], v{vV if isv else vK}, s[{'12:15' if isv else '8:11'}], s43 offen offset:{imm} {kvpol}")
    def win(n):
        if Ntail is not None and n >= tail_from: return Ntail
        if dyn and n >= dyn_from: return NH
        return N
    issued = [0]
    def pace():
        n = issued[0]
        if n >= 512: return False
        w = win(n)
        if Ntail is not None and n >= tail_from:
            if n - Ntail >= 0: A.wait(("kv", n - Ntail))
        elif dyn and n >= dyn_from:
            lab = f"Lw{n}"
            A(f"s_cbranch_vccnz {lab}"); A(f"s_waitcnt vmcnt({N-1})"); A.label(lab)
            A.wait(("kv", n - NH))
        elif n - w >= 0: A.wait(("kv", n - w))
        kv_load(n); issued[0] += 1
        if diag == 5 and n < 44: P.stamp()
        return True
    if nostream:
        A("s_barrier"); A("s_barrier"); A("s_endpgm")
    for _ in range(K0 if bar0 else N): pace()
    A("v_and_b32 v6, 1, v2"); A("v_lshlrev_b32 v6, 4, v6")
    A("v_mov_b32 v7, 0xffff"); A("v_lshlrev_b32 v7, v6, v7")
    A("v_bfe_u32 v6, v2, 1, 2")
    for r in range(4):
        A(f"v_cmp_eq_u32 vcc, {r}, v6"); A.nop(2); A(f"v_cndmask_b32 v{MASK+r}, 0, v7, vcc")
    A("v_lshrrev_b32 v6, 1, v2")
    for t in range(8): A(f"v_cmp_eq_u32 s[{48+2*t}:{49+2*t}], {t}, v6")
    A("v_and_b32 v6, 1, v2"); A("v_cmp_eq_u32 s[64:65], 0, v6")
    A(f"v_lshl_add_u32 v6, v6, 2, v3"); A(f"v_lshlrev_b32 v6, 5, v6")
    if bar0:
        A("s_barrier")
        P.stamp()
    while issued[0] < S0:
        pace()
        if diag == 3: P.stamp()
    P.stamp()
    A("s_barrier")
    P.stamp()
    for a in range(4):
        for half in range(2):
            for q in range(2):
                v = BQ + a * 16 + half * 8 + q * 4
                A(f"ds_read_b128 v[{v}:{v+3}], v6 offset:{L_QP + a*512 + half*256 + q*16}")
    if issued[0] < R: pace()
    A("s_waitcnt lgkmcnt(0)")
    for k in range(16):
        A(f"v_add_f32 v{TM-16+k}, v{BQ+k}, v{BQ+16+k}")
        A(f"v_add_f32 v{BQ+32+k}, v{BQ+32+k}, v{BQ+48+k}")
    if issued[0] < R: pace()
    for k in range(16):
        A(f"v_add_f32 v{S+k}, v{S+k}, v{BQ+32+k}")
    for k in range(8):
        A(f"v_cvt_pk_bf16_f32 v{TM+k}, v{S+2*k}, v{S+2*k+1}")
    if issued[0] < R: pace()
    for t in range(8):
        for k in range(8):
            A(f"v_cndmask_b32 v{BQ+t*8+k}, 0, v{TM+k}, s[{48+2*t}:{49+2*t}]")
        if t % 2 == 1 and issued[0] < R: pace()
    P.stamp()
    if dyn:
        A("s_mov_b64 vcc, 0")
        if dyn == 5:
            A(f"s_lshr_b32 s67, {wmask}, s3"); A("s_bitcmp1_b32 s67, 0"); A("s_cselect_b64 vcc, -1, 0")
        A("s_lshl_b32 s67, s3, 2"); A(f"v_mov_b32 v{TM+12}, s67"); A(f"v_mov_b32 v{TM+14}, 0")
    deferred = []
    unit = [0]
    def run_deferred(force=False):
        k = 0
        while k < len(deferred):
            if force or deferred[k][0] <= unit[0]:
                deferred.pop(k)[1]()
            else: k += 1
    def merge(t16):
        d = D + (t16 % 2) * 4
        a, b = TM + 8, TM + 9
        A(f"v_cndmask_b32 v{a}, v{d+3}, v{d}, s[64:65]")
        A(f"v_cndmask_b32 v{b}, v{d+1}, v{d+2}, s[64:65]")
        A.nop(2)
        A(f"v_add_f32_dpp v{a}, v{b}, v{a} quad_perm:[1,0,3,2] row_mask:0xf bank_mask:0xf")
        bf16r(A, a, a)
        A(f"v_mul_f32 v{a}, {SCALE:#x}, v{a}")
        bf16r(A, S + t16, a)
    def hooks(step, cc):
        if not dyn or dyn == 5: return
        if dyn == 4:
            if cc == 2: A("s_memrealtime s[68:69]")
            if cc == 6 and step >= 2:
                tref = T2 + (min(step, 16) - 2) * TK + max(step - 16, 0) * TV + MARG
                A("s_waitcnt lgkmcnt(0)"); A("s_sub_u32 s68, s68, s70")
                A(f"s_cmp_gt_u32 s68, {tref}"); A("s_cselect_b64 vcc, -1, 0")
            return
        if cc == 2 and dyn == 7 and step == BS0 - 1:
            A(f"ds_read_b32 v{TM+13}, v{TM+14} offset:{L_MODE}")
        if cc == 2 and dyn not in (2, 6, 7):
            A(f"v_mov_b32 v{TM+11}, {step}")
            A(f"ds_write_b32 v{TM+12}, v{TM+11} offset:{L_PROG}")
            if dyn == 3: A(f"ds_read_b32 v{TM+13}, v{TM+14} offset:{L_MODE}")
        if cc == 6:
            if dyn == 3:
                A("s_waitcnt lgkmcnt(0)"); A(f"v_readfirstlane_b32 s67, v{TM+13}")
                A("s_cmp_lg_u32 s67, 0"); A("s_cselect_b64 vcc, -1, 0")
            elif dyn == 2:
                if step == even_boost[0]: A("s_bitcmp0_b32 s2, 0"); A("s_cselect_b64 vcc, -1, 0")
                if step == even_boost[1]: A("s_mov_b64 vcc, 0")
            elif dyn == 7:
                if step == BS0 - 1:
                    A("s_waitcnt lgkmcnt(0)"); A(f"v_readfirstlane_b32 s72, v{TM+13}")
                if BS0 <= step <= BS0 + 8:
                    A(f"s_cmp_gt_u32 s72, {step - BS0}"); A("s_cselect_b64 vcc, -1, 0")
            elif dyn == 6:
                if step in kboost: A("s_mov_b64 vcc, -1")
                elif even_boost[0] <= step < even_boost[1]:
                    A("s_getreg_b32 s67, hwreg(HW_REG_XCC_ID)"); A("s_bitcmp0_b32 s67, 0"); A("s_cselect_b64 vcc, -1, 0")
                elif (step - 1) in kboost or step == even_boost[1]: A("s_mov_b64 vcc, 0")
    def k_consume(c):
        hooks(c // 16, c % 16)
        if diag == 4 and c % 32 == 0 and c: P.stamp()
        t16, tt, half = c // 16, (c % 16) // 2, c % 2
        d = D + (t16 % 2) * 4
        v = RING + (c % R) * 4
        A.wait(("kv", c))
        b = BQ + tt * 8 + half * 4
        cs = "0" if c % 16 == 0 else f"v[{d}:{d+3}]"
        A(f"v_mfma_f32_16x16x32_bf16 v[{d}:{d+3}], v[{v}:{v+3}], v[{b}:{b+3}], {cs}")
        if c % 16 == 15: deferred.append((unit[0] + 9, lambda t=t16: merge(t)))
    def pexp(t16):
        a = TM + 10
        A(f"v_sub_f32 v{a}, v{S+t16}, v{TM}")
        A(f"v_mul_f32 v{a}, {LOG2E:#x}, v{a}")
        A(f"v_exp_f32 v{a}, v{a}")
        A.nop(1)
        A(f"v_add_f32 v{TM+1}, v{TM+1}, v{a}")
        A(f"v_cvt_pk_bf16_f32 v{S+t16}, v{a}, v{a}")
    def abuild(c):
        at = AT + (c % 2) * 4
        for r in range(4):
            A(f"v_and_b32_dpp v{at+r}, v{S + c//16}, v{MASK+r} row_newbcast:{c%16} row_mask:0xf bank_mask:0xf")
    def v_consume(c):
        hooks(16 + c // 16, c % 16)
        if diag == 4 and c % 64 == 0 and c: P.stamp()
        at = AT + (c % 2) * 4
        v = RING + ((256 + c) % R) * 4
        if c + 1 < 256: abuild(c + 1)
        else: A.nop(2)
        A.wait(("kv", 256 + c))
        cs = "0" if c == 0 else f"v[{O}:{O+3}]"
        A(f"v_mfma_f32_16x16x32_bf16 v[{O}:{O+3}], v[{at}:{at+3}], v[{v}:{v+3}], {cs}")
        if c % 16 == 4 and c // 16 + 1 < 16: pexp(c // 16 + 1)
        if c == 236 and earlyml:
            allreduce(A, "add", TM + 1, TM + 2)
            A("s_lshl_b32 s44, s3, 3"); A("v_mov_b32 v7, s44")
            A(f"v_mov_b32 v{TM+2}, v{TM}"); A(f"v_mov_b32 v{TM+3}, v{TM+1}")
            A("s_mov_b64 exec, 1")
            A(f"ds_write_b64 v7, v[{TM+2}:{TM+3}] offset:{L_ML}")
            A("s_mov_b64 exec, -1")
            A("v_lshlrev_b32 v6, 5, v2"); A("v_lshl_add_u32 v6, v3, 4, v6")
            A("s_lshl_b32 s44, s3, 9"); A("v_add_u32 v6, s44, v6")
    c = 0
    while c < 256:
        can_issue = issued[0] < 512 and issued[0] - R < c
        if can_issue: pace()
        lag = issued[0] - win(max(issued[0]-1,0)) - c
        k = catch if lag > 1 else 1
        for _ in range(k):
            if c < 256:
                k_consume(c); c += 1
                unit[0] += 1; run_deferred()
    A.nop(8)
    run_deferred(force=True)
    P.stamp()
    def pace_ok():
        if issued[0] < 512 and issued[0] - R < 256: pace()
    A(f"v_max3_f32 v{TM}, v{S}, v{S+1}, v{S+2}")
    for k in range(3, 15, 2): A(f"v_max3_f32 v{TM}, v{TM}, v{S+k}, v{S+k+1}")
    A(f"v_max_f32 v{TM}, v{TM}, v{S+15}")
    pace_ok()
    allreduce(A, "max", TM, TM + 2)
    pace_ok()
    A(f"v_mov_b32 v{TM+1}, 0")
    pexp(0)
    A.nop(2)
    abuild(0)
    P.stamp()
    c = 0
    while c < 256:
        can_issue = issued[0] < 512 and issued[0] - R < 256 + c
        if can_issue: pace()
        while Ntail is not None and tail_from <= issued[0] < 512 and issued[0] - (256 + c) < Ntail and issued[0] - R < 256 + c: pace()
        lag = issued[0] - win(max(issued[0]-1,0)) - (256 + c)
        k = catch if (lag > 1 or issued[0] >= 512) else 1
        for _ in range(k):
            if c < 256:
                v_consume(c); c += 1
    P.stamp()
    if not earlyml:
        allreduce(A, "add", TM + 1, TM + 2)
        A("v_lshlrev_b32 v6, 5, v2"); A("v_lshl_add_u32 v6, v3, 4, v6")
        A("s_lshl_b32 s44, s3, 9"); A("v_add_u32 v6, s44, v6")
        A("s_lshl_b32 s44, s3, 3"); A("v_mov_b32 v7, s44")
        A(f"v_mov_b32 v{TM+2}, v{TM}"); A(f"v_mov_b32 v{TM+3}, v{TM+1}")
        assert (TM + 2) % 2 == 0
        A("s_mov_b32 exec_hi, 0")
        A(f"ds_write_b128 v6, v[{O}:{O+3}] offset:{L_OP}")
        A("s_mov_b32 exec_lo, 1")
        A(f"ds_write_b64 v7, v[{TM+2}:{TM+3}] offset:{L_ML}")
    else:
        A("s_mov_b32 exec_hi, 0")
        A.nop(7)
        A(f"ds_write_b128 v6, v[{O}:{O+3}] offset:{L_OP}")
    A("s_waitcnt lgkmcnt(0)")
    A("s_barrier")
    P.stamp()
    if tail2:
        A("s_mov_b64 exec, -1")
        P.flush()
        A("s_branch L_b3")
    else:
        P.flush()
        A("s_endpgm")
    A.vm = []
    P = Prof(A, prof, 63)
    A.label("L_aux")
    if dyn == 7: A("s_memrealtime s[74:75]")
    SEL = 8
    AT = 16
    DO = 24
    DQ = 44
    X = 48
    F = 53
    T = 4
    PP = 64
    BUF = 96
    A("s_sub_u32 s42, s3, 4")
    A("s_mul_i32 s43, s42, 160"); A("v_mul_u32_u24 v4, 40, v3"); A("v_add_u32 v4, s43, v4")
    A("v_lshlrev_b32 v4, 13, v4"); A("v_lshl_add_u32 v4, v2, 4, v4")
    A("v_lshlrev_b32 v5, 2, v0")
    A("s_mul_i32 s6, s4, 1280"); A("s_lshl_b32 s7, s5, 8")
    A("s_sub_u32 s44, 5242880, s7")
    A("s_waitcnt lgkmcnt(0)")
    if dyn == 7:
        A("s_cmp_lg_u32 s42, 1"); A("s_cbranch_scc1 L_nostart")
        A("s_cmp_ge_u32 s2, 8"); A("s_cbranch_scc1 L_nostart")
        A("s_or_b32 s76, s74, 1"); A("v_mov_b32 v6, s76"); A("s_lshl_b32 s76, s2, 5"); A("v_mov_b32 v7, s76")
        A("s_mov_b64 exec, 1")
        A("global_store_dword v7, v6, s[38:39] offset:12 sc1")
        A("s_mov_b64 exec, -1")
        A.label("L_nostart")
    srd(A, 8, 16, 17, 6, 1280)
    srd(A, 12, 22, 23, 7, "s44")
    P.stamp()
    for k in range(5):
        A.issue(("x", k), f"buffer_load_dword v{X+k}, v5, s[8:11], 0 offen offset:{k*256}")
    A("s_lshl_b32 s45, s4, 15")
    def wq_load(j):
        v = BUF + 4 * j
        if NQ and j >= NQ: A.wait(("wq", j - NQ))
        A.issue(("wq", j), f"buffer_load_dwordx4 v[{v}:{v+3}], v4, s[12:15], s45 offen {wpol}")
        if j < 39:
            A("s_add_u32 s45, s45, 8192"); A(f"s_cmp_eq_u32 s45, {40*8192}"); A("s_cselect_b32 s45, 0, s45")
    if bar0 == 2: WQ0 = 40
    for j in range(WQ0): wq_load(j)
    if bar0 == 2: A("s_barrier")
    A("v_and_b32 v6, 1, v2")
    A("v_cmp_eq_u32 vcc, 0, v6")
    A("v_mov_b32 v60, 0x01000c0c"); A("v_mov_b32 v61, 0x0c0c0100")
    A("v_cndmask_b32 v60, v60, v61, vcc")
    A("v_mov_b32 v6, 0x03020c0c"); A("v_mov_b32 v61, 0x0c0c0302")
    A("v_cndmask_b32 v61, v6, v61, vcc")
    A("v_bfe_u32 v6, v2, 1, 2"); A("v_mov_b32 v7, 0x0c0c0c0c")
    for r in range(4):
        A(f"v_cmp_eq_u32 vcc, {r}, v6"); A.nop(2)
        A(f"v_cndmask_b32 v{SEL+r}, v7, v60, vcc"); A(f"v_cndmask_b32 v{SEL+4+r}, v7, v61, vcc")
    for k in range(20): A(f"v_mov_b32 v{DO+k}, 0")
    A.wait(("x", 4))
    P.stamp()
    LN = Asm(); layernorm(LN, X, F, (84, 85, 86, 87), X)
    rem = list(range(WQ0, 40)); step = max(1, len(LN.L) // (len(rem) + 1))
    for i, ins in enumerate(LN.L):
        A.L.append(ins)
        if rem and i % step == step - 1: wq_load(rem.pop(0))
    for j in rem: wq_load(j)
    if bar0 == 1: A("s_barrier")
    A("s_mul_i32 s43, s42, 1280")
    A("v_lshlrev_b32 v5, 2, v0"); A("v_add_u32 v5, s43, v5")
    for k in range(5): A(f"ds_write_b32 v5, v{X+k} offset:{L_XN + 256*k}")
    A("s_mul_i32 s43, s42, 1600"); A("v_mul_u32_u24 v5, 80, v3"); A("v_add_u32 v5, s43, v5")
    A("s_lshl_b32 s46, s4, 3")
    A("s_waitcnt lgkmcnt(0)")
    for k in range(10):
        A(f"v_add_u32 v6, s46, v5")
        A(f"ds_read_b64 v[{PP+2*k}:{PP+2*k+1}], v6 offset:{L_XN}")
        A("s_add_u32 s46, s46, 8"); A("s_cmp_eq_u32 s46, 80"); A("s_cselect_b32 s46, 0, s46")
    A("s_waitcnt lgkmcnt(0)")
    P.stamp()
    def abuild_p(preg, par, st):
        at = AT + st * 4
        for r in range(4): A(f"v_perm_b32 v{at+r}, v{preg}, v{preg}, v{SEL + par*4 + r}")
    abuild_p(PP, 0, 0)
    for j in range(40):
        if j + 1 < 40: abuild_p(PP + (j + 1) // 2, (j + 1) % 2, (j + 1) % 2)
        else: A.nop(2)
        A.wait(("wq", j))
        at = AT + (j % 2) * 4; v = BUF + 4 * j
        cs = "0" if j == 0 else f"v[{DQ}:{DQ+3}]"
        A(f"v_mfma_f32_16x16x32_bf16 v[{DQ}:{DQ+3}], v[{at}:{at+3}], v[{v}:{v+3}], {cs}")
    A("v_lshlrev_b32 v6, 5, v2"); A("v_lshl_add_u32 v6, v3, 4, v6")
    A("s_lshl_b32 s43, s42, 9"); A("v_add_u32 v7, s43, v6")
    A.nop(6)
    A("s_mov_b32 exec_hi, 0")
    A(f"ds_write_b128 v7, v[{DQ}:{DQ+3}] offset:{L_QP}")
    A("s_mov_b32 exec_hi, -1")
    if dyn:
        A("v_lshlrev_b32 v6, 2, v0"); A("v_mov_b32 v7, 0")
        A("s_mov_b64 exec, 0xff")
        A(f"ds_write_b32 v6, v7 offset:{L_PROG}")
        A("s_mov_b64 exec, -1")
    A("s_waitcnt lgkmcnt(0)")
    P.stamp()
    A("s_barrier")
    A("s_cmp_lg_u32 s42, 0"); A("s_cbranch_scc1 L_wo")
    A("s_cmp_ge_u32 s5, %d" % (0 if nomlp else 27)); A("s_cbranch_scc1 L_wo")
    layernorm(A, X, F, T, X)
    A("v_lshlrev_b32 v4, 2, v0")
    for k in range(5): A(f"ds_write_b32 v4, v{X+k} offset:{L_Y + 256*k}")
    A("s_lshl_b32 s6, s5, 7")
    A(f"s_sub_u32 s44, {640*3456}, s6")
    srd(A, 8, 28, 29, 6, "s44")
    srd(A, 12, 30, 31, 6, 128)
    A("v_lshlrev_b32 v5, 1, v0")
    A.issue(("b1", 0), f"buffer_load_ushort v{F}, v5, s[12:15], 0 offen")
    A("v_lshrrev_b32 v5, 3, v2"); A("v_lshl_add_u32 v5, v3, 1, v5")
    A("v_mul_u32_u24 v6, 160, v5")
    A(f"s_mov_b32 s45, {(1 if tlbtest & 1 else 80)*3456}"); A("v_mul_lo_u32 v5, s45, v5")
    A("v_and_b32 v7, 7, v2"); A("v_lshl_add_u32 v5, v7, 4, v5")
    A("s_waitcnt lgkmcnt(0)")
    PY = BUF
    for k in range(10): A(f"ds_read_b128 v[{PY+4*k}:{PY+4*k+3}], v6 offset:{L_Y + 16*k}")
    RB, RN = BUF + 40, 30
    def w1_load(j):
        v = RB + (j % RN) * 4
        A(f"s_mov_b32 s45, {j*3456*(8 if tlbtest & 1 else 1)}")
        A.issue(("w1", j), f"buffer_load_dwordx4 v[{v}:{v+3}], v5, s[8:11], s45 offen {wpol}")
    for j in range(NW): w1_load(j)
    A("s_waitcnt lgkmcnt(0)")
    abuild_p(PY, 0, 0)
    for j in range(80):
        if j + 1 < 80: abuild_p(PY + (j + 1) // 2, (j + 1) % 2, (j + 1) % 2)
        else: A.nop(2)
        A.wait(("w1", j))
        at = AT + (j % 2) * 4; v = RB + (j % RN) * 4
        cs = "0" if j == 0 else f"v[{DQ}:{DQ+3}]"
        A(f"v_mfma_f32_16x16x32_bf16 v[{DQ}:{DQ+3}], v[{at}:{at+3}], v[{v}:{v+3}], {cs}")
        if j + NW < 80: w1_load(j + NW)
    A("s_mul_i32 s6, s5, 81920")
    A(f"s_sub_u32 s44, {1728*1280}, s6")
    srd(A, 8, 32, 33, 6, "s44")
    A("v_mul_u32_u24 v5, 20480, v3"); A("v_lshl_add_u32 v5, v2, 4, v5")
    def w2_load(n):
        jj, cb = n // 5, n % 5
        v = RB + (n % RN) * 4
        if cb == 0: A(f"s_mov_b32 s45, {jj*1280}")
        A.issue(("w2", n), f"buffer_load_dwordx4 v[{v}:{v+3}], v5, s[8:11], s45 offen offset:{cb*256} {wpol}")
    for n in range(10): w2_load(n)
    A("v_lshrrev_b32 v6, 1, v3"); A("v_lshrrev_b32 v7, 3, v2")
    A("v_cmp_eq_u32 vcc, v6, v7")
    A("v_lshlrev_b32 v6, 8, v6"); A("v_and_b32 v7, 7, v2"); A("v_lshl_add_u32 v6, v7, 5, v6")
    A("v_and_b32 v7, 1, v3"); A("v_lshl_add_u32 v6, v7, 4, v6")
    A("s_and_saveexec_b64 s[46:47], vcc")
    A(f"ds_write_b128 v6, v[{DQ}:{DQ+3}] offset:{L_T}")
    A("s_mov_b64 exec, s[46:47]")
    A("v_lshlrev_b32 v6, 2, v0")
    A("s_waitcnt lgkmcnt(0)")
    A(f"ds_read_b32 v{F+1}, v6 offset:{L_T}"); A(f"ds_read_b32 v{F+2}, v6 offset:{L_T+256}")
    A("s_waitcnt lgkmcnt(0)")
    A(f"v_add_f32 v{F+1}, v{F+1}, v{F+2}")
    bf16r(A, F + 1, F + 1)
    A.wait(("b1", 0))
    A(f"v_lshlrev_b32 v{F}, 16, v{F}")
    A(f"v_add_f32 v{F+1}, v{F+1}, v{F}")
    bf16r(A, F + 1, F + 1)
    x_, u_, e_ = F + 1, F + 2, F + 3
    A(f"v_mul_f32 v{u_}, v{x_}, v{x_}"); A(f"v_mul_f32 v{u_}, v{u_}, v{x_}")
    A(f"v_mov_b32 v{e_}, {f2u(0.044715):#x}"); A(f"v_fma_f32 v{u_}, v{u_}, v{e_}, v{x_}")
    A(f"v_mul_f32 v{u_}, {f2u(-2*0.7978845608028654*1.4426950408889634):#x}, v{u_}")
    A(f"v_exp_f32 v{u_}, v{u_}"); A.nop(1)
    A(f"v_add_f32 v{u_}, 1.0, v{u_}"); A(f"v_rcp_f32 v{u_}, v{u_}"); A.nop(1)
    A(f"v_mul_f32 v{u_}, v{x_}, v{u_}")
    A(f"v_cvt_pk_bf16_f32 v{u_}, v{u_}, v{u_}")
    A("v_lshlrev_b32 v6, 1, v0")
    A(f"ds_write_b16 v6, v{u_} offset:{L_HV}")
    A("v_lshlrev_b32 v6, 5, v3")
    A("s_waitcnt lgkmcnt(0)")
    for k in range(2): A(f"ds_read_b128 v[{PP+4*k}:{PP+4*k+3}], v6 offset:{L_HV + 16*k}")
    A("s_waitcnt lgkmcnt(0)")
    abuild_p(PP, 0, 0)
    nl = 10
    for jj in range(16):
        if jj + 1 < 16: abuild_p(PP + (jj + 1) // 2, (jj + 1) % 2, (jj + 1) % 2)
        else: A.nop(2)
        at = AT + (jj % 2) * 4
        for cb in range(5):
            n = jj * 5 + cb
            A.wait(("w2", n))
            v = RB + (n % RN) * 4; d = DO + 4 * cb
            A(f"v_mfma_f32_16x16x32_bf16 v[{d}:{d+3}], v[{at}:{at+3}], v[{v}:{v+3}], v[{d}:{d+3}]")
            if nl < 80: w2_load(nl); nl += 1
    A.waitall()
    A.label("L_wo")
    A.vm = []
    def zero_init():
        A("s_cmp_lg_u32 s42, 1"); A("s_cbranch_scc1 L_zero_done")
        A("s_mul_i32 s6, s4, 2560"); A("s_mul_i32 s43, s5, 80"); A("s_add_u32 s6, s6, s43"); A("s_add_u32 s6, s6, 0x100000")
        srd(A, 8, 40, 41, 6, 80)
        A("v_lshlrev_b32 v6, 2, v0"); A("v_mov_b32 v7, 0")
        A("buffer_store_dword v7, v6, s[8:11], 0 offen sc1")
        A("s_lshl_b32 s6, s4, 5"); A("v_mov_b32 v6, s6"); A("v_mov_b32 v7, 1")
        A("s_waitcnt vmcnt(0)")
        A("s_mov_b64 exec, 1")
        A("global_atomic_add v6, v7, s[38:39] offset:4")
        A("s_mov_b64 exec, -1")
        A.label("L_zero_done")
    if fused == 3 and not zlate: zero_init()
    A("s_mul_i32 s6, s5, 163840")
    srd(A, 8, 24, 25, 6, 163840)
    A("s_lshl_b32 s43, s42, 5"); A("v_lshlrev_b32 v5, 3, v3"); A("v_add_u32 v5, s43, v5")
    A("v_mul_u32_u24 v5, 1280, v5"); A("v_lshl_add_u32 v5, v2, 4, v5")
    for n in range(0 if nowo else 40):
        jj, cb = n // 5, n % 5
        v = BUF + 4 * n
        if cb == 0: A(f"s_mov_b32 s45, {jj*1280}")
        if n >= NA: A.wait(("wo", n - NA))
        A.issue(("wo", n), f"buffer_load_dwordx4 v[{v}:{v+3}], v5, s[8:11], s45 offen offset:{cb*256} {wpol}")
    if dyn == 3:
        A("s_cmp_lg_u32 s42, 3"); A("s_cbranch_scc1 L_ctrl_done")
        A.waitall() if False else None
        A(f"s_mov_b32 s50, {CK0}"); A("s_mov_b32 s51, 16"); A("s_mov_b32 s52, 0"); A("s_mov_b32 s53, 0")
        A("v_mov_b32 v6, 0"); A("s_mov_b64 exec, 1")
        A.label("L_ctrl")
        A(f"ds_read_b32 v5, v6 offset:{L_PROG}")
        A("s_waitcnt lgkmcnt(0)")
        A("v_readfirstlane_b32 s54, v5")
        A(f"s_cmp_ge_u32 s54, {CKEXIT}"); A("s_cbranch_scc1 L_ctrl_exit")
        A("s_cmp_eq_u32 s52, 0"); A("s_cbranch_scc1 L_ctrl_a")
        A("s_cmp_lt_u32 s54, s53"); A("s_cbranch_scc1 L_ctrl_a")
        A("s_mov_b32 s52, 0"); A("v_mov_b32 v5, 0"); A(f"ds_write_b32 v6, v5 offset:{L_MODE}")
        A.label("L_ctrl_a")
        A("s_cmp_lt_u32 s54, s50"); A("s_cbranch_scc1 L_ctrl_sleep")
        A("v_mov_b32 v7, 1"); A("v_mov_b32 v4, s51")
        A("global_atomic_add v5, v4, v7, s[38:39] sc0")
        A("s_waitcnt vmcnt(0)")
        A("v_readfirstlane_b32 s55, v5")
        A(f"s_add_u32 s50, s50, {CKS}"); A("s_add_u32 s51, s51, 32")
        A("s_mov_b32 s56, 0")
        for th, bo in zip(TH, BO):
            A(f"s_cmp_ge_u32 s55, {th}"); A(f"s_cselect_b32 s56, {bo}, s56")
        A("s_cmp_eq_u32 s56, 0"); A("s_cbranch_scc1 L_ctrl_sleep")
        A(f"ds_read_b32 v5, v6 offset:{L_PROG}")
        A("s_waitcnt lgkmcnt(0)")
        A("v_readfirstlane_b32 s54, v5")
        A("s_add_u32 s53, s54, s56"); A("s_add_u32 s53, s53, 1")
        A("s_mov_b32 s52, 1"); A("v_mov_b32 v5, 1"); A(f"ds_write_b32 v6, v5 offset:{L_MODE}")
        A.label("L_ctrl_sleep")
        A(f"s_sleep {sleep}")
        A("s_branch L_ctrl")
        A.label("L_ctrl_exit")
        A("s_mov_b64 exec, -1")
        A.label("L_ctrl_done")
    if dyn == 7:
        A("s_cmp_lg_u32 s42, 3"); A("s_cbranch_scc1 L_nb_done")
        A("v_lshlrev_b32 v6, 5, v0")
        A("s_mov_b64 exec, 0xff")
        A("global_load_dword v7, v6, s[38:39] offset:12 sc1")
        A("s_waitcnt vmcnt(0)")
        A("s_mov_b32 s76, 0")
        for i in range(8):
            A(f"v_readlane_b32 s77, v7, {i}")
            A("s_sub_u32 s78, s74, s77"); A("s_cmp_lt_u32 s78, 300"); A("s_cselect_b32 s78, s78, 0")
            A("s_cmp_eq_u32 s77, 0"); A("s_cselect_b32 s78, 0, s78")
            A("s_max_u32 s76, s76, s78")
        A(f"s_mul_i32 s76, s76, {LK}"); A("s_add_u32 s76, s76, 512"); A("s_lshr_b32 s76, s76, 10")
        A("s_getreg_b32 s77, hwreg(HW_REG_XCC_ID)"); A("s_bitcmp0_b32 s77, 0"); A(f"s_cselect_b32 s77, {NBE}, 0")
        A("s_add_u32 s76, s76, s77"); A("s_min_u32 s76, s76, 8")
        A("s_mov_b64 exec, 1")
        A("v_mov_b32 v6, 0"); A("v_mov_b32 v7, s76")
        A(f"ds_write_b32 v6, v7 offset:{L_MODE}")
        A("s_mov_b64 exec, -1")
        A.label("L_nb_done")
    if fused == 3 and zlate: zero_init()
    if fused == 3:
        A("s_lshl_b32 s6, s4, 5"); A("v_mov_b32 v90, s6"); A("v_mov_b32 v91, 1")
        A("s_cmp_lg_u32 s42, 0"); A("s_cbranch_scc1 L_zchk_done")
        A.label("L_zchk")
        A("s_mov_b64 exec, 1")
        A("global_load_dword v89, v90, s[38:39] offset:4 sc1")
        A("s_waitcnt vmcnt(0)")
        A("v_readfirstlane_b32 s51, v89")
        A("s_mov_b64 exec, -1")
        A("s_cmp_ge_u32 s51, 32"); A("s_cbranch_scc1 L_zchk_done")
        A("s_sleep 8")
        A("s_branch L_zchk")
        A.label("L_zchk_done")
        A.vm = []
        A.vm.append("pending")
    XB = 60
    XB = 92
    XP = [92, 94, 88]; BP = [44, 46, 60]
    if fused == 3 and fin1:
        A("v_lshlrev_b32 v4, 3, v0")
        A("s_mul_i32 s6, s4, 1280")
        srd(A, 12, 16, 17, 6, 1280)
        srd(A, 68, 34, 35, None, 1280)
        for i in range(3):
            A.issue(("xf", i), f"buffer_load_dwordx2 v[{XP[i]}:{XP[i]+1}], v4, s[12:15], 0 offen offset:{i*512}")
            A.issue(("bf", i), f"buffer_load_dwordx2 v[{BP[i]}:{BP[i]+1}], v4, s[68:71], 0 offen offset:{i*512}")
    elif fused:
        A("s_lshl_b32 s43, s42, 6"); A("v_add_u32 v4, s43, v0"); A("v_lshlrev_b32 v4, 3, v4")
        A("s_mul_i32 s6, s4, 1280")
        srd(A, 12, 16, 17, 6, 1280)
        A.issue(("xf", 0), f"buffer_load_dwordx2 v[{XB}:{XB+1}], v4, s[12:15], 0 offen")
        srd(A, 68, 34, 35, None, 1280)
        A.issue(("xf", 1), f"buffer_load_dwordx2 v[{XB+2}:{XB+3}], v4, s[68:71], 0 offen")
    A("v_lshlrev_b32 v4, 5, v3"); A("s_lshl_b32 s43, s42, 7"); A("v_add_u32 v4, s43, v4")
    A("v_mov_b32 v5, 0")
    A.waitall()
    if dry:
        A("s_mul_i32 s43, s42, 5120"); A("v_lshlrev_b32 v6, 4, v0"); A("v_add_u32 v6, s43, v6")
        for cb in range(5): A(f"ds_write_b128 v6, v[{DO+4*cb}:{DO+4*cb+3}] offset:{L_F + cb*1024}")
        A("s_waitcnt lgkmcnt(0)")
        A("s_mov_b32 s58, 0")
        A("s_branch L_proj")
        A.label("L_proj_back")
        A("s_mul_i32 s43, s42, 5120"); A("v_lshlrev_b32 v6, 4, v0"); A("v_add_u32 v6, s43, v6")
        for cb in range(5): A(f"ds_read_b128 v[{DO+4*cb}:{DO+4*cb+3}], v6 offset:{L_F + cb*1024}")
        A("v_lshlrev_b32 v4, 5, v3"); A("s_lshl_b32 s43, s42, 7"); A("v_add_u32 v4, s43, v4")
        A("v_mov_b32 v5, 0")
        A("s_mov_b32 s58, 1")
        A("s_waitcnt lgkmcnt(0)")
    P.stamp()
    A("s_barrier")
    P.stamp()
    if dry: A.label("L_proj")
    if fused == 2:
        A("s_cmp_lg_u32 s42, 0"); A("s_cbranch_scc1 L_noticket")
        A("s_lshl_b32 s6, s4, 5"); A("v_mov_b32 v90, s6"); A("v_mov_b32 v91, 1")
        A("s_mov_b64 exec, 1")
        A("global_atomic_add v88, v90, v91, s[38:39] sc0")
        A("global_load_dword v89, v90, s[38:39] offset:4 sc1")
        A("s_mov_b64 exec, -1")
        A.label("L_noticket")
    ML = PP
    OV = PP + 8
    A(f"ds_read_b128 v[{ML}:{ML+3}], v5 offset:{L_ML}"); A(f"ds_read_b128 v[{ML+4}:{ML+7}], v5 offset:{L_ML+16}")
    OVR = [72, 80, 48, 16]
    for w in range(4):
        for q in range(2):
            v = OVR[w] + 4 * q
            A(f"ds_read_b128 v[{v}:{v+3}], v4 offset:{L_OP + w*512 + q*16}")
    A("s_waitcnt lgkmcnt(8)")
    A(f"v_max3_f32 v6, v{ML}, v{ML+2}, v{ML+4}"); A(f"v_max_f32 v6, v6, v{ML+6}")
    for w in range(4):
        A(f"v_sub_f32 v{ML+2*w}, v{ML+2*w}, v6"); A(f"v_mul_f32 v{ML+2*w}, {LOG2E:#x}, v{ML+2*w}"); A(f"v_exp_f32 v{ML+2*w}, v{ML+2*w}")
    A.nop(1)
    A(f"v_mul_f32 v7, v{ML}, v{ML+1}")
    for w in range(1, 4): A(f"v_fmac_f32 v7, v{ML+2*w}, v{ML+2*w+1}")
    A("v_rcp_f32 v7, v7"); A.nop(1)
    A("s_waitcnt lgkmcnt(0)")
    for k in range(8):
        A(f"v_mul_f32 v{OVR[0]+k}, v{OVR[0]+k}, v{ML}")
        for w in range(1, 4): A(f"v_fmac_f32 v{OVR[0]+k}, v{OVR[w]+k}, v{ML+2*w}")
        A(f"v_mul_f32 v{OVR[0]+k}, v{OVR[0]+k}, v7")
    PO = 56
    for k in range(4): A(f"v_cvt_pk_bf16_f32 v{PO+k}, v{OVR[0]+2*k}, v{OVR[0]+2*k+1}")
    abuild_p(PO, 0, 0)
    for jj in range(8):
        if jj + 1 < 8: abuild_p(PO + (jj + 1) // 2, (jj + 1) % 2, (jj + 1) % 2)
        else: A.nop(2)
        at = AT + (jj % 2) * 4
        if jj == 0: A.nop(2)
        for cb in range(5):
            v = BUF + 4 * (jj * 5 + cb); d = DO + 4 * cb
            A(f"v_mfma_f32_16x16x32_bf16 v[{d}:{d+3}], v[{at}:{at+3}], v[{v}:{v+3}], v[{d}:{d+3}]")
    A("v_lshlrev_b32 v6, 5, v2"); A("v_lshl_add_u32 v6, v3, 4, v6")
    A("s_mul_i32 s43, s42, 2560"); A("v_add_u32 v6, s43, v6")
    A.nop(4)
    A("s_mov_b32 exec_hi, 0")
    for cb in range(5):
        A(f"ds_write_b128 v6, v[{DO+4*cb}:{DO+4*cb+3}] offset:{L_OUTP + cb*512}")
    A("s_mov_b32 exec_hi, -1")
    if fused == 3:
        A("s_mul_i32 s6, s4, 2560"); A("s_add_u32 s6, s6, 0x100000")
        srd(A, 8, 40, 41, 6, 2560)
    if fused == 2:
        A("s_mul_i32 s6, s4, 2560"); A("s_add_u32 s6, s6, 0x100000")
        srd(A, 8, 40, 41, 6, 2560)
        A("s_cmp_lg_u32 s42, 0"); A("s_cbranch_scc1 L_tk_done")
        A("s_waitcnt vmcnt(0)")
        A("v_readfirstlane_b32 s50, v88"); A("v_readfirstlane_b32 s51, v89")
        A("s_cmp_lg_u32 s50, 0"); A("s_cbranch_scc1 L_tk_spin")
        for k in range(4): A(f"v_mov_b32 v{72+k}, 0")
        A("v_lshlrev_b32 v7, 4, v0")
        for i in range(3): A(f"buffer_store_dwordx4 v[72:75], v7, s[8:11], 0 offen offset:{i*1024} sc1")
        A("s_waitcnt vmcnt(0)")
        A("s_mov_b64 exec, 1")
        A("global_store_dword v90, v91, s[38:39] offset:4 sc1")
        A("s_mov_b64 exec, -1")
        A("s_branch L_tk_done")
        A.label("L_tk_spin")
        A("s_cmp_lg_u32 s51, 0"); A("s_cbranch_scc1 L_tk_done")
        A("s_mov_b64 exec, 1")
        A("global_load_dword v89, v90, s[38:39] offset:4 sc1")
        A("s_waitcnt vmcnt(0)")
        A("v_readfirstlane_b32 s51, v89")
        A("s_mov_b64 exec, -1")
        A("s_branch L_tk_spin")
        A.label("L_tk_done")
    A("s_waitcnt lgkmcnt(0)")
    if dry:
        A("s_cmp_eq_u32 s58, 0"); A("s_cbranch_scc1 L_proj_back")
    P.stamp()
    A.label("L_b3")
    A("s_barrier")
    if not fused:
        A("s_lshl_b32 s43, s42, 6"); A("v_add_u32 v4, s43, v0")
        A("v_cmp_gt_u32 vcc, 160, v4")
        A("v_lshlrev_b32 v4, 4, v4")
        A("s_and_saveexec_b64 s[46:47], vcc")
        A("s_cbranch_execz L_aux_done")
        for w in range(4): A(f"ds_read_b128 v[{72+4*w}:{75+4*w}], v4 offset:{L_OUTP + w*2560}")
        A("s_mul_i32 s6, s66, 2560")
        srd(A, 8, 40, 41, 6, 2560)
        A("s_waitcnt lgkmcnt(0)")
        for k in range(4):
            A(f"v_add_f32 v{72+k}, v{72+k}, v{76+k}"); A(f"v_add_f32 v{80+k}, v{80+k}, v{84+k}"); A(f"v_add_f32 v{72+k}, v{72+k}, v{80+k}")
        A("buffer_store_dwordx4 v[72:75], v4, s[8:11], 0 offen")
    elif fused in (2, 3):
        A("s_mul_i32 s43, s42, 640"); A("v_lshlrev_b32 v4, 2, v0"); A("v_add_u32 v4, s43, v4")
        for i in range(3):
            for w in range(4):
                A(f"ds_read_b32 v{72+4*i+w}, v4 offset:{L_OUTP + w*2560 + i*256}")
        for i in range(3):
            A(f"s_waitcnt lgkmcnt({8-4*i})")
            v = 72 + 4 * i
            A(f"v_add_f32 v{v}, v{v}, v{v+1}"); A(f"v_add_f32 v{v+2}, v{v+2}, v{v+3}"); A(f"v_add_f32 v{v}, v{v}, v{v+2}")
            if i == 2: A("s_mov_b32 exec_hi, 0")
            A(f"buffer_atomic_add_f32 v{v}, v4, s[8:11], 0 offen offset:{i*256}")
        A("s_mov_b32 exec_hi, -1")
        A("s_waitcnt vmcnt(0)")
        P.stamp()
        A("s_barrier")
        if fused == 3 and fin1:
            A("s_cmp_lg_u32 s42, 0"); A("s_cbranch_scc1 L_aux_done")
            A("v_lshlrev_b32 v4, 4, v0"); A("v_lshlrev_b32 v7, 3, v0")
            A("s_mul_i32 s6, s4, 1280")
            srd(A, 12, 36, 37, 6, 1280)
            A("s_mov_b64 exec, 1")
            A("global_atomic_add v5, v90, v91, s[38:39] offset:8 sc0")
            A("s_waitcnt vmcnt(0)")
            A("v_readfirstlane_b32 s43, v5")
            A("s_mov_b64 exec, -1")
            P.stamp()
            A("s_cmp_lg_u32 s43, 31"); A("s_cbranch_scc1 L_aux_done")
            for i in range(3): A(f"buffer_load_dwordx4 v[{72+4*i}:{75+4*i}], v4, s[8:11], 0 offen offset:{i*1024} sc1")
            for i in range(3):
                A(f"s_waitcnt vmcnt({2-i})" if i == 0 else f"s_waitcnt vmcnt({2-i+0})")
                v = 72 + 4 * i
                for k in range(2):
                    A(f"v_lshlrev_b32 v84, 16, v{BP[i]+k}"); A(f"v_and_b32 v85, 0xffff0000, v{BP[i]+k}")
                    A(f"v_add_f32 v{v+2*k}, v{v+2*k}, v84"); A(f"v_add_f32 v{v+1+2*k}, v{v+1+2*k}, v85")
                    A(f"v_lshlrev_b32 v84, 16, v{XP[i]+k}"); A(f"v_and_b32 v85, 0xffff0000, v{XP[i]+k}")
                    A(f"v_add_f32 v{v+2*k}, v{v+2*k}, v84"); A(f"v_add_f32 v{v+1+2*k}, v{v+1+2*k}, v85")
                A(f"v_cvt_pk_bf16_f32 v{v}, v{v}, v{v+1}"); A(f"v_cvt_pk_bf16_f32 v{v+1}, v{v+2}, v{v+3}")
            for i in range(3): A(f"buffer_store_dwordx2 v[{72+4*i}:{73+4*i}], v7, s[12:15], 0 offen offset:{i*512}")
        else:
            A("s_cmp_lg_u32 s42, 0"); A("s_cbranch_scc1 L_wait_flag")
            A("s_mov_b64 exec, 1")
            A("global_atomic_add v5, v90, v91, s[38:39] offset:8 sc0")
            A("s_waitcnt vmcnt(0)")
            A("v_mov_b32 v6, 0")
            A(f"ds_write_b32 v6, v5 offset:{L_FLAG}")
            A("s_mov_b64 exec, -1")
            A("s_waitcnt lgkmcnt(0)")
            A.label("L_wait_flag")
            P.stamp()
            A("s_barrier")
            A("v_mov_b32 v6, 0")
            A(f"ds_read_b32 v5, v6 offset:{L_FLAG}")
            A("s_lshl_b32 s43, s42, 6"); A("v_add_u32 v4, s43, v0")
            A("v_lshlrev_b32 v7, 3, v4"); A("v_lshlrev_b32 v4, 4, v4")
            A("s_mul_i32 s6, s4, 1280")
            srd(A, 12, 36, 37, 6, 1280)
            A("s_waitcnt lgkmcnt(0)")
            A("v_readfirstlane_b32 s43, v5")
            A("s_cmp_lg_u32 s43, 31"); A("s_cbranch_scc1 L_aux_done")
            A("s_cmp_ge_u32 s42, 3"); A("s_cbranch_scc1 L_aux_done")
            A("buffer_load_dwordx4 v[72:75], v4, s[8:11], 0 offen sc1")
            A("s_waitcnt vmcnt(0)")
            for k in range(2):
                A(f"v_lshlrev_b32 v76, 16, v{XB+2+k}"); A(f"v_and_b32 v77, 0xffff0000, v{XB+2+k}")
                A(f"v_add_f32 v{72+2*k}, v{72+2*k}, v76"); A(f"v_add_f32 v{73+2*k}, v{73+2*k}, v77")
                A(f"v_lshlrev_b32 v76, 16, v{XB+k}"); A(f"v_and_b32 v77, 0xffff0000, v{XB+k}")
                A(f"v_add_f32 v{72+2*k}, v{72+2*k}, v76"); A(f"v_add_f32 v{73+2*k}, v{73+2*k}, v77")
            A("v_cvt_pk_bf16_f32 v72, v72, v73"); A("v_cvt_pk_bf16_f32 v73, v74, v75")
            A("buffer_store_dwordx2 v[72:73], v7, s[12:15], 0 offen")
    else:
        NG = 8 if tail2 else 4
        SPW = 32 // NG
        widx = "s3" if tail2 else "s42"
        A("v_lshlrev_b32 v4, 4, v0")
        A("s_cmp_lg_u32 s3, 4"); A("s_cbranch_scc1 L_wait_flag")
        for i in range(3):
            for w in range(4):
                v = BUF + 16 * i + 4 * w
                A(f"ds_read_b128 v[{v}:{v+3}], v4 offset:{L_OUTP + w*2560 + i*1024}")
        SB = 1280 if sl16 else 2560
        A(f"s_mul_i32 s6, s66, {SB}")
        srd(A, 8, 40, 41, 6, SB)
        if sl16: A("v_lshlrev_b32 v5, 3, v0")
        for i in range(3):
            A(f"s_waitcnt lgkmcnt({8-4*i})")
            v = BUF + 16 * i
            for k in range(4):
                A(f"v_add_f32 v{v+k}, v{v+k}, v{v+4+k}"); A(f"v_add_f32 v{v+8+k}, v{v+8+k}, v{v+12+k}"); A(f"v_add_f32 v{v+k}, v{v+k}, v{v+8+k}")
            if sl16:
                A(f"v_cvt_pk_bf16_f32 v{v+4}, v{v}, v{v+1}"); A(f"v_cvt_pk_bf16_f32 v{v+5}, v{v+2}, v{v+3}")
                A(f"buffer_store_dwordx2 v[{v+4}:{v+5}], v5, s[8:11], 0 offen offset:{i*512} sc1")
            else:
                A(f"buffer_store_dwordx4 v[{v}:{v+3}], v4, s[8:11], 0 offen offset:{i*1024} sc1")
        A("s_lshl_b32 s6, s4, 5")
        A("v_mov_b32 v6, s6"); A("v_mov_b32 v7, 1")
        A("s_waitcnt vmcnt(0)")
        P.stamp()
        A("s_mov_b64 s[46:47], exec"); A("s_mov_b64 exec, 1")
        A("global_atomic_add v5, v6, v7, s[38:39] sc0")
        A("s_waitcnt vmcnt(0)")
        A("v_mov_b32 v6, 0")
        A(f"ds_write_b32 v6, v5 offset:{L_FLAG}")
        A("s_mov_b64 exec, s[46:47]")
        A("s_waitcnt lgkmcnt(0)")
        A.label("L_wait_flag")
        P.stamp()
        A("s_barrier")
        A("v_mov_b32 v6, 0")
        A(f"ds_read_b32 v5, v6 offset:{L_FLAG}")
        A(f"s_mul_i32 s6, s4, {32*SB}"); A(f"s_mul_i32 s43, {widx}, {SPW*SB}"); A("s_add_u32 s6, s6, s43")
        srd(A, 8, 40, 41, 6, SPW * SB)
        if sl16: A("v_lshlrev_b32 v7, 3, v0")
        A("s_waitcnt lgkmcnt(0)")
        A("v_readfirstlane_b32 s43, v5")
        if warm:
            A("s_cmp_eq_u32 s43, 31"); A("s_cselect_b32 s10, s10, 0"); A("s_cselect_b32 s57, 1280, 0")
        else:
            A("s_cmp_lg_u32 s43, 31"); A("s_cbranch_scc1 L_aux_done")
        A.vm = []
        for i in range(3):
            for sl in range(SPW):
                v = BUF + (i * SPW + sl) * 4
                if i == 2 and sl == 0: A("s_mov_b32 exec_hi, 0")
                if sl == 0: so = "0"
                else:
                    A(f"s_mov_b32 s45, {sl*SB}"); so = "s45"
                if sl16:
                    A.issue(("g", i, sl), f"buffer_load_dwordx2 v[{v}:{v+1}], v7, s[8:11], {so} offen offset:{i*512} sc1")
                else:
                    A.issue(("g", i, sl), f"buffer_load_dwordx4 v[{v}:{v+3}], v4, s[8:11], {so} offen offset:{i*1024} sc1")
        A("s_mov_b32 exec_hi, -1")
        A(f"s_mul_i32 s43, {widx}, 2560"); A("v_add_u32 v6, s43, v4")
        LF = L_F if tail2 else L_OUTP
        for i in range(3):
            A.wait(("g", i, SPW - 1))
            v = BUF + i * SPW * 4
            if sl16:
                for sl in range(SPW):
                    q = v + 4 * sl
                    A(f"v_lshlrev_b32 v{q+2}, 16, v{q+1}"); A(f"v_and_b32 v{q+3}, 0xffff0000, v{q+1}")
                    A(f"v_and_b32 v{q+1}, 0xffff0000, v{q}"); A(f"v_lshlrev_b32 v{q}, 16, v{q}")
            n = SPW
            stride = 4
            while n > 1:
                for p in range(n // 2):
                    for k in range(4):
                        A(f"v_add_f32 v{v+2*p*stride+k}, v{v+2*p*stride+k}, v{v+(2*p+1)*stride+k}")
                n //= 2; stride *= 2
            if i == 2: A("s_mov_b32 exec_hi, 0")
            A(f"ds_write_b128 v6, v[{v}:{v+3}] offset:{LF + i*1024}")
        A("s_mov_b32 exec_hi, -1")
        A("s_waitcnt lgkmcnt(0)")
        P.stamp()
        A("s_barrier")
        A("s_cmp_lt_u32 s3, 4"); A("s_cbranch_scc1 L_aux_done")
        A("s_lshl_b32 s43, s42, 6"); A("v_add_u32 v4, s43, v0")
        A("v_cmp_gt_u32 vcc, 160, v4")
        A("v_lshlrev_b32 v5, 3, v4")
        A("v_lshlrev_b32 v4, 4, v4")
        A("s_and_saveexec_b64 s[46:47], vcc")
        A("s_cbranch_execz L_aux_done")
        for w in range(NG): A(f"ds_read_b128 v[{BUF+4*w}:{BUF+3+4*w}], v4 offset:{LF + w*2560}")
        A("s_mul_i32 s6, s4, 1280")
        srd(A, 8, 36, 37, 6, "s57" if warm else 1280)
        A("s_waitcnt lgkmcnt(0)")
        n = NG; stride = 4
        while n > 1:
            for p in range(n // 2):
                for k in range(4):
                    A(f"v_add_f32 v{BUF+2*p*stride+k}, v{BUF+2*p*stride+k}, v{BUF+(2*p+1)*stride+k}")
            n //= 2; stride *= 2
        for k in range(2):
            A(f"v_lshlrev_b32 v76, 16, v{XB+2+k}"); A(f"v_and_b32 v77, 0xffff0000, v{XB+2+k}")
            A(f"v_add_f32 v{BUF+2*k}, v{BUF+2*k}, v76"); A(f"v_add_f32 v{BUF+1+2*k}, v{BUF+1+2*k}, v77")
            A(f"v_lshlrev_b32 v76, 16, v{XB+k}"); A(f"v_and_b32 v77, 0xffff0000, v{XB+k}")
            A(f"v_add_f32 v{BUF+2*k}, v{BUF+2*k}, v76"); A(f"v_add_f32 v{BUF+1+2*k}, v{BUF+1+2*k}, v77")
        A(f"v_cvt_pk_bf16_f32 v72, v{BUF}, v{BUF+1}"); A(f"v_cvt_pk_bf16_f32 v73, v{BUF+2}, v{BUF+3}")
        A("buffer_store_dwordx2 v[72:73], v5, s[8:11], 0 offen")
    A.label("L_aux_done")
    P.stamp()
    if prof and tail2:
        A("s_cmp_lt_u32 s3, 4"); A("s_cbranch_scc1 L_end")
    P.flush()
    A.label("L_end")
    A("s_endpgm")
    out += A.L
    kernels = [(kname, 256, 102)]
    if not fused:
        B = Asm()
        out.append(".globl reduce_kernel"); out.append(".p2align 8"); out.append(".type reduce_kernel,@function")
        B.label("reduce_kernel")
        B("s_cmp_ge_u32 s2, 160"); B("s_cbranch_scc1 R_end")
        B("s_load_dwordx2 s[4:5], s[0:1], 0")
        B("s_load_dwordx4 s[8:11], s[0:1], 72")
        B("s_load_dwordx2 s[6:7], s[0:1], 96")
        B("s_mul_hi_u32 s12, s2, 0xccccccd")
        B("s_mul_i32 s13, s12, 20"); B("s_sub_u32 s13, s2, s13")
        B("v_and_b32 v1, 7, v0"); B("v_lshrrev_b32 v2, 3, v0")
        B("v_mul_u32_u24 v3, 10240, v2"); B("v_lshl_add_u32 v3, v1, 4, v3")
        B("s_lshl_b32 s14, s13, 7"); B("v_add_u32 v3, s14, v3")
        B("s_mul_i32 s15, s12, 81920")
        B("s_waitcnt lgkmcnt(0)")
        B("s_add_u32 s16, s6, s15"); B("s_addc_u32 s17, s7, 0"); B("s_mov_b32 s18, 81920"); B("s_mov_b32 s19, 0x20000")
        B("s_mov_b32 s20, 2560"); B("s_mov_b32 s21, 5120"); B("s_mov_b32 s22, 7680")
        B("buffer_load_dwordx4 v[4:7], v3, s[16:19], 0 offen")
        B("buffer_load_dwordx4 v[8:11], v3, s[16:19], s20 offen")
        B("buffer_load_dwordx4 v[12:15], v3, s[16:19], s21 offen")
        B("buffer_load_dwordx4 v[16:19], v3, s[16:19], s22 offen")
        B("s_mul_i32 s15, s12, 1280"); B("s_lshl_b32 s14, s13, 6")
        B("v_lshlrev_b32 v20, 3, v1"); B("v_add_u32 v20, s14, v20")
        B("s_add_u32 s24, s4, s15"); B("s_addc_u32 s25, s5, 0"); B("s_mov_b32 s26, 1280"); B("s_mov_b32 s27, 0x20000")
        B("s_mov_b32 s28, s8"); B("s_mov_b32 s29, s9"); B("s_mov_b32 s30, 1280"); B("s_mov_b32 s31, 0x20000")
        B("s_add_u32 s32, s10, s15"); B("s_addc_u32 s33, s11, 0"); B("s_mov_b32 s34, 1280"); B("s_mov_b32 s35, 0x20000")
        B("buffer_load_dwordx2 v[22:23], v20, s[24:27], 0 offen")
        B("buffer_load_dwordx2 v[24:25], v20, s[28:31], 0 offen")
        B("s_waitcnt vmcnt(2)")
        for k in range(4):
            B(f"v_add_f32 v{4+k}, v{4+k}, v{8+k}"); B(f"v_add_f32 v{12+k}, v{12+k}, v{16+k}"); B(f"v_add_f32 v{4+k}, v{4+k}, v{12+k}")
        B.nop(2)
        for k in range(4): B(f"v_add_f32_dpp v{4+k}, v{4+k}, v{4+k} row_ror:8 row_mask:0xf bank_mask:0xf")
        for sw in ("v_permlane16_swap_b32", "v_permlane32_swap_b32"):
            for k in range(4): B(f"v_mov_b32 v{8+k}, v{4+k}")
            B.nop(2)
            for k in range(4): B(f"{sw} v{4+k}, v{8+k}")
            B.nop(1)
            for k in range(4): B(f"v_add_f32 v{4+k}, v{4+k}, v{8+k}")
        B("s_waitcnt vmcnt(0)")
        for k in range(2):
            B(f"v_lshlrev_b32 v8, 16, v{22+k}"); B(f"v_and_b32 v9, 0xffff0000, v{22+k}")
            B(f"v_lshlrev_b32 v10, 16, v{24+k}"); B(f"v_and_b32 v11, 0xffff0000, v{24+k}")
            B(f"v_add_f32 v{4+2*k}, v{4+2*k}, v10"); B(f"v_add_f32 v{5+2*k}, v{5+2*k}, v11")
            B(f"v_add_f32 v{4+2*k}, v{4+2*k}, v8"); B(f"v_add_f32 v{5+2*k}, v{5+2*k}, v9")
        B("v_cvt_pk_bf16_f32 v4, v4, v5"); B("v_cvt_pk_bf16_f32 v5, v6, v7")
        B("v_cmp_gt_u32 vcc, 8, v0"); B("s_and_saveexec_b64 s[36:37], vcc")
        B("buffer_store_dwordx2 v[4:5], v20, s[32:35], 0 offen")
        B.label("R_end"); B("s_endpgm")
        out += B.L
        kernels.append(("reduce_kernel", 32, 48))
    out.append('.section .rodata,"a"')
    for kn, nv, ns in kernels:
        out += [".p2align 6", f".amdhsa_kernel {kn}", f"  .amdhsa_next_free_vgpr {nv}", f"  .amdhsa_next_free_sgpr {ns}",
                f"  .amdhsa_accum_offset {nv}", "  .amdhsa_group_segment_fixed_size 0", "  .amdhsa_kernarg_size 104",
                "  .amdhsa_user_sgpr_count 2", "  .amdhsa_user_sgpr_kernarg_segment_ptr 1", "  .amdhsa_system_sgpr_workgroup_id_x 1",
                "  .amdhsa_float_denorm_mode_32 3", ".end_amdhsa_kernel"]
    return "\n".join(out) + "\n"

if __name__ == "__main__":
    kw = eval("dict(" + (sys.argv[2] if len(sys.argv) > 2 else "") + ")")
    open(sys.argv[1], "w").write(gen(**kw))
```

```python
import struct, sys

NAME = "parallel_sum__gqa_block_cached__mixer_channel_mlp__decode"
HEADER = open("cdna_kernels/" + NAME + ".s.ref").read().split("; Override launch geometry")[0]

def f2u(x): return struct.unpack("<I", struct.pack("<f", x))[0]
SCALE = f2u(128 ** -0.5)
LOG2E = f2u(1.4426950408889634)
INV640 = f2u(1.0 / 640)
EPS = f2u(1e-5)

L_XN = 0
L_Y = 5120
L_QP = 6400
L_T = 8448
L_HV = 8960
L_OP = 9216
L_ML = 11264
L_OUTP = 11520
L_FLAG = 21760
L_PROG = 22528
L_MODE = 22544
L_F = 22784
LDS_BYTES = 22784 + 8 * 2560 + 1024

DOC = """; One workgroup per (batch b, head h); 8 waves: waves 0-3 stream the K/V cache, waves 4-7 do everything else.
;  streaming waves: 1-KiB non-temporal loads, 5 in flight per wave.  K phase: S = K q through 16x16x32 MFMAs whose B operand
;    is q placed in two columns per 8-key tile (64 scores per register); scores are rounded like the reference (bf16, *Dh^-0.5,
;    bf16).  True per-wave max, p = exp(s - max) in bf16.  V phase: O += p V through MFMAs with a one-hot-times-p A operand.
;  aux waves: LayerNorm, q = LN(x) Wq[:, h] (K-split over 4 waves, LDS reduce), MLP hidden units 64h..64h+63 (h < 27) of
;    batch b, prefetch of Wo[h], flash-style combine of the 4 wave partials, out-projection, float atomics into a per-batch
;    accumulator row in d_ws (zeroed by this launch); the last workgroup of a batch adds x + b2 and writes d_out.
;  d_debug words of batch b: +4 count of zeroed accumulator slices, +8 count of workgroups whose adds are complete.""".split("\n")

class Asm:
    def __init__(self):
        self.L = []
        self.vm = []
        self.landed = set()
        self.nlabel = 0
    def __call__(self, s): self.L.append("    " + s)
    def label(self, s): self.L.append(s + ":")
    def c(self, s): self.L.append("    ; " + s)
    def issue(self, tag, ins):
        self(ins); self.vm.append(tag)
        assert len(self.vm) <= 63, "too many outstanding vmem ops"
    def wait(self, tag):
        if tag not in self.vm: return
        i = self.vm.index(tag)
        n = len(self.vm) - 1 - i
        self(f"s_waitcnt vmcnt({n})")
        self.vm = self.vm[i + 1:]
    def waitall(self):
        if self.vm: self("s_waitcnt vmcnt(0)")
        self.vm = []
    def nop(self, n):
        while n > 0:
            k = min(n, 16); self(f"s_nop {k-1}"); n -= k

def allreduce(A, op, t, u):
    for ror in (8, 4, 2, 1):
        A.nop(2)
        A(f"v_{op}_f32_dpp v{t}, v{t}, v{t} row_ror:{ror} row_mask:0xf bank_mask:0xf")
    for sw in ("v_permlane16_swap_b32", "v_permlane32_swap_b32"):
        A(f"v_mov_b32 v{u}, v{t}")
        A.nop(2)
        A(f"{sw} v{t}, v{u}")
        A.nop(1)
        A(f"v_{op}_f32 v{t}, v{t}, v{u}")

def bf16r(A, d, s):
    A(f"v_cvt_pk_bf16_f32 v{d}, v{s}, v{s}")
    A(f"v_and_b32 v{d}, 0xffff0000, v{d}")

def layernorm(A, X, F, T, OUT):
    if isinstance(T, int): T = (T, T+1, T+2, T+3)
    for k in range(5):
        A(f"v_lshlrev_b32 v{F+2*k}, 16, v{X+k}")
        A(f"v_and_b32 v{F+2*k+1}, 0xffff0000, v{X+k}")
    t, u, m, r = T
    A(f"v_add_f32 v{t}, v{F}, v{F+1}")
    for k in range(2, 10): A(f"v_add_f32 v{t}, v{t}, v{F+k}")
    allreduce(A, "add", t, u)
    A(f"v_mul_f32 v{m}, {INV640:#x}, v{t}")
    A(f"v_sub_f32 v{u}, v{F}, v{m}")
    A(f"v_mul_f32 v{t}, v{u}, v{u}")
    for k in range(1, 10):
        A(f"v_sub_f32 v{u}, v{F+k}, v{m}")
        A(f"v_fmac_f32 v{t}, v{u}, v{u}")
    allreduce(A, "add", t, u)
    A(f"v_mul_f32 v{t}, {INV640:#x}, v{t}")
    bf16r(A, t, t)
    A(f"v_add_f32 v{t}, {EPS:#x}, v{t}")
    bf16r(A, t, t)
    A(f"v_sqrt_f32 v{t}, v{t}")
    A.nop(1)
    bf16r(A, t, t)
    A(f"v_rcp_f32 v{r}, v{t}")
    bf16r(A, m, m)
    for k in range(5):
        A(f"v_sub_f32 v{F+2*k}, v{F+2*k}, v{m}")
        A(f"v_sub_f32 v{F+2*k+1}, v{F+2*k+1}, v{m}")
        A(f"v_cvt_pk_bf16_f32 v{u}, v{F+2*k}, v{F+2*k+1}")
        A(f"v_lshlrev_b32 v{F+2*k}, 16, v{u}")
        A(f"v_and_b32 v{F+2*k+1}, 0xffff0000, v{u}")
        A(f"v_mul_f32 v{F+2*k}, v{F+2*k}, v{r}")
        A(f"v_mul_f32 v{F+2*k+1}, v{F+2*k+1}, v{r}")
        A(f"v_cvt_pk_bf16_f32 v{OUT+k}, v{F+2*k}, v{F+2*k+1}")

def srd(A, d, lo, hi, off_s, size):
    if off_s is None:
        A(f"s_mov_b32 s{d}, s{lo}"); A(f"s_mov_b32 s{d+1}, s{hi}")
    else:
        A(f"s_add_u32 s{d}, s{lo}, s{off_s}"); A(f"s_addc_u32 s{d+1}, s{hi}, 0")
    A(f"s_mov_b32 s{d+2}, {size}")
    A(f"s_mov_b32 s{d+3}, 0x20000")

class Prof:
    def __init__(self, A, on, reg): self.A, self.on, self.reg, self.n = A, on, reg, 0
    def stamp(self):
        if not self.on: return
        A = self.A
        A("s_memrealtime s[92:93]"); A("s_waitcnt lgkmcnt(0)")
        A(f"v_writelane_b32 v{self.reg}, s92, {self.n}"); self.n += 1
    def flush(self):
        if not self.on: return
        A = self.A
        A("s_getreg_b32 s92, hwreg(HW_REG_HW_ID)"); A(f"v_writelane_b32 v{self.reg}, s92, 62")
        A("s_mov_b64 exec, -1")
        A("s_lshl_b32 s94, s2, 3"); A("s_add_u32 s94, s94, s3"); A("s_lshl_b32 s94, s94, 8"); A("s_add_u32 s94, s94, 0x2000000")
        A(f"v_lshlrev_b32 v1, 2, v0"); A("v_add_u32 v1, s94, v1")
        A(f"global_store_dword v1, v{self.reg}, s[40:41]")

def gen(N=5, C=8, S0=24, R=32, catch=2, Ntail=None, tail_from=None, NA=4, wpol="", kvpol="nt", prof=0, fused=0, prio=1, hmap=1, nomlp=0, nowo=0, NW=8, diag=0, nostream=0, WQ0=16, NQ=0, bar0=0, K0=5, dyn=0, NH=8, dyn_from=32, CK0=4, CKS=4, TH=(128,192,232), BO=(1,2,3), CKEXIT=30, sleep=3, even_boost=(16,20), T2=720, TK=226, TV=217, MARG=0, wmask=0, rotm=0, CV=None, tail2=0, rg=32, sl16=0, warm=0, earlyml=1, rotx=0, ktest=0, fin1=1, swapkv=0, zlate=0, NBE=3, LK=26, BS0=16, kboost=(), tlbtest=0, dry=0, THON=32, THOFF=8, PEXIT=120, res=8):
    A = Asm()
    P = Prof(A, prof, 63)
    kname = NAME + "_kernel"
    out = []
    out.append(HEADER.rstrip("\n"))
    lds_bytes = LDS_BYTES if (tail2 or dry or fused == 1) else 22784
    out += DOC
    if fused:
        out.append(f"; @launch grid=(256,1,1) block=(512,1,1) lds={lds_bytes}")
    else:
        out.append(f"; @launch kernel={kname} grid=(256,1,1) block=(512,1,1) lds={lds_bytes}")
        out.append(f"; @launch kernel=reduce_kernel grid=(160,1,1) block=(64,1,1) lds=0")
    out.append('.amdgcn_target "amdgcn-amd-amdhsa--gfx950"')
    out.append(".text"); out.append(f".globl {kname}"); out.append(".p2align 8"); out.append(f".type {kname},@function")
    A.label(kname)
    A("s_cmp_ge_u32 s2, 256"); A("s_cbranch_scc1 L_end")
    A("s_load_dwordx16 s[16:31], s[0:1], 0")
    A("s_load_dwordx8 s[32:39], s[0:1], 64")
    A("s_load_dwordx2 s[40:41], s[0:1], 96")
    A("v_lshrrev_b32 v1, 6, v0")
    A("v_and_b32 v0, 63, v0")
    A("v_readfirstlane_b32 s3, v1")
    A("v_and_b32 v2, 15, v0")
    A("v_lshrrev_b32 v3, 4, v0")
    if hmap == 0:
        A("s_lshr_b32 s4, s2, 5")
        A("s_and_b32 s5, s2, 31")
    else:
        A("s_and_b32 s5, s2, 7"); A("s_lshl_b32 s5, s5, 2"); A("s_bfe_u32 s4, s2, 0x20003"); A("s_add_u32 s5, s5, s4")
        A("s_lshr_b32 s4, s2, 5")
    A("s_lshl_b32 s66, s4, 5"); A("s_add_u32 s66, s66, s5")
    if prof: A("v_mov_b32 v63, 0")
    A("s_cmp_ge_u32 s3, 4"); A("s_cbranch_scc1 L_aux")
    vK, vV = 4, 5
    MASK = 8
    AT = 12
    D = 20
    O = 28
    S = 32
    TM = 48
    BQ = 64
    RING = 128
    assert R * 4 + RING <= 256
    if prio: A(f"s_setprio {prio}")
    A("v_bfe_u32 v6, v2, 1, 1"); A("v_lshlrev_b32 v6, 10, v6")
    A("v_lshrrev_b32 v7, 2, v2"); A("v_lshl_add_u32 v6, v7, 8, v6")
    A("v_and_b32 v7, 1, v2"); A("v_lshl_add_u32 v6, v7, 6, v6")
    A(f"v_lshl_add_u32 v{vK}, v3, 4, v6")
    A(f"v_lshlrev_b32 v{vV}, 4, v0")
    if ktest == 1: A(f"v_lshlrev_b32 v{vK}, 4, v0")
    if ktest == 2:
        A("v_bfe_u32 v6, v0, 2, 2"); A("v_lshlrev_b32 v6, 8, v6"); A("v_lshl_add_u32 v6, v3, 6, v6"); A("v_and_b32 v7, 3, v0")
        A(f"v_lshl_add_u32 v{vK}, v7, 4, v6")
    A("s_lshl_b32 s6, s66, 20"); A("s_lshr_b32 s7, s66, 12")
    if CV is None: CV = C
    A(f"s_mul_i32 s42, s3, {C*1024}")
    if rotx:
        rotm = 1
        if rotx == 2: A("s_lshr_b32 s45, s2, 5"); A("s_lshl_b32 s45, s45, 2")
        if rotx == 3: A("s_lshr_b32 s45, s2, 5"); A("s_lshl_b32 s45, s45, 2"); A("s_add_u32 s45, s45, s2")
        if rotx == 5: A("s_and_b32 s45, s2, 7"); A("s_lshl_b32 s45, s45, 2")
        if rotx == 6: A("s_lshr_b32 s45, s2, 3")
        if rotx == 7: A("s_and_b32 s45, s2, 7")
        if rotx == 8: A("s_lshr_b32 s45, s2, 3"); A("s_and_b32 s45, s45, 3"); A("s_lshl_b32 s45, s45, 3")
        A(f"s_and_b32 s45, s45, {1024 // rg - 1}"); A(f"s_mul_i32 s45, s45, {rg*1024}")
        A("s_add_u32 s42, s42, s45")
    elif rotm:
        A(f"s_mul_i32 s45, s2, {rotm}"); A(f"s_and_b32 s45, s45, {1024 // rg - 1}"); A(f"s_mul_i32 s45, s45, {rg*1024}")
        A("s_add_u32 s42, s42, s45")
    A("s_waitcnt lgkmcnt(0)")
    kp, vp = (20, 18) if swapkv else (18, 20)
    A(f"s_add_u32 s8, s{kp}, s6"); A(f"s_addc_u32 s9, s{kp+1}, s7"); A("s_mov_b32 s10, 0x100000"); A("s_mov_b32 s11, 0x20000")
    A(f"s_add_u32 s12, s{vp}, s6"); A(f"s_addc_u32 s13, s{vp+1}, s7"); A("s_mov_b32 s14, 0x100000"); A("s_mov_b32 s15, 0x20000")
    P.stamp()
    if dyn == 4: A("s_memrealtime s[70:71]")
    cur_page = [None]
    def kv_load(n):
        isv = n >= 256; m = n % 256
        vi, wi = m // C, m % C
        byte = vi * 4 * C * 1024 + (wi // 2) * 2048 + ((wi % 2) * (1024 if (isv or ktest) else 128))
        page, imm = byte // 4096 * 4096, byte % 4096
        if cur_page[0] != page:
            A(f"s_add_u32 s43, s42, {page}"); cur_page[0] = page
            if rotm: A("s_and_b32 s43, s43, 0xfffff")
        v = RING + (n % R) * 4
        A.issue(("kv", n), f"buffer_load_dwordx4 v[{v}:{v+3}], v{vV if isv else vK}, s[{'12:15' if isv else '8:11'}], s43 offen offset:{imm} {kvpol}")
    def win(n):
        if Ntail is not None and n >= tail_from: return Ntail
        if dyn and n >= dyn_from: return NH
        return N
    issued = [0]
    def pace():
        n = issued[0]
        if n >= 512: return False
        w = win(n)
        if Ntail is not None and n >= tail_from:
            if n - Ntail >= 0: A.wait(("kv", n - Ntail))
        elif dyn and n >= dyn_from:
            lab = f"Lw{n}"
            A(f"s_cbranch_vccnz {lab}"); A(f"s_waitcnt vmcnt({N-1})"); A.label(lab)
            A.wait(("kv", n - NH))
        elif n - w >= 0: A.wait(("kv", n - w))
        kv_load(n); issued[0] += 1
        if diag == 5 and n < 44: P.stamp()
        return True
    if nostream:
        A("s_barrier"); A("s_barrier"); A("s_endpgm")
    for _ in range(K0 if bar0 else N): pace()
    A("v_and_b32 v6, 1, v2"); A("v_lshlrev_b32 v6, 4, v6")
    A("v_mov_b32 v7, 0xffff"); A("v_lshlrev_b32 v7, v6, v7")
    A("v_bfe_u32 v6, v2, 1, 2")
    for r in range(4):
        A(f"v_cmp_eq_u32 vcc, {r}, v6"); A.nop(2); A(f"v_cndmask_b32 v{MASK+r}, 0, v7, vcc")
    A("v_lshrrev_b32 v6, 1, v2")
    for t in range(8): A(f"v_cmp_eq_u32 s[{48+2*t}:{49+2*t}], {t}, v6")
    A("v_and_b32 v6, 1, v2"); A("v_cmp_eq_u32 s[64:65], 0, v6")
    A(f"v_lshl_add_u32 v6, v6, 2, v3"); A(f"v_lshlrev_b32 v6, 5, v6")
    if bar0:
        A("s_barrier")
        P.stamp()
    while issued[0] < S0:
        pace()
        if diag == 3: P.stamp()
    P.stamp()
    A("s_barrier")
    P.stamp()
    for a in range(4):
        for half in range(2):
            for q in range(2):
                v = BQ + a * 16 + half * 8 + q * 4
                A(f"ds_read_b128 v[{v}:{v+3}], v6 offset:{L_QP + a*512 + half*256 + q*16}")
    if issued[0] < R: pace()
    A("s_waitcnt lgkmcnt(0)")
    for k in range(16):
        A(f"v_add_f32 v{TM-16+k}, v{BQ+k}, v{BQ+16+k}")
        A(f"v_add_f32 v{BQ+32+k}, v{BQ+32+k}, v{BQ+48+k}")
    if issued[0] < R: pace()
    for k in range(16):
        A(f"v_add_f32 v{S+k}, v{S+k}, v{BQ+32+k}")
    for k in range(8):
        A(f"v_cvt_pk_bf16_f32 v{TM+k}, v{S+2*k}, v{S+2*k+1}")
    if issued[0] < R: pace()
    for t in range(8):
        for k in range(8):
            A(f"v_cndmask_b32 v{BQ+t*8+k}, 0, v{TM+k}, s[{48+2*t}:{49+2*t}]")
        if t % 2 == 1 and issued[0] < R: pace()
    P.stamp()
    if dyn:
        A("s_mov_b64 vcc, 0")
        if dyn == 5:
            A(f"s_lshr_b32 s67, {wmask}, s3"); A("s_bitcmp1_b32 s67, 0"); A("s_cselect_b64 vcc, -1, 0")
        A("s_lshl_b32 s67, s3, 2"); A(f"v_mov_b32 v{TM+12}, s67"); A(f"v_mov_b32 v{TM+14}, 0")
    deferred = []
    unit = [0]
    def run_deferred(force=False):
        k = 0
        while k < len(deferred):
            if force or deferred[k][0] <= unit[0]:
                deferred.pop(k)[1]()
            else: k += 1
    def merge(t16):
        d = D + (t16 % 2) * 4
        a, b = TM + 8, TM + 9
        A(f"v_cndmask_b32 v{a}, v{d+3}, v{d}, s[64:65]")
        A(f"v_cndmask_b32 v{b}, v{d+1}, v{d+2}, s[64:65]")
        A.nop(2)
        A(f"v_add_f32_dpp v{a}, v{b}, v{a} quad_perm:[1,0,3,2] row_mask:0xf bank_mask:0xf")
        bf16r(A, a, a)
        A(f"v_mul_f32 v{a}, {SCALE:#x}, v{a}")
        bf16r(A, S + t16, a)
    def hooks(step, cc):
        if not dyn or dyn == 5: return
        if dyn == 8:
            if cc % res == 0:
                A(f"v_mov_b32 v{TM+11}, {step*4 + cc//4}")
                A(f"ds_write_b32 v{TM+12}, v{TM+11} offset:{L_PROG}")
            if cc % 8 == 2: A(f"ds_read_b32 v{TM+13}, v{TM+14} offset:{L_MODE}")
            if cc % 8 == 6:
                if even_boost[0] <= step < even_boost[1]:
                    A("s_waitcnt lgkmcnt(0)"); A(f"v_readfirstlane_b32 s67, v{TM+13}")
                    A("s_getreg_b32 s73, hwreg(HW_REG_XCC_ID)"); A("s_andn2_b32 s73, 1, s73"); A("s_or_b32 s67, s67, s73")
                    A("s_cmp_lg_u32 s67, 0"); A("s_cselect_b64 vcc, -1, 0")
                else:
                    A("s_waitcnt lgkmcnt(0)"); A(f"v_readfirstlane_b32 s67, v{TM+13}")
                    A("s_cmp_lg_u32 s67, 0"); A("s_cselect_b64 vcc, -1, 0")
            return
        if dyn == 4:
            if cc == 2: A("s_memrealtime s[68:69]")
            if cc == 6 and step >= 2:
                tref = T2 + (min(step, 16) - 2) * TK + max(step - 16, 0) * TV + MARG
                A("s_waitcnt lgkmcnt(0)"); A("s_sub_u32 s68, s68, s70")
                A(f"s_cmp_gt_u32 s68, {tref}"); A("s_cselect_b64 vcc, -1, 0")
            return
        if cc == 2 and dyn == 7 and step == BS0 - 1:
            A(f"ds_read_b32 v{TM+13}, v{TM+14} offset:{L_MODE}")
        if cc == 2 and dyn not in (2, 6, 7):
            A(f"v_mov_b32 v{TM+11}, {step}")
            A(f"ds_write_b32 v{TM+12}, v{TM+11} offset:{L_PROG}")
            if dyn == 3: A(f"ds_read_b32 v{TM+13}, v{TM+14} offset:{L_MODE}")
        if cc == 6:
            if dyn == 3:
                A("s_waitcnt lgkmcnt(0)"); A(f"v_readfirstlane_b32 s67, v{TM+13}")
                A("s_cmp_lg_u32 s67, 0"); A("s_cselect_b64 vcc, -1, 0")
            elif dyn == 2:
                if step == even_boost[0]: A("s_bitcmp0_b32 s2, 0"); A("s_cselect_b64 vcc, -1, 0")
                if step == even_boost[1]: A("s_mov_b64 vcc, 0")
            elif dyn == 7:
                if step == BS0 - 1:
                    A("s_waitcnt lgkmcnt(0)"); A(f"v_readfirstlane_b32 s72, v{TM+13}")
                if BS0 <= step <= BS0 + 8:
                    A(f"s_cmp_gt_u32 s72, {step - BS0}"); A("s_cselect_b64 vcc, -1, 0")
            elif dyn == 6:
                if step in kboost: A("s_mov_b64 vcc, -1")
                elif even_boost[0] <= step < even_boost[1]:
                    A("s_getreg_b32 s67, hwreg(HW_REG_XCC_ID)"); A("s_bitcmp0_b32 s67, 0"); A("s_cselect_b64 vcc, -1, 0")
                elif (step - 1) in kboost or step == even_boost[1]: A("s_mov_b64 vcc, 0")
    def k_consume(c):
        hooks(c // 16, c % 16)
        if diag == 4 and c % 32 == 0 and c: P.stamp()
        t16, tt, half = c // 16, (c % 16) // 2, c % 2
        d = D + (t16 % 2) * 4
        v = RING + (c % R) * 4
        A.wait(("kv", c))
        b = BQ + tt * 8 + half * 4
        cs = "0" if c % 16 == 0 else f"v[{d}:{d+3}]"
        A(f"v_mfma_f32_16x16x32_bf16 v[{d}:{d+3}], v[{v}:{v+3}], v[{b}:{b+3}], {cs}")
        if c % 16 == 15: deferred.append((unit[0] + 9, lambda t=t16: merge(t)))
    def pexp(t16):
        a = TM + 10
        A(f"v_sub_f32 v{a}, v{S+t16}, v{TM}")
        A(f"v_mul_f32 v{a}, {LOG2E:#x}, v{a}")
        A(f"v_exp_f32 v{a}, v{a}")
        A.nop(1)
        A(f"v_add_f32 v{TM+1}, v{TM+1}, v{a}")
        A(f"v_cvt_pk_bf16_f32 v{S+t16}, v{a}, v{a}")
    def abuild(c):
        at = AT + (c % 2) * 4
        for r in range(4):
            A(f"v_and_b32_dpp v{at+r}, v{S + c//16}, v{MASK+r} row_newbcast:{c%16} row_mask:0xf bank_mask:0xf")
    def v_consume(c):
        hooks(16 + c // 16, c % 16)
        if diag == 4 and c % 64 == 0 and c: P.stamp()
        at = AT + (c % 2) * 4
        v = RING + ((256 + c) % R) * 4
        if c + 1 < 256: abuild(c + 1)
        else: A.nop(2)
        A.wait(("kv", 256 + c))
        cs = "0" if c == 0 else f"v[{O}:{O+3}]"
        A(f"v_mfma_f32_16x16x32_bf16 v[{O}:{O+3}], v[{at}:{at+3}], v[{v}:{v+3}], {cs}")
        if c % 16 == 4 and c // 16 + 1 < 16: pexp(c // 16 + 1)
        if c == 236 and earlyml:
            allreduce(A, "add", TM + 1, TM + 2)
            A("s_lshl_b32 s44, s3, 3"); A("v_mov_b32 v7, s44")
            A(f"v_mov_b32 v{TM+2}, v{TM}"); A(f"v_mov_b32 v{TM+3}, v{TM+1}")
            A("s_mov_b64 exec, 1")
            A(f"ds_write_b64 v7, v[{TM+2}:{TM+3}] offset:{L_ML}")
            A("s_mov_b64 exec, -1")
            A("v_lshlrev_b32 v6, 5, v2"); A("v_lshl_add_u32 v6, v3, 4, v6")
            A("s_lshl_b32 s44, s3, 9"); A("v_add_u32 v6, s44, v6")
    c = 0
    while c < 256:
        can_issue = issued[0] < 512 and issued[0] - R < c
        if can_issue: pace()
        lag = issued[0] - win(max(issued[0]-1,0)) - c
        k = catch if lag > 1 else 1
        for _ in range(k):
            if c < 256:
                k_consume(c); c += 1
                unit[0] += 1; run_deferred()
    A.nop(8)
    run_deferred(force=True)
    P.stamp()
    def pace_ok():
        if issued[0] < 512 and issued[0] - R < 256: pace()
    A(f"v_max3_f32 v{TM}, v{S}, v{S+1}, v{S+2}")
    for k in range(3, 15, 2): A(f"v_max3_f32 v{TM}, v{TM}, v{S+k}, v{S+k+1}")
    A(f"v_max_f32 v{TM}, v{TM}, v{S+15}")
    pace_ok()
    allreduce(A, "max", TM, TM + 2)
    pace_ok()
    A(f"v_mov_b32 v{TM+1}, 0")
    pexp(0)
    A.nop(2)
    abuild(0)
    P.stamp()
    c = 0
    while c < 256:
        can_issue = issued[0] < 512 and issued[0] - R < 256 + c
        if can_issue: pace()
        while Ntail is not None and tail_from <= issued[0] < 512 and issued[0] - (256 + c) < Ntail and issued[0] - R < 256 + c: pace()
        lag = issued[0] - win(max(issued[0]-1,0)) - (256 + c)
        k = catch if (lag > 1 or issued[0] >= 512) else 1
        for _ in range(k):
            if c < 256:
                v_consume(c); c += 1
    P.stamp()
    if not earlyml:
        allreduce(A, "add", TM + 1, TM + 2)
        A("v_lshlrev_b32 v6, 5, v2"); A("v_lshl_add_u32 v6, v3, 4, v6")
        A("s_lshl_b32 s44, s3, 9"); A("v_add_u32 v6, s44, v6")
        A("s_lshl_b32 s44, s3, 3"); A("v_mov_b32 v7, s44")
        A(f"v_mov_b32 v{TM+2}, v{TM}"); A(f"v_mov_b32 v{TM+3}, v{TM+1}")
        assert (TM + 2) % 2 == 0
        A("s_mov_b32 exec_hi, 0")
        A(f"ds_write_b128 v6, v[{O}:{O+3}] offset:{L_OP}")
        A("s_mov_b32 exec_lo, 1")
        A(f"ds_write_b64 v7, v[{TM+2}:{TM+3}] offset:{L_ML}")
    else:
        A("s_mov_b32 exec_hi, 0")
        A.nop(7)
        A(f"ds_write_b128 v6, v[{O}:{O+3}] offset:{L_OP}")
    A("s_waitcnt lgkmcnt(0)")
    A("s_barrier")
    P.stamp()
    if tail2:
        A("s_mov_b64 exec, -1")
        P.flush()
        A("s_branch L_b3")
    else:
        P.flush()
        A("s_endpgm")
    A.vm = []
    P = Prof(A, prof, 63)
    A.label("L_aux")
    if dyn == 7: A("s_memrealtime s[74:75]")
    SEL = 8
    AT = 16
    DO = 24
    DQ = 44
    X = 48
    F = 53
    T = 4
    PP = 64
    BUF = 96
    A("s_sub_u32 s42, s3, 4")
    A("s_mul_i32 s43, s42, 160"); A("v_mul_u32_u24 v4, 40, v3"); A("v_add_u32 v4, s43, v4")
    A("v_lshlrev_b32 v4, 13, v4"); A("v_lshl_add_u32 v4, v2, 4, v4")
    A("v_lshlrev_b32 v5, 2, v0")
    A("s_mul_i32 s6, s4, 1280"); A("s_lshl_b32 s7, s5, 8")
    A("s_sub_u32 s44, 5242880, s7")
    A("s_waitcnt lgkmcnt(0)")
    if dyn == 7:
        A("s_cmp_lg_u32 s42, 1"); A("s_cbranch_scc1 L_nostart")
        A("s_cmp_ge_u32 s2, 8"); A("s_cbranch_scc1 L_nostart")
        A("s_or_b32 s76, s74, 1"); A("v_mov_b32 v6, s76"); A("s_lshl_b32 s76, s2, 5"); A("v_mov_b32 v7, s76")
        A("s_mov_b64 exec, 1")
        A("global_store_dword v7, v6, s[38:39] offset:12 sc1")
        A("s_mov_b64 exec, -1")
        A.label("L_nostart")
    srd(A, 8, 16, 17, 6, 1280)
    srd(A, 12, 22, 23, 7, "s44")
    P.stamp()
    for k in range(5):
        A.issue(("x", k), f"buffer_load_dword v{X+k}, v5, s[8:11], 0 offen offset:{k*256}")
    A("s_lshl_b32 s45, s4, 15")
    def wq_load(j):
        v = BUF + 4 * j
        if NQ and j >= NQ: A.wait(("wq", j - NQ))
        A.issue(("wq", j), f"buffer_load_dwordx4 v[{v}:{v+3}], v4, s[12:15], s45 offen {wpol}")
        if j < 39:
            A("s_add_u32 s45, s45, 8192"); A(f"s_cmp_eq_u32 s45, {40*8192}"); A("s_cselect_b32 s45, 0, s45")
    if bar0 == 2: WQ0 = 40
    for j in range(WQ0): wq_load(j)
    if bar0 == 2: A("s_barrier")
    A("v_and_b32 v6, 1, v2")
    A("v_cmp_eq_u32 vcc, 0, v6")
    A("v_mov_b32 v60, 0x01000c0c"); A("v_mov_b32 v61, 0x0c0c0100")
    A("v_cndmask_b32 v60, v60, v61, vcc")
    A("v_mov_b32 v6, 0x03020c0c"); A("v_mov_b32 v61, 0x0c0c0302")
    A("v_cndmask_b32 v61, v6, v61, vcc")
    A("v_bfe_u32 v6, v2, 1, 2"); A("v_mov_b32 v7, 0x0c0c0c0c")
    for r in range(4):
        A(f"v_cmp_eq_u32 vcc, {r}, v6"); A.nop(2)
        A(f"v_cndmask_b32 v{SEL+r}, v7, v60, vcc"); A(f"v_cndmask_b32 v{SEL+4+r}, v7, v61, vcc")
    for k in range(20): A(f"v_mov_b32 v{DO+k}, 0")
    A.wait(("x", 4))
    P.stamp()
    LN = Asm(); layernorm(LN, X, F, (84, 85, 86, 87), X)
    rem = list(range(WQ0, 40)); step = max(1, len(LN.L) // (len(rem) + 1))
    for i, ins in enumerate(LN.L):
        A.L.append(ins)
        if rem and i % step == step - 1: wq_load(rem.pop(0))
    for j in rem: wq_load(j)
    if bar0 == 1: A("s_barrier")
    A("s_mul_i32 s43, s42, 1280")
    A("v_lshlrev_b32 v5, 2, v0"); A("v_add_u32 v5, s43, v5")
    for k in range(5): A(f"ds_write_b32 v5, v{X+k} offset:{L_XN + 256*k}")
    A("s_mul_i32 s43, s42, 1600"); A("v_mul_u32_u24 v5, 80, v3"); A("v_add_u32 v5, s43, v5")
    A("s_lshl_b32 s46, s4, 3")
    A("s_waitcnt lgkmcnt(0)")
    for k in range(10):
        A(f"v_add_u32 v6, s46, v5")
        A(f"ds_read_b64 v[{PP+2*k}:{PP+2*k+1}], v6 offset:{L_XN}")
        A("s_add_u32 s46, s46, 8"); A("s_cmp_eq_u32 s46, 80"); A("s_cselect_b32 s46, 0, s46")
    A("s_waitcnt lgkmcnt(0)")
    P.stamp()
    def abuild_p(preg, par, st):
        at = AT + st * 4
        for r in range(4): A(f"v_perm_b32 v{at+r}, v{preg}, v{preg}, v{SEL + par*4 + r}")
    abuild_p(PP, 0, 0)
    for j in range(40):
        if j + 1 < 40: abuild_p(PP + (j + 1) // 2, (j + 1) % 2, (j + 1) % 2)
        else: A.nop(2)
        A.wait(("wq", j))
        at = AT + (j % 2) * 4; v = BUF + 4 * j
        cs = "0" if j == 0 else f"v[{DQ}:{DQ+3}]"
        A(f"v_mfma_f32_16x16x32_bf16 v[{DQ}:{DQ+3}], v[{at}:{at+3}], v[{v}:{v+3}], {cs}")
    A("v_lshlrev_b32 v6, 5, v2"); A("v_lshl_add_u32 v6, v3, 4, v6")
    A("s_lshl_b32 s43, s42, 9"); A("v_add_u32 v7, s43, v6")
    A.nop(6)
    A("s_mov_b32 exec_hi, 0")
    A(f"ds_write_b128 v7, v[{DQ}:{DQ+3}] offset:{L_QP}")
    A("s_mov_b32 exec_hi, -1")
    if dyn:
        A("v_lshlrev_b32 v6, 2, v0"); A("v_mov_b32 v7, 0")
        A("s_mov_b64 exec, 0xff")
        A(f"ds_write_b32 v6, v7 offset:{L_PROG}")
        A("s_mov_b64 exec, -1")
    A("s_waitcnt lgkmcnt(0)")
    P.stamp()
    A("s_barrier")
    A("s_cmp_lg_u32 s42, 0"); A("s_cbranch_scc1 L_wo")
    A("s_cmp_ge_u32 s5, %d" % (0 if nomlp else 27)); A("s_cbranch_scc1 L_wo")
    layernorm(A, X, F, T, X)
    A("v_lshlrev_b32 v4, 2, v0")
    for k in range(5): A(f"ds_write_b32 v4, v{X+k} offset:{L_Y + 256*k}")
    A("s_lshl_b32 s6, s5, 7")
    A(f"s_sub_u32 s44, {640*3456}, s6")
    srd(A, 8, 28, 29, 6, "s44")
    srd(A, 12, 30, 31, 6, 128)
    A("v_lshlrev_b32 v5, 1, v0")
    A.issue(("b1", 0), f"buffer_load_ushort v{F}, v5, s[12:15], 0 offen")
    A("v_lshrrev_b32 v5, 3, v2"); A("v_lshl_add_u32 v5, v3, 1, v5")
    A("v_mul_u32_u24 v6, 160, v5")
    A(f"s_mov_b32 s45, {(1 if tlbtest & 1 else 80)*3456}"); A("v_mul_lo_u32 v5, s45, v5")
    A("v_and_b32 v7, 7, v2"); A("v_lshl_add_u32 v5, v7, 4, v5")
    A("s_waitcnt lgkmcnt(0)")
    PY = BUF
    for k in range(10): A(f"ds_read_b128 v[{PY+4*k}:{PY+4*k+3}], v6 offset:{L_Y + 16*k}")
    RB, RN = BUF + 40, 30
    def w1_load(j):
        v = RB + (j % RN) * 4
        A(f"s_mov_b32 s45, {j*3456*(8 if tlbtest & 1 else 1)}")
        A.issue(("w1", j), f"buffer_load_dwordx4 v[{v}:{v+3}], v5, s[8:11], s45 offen {wpol}")
    for j in range(NW): w1_load(j)
    A("s_waitcnt lgkmcnt(0)")
    abuild_p(PY, 0, 0)
    for j in range(80):
        if j + 1 < 80: abuild_p(PY + (j + 1) // 2, (j + 1) % 2, (j + 1) % 2)
        else: A.nop(2)
        A.wait(("w1", j))
        at = AT + (j % 2) * 4; v = RB + (j % RN) * 4
        cs = "0" if j == 0 else f"v[{DQ}:{DQ+3}]"
        A(f"v_mfma_f32_16x16x32_bf16 v[{DQ}:{DQ+3}], v[{at}:{at+3}], v[{v}:{v+3}], {cs}")
        if j + NW < 80: w1_load(j + NW)
    A("s_mul_i32 s6, s5, 81920")
    A(f"s_sub_u32 s44, {1728*1280}, s6")
    srd(A, 8, 32, 33, 6, "s44")
    A("v_mul_u32_u24 v5, 20480, v3"); A("v_lshl_add_u32 v5, v2, 4, v5")
    def w2_load(n):
        jj, cb = n // 5, n % 5
        v = RB + (n % RN) * 4
        if cb == 0: A(f"s_mov_b32 s45, {jj*1280}")
        A.issue(("w2", n), f"buffer_load_dwordx4 v[{v}:{v+3}], v5, s[8:11], s45 offen offset:{cb*256} {wpol}")
    for n in range(10): w2_load(n)
    A("v_lshrrev_b32 v6, 1, v3"); A("v_lshrrev_b32 v7, 3, v2")
    A("v_cmp_eq_u32 vcc, v6, v7")
    A("v_lshlrev_b32 v6, 8, v6"); A("v_and_b32 v7, 7, v2"); A("v_lshl_add_u32 v6, v7, 5, v6")
    A("v_and_b32 v7, 1, v3"); A("v_lshl_add_u32 v6, v7, 4, v6")
    A("s_and_saveexec_b64 s[46:47], vcc")
    A(f"ds_write_b128 v6, v[{DQ}:{DQ+3}] offset:{L_T}")
    A("s_mov_b64 exec, s[46:47]")
    A("v_lshlrev_b32 v6, 2, v0")
    A("s_waitcnt lgkmcnt(0)")
    A(f"ds_read_b32 v{F+1}, v6 offset:{L_T}"); A(f"ds_read_b32 v{F+2}, v6 offset:{L_T+256}")
    A("s_waitcnt lgkmcnt(0)")
    A(f"v_add_f32 v{F+1}, v{F+1}, v{F+2}")
    bf16r(A, F + 1, F + 1)
    A.wait(("b1", 0))
    A(f"v_lshlrev_b32 v{F}, 16, v{F}")
    A(f"v_add_f32 v{F+1}, v{F+1}, v{F}")
    bf16r(A, F + 1, F + 1)
    x_, u_, e_ = F + 1, F + 2, F + 3
    A(f"v_mul_f32 v{u_}, v{x_}, v{x_}"); A(f"v_mul_f32 v{u_}, v{u_}, v{x_}")
    A(f"v_mov_b32 v{e_}, {f2u(0.044715):#x}"); A(f"v_fma_f32 v{u_}, v{u_}, v{e_}, v{x_}")
    A(f"v_mul_f32 v{u_}, {f2u(-2*0.7978845608028654*1.4426950408889634):#x}, v{u_}")
    A(f"v_exp_f32 v{u_}, v{u_}"); A.nop(1)
    A(f"v_add_f32 v{u_}, 1.0, v{u_}"); A(f"v_rcp_f32 v{u_}, v{u_}"); A.nop(1)
    A(f"v_mul_f32 v{u_}, v{x_}, v{u_}")
    A(f"v_cvt_pk_bf16_f32 v{u_}, v{u_}, v{u_}")
    A("v_lshlrev_b32 v6, 1, v0")
    A(f"ds_write_b16 v6, v{u_} offset:{L_HV}")
    A("v_lshlrev_b32 v6, 5, v3")
    A("s_waitcnt lgkmcnt(0)")
    for k in range(2): A(f"ds_read_b128 v[{PP+4*k}:{PP+4*k+3}], v6 offset:{L_HV + 16*k}")
    A("s_waitcnt lgkmcnt(0)")
    abuild_p(PP, 0, 0)
    nl = 10
    for jj in range(16):
        if jj + 1 < 16: abuild_p(PP + (jj + 1) // 2, (jj + 1) % 2, (jj + 1) % 2)
        else: A.nop(2)
        at = AT + (jj % 2) * 4
        for cb in range(5):
            n = jj * 5 + cb
            A.wait(("w2", n))
            v = RB + (n % RN) * 4; d = DO + 4 * cb
            A(f"v_mfma_f32_16x16x32_bf16 v[{d}:{d+3}], v[{at}:{at+3}], v[{v}:{v+3}], v[{d}:{d+3}]")
            if nl < 80: w2_load(nl); nl += 1
    A.waitall()
    A.label("L_wo")
    A.vm = []
    def zero_init():
        A("s_cmp_lg_u32 s42, 1"); A("s_cbranch_scc1 L_zero_done")
        A("s_mul_i32 s6, s4, 2560"); A("s_mul_i32 s43, s5, 80"); A("s_add_u32 s6, s6, s43"); A("s_add_u32 s6, s6, 0x100000")
        srd(A, 8, 40, 41, 6, 80)
        A("v_lshlrev_b32 v6, 2, v0"); A("v_mov_b32 v7, 0")
        A("buffer_store_dword v7, v6, s[8:11], 0 offen sc1")
        A("s_lshl_b32 s6, s4, 5"); A("v_mov_b32 v6, s6"); A("v_mov_b32 v7, 1")
        A("s_waitcnt vmcnt(0)")
        A("s_mov_b64 exec, 1")
        A("global_atomic_add v6, v7, s[38:39] offset:4")
        A("s_mov_b64 exec, -1")
        A.label("L_zero_done")
    if fused == 3 and not zlate: zero_init()
    if dyn == 8:
        A("s_getreg_b32 s76, hwreg(HW_REG_XCC_ID)"); A("s_and_b32 s76, s76, 7"); A("s_lshl_b32 s76, s76, 8"); A("s_add_u32 s76, s76, 0x200000")
        A("s_getreg_b32 s77, hwreg(HW_REG_HW_ID)"); A("s_bfe_u32 s78, s77, 0x2000d"); A("s_bfe_u32 s77, s77, 0x40008")
        A("s_lshl_b32 s78, s78, 4"); A("s_add_u32 s77, s77, s78"); A("s_lshl_b32 s77, s77, 2"); A("s_add_u32 s77, s77, s76")
        A("s_cmp_lg_u32 s42, 3"); A("s_cbranch_scc1 L_slot_done")
        A("v_lshlrev_b32 v6, 2, v0"); A("v_add_u32 v6, s76, v6"); A("v_bfrev_b32 v7, 1")
        A("global_store_dword v6, v7, s[40:41]")
        A.label("L_slot_done")
    A("s_mul_i32 s6, s5, 163840")
    srd(A, 8, 24, 25, 6, 163840)
    A("s_lshl_b32 s43, s42, 5"); A("v_lshlrev_b32 v5, 3, v3"); A("v_add_u32 v5, s43, v5")
    A("v_mul_u32_u24 v5, 1280, v5"); A("v_lshl_add_u32 v5, v2, 4, v5")
    for n in range(0 if nowo else 40):
        jj, cb = n // 5, n % 5
        v = BUF + 4 * n
        if cb == 0: A(f"s_mov_b32 s45, {jj*1280}")
        if n >= NA: A.wait(("wo", n - NA))
        A.issue(("wo", n), f"buffer_load_dwordx4 v[{v}:{v+3}], v5, s[8:11], s45 offen offset:{cb*256} {wpol}")
    if dyn == 3:
        A("s_cmp_lg_u32 s42, 3"); A("s_cbranch_scc1 L_ctrl_done")
        A.waitall() if False else None
        A(f"s_mov_b32 s50, {CK0}"); A("s_mov_b32 s51, 16"); A("s_mov_b32 s52, 0"); A("s_mov_b32 s53, 0")
        A("v_mov_b32 v6, 0"); A("s_mov_b64 exec, 1")
        A.label("L_ctrl")
        A(f"ds_read_b32 v5, v6 offset:{L_PROG}")
        A("s_waitcnt lgkmcnt(0)")
        A("v_readfirstlane_b32 s54, v5")
        A(f"s_cmp_ge_u32 s54, {CKEXIT}"); A("s_cbranch_scc1 L_ctrl_exit")
        A("s_cmp_eq_u32 s52, 0"); A("s_cbranch_scc1 L_ctrl_a")
        A("s_cmp_lt_u32 s54, s53"); A("s_cbranch_scc1 L_ctrl_a")
        A("s_mov_b32 s52, 0"); A("v_mov_b32 v5, 0"); A(f"ds_write_b32 v6, v5 offset:{L_MODE}")
        A.label("L_ctrl_a")
        A("s_cmp_lt_u32 s54, s50"); A("s_cbranch_scc1 L_ctrl_sleep")
        A("v_mov_b32 v7, 1"); A("v_mov_b32 v4, s51")
        A("global_atomic_add v5, v4, v7, s[38:39] sc0")
        A("s_waitcnt vmcnt(0)")
        A("v_readfirstlane_b32 s55, v5")
        A(f"s_add_u32 s50, s50, {CKS}"); A("s_add_u32 s51, s51, 32")
        A("s_mov_b32 s56, 0")
        for th, bo in zip(TH, BO):
            A(f"s_cmp_ge_u32 s55, {th}"); A(f"s_cselect_b32 s56, {bo}, s56")
        A("s_cmp_eq_u32 s56, 0"); A("s_cbranch_scc1 L_ctrl_sleep")
        A(f"ds_read_b32 v5, v6 offset:{L_PROG}")
        A("s_waitcnt lgkmcnt(0)")
        A("v_readfirstlane_b32 s54, v5")
        A("s_add_u32 s53, s54, s56"); A("s_add_u32 s53, s53, 1")
        A("s_mov_b32 s52, 1"); A("v_mov_b32 v5, 1"); A(f"ds_write_b32 v6, v5 offset:{L_MODE}")
        A.label("L_ctrl_sleep")
        A(f"s_sleep {sleep}")
        A("s_branch L_ctrl")
        A.label("L_ctrl_exit")
        A("s_mov_b64 exec, -1")
        A.label("L_ctrl_done")
    if dyn == 7:
        A("s_cmp_lg_u32 s42, 3"); A("s_cbranch_scc1 L_nb_done")
        A("v_lshlrev_b32 v6, 5, v0")
        A("s_mov_b64 exec, 0xff")
        A("global_load_dword v7, v6, s[38:39] offset:12 sc1")
        A("s_waitcnt vmcnt(0)")
        A("s_mov_b32 s76, 0")
        for i in range(8):
            A(f"v_readlane_b32 s77, v7, {i}")
            A("s_sub_u32 s78, s74, s77"); A("s_cmp_lt_u32 s78, 300"); A("s_cselect_b32 s78, s78, 0")
            A("s_cmp_eq_u32 s77, 0"); A("s_cselect_b32 s78, 0, s78")
            A("s_max_u32 s76, s76, s78")
        A(f"s_mul_i32 s76, s76, {LK}"); A("s_add_u32 s76, s76, 512"); A("s_lshr_b32 s76, s76, 10")
        A("s_getreg_b32 s77, hwreg(HW_REG_XCC_ID)"); A("s_bitcmp0_b32 s77, 0"); A(f"s_cselect_b32 s77, {NBE}, 0")
        A("s_add_u32 s76, s76, s77"); A("s_min_u32 s76, s76, 8")
        A("s_mov_b64 exec, 1")
        A("v_mov_b32 v6, 0"); A("v_mov_b32 v7, s76")
        A(f"ds_write_b32 v6, v7 offset:{L_MODE}")
        A("s_mov_b64 exec, -1")
        A.label("L_nb_done")
    if dyn == 8:
        A("s_cmp_lg_u32 s42, 3"); A("s_cbranch_scc1 L_c8_done")
        A("v_mov_b32 v6, 0"); A("v_mov_b32 v4, s77")
        A("v_lshlrev_b32 v5, 2, v0"); A("v_add_u32 v5, s76, v5")
        A("s_mov_b32 s78, -1"); A("s_mov_b32 s79, 0")
        A.label("L_c8")
        A(f"ds_read_b32 v7, v6 offset:{L_PROG}")
        A("s_waitcnt lgkmcnt(0)")
        A("v_readfirstlane_b32 s80, v7")
        A(f"s_cmp_ge_u32 s80, {PEXIT}"); A("s_cbranch_scc1 L_c8_exit")
        A("s_cmp_eq_u32 s80, s78"); A("s_cbranch_scc1 L_c8_sleep")
        A("s_mov_b32 s78, s80")
        A("s_mov_b64 exec, 1")
        A("global_store_dword v4, v7, s[40:41]")
        A("s_mov_b64 exec, -1")
        A("global_load_dword v72, v5, s[40:41] sc1")
        A("s_waitcnt vmcnt(0)")
        A("v_cmp_gt_i32 vcc, 0, v72")
        A("v_sub_u32 v72, v72, v7")
        A("v_med3_i32 v72, v72, -8, 8")
        A("v_cndmask_b32 v72, v72, v6, vcc")
        for ror in (8, 4, 2, 1):
            A.nop(2); A(f"v_add_u32_dpp v72, v72, v72 row_ror:{ror} row_mask:0xf bank_mask:0xf")
        A.nop(1)
        A("v_readlane_b32 s81, v72, 0"); A("v_readlane_b32 s82, v72, 16"); A("v_readlane_b32 s84, v72, 32"); A("v_readlane_b32 s85, v72, 48")
        A("s_add_i32 s81, s81, s82"); A("s_add_i32 s84, s84, s85"); A("s_add_i32 s81, s81, s84")
        A("s_mov_b32 s83, s79")
        A(f"s_cmp_ge_i32 s81, {THON}"); A("s_cselect_b32 s83, 1, s83")
        A(f"s_cmp_le_i32 s81, {THOFF}"); A("s_cselect_b32 s83, 0, s83")
        A("s_cmp_eq_u32 s83, s79"); A("s_cbranch_scc1 L_c8_sleep")
        A("s_mov_b32 s79, s83"); A("v_mov_b32 v73, s83")
        A(f"ds_write_b32 v6, v73 offset:{L_MODE}")
        A.label("L_c8_sleep")
        A("s_sleep 2")
        A("s_branch L_c8")
        A.label("L_c8_exit")
        A("s_mov_b64 exec, -1")
        A.label("L_c8_done")
    if fused == 3 and zlate: zero_init()
    if fused == 3:
        A("s_lshl_b32 s6, s4, 5"); A("v_mov_b32 v90, s6"); A("v_mov_b32 v91, 1")
        A("s_cmp_lg_u32 s42, 0"); A("s_cbranch_scc1 L_zchk_done")
        A.label("L_zchk")
        A("s_mov_b64 exec, 1")
        A("global_load_dword v89, v90, s[38:39] offset:4 sc1")
        A("s_waitcnt vmcnt(0)")
        A("v_readfirstlane_b32 s51, v89")
        A("s_mov_b64 exec, -1")
        A("s_cmp_ge_u32 s51, 32"); A("s_cbranch_scc1 L_zchk_done")
        A("s_sleep 8")
        A("s_branch L_zchk")
        A.label("L_zchk_done")
        A.vm = []
        A.vm.append("pending")
    XB = 60
    XB = 92
    XP = [92, 94, 88]; BP = [44, 46, 60]
    if fused == 3 and fin1:
        A("v_lshlrev_b32 v4, 3, v0")
        A("s_mul_i32 s6, s4, 1280")
        srd(A, 12, 16, 17, 6, 1280)
        srd(A, 68, 34, 35, None, 1280)
        for i in range(3):
            A.issue(("xf", i), f"buffer_load_dwordx2 v[{XP[i]}:{XP[i]+1}], v4, s[12:15], 0 offen offset:{i*512}")
            A.issue(("bf", i), f"buffer_load_dwordx2 v[{BP[i]}:{BP[i]+1}], v4, s[68:71], 0 offen offset:{i*512}")
    elif fused:
        A("s_lshl_b32 s43, s42, 6"); A("v_add_u32 v4, s43, v0"); A("v_lshlrev_b32 v4, 3, v4")
        A("s_mul_i32 s6, s4, 1280")
        srd(A, 12, 16, 17, 6, 1280)
        A.issue(("xf", 0), f"buffer_load_dwordx2 v[{XB}:{XB+1}], v4, s[12:15], 0 offen")
        srd(A, 68, 34, 35, None, 1280)
        A.issue(("xf", 1), f"buffer_load_dwordx2 v[{XB+2}:{XB+3}], v4, s[68:71], 0 offen")
    A("v_lshlrev_b32 v4, 5, v3"); A("s_lshl_b32 s43, s42, 7"); A("v_add_u32 v4, s43, v4")
    A("v_mov_b32 v5, 0")
    A.waitall()
    if dry:
        A("s_mul_i32 s43, s42, 5120"); A("v_lshlrev_b32 v6, 4, v0"); A("v_add_u32 v6, s43, v6")
        for cb in range(5): A(f"ds_write_b128 v6, v[{DO+4*cb}:{DO+4*cb+3}] offset:{L_F + cb*1024}")
        A("s_waitcnt lgkmcnt(0)")
        A("s_mov_b32 s58, 0")
        A("s_branch L_proj")
        A.label("L_proj_back")
        A("s_mul_i32 s43, s42, 5120"); A("v_lshlrev_b32 v6, 4, v0"); A("v_add_u32 v6, s43, v6")
        for cb in range(5): A(f"ds_read_b128 v[{DO+4*cb}:{DO+4*cb+3}], v6 offset:{L_F + cb*1024}")
        A("v_lshlrev_b32 v4, 5, v3"); A("s_lshl_b32 s43, s42, 7"); A("v_add_u32 v4, s43, v4")
        A("v_mov_b32 v5, 0")
        A("s_mov_b32 s58, 1")
        A("s_waitcnt lgkmcnt(0)")
    P.stamp()
    A("s_barrier")
    P.stamp()
    if dry: A.label("L_proj")
    if fused == 2:
        A("s_cmp_lg_u32 s42, 0"); A("s_cbranch_scc1 L_noticket")
        A("s_lshl_b32 s6, s4, 5"); A("v_mov_b32 v90, s6"); A("v_mov_b32 v91, 1")
        A("s_mov_b64 exec, 1")
        A("global_atomic_add v88, v90, v91, s[38:39] sc0")
        A("global_load_dword v89, v90, s[38:39] offset:4 sc1")
        A("s_mov_b64 exec, -1")
        A.label("L_noticket")
    ML = PP
    OV = PP + 8
    A(f"ds_read_b128 v[{ML}:{ML+3}], v5 offset:{L_ML}"); A(f"ds_read_b128 v[{ML+4}:{ML+7}], v5 offset:{L_ML+16}")
    OVR = [72, 80, 48, 16]
    for w in range(4):
        for q in range(2):
            v = OVR[w] + 4 * q
            A(f"ds_read_b128 v[{v}:{v+3}], v4 offset:{L_OP + w*512 + q*16}")
    A("s_waitcnt lgkmcnt(8)")
    A(f"v_max3_f32 v6, v{ML}, v{ML+2}, v{ML+4}"); A(f"v_max_f32 v6, v6, v{ML+6}")
    for w in range(4):
        A(f"v_sub_f32 v{ML+2*w}, v{ML+2*w}, v6"); A(f"v_mul_f32 v{ML+2*w}, {LOG2E:#x}, v{ML+2*w}"); A(f"v_exp_f32 v{ML+2*w}, v{ML+2*w}")
    A.nop(1)
    A(f"v_mul_f32 v7, v{ML}, v{ML+1}")
    for w in range(1, 4): A(f"v_fmac_f32 v7, v{ML+2*w}, v{ML+2*w+1}")
    A("v_rcp_f32 v7, v7"); A.nop(1)
    A("s_waitcnt lgkmcnt(0)")
    for k in range(8):
        A(f"v_mul_f32 v{OVR[0]+k}, v{OVR[0]+k}, v{ML}")
        for w in range(1, 4): A(f"v_fmac_f32 v{OVR[0]+k}, v{OVR[w]+k}, v{ML+2*w}")
        A(f"v_mul_f32 v{OVR[0]+k}, v{OVR[0]+k}, v7")
    PO = 56
    for k in range(4): A(f"v_cvt_pk_bf16_f32 v{PO+k}, v{OVR[0]+2*k}, v{OVR[0]+2*k+1}")
    abuild_p(PO, 0, 0)
    for jj in range(8):
        if jj + 1 < 8: abuild_p(PO + (jj + 1) // 2, (jj + 1) % 2, (jj + 1) % 2)
        else: A.nop(2)
        at = AT + (jj % 2) * 4
        if jj == 0: A.nop(2)
        for cb in range(5):
            v = BUF + 4 * (jj * 5 + cb); d = DO + 4 * cb
            A(f"v_mfma_f32_16x16x32_bf16 v[{d}:{d+3}], v[{at}:{at+3}], v[{v}:{v+3}], v[{d}:{d+3}]")
    A("v_lshlrev_b32 v6, 5, v2"); A("v_lshl_add_u32 v6, v3, 4, v6")
    A("s_mul_i32 s43, s42, 2560"); A("v_add_u32 v6, s43, v6")
    A.nop(4)
    A("s_mov_b32 exec_hi, 0")
    for cb in range(5):
        A(f"ds_write_b128 v6, v[{DO+4*cb}:{DO+4*cb+3}] offset:{L_OUTP + cb*512}")
    A("s_mov_b32 exec_hi, -1")
    if fused == 3:
        A("s_mul_i32 s6, s4, 2560"); A("s_add_u32 s6, s6, 0x100000")
        srd(A, 8, 40, 41, 6, 2560)
    if fused == 2:
        A("s_mul_i32 s6, s4, 2560"); A("s_add_u32 s6, s6, 0x100000")
        srd(A, 8, 40, 41, 6, 2560)
        A("s_cmp_lg_u32 s42, 0"); A("s_cbranch_scc1 L_tk_done")
        A("s_waitcnt vmcnt(0)")
        A("v_readfirstlane_b32 s50, v88"); A("v_readfirstlane_b32 s51, v89")
        A("s_cmp_lg_u32 s50, 0"); A("s_cbranch_scc1 L_tk_spin")
        for k in range(4): A(f"v_mov_b32 v{72+k}, 0")
        A("v_lshlrev_b32 v7, 4, v0")
        for i in range(3): A(f"buffer_store_dwordx4 v[72:75], v7, s[8:11], 0 offen offset:{i*1024} sc1")
        A("s_waitcnt vmcnt(0)")
        A("s_mov_b64 exec, 1")
        A("global_store_dword v90, v91, s[38:39] offset:4 sc1")
        A("s_mov_b64 exec, -1")
        A("s_branch L_tk_done")
        A.label("L_tk_spin")
        A("s_cmp_lg_u32 s51, 0"); A("s_cbranch_scc1 L_tk_done")
        A("s_mov_b64 exec, 1")
        A("global_load_dword v89, v90, s[38:39] offset:4 sc1")
        A("s_waitcnt vmcnt(0)")
        A("v_readfirstlane_b32 s51, v89")
        A("s_mov_b64 exec, -1")
        A("s_branch L_tk_spin")
        A.label("L_tk_done")
    A("s_waitcnt lgkmcnt(0)")
    if dry:
        A("s_cmp_eq_u32 s58, 0"); A("s_cbranch_scc1 L_proj_back")
    P.stamp()
    A.label("L_b3")
    A("s_barrier")
    if not fused:
        A("s_lshl_b32 s43, s42, 6"); A("v_add_u32 v4, s43, v0")
        A("v_cmp_gt_u32 vcc, 160, v4")
        A("v_lshlrev_b32 v4, 4, v4")
        A("s_and_saveexec_b64 s[46:47], vcc")
        A("s_cbranch_execz L_aux_done")
        for w in range(4): A(f"ds_read_b128 v[{72+4*w}:{75+4*w}], v4 offset:{L_OUTP + w*2560}")
        A("s_mul_i32 s6, s66, 2560")
        srd(A, 8, 40, 41, 6, 2560)
        A("s_waitcnt lgkmcnt(0)")
        for k in range(4):
            A(f"v_add_f32 v{72+k}, v{72+k}, v{76+k}"); A(f"v_add_f32 v{80+k}, v{80+k}, v{84+k}"); A(f"v_add_f32 v{72+k}, v{72+k}, v{80+k}")
        A("buffer_store_dwordx4 v[72:75], v4, s[8:11], 0 offen")
    elif fused in (2, 3):
        A("s_mul_i32 s43, s42, 640"); A("v_lshlrev_b32 v4, 2, v0"); A("v_add_u32 v4, s43, v4")
        for i in range(3):
            for w in range(4):
                A(f"ds_read_b32 v{72+4*i+w}, v4 offset:{L_OUTP + w*2560 + i*256}")
        for i in range(3):
            A(f"s_waitcnt lgkmcnt({8-4*i})")
            v = 72 + 4 * i
            A(f"v_add_f32 v{v}, v{v}, v{v+1}"); A(f"v_add_f32 v{v+2}, v{v+2}, v{v+3}"); A(f"v_add_f32 v{v}, v{v}, v{v+2}")
            if i == 2: A("s_mov_b32 exec_hi, 0")
            A(f"buffer_atomic_add_f32 v{v}, v4, s[8:11], 0 offen offset:{i*256}")
        A("s_mov_b32 exec_hi, -1")
        A("s_waitcnt vmcnt(0)")
        P.stamp()
        A("s_barrier")
        if fused == 3 and fin1:
            A("s_cmp_lg_u32 s42, 0"); A("s_cbranch_scc1 L_aux_done")
            A("v_lshlrev_b32 v4, 4, v0"); A("v_lshlrev_b32 v7, 3, v0")
            A("s_mul_i32 s6, s4, 1280")
            srd(A, 12, 36, 37, 6, 1280)
            A("s_mov_b64 exec, 1")
            A("global_atomic_add v5, v90, v91, s[38:39] offset:8 sc0")
            A("s_waitcnt vmcnt(0)")
            A("v_readfirstlane_b32 s43, v5")
            A("s_mov_b64 exec, -1")
            P.stamp()
            A("s_cmp_lg_u32 s43, 31"); A("s_cbranch_scc1 L_aux_done")
            for i in range(3): A(f"buffer_load_dwordx4 v[{72+4*i}:{75+4*i}], v4, s[8:11], 0 offen offset:{i*1024} sc1")
            for i in range(3):
                A(f"s_waitcnt vmcnt({2-i})" if i == 0 else f"s_waitcnt vmcnt({2-i+0})")
                v = 72 + 4 * i
                for k in range(2):
                    A(f"v_lshlrev_b32 v84, 16, v{BP[i]+k}"); A(f"v_and_b32 v85, 0xffff0000, v{BP[i]+k}")
                    A(f"v_add_f32 v{v+2*k}, v{v+2*k}, v84"); A(f"v_add_f32 v{v+1+2*k}, v{v+1+2*k}, v85")
                    A(f"v_lshlrev_b32 v84, 16, v{XP[i]+k}"); A(f"v_and_b32 v85, 0xffff0000, v{XP[i]+k}")
                    A(f"v_add_f32 v{v+2*k}, v{v+2*k}, v84"); A(f"v_add_f32 v{v+1+2*k}, v{v+1+2*k}, v85")
                A(f"v_cvt_pk_bf16_f32 v{v}, v{v}, v{v+1}"); A(f"v_cvt_pk_bf16_f32 v{v+1}, v{v+2}, v{v+3}")
            for i in range(3): A(f"buffer_store_dwordx2 v[{72+4*i}:{73+4*i}], v7, s[12:15], 0 offen offset:{i*512}")
        else:
            A("s_cmp_lg_u32 s42, 0"); A("s_cbranch_scc1 L_wait_flag")
            A("s_mov_b64 exec, 1")
            A("global_atomic_add v5, v90, v91, s[38:39] offset:8 sc0")
            A("s_waitcnt vmcnt(0)")
            A("v_mov_b32 v6, 0")
            A(f"ds_write_b32 v6, v5 offset:{L_FLAG}")
            A("s_mov_b64 exec, -1")
            A("s_waitcnt lgkmcnt(0)")
            A.label("L_wait_flag")
            P.stamp()
            A("s_barrier")
            A("v_mov_b32 v6, 0")
            A(f"ds_read_b32 v5, v6 offset:{L_FLAG}")
            A("s_lshl_b32 s43, s42, 6"); A("v_add_u32 v4, s43, v0")
            A("v_lshlrev_b32 v7, 3, v4"); A("v_lshlrev_b32 v4, 4, v4")
            A("s_mul_i32 s6, s4, 1280")
            srd(A, 12, 36, 37, 6, 1280)
            A("s_waitcnt lgkmcnt(0)")
            A("v_readfirstlane_b32 s43, v5")
            A("s_cmp_lg_u32 s43, 31"); A("s_cbranch_scc1 L_aux_done")
            A("s_cmp_ge_u32 s42, 3"); A("s_cbranch_scc1 L_aux_done")
            A("buffer_load_dwordx4 v[72:75], v4, s[8:11], 0 offen sc1")
            A("s_waitcnt vmcnt(0)")
            for k in range(2):
                A(f"v_lshlrev_b32 v76, 16, v{XB+2+k}"); A(f"v_and_b32 v77, 0xffff0000, v{XB+2+k}")
                A(f"v_add_f32 v{72+2*k}, v{72+2*k}, v76"); A(f"v_add_f32 v{73+2*k}, v{73+2*k}, v77")
                A(f"v_lshlrev_b32 v76, 16, v{XB+k}"); A(f"v_and_b32 v77, 0xffff0000, v{XB+k}")
                A(f"v_add_f32 v{72+2*k}, v{72+2*k}, v76"); A(f"v_add_f32 v{73+2*k}, v{73+2*k}, v77")
            A("v_cvt_pk_bf16_f32 v72, v72, v73"); A("v_cvt_pk_bf16_f32 v73, v74, v75")
            A("buffer_store_dwordx2 v[72:73], v7, s[12:15], 0 offen")
    else:
        NG = 8 if tail2 else 4
        SPW = 32 // NG
        widx = "s3" if tail2 else "s42"
        A("v_lshlrev_b32 v4, 4, v0")
        A("s_cmp_lg_u32 s3, 4"); A("s_cbranch_scc1 L_wait_flag")
        for i in range(3):
            for w in range(4):
                v = BUF + 16 * i + 4 * w
                A(f"ds_read_b128 v[{v}:{v+3}], v4 offset:{L_OUTP + w*2560 + i*1024}")
        SB = 1280 if sl16 else 2560
        A(f"s_mul_i32 s6, s66, {SB}")
        srd(A, 8, 40, 41, 6, SB)
        if sl16: A("v_lshlrev_b32 v5, 3, v0")
        for i in range(3):
            A(f"s_waitcnt lgkmcnt({8-4*i})")
            v = BUF + 16 * i
            for k in range(4):
                A(f"v_add_f32 v{v+k}, v{v+k}, v{v+4+k}"); A(f"v_add_f32 v{v+8+k}, v{v+8+k}, v{v+12+k}"); A(f"v_add_f32 v{v+k}, v{v+k}, v{v+8+k}")
            if sl16:
                A(f"v_cvt_pk_bf16_f32 v{v+4}, v{v}, v{v+1}"); A(f"v_cvt_pk_bf16_f32 v{v+5}, v{v+2}, v{v+3}")
                A(f"buffer_store_dwordx2 v[{v+4}:{v+5}], v5, s[8:11], 0 offen offset:{i*512} sc1")
            else:
                A(f"buffer_store_dwordx4 v[{v}:{v+3}], v4, s[8:11], 0 offen offset:{i*1024} sc1")
        A("s_lshl_b32 s6, s4, 5")
        A("v_mov_b32 v6, s6"); A("v_mov_b32 v7, 1")
        A("s_waitcnt vmcnt(0)")
        P.stamp()
        A("s_mov_b64 s[46:47], exec"); A("s_mov_b64 exec, 1")
        A("global_atomic_add v5, v6, v7, s[38:39] sc0")
        A("s_waitcnt vmcnt(0)")
        A("v_mov_b32 v6, 0")
        A(f"ds_write_b32 v6, v5 offset:{L_FLAG}")
        A("s_mov_b64 exec, s[46:47]")
        A("s_waitcnt lgkmcnt(0)")
        A.label("L_wait_flag")
        P.stamp()
        A("s_barrier")
        A("v_mov_b32 v6, 0")
        A(f"ds_read_b32 v5, v6 offset:{L_FLAG}")
        A(f"s_mul_i32 s6, s4, {32*SB}"); A(f"s_mul_i32 s43, {widx}, {SPW*SB}"); A("s_add_u32 s6, s6, s43")
        srd(A, 8, 40, 41, 6, SPW * SB)
        if sl16: A("v_lshlrev_b32 v7, 3, v0")
        A("s_waitcnt lgkmcnt(0)")
        A("v_readfirstlane_b32 s43, v5")
        if warm:
            A("s_cmp_eq_u32 s43, 31"); A("s_cselect_b32 s10, s10, 0"); A("s_cselect_b32 s57, 1280, 0")
        else:
            A("s_cmp_lg_u32 s43, 31"); A("s_cbranch_scc1 L_aux_done")
        A.vm = []
        for i in range(3):
            for sl in range(SPW):
                v = BUF + (i * SPW + sl) * 4
                if i == 2 and sl == 0: A("s_mov_b32 exec_hi, 0")
                if sl == 0: so = "0"
                else:
                    A(f"s_mov_b32 s45, {sl*SB}"); so = "s45"
                if sl16:
                    A.issue(("g", i, sl), f"buffer_load_dwordx2 v[{v}:{v+1}], v7, s[8:11], {so} offen offset:{i*512} sc1")
                else:
                    A.issue(("g", i, sl), f"buffer_load_dwordx4 v[{v}:{v+3}], v4, s[8:11], {so} offen offset:{i*1024} sc1")
        A("s_mov_b32 exec_hi, -1")
        A(f"s_mul_i32 s43, {widx}, 2560"); A("v_add_u32 v6, s43, v4")
        LF = L_F if tail2 else L_OUTP
        for i in range(3):
            A.wait(("g", i, SPW - 1))
            v = BUF + i * SPW * 4
            if sl16:
                for sl in range(SPW):
                    q = v + 4 * sl
                    A(f"v_lshlrev_b32 v{q+2}, 16, v{q+1}"); A(f"v_and_b32 v{q+3}, 0xffff0000, v{q+1}")
                    A(f"v_and_b32 v{q+1}, 0xffff0000, v{q}"); A(f"v_lshlrev_b32 v{q}, 16, v{q}")
            n = SPW
            stride = 4
            while n > 1:
                for p in range(n // 2):
                    for k in range(4):
                        A(f"v_add_f32 v{v+2*p*stride+k}, v{v+2*p*stride+k}, v{v+(2*p+1)*stride+k}")
                n //= 2; stride *= 2
            if i == 2: A("s_mov_b32 exec_hi, 0")
            A(f"ds_write_b128 v6, v[{v}:{v+3}] offset:{LF + i*1024}")
        A("s_mov_b32 exec_hi, -1")
        A("s_waitcnt lgkmcnt(0)")
        P.stamp()
        A("s_barrier")
        A("s_cmp_lt_u32 s3, 4"); A("s_cbranch_scc1 L_aux_done")
        A("s_lshl_b32 s43, s42, 6"); A("v_add_u32 v4, s43, v0")
        A("v_cmp_gt_u32 vcc, 160, v4")
        A("v_lshlrev_b32 v5, 3, v4")
        A("v_lshlrev_b32 v4, 4, v4")
        A("s_and_saveexec_b64 s[46:47], vcc")
        A("s_cbranch_execz L_aux_done")
        for w in range(NG): A(f"ds_read_b128 v[{BUF+4*w}:{BUF+3+4*w}], v4 offset:{LF + w*2560}")
        A("s_mul_i32 s6, s4, 1280")
        srd(A, 8, 36, 37, 6, "s57" if warm else 1280)
        A("s_waitcnt lgkmcnt(0)")
        n = NG; stride = 4
        while n > 1:
            for p in range(n // 2):
                for k in range(4):
                    A(f"v_add_f32 v{BUF+2*p*stride+k}, v{BUF+2*p*stride+k}, v{BUF+(2*p+1)*stride+k}")
            n //= 2; stride *= 2
        for k in range(2):
            A(f"v_lshlrev_b32 v76, 16, v{XB+2+k}"); A(f"v_and_b32 v77, 0xffff0000, v{XB+2+k}")
            A(f"v_add_f32 v{BUF+2*k}, v{BUF+2*k}, v76"); A(f"v_add_f32 v{BUF+1+2*k}, v{BUF+1+2*k}, v77")
            A(f"v_lshlrev_b32 v76, 16, v{XB+k}"); A(f"v_and_b32 v77, 0xffff0000, v{XB+k}")
            A(f"v_add_f32 v{BUF+2*k}, v{BUF+2*k}, v76"); A(f"v_add_f32 v{BUF+1+2*k}, v{BUF+1+2*k}, v77")
        A(f"v_cvt_pk_bf16_f32 v72, v{BUF}, v{BUF+1}"); A(f"v_cvt_pk_bf16_f32 v73, v{BUF+2}, v{BUF+3}")
        A("buffer_store_dwordx2 v[72:73], v5, s[8:11], 0 offen")
    A.label("L_aux_done")
    P.stamp()
    if prof and tail2:
        A("s_cmp_lt_u32 s3, 4"); A("s_cbranch_scc1 L_end")
    P.flush()
    A.label("L_end")
    A("s_endpgm")
    out += A.L
    kernels = [(kname, 256, 102)]
    if not fused:
        B = Asm()
        out.append(".globl reduce_kernel"); out.append(".p2align 8"); out.append(".type reduce_kernel,@function")
        B.label("reduce_kernel")
        B("s_cmp_ge_u32 s2, 160"); B("s_cbranch_scc1 R_end")
        B("s_load_dwordx2 s[4:5], s[0:1], 0")
        B("s_load_dwordx4 s[8:11], s[0:1], 72")
        B("s_load_dwordx2 s[6:7], s[0:1], 96")
        B("s_mul_hi_u32 s12, s2, 0xccccccd")
        B("s_mul_i32 s13, s12, 20"); B("s_sub_u32 s13, s2, s13")
        B("v_and_b32 v1, 7, v0"); B("v_lshrrev_b32 v2, 3, v0")
        B("v_mul_u32_u24 v3, 10240, v2"); B("v_lshl_add_u32 v3, v1, 4, v3")
        B("s_lshl_b32 s14, s13, 7"); B("v_add_u32 v3, s14, v3")
        B("s_mul_i32 s15, s12, 81920")
        B("s_waitcnt lgkmcnt(0)")
        B("s_add_u32 s16, s6, s15"); B("s_addc_u32 s17, s7, 0"); B("s_mov_b32 s18, 81920"); B("s_mov_b32 s19, 0x20000")
        B("s_mov_b32 s20, 2560"); B("s_mov_b32 s21, 5120"); B("s_mov_b32 s22, 7680")
        B("buffer_load_dwordx4 v[4:7], v3, s[16:19], 0 offen")
        B("buffer_load_dwordx4 v[8:11], v3, s[16:19], s20 offen")
        B("buffer_load_dwordx4 v[12:15], v3, s[16:19], s21 offen")
        B("buffer_load_dwordx4 v[16:19], v3, s[16:19], s22 offen")
        B("s_mul_i32 s15, s12, 1280"); B("s_lshl_b32 s14, s13, 6")
        B("v_lshlrev_b32 v20, 3, v1"); B("v_add_u32 v20, s14, v20")
        B("s_add_u32 s24, s4, s15"); B("s_addc_u32 s25, s5, 0"); B("s_mov_b32 s26, 1280"); B("s_mov_b32 s27, 0x20000")
        B("s_mov_b32 s28, s8"); B("s_mov_b32 s29, s9"); B("s_mov_b32 s30, 1280"); B("s_mov_b32 s31, 0x20000")
        B("s_add_u32 s32, s10, s15"); B("s_addc_u32 s33, s11, 0"); B("s_mov_b32 s34, 1280"); B("s_mov_b32 s35, 0x20000")
        B("buffer_load_dwordx2 v[22:23], v20, s[24:27], 0 offen")
        B("buffer_load_dwordx2 v[24:25], v20, s[28:31], 0 offen")
        B("s_waitcnt vmcnt(2)")
        for k in range(4):
            B(f"v_add_f32 v{4+k}, v{4+k}, v{8+k}"); B(f"v_add_f32 v{12+k}, v{12+k}, v{16+k}"); B(f"v_add_f32 v{4+k}, v{4+k}, v{12+k}")
        B.nop(2)
        for k in range(4): B(f"v_add_f32_dpp v{4+k}, v{4+k}, v{4+k} row_ror:8 row_mask:0xf bank_mask:0xf")
        for sw in ("v_permlane16_swap_b32", "v_permlane32_swap_b32"):
            for k in range(4): B(f"v_mov_b32 v{8+k}, v{4+k}")
            B.nop(2)
            for k in range(4): B(f"{sw} v{4+k}, v{8+k}")
            B.nop(1)
            for k in range(4): B(f"v_add_f32 v{4+k}, v{4+k}, v{8+k}")
        B("s_waitcnt vmcnt(0)")
        for k in range(2):
            B(f"v_lshlrev_b32 v8, 16, v{22+k}"); B(f"v_and_b32 v9, 0xffff0000, v{22+k}")
            B(f"v_lshlrev_b32 v10, 16, v{24+k}"); B(f"v_and_b32 v11, 0xffff0000, v{24+k}")
            B(f"v_add_f32 v{4+2*k}, v{4+2*k}, v10"); B(f"v_add_f32 v{5+2*k}, v{5+2*k}, v11")
            B(f"v_add_f32 v{4+2*k}, v{4+2*k}, v8"); B(f"v_add_f32 v{5+2*k}, v{5+2*k}, v9")
        B("v_cvt_pk_bf16_f32 v4, v4, v5"); B("v_cvt_pk_bf16_f32 v5, v6, v7")
        B("v_cmp_gt_u32 vcc, 8, v0"); B("s_and_saveexec_b64 s[36:37], vcc")
        B("buffer_store_dwordx2 v[4:5], v20, s[32:35], 0 offen")
        B.label("R_end"); B("s_endpgm")
        out += B.L
        kernels.append(("reduce_kernel", 32, 48))
    out.append('.section .rodata,"a"')
    for kn, nv, ns in kernels:
        out += [".p2align 6", f".amdhsa_kernel {kn}", f"  .amdhsa_next_free_vgpr {nv}", f"  .amdhsa_next_free_sgpr {ns}",
                f"  .amdhsa_accum_offset {nv}", "  .amdhsa_group_segment_fixed_size 0", "  .amdhsa_kernarg_size 104",
                "  .amdhsa_user_sgpr_count 2", "  .amdhsa_user_sgpr_kernarg_segment_ptr 1", "  .amdhsa_system_sgpr_workgroup_id_x 1",
                "  .amdhsa_float_denorm_mode_32 3", ".end_amdhsa_kernel"]
    return "\n".join(out) + "\n"

if __name__ == "__main__":
    kw = eval("dict(" + (sys.argv[2] if len(sys.argv) > 2 else "") + ")")
    open(sys.argv[1], "w").write(gen(**kw))
```

```python
import struct, sys

NAME = "parallel_sum__gqa_block_cached__mixer_channel_mlp__decode"
HEADER = open("cdna_kernels/" + NAME + ".s.ref").read().split("; Override launch geometry")[0]

def f2u(x): return struct.unpack("<I", struct.pack("<f", x))[0]
SCALE = f2u(128 ** -0.5)
LOG2E = f2u(1.4426950408889634)
INV640 = f2u(1.0 / 640)
EPS = f2u(1e-5)

L_XN = 0
L_Y = 5120
L_QP = 6400
L_T = 8448
L_HV = 8960
L_OP = 9216
L_ML = 11264
L_OUTP = 11520
L_FLAG = 21760
L_PROG = 22528
L_MODE = 22544
L_F = 22784
LDS_BYTES = 22784 + 8 * 2560 + 1024

DOC = """; One workgroup per (batch b, head h); 8 waves: waves 0-3 stream the K/V cache, waves 4-7 do everything else.
;  streaming waves: 1-KiB non-temporal loads, 5 in flight per wave.  K phase: S = K q through 16x16x32 MFMAs whose B operand
;    is q placed in two columns per 8-key tile (64 scores per register); scores are rounded like the reference (bf16, *Dh^-0.5,
;    bf16).  True per-wave max, p = exp(s - max) in bf16.  V phase: O += p V through MFMAs with a one-hot-times-p A operand.
;  aux waves: LayerNorm, q = LN(x) Wq[:, h] (K-split over 4 waves, LDS reduce), MLP hidden units 64h..64h+63 (h < 27) of
;    batch b, prefetch of Wo[h], flash-style combine of the 4 wave partials, out-projection, float atomics into a per-batch
;    accumulator row in d_ws (zeroed by this launch); the last workgroup of a batch adds x + b2 and writes d_out.
;  d_debug words of batch b: +4 count of zeroed accumulator slices, +8 count of workgroups whose adds are complete.
;  Load balance (speed hint only, never affects results): aux wave 3 publishes this workgroup's progress on a per-XCD board in
;    d_ws and switches the streaming waves to a 7-deep window (VCC) while they lag behind the other CUs of the XCD.""".split("\n")

class Asm:
    def __init__(self):
        self.L = []
        self.vm = []
        self.landed = set()
        self.nlabel = 0
    def __call__(self, s): self.L.append("    " + s)
    def label(self, s): self.L.append(s + ":")
    def c(self, s): self.L.append("    ; " + s)
    def issue(self, tag, ins):
        self(ins); self.vm.append(tag)
        assert len(self.vm) <= 63, "too many outstanding vmem ops"
    def wait(self, tag):
        if tag not in self.vm: return
        i = self.vm.index(tag)
        n = len(self.vm) - 1 - i
        self(f"s_waitcnt vmcnt({n})")
        self.vm = self.vm[i + 1:]
    def waitall(self):
        if self.vm: self("s_waitcnt vmcnt(0)")
        self.vm = []
    def nop(self, n):
        while n > 0:
            k = min(n, 16); self(f"s_nop {k-1}"); n -= k

def allreduce(A, op, t, u):
    for ror in (8, 4, 2, 1):
        A.nop(2)
        A(f"v_{op}_f32_dpp v{t}, v{t}, v{t} row_ror:{ror} row_mask:0xf bank_mask:0xf")
    for sw in ("v_permlane16_swap_b32", "v_permlane32_swap_b32"):
        A(f"v_mov_b32 v{u}, v{t}")
        A.nop(2)
        A(f"{sw} v{t}, v{u}")
        A.nop(1)
        A(f"v_{op}_f32 v{t}, v{t}, v{u}")

def bf16r(A, d, s):
    A(f"v_cvt_pk_bf16_f32 v{d}, v{s}, v{s}")
    A(f"v_and_b32 v{d}, 0xffff0000, v{d}")

def layernorm(A, X, F, T, OUT):
    if isinstance(T, int): T = (T, T+1, T+2, T+3)
    for k in range(5):
        A(f"v_lshlrev_b32 v{F+2*k}, 16, v{X+k}")
        A(f"v_and_b32 v{F+2*k+1}, 0xffff0000, v{X+k}")
    t, u, m, r = T
    A(f"v_add_f32 v{t}, v{F}, v{F+1}")
    for k in range(2, 10): A(f"v_add_f32 v{t}, v{t}, v{F+k}")
    allreduce(A, "add", t, u)
    A(f"v_mul_f32 v{m}, {INV640:#x}, v{t}")
    A(f"v_sub_f32 v{u}, v{F}, v{m}")
    A(f"v_mul_f32 v{t}, v{u}, v{u}")
    for k in range(1, 10):
        A(f"v_sub_f32 v{u}, v{F+k}, v{m}")
        A(f"v_fmac_f32 v{t}, v{u}, v{u}")
    allreduce(A, "add", t, u)
    A(f"v_mul_f32 v{t}, {INV640:#x}, v{t}")
    bf16r(A, t, t)
    A(f"v_add_f32 v{t}, {EPS:#x}, v{t}")
    bf16r(A, t, t)
    A(f"v_sqrt_f32 v{t}, v{t}")
    A.nop(1)
    bf16r(A, t, t)
    A(f"v_rcp_f32 v{r}, v{t}")
    bf16r(A, m, m)
    for k in range(5):
        A(f"v_sub_f32 v{F+2*k}, v{F+2*k}, v{m}")
        A(f"v_sub_f32 v{F+2*k+1}, v{F+2*k+1}, v{m}")
        A(f"v_cvt_pk_bf16_f32 v{u}, v{F+2*k}, v{F+2*k+1}")
        A(f"v_lshlrev_b32 v{F+2*k}, 16, v{u}")
        A(f"v_and_b32 v{F+2*k+1}, 0xffff0000, v{u}")
        A(f"v_mul_f32 v{F+2*k}, v{F+2*k}, v{r}")
        A(f"v_mul_f32 v{F+2*k+1}, v{F+2*k+1}, v{r}")
        A(f"v_cvt_pk_bf16_f32 v{OUT+k}, v{F+2*k}, v{F+2*k+1}")

def srd(A, d, lo, hi, off_s, size):
    if off_s is None:
        A(f"s_mov_b32 s{d}, s{lo}"); A(f"s_mov_b32 s{d+1}, s{hi}")
    else:
        A(f"s_add_u32 s{d}, s{lo}, s{off_s}"); A(f"s_addc_u32 s{d+1}, s{hi}, 0")
    A(f"s_mov_b32 s{d+2}, {size}")
    A(f"s_mov_b32 s{d+3}, 0x20000")

class Prof:
    def __init__(self, A, on, reg): self.A, self.on, self.reg, self.n = A, on, reg, 0
    def stamp(self):
        if not self.on: return
        A = self.A
        A("s_memrealtime s[92:93]"); A("s_waitcnt lgkmcnt(0)")
        A(f"v_writelane_b32 v{self.reg}, s92, {self.n}"); self.n += 1
    def flush(self):
        if not self.on: return
        A = self.A
        A("s_getreg_b32 s92, hwreg(HW_REG_HW_ID)"); A(f"v_writelane_b32 v{self.reg}, s92, 62")
        A("s_mov_b64 exec, -1")
        A("s_lshl_b32 s94, s2, 3"); A("s_add_u32 s94, s94, s3"); A("s_lshl_b32 s94, s94, 8"); A("s_add_u32 s94, s94, 0x2000000")
        A(f"v_lshlrev_b32 v1, 2, v0"); A("v_add_u32 v1, s94, v1")
        A(f"global_store_dword v1, v{self.reg}, s[40:41]")

def gen(N=5, C=8, S0=24, R=32, catch=2, Ntail=None, tail_from=None, NA=4, wpol="", kvpol="nt", prof=0, fused=0, prio=1, hmap=1, nomlp=0, nowo=0, NW=8, diag=0, nostream=0, WQ0=16, NQ=0, bar0=0, K0=5, dyn=0, NH=8, dyn_from=32, CK0=4, CKS=4, TH=(128,192,232), BO=(1,2,3), CKEXIT=30, sleep=3, even_boost=(16,20), T2=720, TK=226, TV=217, MARG=0, wmask=0, rotm=0, CV=None, tail2=0, rg=32, sl16=0, warm=0, earlyml=1, rotx=0, ktest=0, fin1=1, swapkv=0, zlate=0, NBE=3, LK=26, BS0=16, kboost=(), tlbtest=0, dry=0, THON=32, THOFF=8, PEXIT=120, res=8, glob=0, GK=3):
    A = Asm()
    P = Prof(A, prof, 63)
    kname = NAME + "_kernel"
    out = []
    out.append(HEADER.rstrip("\n"))
    lds_bytes = LDS_BYTES if (tail2 or dry or fused == 1) else 22784
    out += DOC
    if fused:
        out.append(f"; @launch grid=(256,1,1) block=(512,1,1) lds={lds_bytes}")
    else:
        out.append(f"; @launch kernel={kname} grid=(256,1,1) block=(512,1,1) lds={lds_bytes}")
        out.append(f"; @launch kernel=reduce_kernel grid=(160,1,1) block=(64,1,1) lds=0")
    out.append('.amdgcn_target "amdgcn-amd-amdhsa--gfx950"')
    out.append(".text"); out.append(f".globl {kname}"); out.append(".p2align 8"); out.append(f".type {kname},@function")
    A.label(kname)
    A("s_cmp_ge_u32 s2, 256"); A("s_cbranch_scc1 L_end")
    A("s_load_dwordx16 s[16:31], s[0:1], 0")
    A("s_load_dwordx8 s[32:39], s[0:1], 64")
    A("s_load_dwordx2 s[40:41], s[0:1], 96")
    A("v_lshrrev_b32 v1, 6, v0")
    A("v_and_b32 v0, 63, v0")
    A("v_readfirstlane_b32 s3, v1")
    A("v_and_b32 v2, 15, v0")
    A("v_lshrrev_b32 v3, 4, v0")
    if hmap == 0:
        A("s_lshr_b32 s4, s2, 5")
        A("s_and_b32 s5, s2, 31")
    else:
        A("s_and_b32 s5, s2, 7"); A("s_lshl_b32 s5, s5, 2"); A("s_bfe_u32 s4, s2, 0x20003"); A("s_add_u32 s5, s5, s4")
        A("s_lshr_b32 s4, s2, 5")
    A("s_lshl_b32 s66, s4, 5"); A("s_add_u32 s66, s66, s5")
    if prof: A("v_mov_b32 v63, 0")
    A("s_cmp_ge_u32 s3, 4"); A("s_cbranch_scc1 L_aux")
    vK, vV = 4, 5
    MASK = 8
    AT = 12
    D = 20
    O = 28
    S = 32
    TM = 48
    BQ = 64
    RING = 128
    assert R * 4 + RING <= 256
    if prio: A(f"s_setprio {prio}")
    A("v_bfe_u32 v6, v2, 1, 1"); A("v_lshlrev_b32 v6, 10, v6")
    A("v_lshrrev_b32 v7, 2, v2"); A("v_lshl_add_u32 v6, v7, 8, v6")
    A("v_and_b32 v7, 1, v2"); A("v_lshl_add_u32 v6, v7, 6, v6")
    A(f"v_lshl_add_u32 v{vK}, v3, 4, v6")
    A(f"v_lshlrev_b32 v{vV}, 4, v0")
    if ktest == 1: A(f"v_lshlrev_b32 v{vK}, 4, v0")
    if ktest == 2:
        A("v_bfe_u32 v6, v0, 2, 2"); A("v_lshlrev_b32 v6, 8, v6"); A("v_lshl_add_u32 v6, v3, 6, v6"); A("v_and_b32 v7, 3, v0")
        A(f"v_lshl_add_u32 v{vK}, v7, 4, v6")
    A("s_lshl_b32 s6, s66, 20"); A("s_lshr_b32 s7, s66, 12")
    if CV is None: CV = C
    A(f"s_mul_i32 s42, s3, {C*1024}")
    if rotx:
        rotm = 1
        if rotx == 2: A("s_lshr_b32 s45, s2, 5"); A("s_lshl_b32 s45, s45, 2")
        if rotx == 3: A("s_lshr_b32 s45, s2, 5"); A("s_lshl_b32 s45, s45, 2"); A("s_add_u32 s45, s45, s2")
        if rotx == 5: A("s_and_b32 s45, s2, 7"); A("s_lshl_b32 s45, s45, 2")
        if rotx == 6: A("s_lshr_b32 s45, s2, 3")
        if rotx == 7: A("s_and_b32 s45, s2, 7")
        if rotx == 8: A("s_lshr_b32 s45, s2, 3"); A("s_and_b32 s45, s45, 3"); A("s_lshl_b32 s45, s45, 3")
        A(f"s_and_b32 s45, s45, {1024 // rg - 1}"); A(f"s_mul_i32 s45, s45, {rg*1024}")
        A("s_add_u32 s42, s42, s45")
    elif rotm:
        A(f"s_mul_i32 s45, s2, {rotm}"); A(f"s_and_b32 s45, s45, {1024 // rg - 1}"); A(f"s_mul_i32 s45, s45, {rg*1024}")
        A("s_add_u32 s42, s42, s45")
    A("s_waitcnt lgkmcnt(0)")
    kp, vp = (20, 18) if swapkv else (18, 20)
    A(f"s_add_u32 s8, s{kp}, s6"); A(f"s_addc_u32 s9, s{kp+1}, s7"); A("s_mov_b32 s10, 0x100000"); A("s_mov_b32 s11, 0x20000")
    A(f"s_add_u32 s12, s{vp}, s6"); A(f"s_addc_u32 s13, s{vp+1}, s7"); A("s_mov_b32 s14, 0x100000"); A("s_mov_b32 s15, 0x20000")
    P.stamp()
    if dyn == 4: A("s_memrealtime s[70:71]")
    cur_page = [None]
    def kv_load(n):
        isv = n >= 256; m = n % 256
        vi, wi = m // C, m % C
        byte = vi * 4 * C * 1024 + (wi // 2) * 2048 + ((wi % 2) * (1024 if (isv or ktest) else 128))
        page, imm = byte // 4096 * 4096, byte % 4096
        if cur_page[0] != page:
            A(f"s_add_u32 s43, s42, {page}"); cur_page[0] = page
            if rotm: A("s_and_b32 s43, s43, 0xfffff")
        v = RING + (n % R) * 4
        A.issue(("kv", n), f"buffer_load_dwordx4 v[{v}:{v+3}], v{vV if isv else vK}, s[{'12:15' if isv else '8:11'}], s43 offen offset:{imm} {kvpol}")
    def win(n):
        if Ntail is not None and n >= tail_from: return Ntail
        if dyn and n >= dyn_from: return NH
        return N
    issued = [0]
    def pace():
        n = issued[0]
        if n >= 512: return False
        w = win(n)
        if Ntail is not None and n >= tail_from:
            if n - Ntail >= 0: A.wait(("kv", n - Ntail))
        elif dyn and n >= dyn_from:
            lab = f"Lw{n}"
            A(f"s_cbranch_vccnz {lab}"); A(f"s_waitcnt vmcnt({N-1})"); A.label(lab)
            A.wait(("kv", n - NH))
        elif n - w >= 0: A.wait(("kv", n - w))
        kv_load(n); issued[0] += 1
        if diag == 5 and n < 44: P.stamp()
        return True
    if nostream:
        A("s_barrier"); A("s_barrier"); A("s_endpgm")
    for _ in range(K0 if bar0 else N): pace()
    A("v_and_b32 v6, 1, v2"); A("v_lshlrev_b32 v6, 4, v6")
    A("v_mov_b32 v7, 0xffff"); A("v_lshlrev_b32 v7, v6, v7")
    A("v_bfe_u32 v6, v2, 1, 2")
    for r in range(4):
        A(f"v_cmp_eq_u32 vcc, {r}, v6"); A.nop(2); A(f"v_cndmask_b32 v{MASK+r}, 0, v7, vcc")
    A("v_lshrrev_b32 v6, 1, v2")
    for t in range(8): A(f"v_cmp_eq_u32 s[{48+2*t}:{49+2*t}], {t}, v6")
    A("v_and_b32 v6, 1, v2"); A("v_cmp_eq_u32 s[64:65], 0, v6")
    A(f"v_lshl_add_u32 v6, v6, 2, v3"); A(f"v_lshlrev_b32 v6, 5, v6")
    if bar0:
        A("s_barrier")
        P.stamp()
    while issued[0] < S0:
        pace()
        if diag == 3: P.stamp()
    P.stamp()
    A("s_barrier")
    P.stamp()
    for a in range(4):
        for half in range(2):
            for q in range(2):
                v = BQ + a * 16 + half * 8 + q * 4
                A(f"ds_read_b128 v[{v}:{v+3}], v6 offset:{L_QP + a*512 + half*256 + q*16}")
    if issued[0] < R: pace()
    A("s_waitcnt lgkmcnt(0)")
    for k in range(16):
        A(f"v_add_f32 v{TM-16+k}, v{BQ+k}, v{BQ+16+k}")
        A(f"v_add_f32 v{BQ+32+k}, v{BQ+32+k}, v{BQ+48+k}")
    if issued[0] < R: pace()
    for k in range(16):
        A(f"v_add_f32 v{S+k}, v{S+k}, v{BQ+32+k}")
    for k in range(8):
        A(f"v_cvt_pk_bf16_f32 v{TM+k}, v{S+2*k}, v{S+2*k+1}")
    if issued[0] < R: pace()
    for t in range(8):
        for k in range(8):
            A(f"v_cndmask_b32 v{BQ+t*8+k}, 0, v{TM+k}, s[{48+2*t}:{49+2*t}]")
        if t % 2 == 1 and issued[0] < R: pace()
    P.stamp()
    if dyn:
        A("s_mov_b64 vcc, 0")
        if dyn == 5:
            A(f"s_lshr_b32 s67, {wmask}, s3"); A("s_bitcmp1_b32 s67, 0"); A("s_cselect_b64 vcc, -1, 0")
        A("s_lshl_b32 s67, s3, 2"); A(f"v_mov_b32 v{TM+12}, s67"); A(f"v_mov_b32 v{TM+14}, 0")
    deferred = []
    unit = [0]
    def run_deferred(force=False):
        k = 0
        while k < len(deferred):
            if force or deferred[k][0] <= unit[0]:
                deferred.pop(k)[1]()
            else: k += 1
    def merge(t16):
        d = D + (t16 % 2) * 4
        a, b = TM + 8, TM + 9
        A(f"v_cndmask_b32 v{a}, v{d+3}, v{d}, s[64:65]")
        A(f"v_cndmask_b32 v{b}, v{d+1}, v{d+2}, s[64:65]")
        A.nop(2)
        A(f"v_add_f32_dpp v{a}, v{b}, v{a} quad_perm:[1,0,3,2] row_mask:0xf bank_mask:0xf")
        bf16r(A, a, a)
        A(f"v_mul_f32 v{a}, {SCALE:#x}, v{a}")
        bf16r(A, S + t16, a)
    def hooks(step, cc):
        if not dyn or dyn == 5: return
        if dyn == 8:
            if cc % res == 0:
                A(f"v_mov_b32 v{TM+11}, {step*4 + cc//4}")
                A(f"ds_write_b32 v{TM+12}, v{TM+11} offset:{L_PROG}")
            if cc % 8 == 2: A(f"ds_read_b32 v{TM+13}, v{TM+14} offset:{L_MODE}")
            if cc % 8 == 6:
                if even_boost[0] <= step < even_boost[1]:
                    A("s_waitcnt lgkmcnt(0)"); A(f"v_readfirstlane_b32 s67, v{TM+13}")
                    A("s_getreg_b32 s73, hwreg(HW_REG_XCC_ID)"); A("s_andn2_b32 s73, 1, s73"); A("s_or_b32 s67, s67, s73")
                    A("s_cmp_lg_u32 s67, 0"); A("s_cselect_b64 vcc, -1, 0")
                else:
                    A("s_waitcnt lgkmcnt(0)"); A(f"v_readfirstlane_b32 s67, v{TM+13}")
                    A("s_cmp_lg_u32 s67, 0"); A("s_cselect_b64 vcc, -1, 0")
            return
        if dyn == 4:
            if cc == 2: A("s_memrealtime s[68:69]")
            if cc == 6 and step >= 2:
                tref = T2 + (min(step, 16) - 2) * TK + max(step - 16, 0) * TV + MARG
                A("s_waitcnt lgkmcnt(0)"); A("s_sub_u32 s68, s68, s70")
                A(f"s_cmp_gt_u32 s68, {tref}"); A("s_cselect_b64 vcc, -1, 0")
            return
        if cc == 2 and dyn == 7 and step == BS0 - 1:
            A(f"ds_read_b32 v{TM+13}, v{TM+14} offset:{L_MODE}")
        if cc == 2 and dyn not in (2, 6, 7):
            A(f"v_mov_b32 v{TM+11}, {step}")
            A(f"ds_write_b32 v{TM+12}, v{TM+11} offset:{L_PROG}")
            if dyn == 3: A(f"ds_read_b32 v{TM+13}, v{TM+14} offset:{L_MODE}")
        if cc == 6:
            if dyn == 3:
                A("s_waitcnt lgkmcnt(0)"); A(f"v_readfirstlane_b32 s67, v{TM+13}")
                A("s_cmp_lg_u32 s67, 0"); A("s_cselect_b64 vcc, -1, 0")
            elif dyn == 2:
                if step == even_boost[0]: A("s_bitcmp0_b32 s2, 0"); A("s_cselect_b64 vcc, -1, 0")
                if step == even_boost[1]: A("s_mov_b64 vcc, 0")
            elif dyn == 7:
                if step == BS0 - 1:
                    A("s_waitcnt lgkmcnt(0)"); A(f"v_readfirstlane_b32 s72, v{TM+13}")
                if BS0 <= step <= BS0 + 8:
                    A(f"s_cmp_gt_u32 s72, {step - BS0}"); A("s_cselect_b64 vcc, -1, 0")
            elif dyn == 6:
                if step in kboost: A("s_mov_b64 vcc, -1")
                elif even_boost[0] <= step < even_boost[1]:
                    A("s_getreg_b32 s67, hwreg(HW_REG_XCC_ID)"); A("s_bitcmp0_b32 s67, 0"); A("s_cselect_b64 vcc, -1, 0")
                elif (step - 1) in kboost or step == even_boost[1]: A("s_mov_b64 vcc, 0")
    def k_consume(c):
        hooks(c // 16, c % 16)
        if diag == 4 and c % 32 == 0 and c: P.stamp()
        t16, tt, half = c // 16, (c % 16) // 2, c % 2
        d = D + (t16 % 2) * 4
        v = RING + (c % R) * 4
        A.wait(("kv", c))
        b = BQ + tt * 8 + half * 4
        cs = "0" if c % 16 == 0 else f"v[{d}:{d+3}]"
        A(f"v_mfma_f32_16x16x32_bf16 v[{d}:{d+3}], v[{v}:{v+3}], v[{b}:{b+3}], {cs}")
        if c % 16 == 15: deferred.append((unit[0] + 9, lambda t=t16: merge(t)))
    def pexp(t16):
        a = TM + 10
        A(f"v_sub_f32 v{a}, v{S+t16}, v{TM}")
        A(f"v_mul_f32 v{a}, {LOG2E:#x}, v{a}")
        A(f"v_exp_f32 v{a}, v{a}")
        A.nop(1)
        A(f"v_add_f32 v{TM+1}, v{TM+1}, v{a}")
        A(f"v_cvt_pk_bf16_f32 v{S+t16}, v{a}, v{a}")
    def abuild(c):
        at = AT + (c % 2) * 4
        for r in range(4):
            A(f"v_and_b32_dpp v{at+r}, v{S + c//16}, v{MASK+r} row_newbcast:{c%16} row_mask:0xf bank_mask:0xf")
    def v_consume(c):
        hooks(16 + c // 16, c % 16)
        if diag == 4 and c % 64 == 0 and c: P.stamp()
        at = AT + (c % 2) * 4
        v = RING + ((256 + c) % R) * 4
        if c + 1 < 256: abuild(c + 1)
        else: A.nop(2)
        A.wait(("kv", 256 + c))
        cs = "0" if c == 0 else f"v[{O}:{O+3}]"
        A(f"v_mfma_f32_16x16x32_bf16 v[{O}:{O+3}], v[{at}:{at+3}], v[{v}:{v+3}], {cs}")
        if c % 16 == 4 and c // 16 + 1 < 16: pexp(c // 16 + 1)
        if c == 236 and earlyml:
            allreduce(A, "add", TM + 1, TM + 2)
            A("s_lshl_b32 s44, s3, 3"); A("v_mov_b32 v7, s44")
            A(f"v_mov_b32 v{TM+2}, v{TM}"); A(f"v_mov_b32 v{TM+3}, v{TM+1}")
            A("s_mov_b64 exec, 1")
            A(f"ds_write_b64 v7, v[{TM+2}:{TM+3}] offset:{L_ML}")
            A("s_mov_b64 exec, -1")
            A("v_lshlrev_b32 v6, 5, v2"); A("v_lshl_add_u32 v6, v3, 4, v6")
            A("s_lshl_b32 s44, s3, 9"); A("v_add_u32 v6, s44, v6")
    c = 0
    while c < 256:
        can_issue = issued[0] < 512 and issued[0] - R < c
        if can_issue: pace()
        lag = issued[0] - win(max(issued[0]-1,0)) - c
        k = catch if lag > 1 else 1
        for _ in range(k):
            if c < 256:
                k_consume(c); c += 1
                unit[0] += 1; run_deferred()
    A.nop(8)
    run_deferred(force=True)
    P.stamp()
    def pace_ok():
        if issued[0] < 512 and issued[0] - R < 256: pace()
    A(f"v_max3_f32 v{TM}, v{S}, v{S+1}, v{S+2}")
    for k in range(3, 15, 2): A(f"v_max3_f32 v{TM}, v{TM}, v{S+k}, v{S+k+1}")
    A(f"v_max_f32 v{TM}, v{TM}, v{S+15}")
    pace_ok()
    allreduce(A, "max", TM, TM + 2)
    pace_ok()
    A(f"v_mov_b32 v{TM+1}, 0")
    pexp(0)
    A.nop(2)
    abuild(0)
    P.stamp()
    c = 0
    while c < 256:
        can_issue = issued[0] < 512 and issued[0] - R < 256 + c
        if can_issue: pace()
        while Ntail is not None and tail_from <= issued[0] < 512 and issued[0] - (256 + c) < Ntail and issued[0] - R < 256 + c: pace()
        lag = issued[0] - win(max(issued[0]-1,0)) - (256 + c)
        k = catch if (lag > 1 or issued[0] >= 512) else 1
        for _ in range(k):
            if c < 256:
                v_consume(c); c += 1
    P.stamp()
    if not earlyml:
        allreduce(A, "add", TM + 1, TM + 2)
        A("v_lshlrev_b32 v6, 5, v2"); A("v_lshl_add_u32 v6, v3, 4, v6")
        A("s_lshl_b32 s44, s3, 9"); A("v_add_u32 v6, s44, v6")
        A("s_lshl_b32 s44, s3, 3"); A("v_mov_b32 v7, s44")
        A(f"v_mov_b32 v{TM+2}, v{TM}"); A(f"v_mov_b32 v{TM+3}, v{TM+1}")
        assert (TM + 2) % 2 == 0
        A("s_mov_b32 exec_hi, 0")
        A(f"ds_write_b128 v6, v[{O}:{O+3}] offset:{L_OP}")
        A("s_mov_b32 exec_lo, 1")
        A(f"ds_write_b64 v7, v[{TM+2}:{TM+3}] offset:{L_ML}")
    else:
        A("s_mov_b32 exec_hi, 0")
        A.nop(7)
        A(f"ds_write_b128 v6, v[{O}:{O+3}] offset:{L_OP}")
    A("s_waitcnt lgkmcnt(0)")
    A("s_barrier")
    P.stamp()
    if tail2:
        A("s_mov_b64 exec, -1")
        P.flush()
        A("s_branch L_b3")
    else:
        P.flush()
        A("s_endpgm")
    A.vm = []
    P = Prof(A, prof, 63)
    A.label("L_aux")
    if dyn == 7: A("s_memrealtime s[74:75]")
    SEL = 8
    AT = 16
    DO = 24
    DQ = 44
    X = 48
    F = 53
    T = 4
    PP = 64
    BUF = 96
    A("s_sub_u32 s42, s3, 4")
    A("s_mul_i32 s43, s42, 160"); A("v_mul_u32_u24 v4, 40, v3"); A("v_add_u32 v4, s43, v4")
    A("v_lshlrev_b32 v4, 13, v4"); A("v_lshl_add_u32 v4, v2, 4, v4")
    A("v_lshlrev_b32 v5, 2, v0")
    A("s_mul_i32 s6, s4, 1280"); A("s_lshl_b32 s7, s5, 8")
    A("s_sub_u32 s44, 5242880, s7")
    A("s_waitcnt lgkmcnt(0)")
    if dyn == 7:
        A("s_cmp_lg_u32 s42, 1"); A("s_cbranch_scc1 L_nostart")
        A("s_cmp_ge_u32 s2, 8"); A("s_cbranch_scc1 L_nostart")
        A("s_or_b32 s76, s74, 1"); A("v_mov_b32 v6, s76"); A("s_lshl_b32 s76, s2, 5"); A("v_mov_b32 v7, s76")
        A("s_mov_b64 exec, 1")
        A("global_store_dword v7, v6, s[38:39] offset:12 sc1")
        A("s_mov_b64 exec, -1")
        A.label("L_nostart")
    srd(A, 8, 16, 17, 6, 1280)
    srd(A, 12, 22, 23, 7, "s44")
    P.stamp()
    for k in range(5):
        A.issue(("x", k), f"buffer_load_dword v{X+k}, v5, s[8:11], 0 offen offset:{k*256}")
    A("s_lshl_b32 s45, s4, 15")
    def wq_load(j):
        v = BUF + 4 * j
        if NQ and j >= NQ: A.wait(("wq", j - NQ))
        A.issue(("wq", j), f"buffer_load_dwordx4 v[{v}:{v+3}], v4, s[12:15], s45 offen {wpol}")
        if j < 39:
            A("s_add_u32 s45, s45, 8192"); A(f"s_cmp_eq_u32 s45, {40*8192}"); A("s_cselect_b32 s45, 0, s45")
    if bar0 == 2: WQ0 = 40
    for j in range(WQ0): wq_load(j)
    if bar0 == 2: A("s_barrier")
    A("v_and_b32 v6, 1, v2")
    A("v_cmp_eq_u32 vcc, 0, v6")
    A("v_mov_b32 v60, 0x01000c0c"); A("v_mov_b32 v61, 0x0c0c0100")
    A("v_cndmask_b32 v60, v60, v61, vcc")
    A("v_mov_b32 v6, 0x03020c0c"); A("v_mov_b32 v61, 0x0c0c0302")
    A("v_cndmask_b32 v61, v6, v61, vcc")
    A("v_bfe_u32 v6, v2, 1, 2"); A("v_mov_b32 v7, 0x0c0c0c0c")
    for r in range(4):
        A(f"v_cmp_eq_u32 vcc, {r}, v6"); A.nop(2)
        A(f"v_cndmask_b32 v{SEL+r}, v7, v60, vcc"); A(f"v_cndmask_b32 v{SEL+4+r}, v7, v61, vcc")
    for k in range(20): A(f"v_mov_b32 v{DO+k}, 0")
    A.wait(("x", 4))
    P.stamp()
    LN = Asm(); layernorm(LN, X, F, (84, 85, 86, 87), X)
    rem = list(range(WQ0, 40)); step = max(1, len(LN.L) // (len(rem) + 1))
    for i, ins in enumerate(LN.L):
        A.L.append(ins)
        if rem and i % step == step - 1: wq_load(rem.pop(0))
    for j in rem: wq_load(j)
    if bar0 == 1: A("s_barrier")
    A("s_mul_i32 s43, s42, 1280")
    A("v_lshlrev_b32 v5, 2, v0"); A("v_add_u32 v5, s43, v5")
    for k in range(5): A(f"ds_write_b32 v5, v{X+k} offset:{L_XN + 256*k}")
    A("s_mul_i32 s43, s42, 1600"); A("v_mul_u32_u24 v5, 80, v3"); A("v_add_u32 v5, s43, v5")
    A("s_lshl_b32 s46, s4, 3")
    A("s_waitcnt lgkmcnt(0)")
    for k in range(10):
        A(f"v_add_u32 v6, s46, v5")
        A(f"ds_read_b64 v[{PP+2*k}:{PP+2*k+1}], v6 offset:{L_XN}")
        A("s_add_u32 s46, s46, 8"); A("s_cmp_eq_u32 s46, 80"); A("s_cselect_b32 s46, 0, s46")
    A("s_waitcnt lgkmcnt(0)")
    P.stamp()
    def abuild_p(preg, par, st):
        at = AT + st * 4
        for r in range(4): A(f"v_perm_b32 v{at+r}, v{preg}, v{preg}, v{SEL + par*4 + r}")
    abuild_p(PP, 0, 0)
    for j in range(40):
        if j + 1 < 40: abuild_p(PP + (j + 1) // 2, (j + 1) % 2, (j + 1) % 2)
        else: A.nop(2)
        A.wait(("wq", j))
        at = AT + (j % 2) * 4; v = BUF + 4 * j
        cs = "0" if j == 0 else f"v[{DQ}:{DQ+3}]"
        A(f"v_mfma_f32_16x16x32_bf16 v[{DQ}:{DQ+3}], v[{at}:{at+3}], v[{v}:{v+3}], {cs}")
    A("v_lshlrev_b32 v6, 5, v2"); A("v_lshl_add_u32 v6, v3, 4, v6")
    A("s_lshl_b32 s43, s42, 9"); A("v_add_u32 v7, s43, v6")
    A.nop(6)
    A("s_mov_b32 exec_hi, 0")
    A(f"ds_write_b128 v7, v[{DQ}:{DQ+3}] offset:{L_QP}")
    A("s_mov_b32 exec_hi, -1")
    if dyn:
        A("v_lshlrev_b32 v6, 2, v0"); A("v_mov_b32 v7, 0")
        A("s_mov_b64 exec, 0xff")
        A(f"ds_write_b32 v6, v7 offset:{L_PROG}")
        A("s_mov_b64 exec, -1")
    A("s_waitcnt lgkmcnt(0)")
    P.stamp()
    A("s_barrier")
    A("s_cmp_lg_u32 s42, 0"); A("s_cbranch_scc1 L_wo")
    A("s_cmp_ge_u32 s5, %d" % (0 if nomlp else 27)); A("s_cbranch_scc1 L_wo")
    layernorm(A, X, F, T, X)
    A("v_lshlrev_b32 v4, 2, v0")
    for k in range(5): A(f"ds_write_b32 v4, v{X+k} offset:{L_Y + 256*k}")
    A("s_lshl_b32 s6, s5, 7")
    A(f"s_sub_u32 s44, {640*3456}, s6")
    srd(A, 8, 28, 29, 6, "s44")
    srd(A, 12, 30, 31, 6, 128)
    A("v_lshlrev_b32 v5, 1, v0")
    A.issue(("b1", 0), f"buffer_load_ushort v{F}, v5, s[12:15], 0 offen")
    A("v_lshrrev_b32 v5, 3, v2"); A("v_lshl_add_u32 v5, v3, 1, v5")
    A("v_mul_u32_u24 v6, 160, v5")
    A(f"s_mov_b32 s45, {(1 if tlbtest & 1 else 80)*3456}"); A("v_mul_lo_u32 v5, s45, v5")
    A("v_and_b32 v7, 7, v2"); A("v_lshl_add_u32 v5, v7, 4, v5")
    A("s_waitcnt lgkmcnt(0)")
    PY = BUF
    for k in range(10): A(f"ds_read_b128 v[{PY+4*k}:{PY+4*k+3}], v6 offset:{L_Y + 16*k}")
    RB, RN = BUF + 40, 30
    def w1_load(j):
        v = RB + (j % RN) * 4
        A(f"s_mov_b32 s45, {j*3456*(8 if tlbtest & 1 else 1)}")
        A.issue(("w1", j), f"buffer_load_dwordx4 v[{v}:{v+3}], v5, s[8:11], s45 offen {wpol}")
    for j in range(NW): w1_load(j)
    A("s_waitcnt lgkmcnt(0)")
    abuild_p(PY, 0, 0)
    for j in range(80):
        if j + 1 < 80: abuild_p(PY + (j + 1) // 2, (j + 1) % 2, (j + 1) % 2)
        else: A.nop(2)
        A.wait(("w1", j))
        at = AT + (j % 2) * 4; v = RB + (j % RN) * 4
        cs = "0" if j == 0 else f"v[{DQ}:{DQ+3}]"
        A(f"v_mfma_f32_16x16x32_bf16 v[{DQ}:{DQ+3}], v[{at}:{at+3}], v[{v}:{v+3}], {cs}")
        if j + NW < 80: w1_load(j + NW)
    A("s_mul_i32 s6, s5, 81920")
    A(f"s_sub_u32 s44, {1728*1280}, s6")
    srd(A, 8, 32, 33, 6, "s44")
    A("v_mul_u32_u24 v5, 20480, v3"); A("v_lshl_add_u32 v5, v2, 4, v5")
    def w2_load(n):
        jj, cb = n // 5, n % 5
        v = RB + (n % RN) * 4
        if cb == 0: A(f"s_mov_b32 s45, {jj*1280}")
        A.issue(("w2", n), f"buffer_load_dwordx4 v[{v}:{v+3}], v5, s[8:11], s45 offen offset:{cb*256} {wpol}")
    for n in range(10): w2_load(n)
    A("v_lshrrev_b32 v6, 1, v3"); A("v_lshrrev_b32 v7, 3, v2")
    A("v_cmp_eq_u32 vcc, v6, v7")
    A("v_lshlrev_b32 v6, 8, v6"); A("v_and_b32 v7, 7, v2"); A("v_lshl_add_u32 v6, v7, 5, v6")
    A("v_and_b32 v7, 1, v3"); A("v_lshl_add_u32 v6, v7, 4, v6")
    A("s_and_saveexec_b64 s[46:47], vcc")
    A(f"ds_write_b128 v6, v[{DQ}:{DQ+3}] offset:{L_T}")
    A("s_mov_b64 exec, s[46:47]")
    A("v_lshlrev_b32 v6, 2, v0")
    A("s_waitcnt lgkmcnt(0)")
    A(f"ds_read_b32 v{F+1}, v6 offset:{L_T}"); A(f"ds_read_b32 v{F+2}, v6 offset:{L_T+256}")
    A("s_waitcnt lgkmcnt(0)")
    A(f"v_add_f32 v{F+1}, v{F+1}, v{F+2}")
    bf16r(A, F + 1, F + 1)
    A.wait(("b1", 0))
    A(f"v_lshlrev_b32 v{F}, 16, v{F}")
    A(f"v_add_f32 v{F+1}, v{F+1}, v{F}")
    bf16r(A, F + 1, F + 1)
    x_, u_, e_ = F + 1, F + 2, F + 3
    A(f"v_mul_f32 v{u_}, v{x_}, v{x_}"); A(f"v_mul_f32 v{u_}, v{u_}, v{x_}")
    A(f"v_mov_b32 v{e_}, {f2u(0.044715):#x}"); A(f"v_fma_f32 v{u_}, v{u_}, v{e_}, v{x_}")
    A(f"v_mul_f32 v{u_}, {f2u(-2*0.7978845608028654*1.4426950408889634):#x}, v{u_}")
    A(f"v_exp_f32 v{u_}, v{u_}"); A.nop(1)
    A(f"v_add_f32 v{u_}, 1.0, v{u_}"); A(f"v_rcp_f32 v{u_}, v{u_}"); A.nop(1)
    A(f"v_mul_f32 v{u_}, v{x_}, v{u_}")
    A(f"v_cvt_pk_bf16_f32 v{u_}, v{u_}, v{u_}")
    A("v_lshlrev_b32 v6, 1, v0")
    A(f"ds_write_b16 v6, v{u_} offset:{L_HV}")
    A("v_lshlrev_b32 v6, 5, v3")
    A("s_waitcnt lgkmcnt(0)")
    for k in range(2): A(f"ds_read_b128 v[{PP+4*k}:{PP+4*k+3}], v6 offset:{L_HV + 16*k}")
    A("s_waitcnt lgkmcnt(0)")
    abuild_p(PP, 0, 0)
    nl = 10
    for jj in range(16):
        if jj + 1 < 16: abuild_p(PP + (jj + 1) // 2, (jj + 1) % 2, (jj + 1) % 2)
        else: A.nop(2)
        at = AT + (jj % 2) * 4
        for cb in range(5):
            n = jj * 5 + cb
            A.wait(("w2", n))
            v = RB + (n % RN) * 4; d = DO + 4 * cb
            A(f"v_mfma_f32_16x16x32_bf16 v[{d}:{d+3}], v[{at}:{at+3}], v[{v}:{v+3}], v[{d}:{d+3}]")
            if nl < 80: w2_load(nl); nl += 1
    A.waitall()
    A.label("L_wo")
    A.vm = []
    def zero_init():
        A("s_cmp_lg_u32 s42, 1"); A("s_cbranch_scc1 L_zero_done")
        A("s_mul_i32 s6, s4, 2560"); A("s_mul_i32 s43, s5, 80"); A("s_add_u32 s6, s6, s43"); A("s_add_u32 s6, s6, 0x100000")
        srd(A, 8, 40, 41, 6, 80)
        A("v_lshlrev_b32 v6, 2, v0"); A("v_mov_b32 v7, 0")
        A("buffer_store_dword v7, v6, s[8:11], 0 offen sc1")
        A("s_lshl_b32 s6, s4, 5"); A("v_mov_b32 v6, s6"); A("v_mov_b32 v7, 1")
        A("s_waitcnt vmcnt(0)")
        A("s_mov_b64 exec, 1")
        A("global_atomic_add v6, v7, s[38:39] offset:4")
        A("s_mov_b64 exec, -1")
        A.label("L_zero_done")
    if fused == 3 and not zlate: zero_init()
    if dyn == 8:
        A("s_getreg_b32 s76, hwreg(HW_REG_XCC_ID)"); A("s_and_b32 s76, s76, 7"); A("s_lshl_b32 s76, s76, 8"); A("s_add_u32 s76, s76, 0x200000")
        A("s_getreg_b32 s77, hwreg(HW_REG_HW_ID)"); A("s_bfe_u32 s78, s77, 0x2000d"); A("s_bfe_u32 s77, s77, 0x40008")
        A("s_lshl_b32 s78, s78, 4"); A("s_add_u32 s77, s77, s78"); A("s_lshl_b32 s77, s77, 2"); A("s_add_u32 s77, s77, s76")
        A("s_cmp_lg_u32 s42, 3"); A("s_cbranch_scc1 L_slot_done")
        A("v_lshlrev_b32 v6, 2, v0"); A("v_add_u32 v6, s76, v6"); A("v_bfrev_b32 v7, 1")
        A("global_store_dword v6, v7, s[40:41]")
        if glob:
            A("s_cmp_ge_u32 s2, 8"); A("s_cbranch_scc1 L_slot_done")
            A("v_lshlrev_b32 v6, 2, v0"); A("v_add_u32 v6, 0x201000, v6")
            A("s_mov_b64 exec, 0xff")
            A("global_store_dword v6, v7, s[40:41] sc1")
            A("s_mov_b64 exec, -1")
        A.label("L_slot_done")
    A("s_mul_i32 s6, s5, 163840")
    srd(A, 8, 24, 25, 6, 163840)
    A("s_lshl_b32 s43, s42, 5"); A("v_lshlrev_b32 v5, 3, v3"); A("v_add_u32 v5, s43, v5")
    A("v_mul_u32_u24 v5, 1280, v5"); A("v_lshl_add_u32 v5, v2, 4, v5")
    for n in range(0 if nowo else 40):
        jj, cb = n // 5, n % 5
        v = BUF + 4 * n
        if cb == 0: A(f"s_mov_b32 s45, {jj*1280}")
        if n >= NA: A.wait(("wo", n - NA))
        A.issue(("wo", n), f"buffer_load_dwordx4 v[{v}:{v+3}], v5, s[8:11], s45 offen offset:{cb*256} {wpol}")
    if dyn == 3:
        A("s_cmp_lg_u32 s42, 3"); A("s_cbranch_scc1 L_ctrl_done")
        A.waitall() if False else None
        A(f"s_mov_b32 s50, {CK0}"); A("s_mov_b32 s51, 16"); A("s_mov_b32 s52, 0"); A("s_mov_b32 s53, 0")
        A("v_mov_b32 v6, 0"); A("s_mov_b64 exec, 1")
        A.label("L_ctrl")
        A(f"ds_read_b32 v5, v6 offset:{L_PROG}")
        A("s_waitcnt lgkmcnt(0)")
        A("v_readfirstlane_b32 s54, v5")
        A(f"s_cmp_ge_u32 s54, {CKEXIT}"); A("s_cbranch_scc1 L_ctrl_exit")
        A("s_cmp_eq_u32 s52, 0"); A("s_cbranch_scc1 L_ctrl_a")
        A("s_cmp_lt_u32 s54, s53"); A("s_cbranch_scc1 L_ctrl_a")
        A("s_mov_b32 s52, 0"); A("v_mov_b32 v5, 0"); A(f"ds_write_b32 v6, v5 offset:{L_MODE}")
        A.label("L_ctrl_a")
        A("s_cmp_lt_u32 s54, s50"); A("s_cbranch_scc1 L_ctrl_sleep")
        A("v_mov_b32 v7, 1"); A("v_mov_b32 v4, s51")
        A("global_atomic_add v5, v4, v7, s[38:39] sc0")
        A("s_waitcnt vmcnt(0)")
        A("v_readfirstlane_b32 s55, v5")
        A(f"s_add_u32 s50, s50, {CKS}"); A("s_add_u32 s51, s51, 32")
        A("s_mov_b32 s56, 0")
        for th, bo in zip(TH, BO):
            A(f"s_cmp_ge_u32 s55, {th}"); A(f"s_cselect_b32 s56, {bo}, s56")
        A("s_cmp_eq_u32 s56, 0"); A("s_cbranch_scc1 L_ctrl_sleep")
        A(f"ds_read_b32 v5, v6 offset:{L_PROG}")
        A("s_waitcnt lgkmcnt(0)")
        A("v_readfirstlane_b32 s54, v5")
        A("s_add_u32 s53, s54, s56"); A("s_add_u32 s53, s53, 1")
        A("s_mov_b32 s52, 1"); A("v_mov_b32 v5, 1"); A(f"ds_write_b32 v6, v5 offset:{L_MODE}")
        A.label("L_ctrl_sleep")
        A(f"s_sleep {sleep}")
        A("s_branch L_ctrl")
        A.label("L_ctrl_exit")
        A("s_mov_b64 exec, -1")
        A.label("L_ctrl_done")
    if dyn == 7:
        A("s_cmp_lg_u32 s42, 3"); A("s_cbranch_scc1 L_nb_done")
        A("v_lshlrev_b32 v6, 5, v0")
        A("s_mov_b64 exec, 0xff")
        A("global_load_dword v7, v6, s[38:39] offset:12 sc1")
        A("s_waitcnt vmcnt(0)")
        A("s_mov_b32 s76, 0")
        for i in range(8):
            A(f"v_readlane_b32 s77, v7, {i}")
            A("s_sub_u32 s78, s74, s77"); A("s_cmp_lt_u32 s78, 300"); A("s_cselect_b32 s78, s78, 0")
            A("s_cmp_eq_u32 s77, 0"); A("s_cselect_b32 s78, 0, s78")
            A("s_max_u32 s76, s76, s78")
        A(f"s_mul_i32 s76, s76, {LK}"); A("s_add_u32 s76, s76, 512"); A("s_lshr_b32 s76, s76, 10")
        A("s_getreg_b32 s77, hwreg(HW_REG_XCC_ID)"); A("s_bitcmp0_b32 s77, 0"); A(f"s_cselect_b32 s77, {NBE}, 0")
        A("s_add_u32 s76, s76, s77"); A("s_min_u32 s76, s76, 8")
        A("s_mov_b64 exec, 1")
        A("v_mov_b32 v6, 0"); A("v_mov_b32 v7, s76")
        A(f"ds_write_b32 v6, v7 offset:{L_MODE}")
        A("s_mov_b64 exec, -1")
        A.label("L_nb_done")
    if dyn == 8:
        A("s_cmp_lg_u32 s42, 3"); A("s_cbranch_scc1 L_c8_done")
        A("v_mov_b32 v6, 0"); A("v_mov_b32 v4, s77")
        A("v_lshlrev_b32 v5, 2, v0"); A("v_add_u32 v5, s76, v5")
        A("s_mov_b32 s78, -1"); A("s_mov_b32 s79, 0")
        if glob:
            A("s_mov_b32 s86, 0"); A("s_mov_b32 s87, 0")
            A("s_getreg_b32 s88, hwreg(HW_REG_XCC_ID)"); A("s_and_b32 s88, s88, 7"); A("s_lshl_b32 s88, s88, 2"); A("s_add_u32 s88, s88, 0x201000")
            A("v_mov_b32 v74, s88")
            A("v_and_b32 v75, 7, v0"); A("v_lshlrev_b32 v75, 2, v75"); A("v_add_u32 v75, 0x201000, v75")
        A.label("L_c8")
        A(f"ds_read_b32 v7, v6 offset:{L_PROG}")
        A("s_waitcnt lgkmcnt(0)")
        A("v_readfirstlane_b32 s80, v7")
        A(f"s_cmp_ge_u32 s80, {PEXIT}"); A("s_cbranch_scc1 L_c8_exit")
        A("s_cmp_eq_u32 s80, s78"); A("s_cbranch_scc1 L_c8_sleep")
        A("s_mov_b32 s78, s80")
        A("s_mov_b64 exec, 1")
        A("global_store_dword v4, v7, s[40:41]")
        A("s_mov_b64 exec, -1")
        A("global_load_dword v72, v5, s[40:41] sc1")
        A("s_waitcnt vmcnt(0)")
        A("v_cmp_gt_i32 vcc, 0, v72")
        A("v_sub_u32 v72, v72, v7")
        A("v_med3_i32 v72, v72, -8, 8")
        A("v_cndmask_b32 v72, v72, v6, vcc")
        for ror in (8, 4, 2, 1):
            A.nop(2); A(f"v_add_u32_dpp v72, v72, v72 row_ror:{ror} row_mask:0xf bank_mask:0xf")
        A.nop(1)
        A("v_readlane_b32 s81, v72, 0"); A("v_readlane_b32 s82, v72, 16"); A("v_readlane_b32 s84, v72, 32"); A("v_readlane_b32 s85, v72, 48")
        A("s_add_i32 s81, s81, s82"); A("s_add_i32 s84, s84, s85"); A("s_add_i32 s81, s81, s84")
        if glob:
            A("s_lshl_b32 s84, s80, 5"); A("s_add_i32 s84, s84, s81")
            A("s_cmp_ge_u32 s2, 8"); A("s_cbranch_scc1 L_c8_nopub")
            A("v_mov_b32 v76, s84")
            A("s_mov_b64 exec, 1")
            A("global_store_dword v74, v76, s[40:41] sc1")
            A("s_mov_b64 exec, -1")
            A.label("L_c8_nopub")
            A("s_add_u32 s87, s87, 1"); A(f"s_and_b32 s85, s87, {GK}"); A("s_cmp_lg_u32 s85, 0"); A("s_cbranch_scc1 L_c8_nobias")
            A("global_load_dword v76, v75, s[40:41] sc1")
            A("s_waitcnt vmcnt(0)")
            A("v_cmp_gt_i32 vcc, 0, v76")
            A("v_subrev_u32 v76, s84, v76")
            A("v_mov_b32 v77, 0xffffff80"); A("v_mov_b32 v78, 128")
            A("v_med3_i32 v76, v76, v77, v78")
            A("v_cndmask_b32 v76, v76, v6, vcc")
            for ror in (4, 2, 1):
                A.nop(2); A(f"v_add_u32_dpp v76, v76, v76 row_ror:{ror} row_mask:0xf bank_mask:0xf")
            A.nop(1)
            A("v_readlane_b32 s86, v76, 0"); A("s_ashr_i32 s86, s86, 3")
            A.label("L_c8_nobias")
            A("s_add_i32 s81, s81, s86")
        A("s_mov_b32 s83, s79")
        A(f"s_cmp_ge_i32 s81, {THON}"); A("s_cselect_b32 s83, 1, s83")
        A(f"s_cmp_le_i32 s81, {THOFF}"); A("s_cselect_b32 s83, 0, s83")
        A("s_cmp_eq_u32 s83, s79"); A("s_cbranch_scc1 L_c8_sleep")
        A("s_mov_b32 s79, s83"); A("v_mov_b32 v73, s83")
        A(f"ds_write_b32 v6, v73 offset:{L_MODE}")
        A.label("L_c8_sleep")
        A("s_sleep 2")
        A("s_branch L_c8")
        A.label("L_c8_exit")
        A("s_mov_b64 exec, -1")
        A.label("L_c8_done")
    if fused == 3 and zlate: zero_init()
    if fused == 3:
        A("s_lshl_b32 s6, s4, 5"); A("v_mov_b32 v90, s6"); A("v_mov_b32 v91, 1")
        A("s_cmp_lg_u32 s42, 0"); A("s_cbranch_scc1 L_zchk_done")
        A.label("L_zchk")
        A("s_mov_b64 exec, 1")
        A("global_load_dword v89, v90, s[38:39] offset:4 sc1")
        A("s_waitcnt vmcnt(0)")
        A("v_readfirstlane_b32 s51, v89")
        A("s_mov_b64 exec, -1")
        A("s_cmp_ge_u32 s51, 32"); A("s_cbranch_scc1 L_zchk_done")
        A("s_sleep 8")
        A("s_branch L_zchk")
        A.label("L_zchk_done")
        A.vm = []
        A.vm.append("pending")
    XB = 60
    XB = 92
    XP = [92, 94, 88]; BP = [44, 46, 60]
    if fused == 3 and fin1:
        A("v_lshlrev_b32 v4, 3, v0")
        A("s_mul_i32 s6, s4, 1280")
        srd(A, 12, 16, 17, 6, 1280)
        srd(A, 68, 34, 35, None, 1280)
        for i in range(3):
            A.issue(("xf", i), f"buffer_load_dwordx2 v[{XP[i]}:{XP[i]+1}], v4, s[12:15], 0 offen offset:{i*512}")
            A.issue(("bf", i), f"buffer_load_dwordx2 v[{BP[i]}:{BP[i]+1}], v4, s[68:71], 0 offen offset:{i*512}")
    elif fused:
        A("s_lshl_b32 s43, s42, 6"); A("v_add_u32 v4, s43, v0"); A("v_lshlrev_b32 v4, 3, v4")
        A("s_mul_i32 s6, s4, 1280")
        srd(A, 12, 16, 17, 6, 1280)
        A.issue(("xf", 0), f"buffer_load_dwordx2 v[{XB}:{XB+1}], v4, s[12:15], 0 offen")
        srd(A, 68, 34, 35, None, 1280)
        A.issue(("xf", 1), f"buffer_load_dwordx2 v[{XB+2}:{XB+3}], v4, s[68:71], 0 offen")
    A("v_lshlrev_b32 v4, 5, v3"); A("s_lshl_b32 s43, s42, 7"); A("v_add_u32 v4, s43, v4")
    A("v_mov_b32 v5, 0")
    A.waitall()
    if dry:
        A("s_mul_i32 s43, s42, 5120"); A("v_lshlrev_b32 v6, 4, v0"); A("v_add_u32 v6, s43, v6")
        for cb in range(5): A(f"ds_write_b128 v6, v[{DO+4*cb}:{DO+4*cb+3}] offset:{L_F + cb*1024}")
        A("s_waitcnt lgkmcnt(0)")
        A("s_mov_b32 s58, 0")
        A("s_branch L_proj")
        A.label("L_proj_back")
        A("s_mul_i32 s43, s42, 5120"); A("v_lshlrev_b32 v6, 4, v0"); A("v_add_u32 v6, s43, v6")
        for cb in range(5): A(f"ds_read_b128 v[{DO+4*cb}:{DO+4*cb+3}], v6 offset:{L_F + cb*1024}")
        A("v_lshlrev_b32 v4, 5, v3"); A("s_lshl_b32 s43, s42, 7"); A("v_add_u32 v4, s43, v4")
        A("v_mov_b32 v5, 0")
        A("s_mov_b32 s58, 1")
        A("s_waitcnt lgkmcnt(0)")
    P.stamp()
    A("s_barrier")
    P.stamp()
    if dry: A.label("L_proj")
    if fused == 2:
        A("s_cmp_lg_u32 s42, 0"); A("s_cbranch_scc1 L_noticket")
        A("s_lshl_b32 s6, s4, 5"); A("v_mov_b32 v90, s6"); A("v_mov_b32 v91, 1")
        A("s_mov_b64 exec, 1")
        A("global_atomic_add v88, v90, v91, s[38:39] sc0")
        A("global_load_dword v89, v90, s[38:39] offset:4 sc1")
        A("s_mov_b64 exec, -1")
        A.label("L_noticket")
    ML = PP
    OV = PP + 8
    A(f"ds_read_b128 v[{ML}:{ML+3}], v5 offset:{L_ML}"); A(f"ds_read_b128 v[{ML+4}:{ML+7}], v5 offset:{L_ML+16}")
    OVR = [72, 80, 48, 16]
    for w in range(4):
        for q in range(2):
            v = OVR[w] + 4 * q
            A(f"ds_read_b128 v[{v}:{v+3}], v4 offset:{L_OP + w*512 + q*16}")
    A("s_waitcnt lgkmcnt(8)")
    A(f"v_max3_f32 v6, v{ML}, v{ML+2}, v{ML+4}"); A(f"v_max_f32 v6, v6, v{ML+6}")
    for w in range(4):
        A(f"v_sub_f32 v{ML+2*w}, v{ML+2*w}, v6"); A(f"v_mul_f32 v{ML+2*w}, {LOG2E:#x}, v{ML+2*w}"); A(f"v_exp_f32 v{ML+2*w}, v{ML+2*w}")
    A.nop(1)
    A(f"v_mul_f32 v7, v{ML}, v{ML+1}")
    for w in range(1, 4): A(f"v_fmac_f32 v7, v{ML+2*w}, v{ML+2*w+1}")
    A("v_rcp_f32 v7, v7"); A.nop(1)
    A("s_waitcnt lgkmcnt(0)")
    for k in range(8):
        A(f"v_mul_f32 v{OVR[0]+k}, v{OVR[0]+k}, v{ML}")
        for w in range(1, 4): A(f"v_fmac_f32 v{OVR[0]+k}, v{OVR[w]+k}, v{ML+2*w}")
        A(f"v_mul_f32 v{OVR[0]+k}, v{OVR[0]+k}, v7")
    PO = 56
    for k in range(4): A(f"v_cvt_pk_bf16_f32 v{PO+k}, v{OVR[0]+2*k}, v{OVR[0]+2*k+1}")
    abuild_p(PO, 0, 0)
    for jj in range(8):
        if jj + 1 < 8: abuild_p(PO + (jj + 1) // 2, (jj + 1) % 2, (jj + 1) % 2)
        else: A.nop(2)
        at = AT + (jj % 2) * 4
        if jj == 0: A.nop(2)
        for cb in range(5):
            v = BUF + 4 * (jj * 5 + cb); d = DO + 4 * cb
            A(f"v_mfma_f32_16x16x32_bf16 v[{d}:{d+3}], v[{at}:{at+3}], v[{v}:{v+3}], v[{d}:{d+3}]")
    A("v_lshlrev_b32 v6, 5, v2"); A("v_lshl_add_u32 v6, v3, 4, v6")
    A("s_mul_i32 s43, s42, 2560"); A("v_add_u32 v6, s43, v6")
    A.nop(4)
    A("s_mov_b32 exec_hi, 0")
    for cb in range(5):
        A(f"ds_write_b128 v6, v[{DO+4*cb}:{DO+4*cb+3}] offset:{L_OUTP + cb*512}")
    A("s_mov_b32 exec_hi, -1")
    if fused == 3:
        A("s_mul_i32 s6, s4, 2560"); A("s_add_u32 s6, s6, 0x100000")
        srd(A, 8, 40, 41, 6, 2560)
    if fused == 2:
        A("s_mul_i32 s6, s4, 2560"); A("s_add_u32 s6, s6, 0x100000")
        srd(A, 8, 40, 41, 6, 2560)
        A("s_cmp_lg_u32 s42, 0"); A("s_cbranch_scc1 L_tk_done")
        A("s_waitcnt vmcnt(0)")
        A("v_readfirstlane_b32 s50, v88"); A("v_readfirstlane_b32 s51, v89")
        A("s_cmp_lg_u32 s50, 0"); A("s_cbranch_scc1 L_tk_spin")
        for k in range(4): A(f"v_mov_b32 v{72+k}, 0")
        A("v_lshlrev_b32 v7, 4, v0")
        for i in range(3): A(f"buffer_store_dwordx4 v[72:75], v7, s[8:11], 0 offen offset:{i*1024} sc1")
        A("s_waitcnt vmcnt(0)")
        A("s_mov_b64 exec, 1")
        A("global_store_dword v90, v91, s[38:39] offset:4 sc1")
        A("s_mov_b64 exec, -1")
        A("s_branch L_tk_done")
        A.label("L_tk_spin")
        A("s_cmp_lg_u32 s51, 0"); A("s_cbranch_scc1 L_tk_done")
        A("s_mov_b64 exec, 1")
        A("global_load_dword v89, v90, s[38:39] offset:4 sc1")
        A("s_waitcnt vmcnt(0)")
        A("v_readfirstlane_b32 s51, v89")
        A("s_mov_b64 exec, -1")
        A("s_branch L_tk_spin")
        A.label("L_tk_done")
    A("s_waitcnt lgkmcnt(0)")
    if dry:
        A("s_cmp_eq_u32 s58, 0"); A("s_cbranch_scc1 L_proj_back")
    P.stamp()
    A.label("L_b3")
    A("s_barrier")
    if not fused:
        A("s_lshl_b32 s43, s42, 6"); A("v_add_u32 v4, s43, v0")
        A("v_cmp_gt_u32 vcc, 160, v4")
        A("v_lshlrev_b32 v4, 4, v4")
        A("s_and_saveexec_b64 s[46:47], vcc")
        A("s_cbranch_execz L_aux_done")
        for w in range(4): A(f"ds_read_b128 v[{72+4*w}:{75+4*w}], v4 offset:{L_OUTP + w*2560}")
        A("s_mul_i32 s6, s66, 2560")
        srd(A, 8, 40, 41, 6, 2560)
        A("s_waitcnt lgkmcnt(0)")
        for k in range(4):
            A(f"v_add_f32 v{72+k}, v{72+k}, v{76+k}"); A(f"v_add_f32 v{80+k}, v{80+k}, v{84+k}"); A(f"v_add_f32 v{72+k}, v{72+k}, v{80+k}")
        A("buffer_store_dwordx4 v[72:75], v4, s[8:11], 0 offen")
    elif fused in (2, 3):
        A("s_mul_i32 s43, s42, 640"); A("v_lshlrev_b32 v4, 2, v0"); A("v_add_u32 v4, s43, v4")
        for i in range(3):
            for w in range(4):
                A(f"ds_read_b32 v{72+4*i+w}, v4 offset:{L_OUTP + w*2560 + i*256}")
        for i in range(3):
            A(f"s_waitcnt lgkmcnt({8-4*i})")
            v = 72 + 4 * i
            A(f"v_add_f32 v{v}, v{v}, v{v+1}"); A(f"v_add_f32 v{v+2}, v{v+2}, v{v+3}"); A(f"v_add_f32 v{v}, v{v}, v{v+2}")
            if i == 2: A("s_mov_b32 exec_hi, 0")
            A(f"buffer_atomic_add_f32 v{v}, v4, s[8:11], 0 offen offset:{i*256}")
        A("s_mov_b32 exec_hi, -1")
        A("s_waitcnt vmcnt(0)")
        P.stamp()
        A("s_barrier")
        if fused == 3 and fin1:
            A("s_cmp_lg_u32 s42, 0"); A("s_cbranch_scc1 L_aux_done")
            A("v_lshlrev_b32 v4, 4, v0"); A("v_lshlrev_b32 v7, 3, v0")
            A("s_mul_i32 s6, s4, 1280")
            srd(A, 12, 36, 37, 6, 1280)
            A("s_mov_b64 exec, 1")
            A("global_atomic_add v5, v90, v91, s[38:39] offset:8 sc0")
            A("s_waitcnt vmcnt(0)")
            A("v_readfirstlane_b32 s43, v5")
            A("s_mov_b64 exec, -1")
            P.stamp()
            A("s_cmp_lg_u32 s43, 31"); A("s_cbranch_scc1 L_aux_done")
            for i in range(3): A(f"buffer_load_dwordx4 v[{72+4*i}:{75+4*i}], v4, s[8:11], 0 offen offset:{i*1024} sc1")
            for i in range(3):
                A(f"s_waitcnt vmcnt({2-i})" if i == 0 else f"s_waitcnt vmcnt({2-i+0})")
                v = 72 + 4 * i
                for k in range(2):
                    A(f"v_lshlrev_b32 v84, 16, v{BP[i]+k}"); A(f"v_and_b32 v85, 0xffff0000, v{BP[i]+k}")
                    A(f"v_add_f32 v{v+2*k}, v{v+2*k}, v84"); A(f"v_add_f32 v{v+1+2*k}, v{v+1+2*k}, v85")
                    A(f"v_lshlrev_b32 v84, 16, v{XP[i]+k}"); A(f"v_and_b32 v85, 0xffff0000, v{XP[i]+k}")
                    A(f"v_add_f32 v{v+2*k}, v{v+2*k}, v84"); A(f"v_add_f32 v{v+1+2*k}, v{v+1+2*k}, v85")
                A(f"v_cvt_pk_bf16_f32 v{v}, v{v}, v{v+1}"); A(f"v_cvt_pk_bf16_f32 v{v+1}, v{v+2}, v{v+3}")
            for i in range(3): A(f"buffer_store_dwordx2 v[{72+4*i}:{73+4*i}], v7, s[12:15], 0 offen offset:{i*512}")
        else:
            A("s_cmp_lg_u32 s42, 0"); A("s_cbranch_scc1 L_wait_flag")
            A("s_mov_b64 exec, 1")
            A("global_atomic_add v5, v90, v91, s[38:39] offset:8 sc0")
            A("s_waitcnt vmcnt(0)")
            A("v_mov_b32 v6, 0")
            A(f"ds_write_b32 v6, v5 offset:{L_FLAG}")
            A("s_mov_b64 exec, -1")
            A("s_waitcnt lgkmcnt(0)")
            A.label("L_wait_flag")
            P.stamp()
            A("s_barrier")
            A("v_mov_b32 v6, 0")
            A(f"ds_read_b32 v5, v6 offset:{L_FLAG}")
            A("s_lshl_b32 s43, s42, 6"); A("v_add_u32 v4, s43, v0")
            A("v_lshlrev_b32 v7, 3, v4"); A("v_lshlrev_b32 v4, 4, v4")
            A("s_mul_i32 s6, s4, 1280")
            srd(A, 12, 36, 37, 6, 1280)
            A("s_waitcnt lgkmcnt(0)")
            A("v_readfirstlane_b32 s43, v5")
            A("s_cmp_lg_u32 s43, 31"); A("s_cbranch_scc1 L_aux_done")
            A("s_cmp_ge_u32 s42, 3"); A("s_cbranch_scc1 L_aux_done")
            A("buffer_load_dwordx4 v[72:75], v4, s[8:11], 0 offen sc1")
            A("s_waitcnt vmcnt(0)")
            for k in range(2):
                A(f"v_lshlrev_b32 v76, 16, v{XB+2+k}"); A(f"v_and_b32 v77, 0xffff0000, v{XB+2+k}")
                A(f"v_add_f32 v{72+2*k}, v{72+2*k}, v76"); A(f"v_add_f32 v{73+2*k}, v{73+2*k}, v77")
                A(f"v_lshlrev_b32 v76, 16, v{XB+k}"); A(f"v_and_b32 v77, 0xffff0000, v{XB+k}")
                A(f"v_add_f32 v{72+2*k}, v{72+2*k}, v76"); A(f"v_add_f32 v{73+2*k}, v{73+2*k}, v77")
            A("v_cvt_pk_bf16_f32 v72, v72, v73"); A("v_cvt_pk_bf16_f32 v73, v74, v75")
            A("buffer_store_dwordx2 v[72:73], v7, s[12:15], 0 offen")
    else:
        NG = 8 if tail2 else 4
        SPW = 32 // NG
        widx = "s3" if tail2 else "s42"
        A("v_lshlrev_b32 v4, 4, v0")
        A("s_cmp_lg_u32 s3, 4"); A("s_cbranch_scc1 L_wait_flag")
        for i in range(3):
            for w in range(4):
                v = BUF + 16 * i + 4 * w
                A(f"ds_read_b128 v[{v}:{v+3}], v4 offset:{L_OUTP + w*2560 + i*1024}")
        SB = 1280 if sl16 else 2560
        A(f"s_mul_i32 s6, s66, {SB}")
        srd(A, 8, 40, 41, 6, SB)
        if sl16: A("v_lshlrev_b32 v5, 3, v0")
        for i in range(3):
            A(f"s_waitcnt lgkmcnt({8-4*i})")
            v = BUF + 16 * i
            for k in range(4):
                A(f"v_add_f32 v{v+k}, v{v+k}, v{v+4+k}"); A(f"v_add_f32 v{v+8+k}, v{v+8+k}, v{v+12+k}"); A(f"v_add_f32 v{v+k}, v{v+k}, v{v+8+k}")
            if sl16:
                A(f"v_cvt_pk_bf16_f32 v{v+4}, v{v}, v{v+1}"); A(f"v_cvt_pk_bf16_f32 v{v+5}, v{v+2}, v{v+3}")
                A(f"buffer_store_dwordx2 v[{v+4}:{v+5}], v5, s[8:11], 0 offen offset:{i*512} sc1")
            else:
                A(f"buffer_store_dwordx4 v[{v}:{v+3}], v4, s[8:11], 0 offen offset:{i*1024} sc1")
        A("s_lshl_b32 s6, s4, 5")
        A("v_mov_b32 v6, s6"); A("v_mov_b32 v7, 1")
        A("s_waitcnt vmcnt(0)")
        P.stamp()
        A("s_mov_b64 s[46:47], exec"); A("s_mov_b64 exec, 1")
        A("global_atomic_add v5, v6, v7, s[38:39] sc0")
        A("s_waitcnt vmcnt(0)")
        A("v_mov_b32 v6, 0")
        A(f"ds_write_b32 v6, v5 offset:{L_FLAG}")
        A("s_mov_b64 exec, s[46:47]")
        A("s_waitcnt lgkmcnt(0)")
        A.label("L_wait_flag")
        P.stamp()
        A("s_barrier")
        A("v_mov_b32 v6, 0")
        A(f"ds_read_b32 v5, v6 offset:{L_FLAG}")
        A(f"s_mul_i32 s6, s4, {32*SB}"); A(f"s_mul_i32 s43, {widx}, {SPW*SB}"); A("s_add_u32 s6, s6, s43")
        srd(A, 8, 40, 41, 6, SPW * SB)
        if sl16: A("v_lshlrev_b32 v7, 3, v0")
        A("s_waitcnt lgkmcnt(0)")
        A("v_readfirstlane_b32 s43, v5")
        if warm:
            A("s_cmp_eq_u32 s43, 31"); A("s_cselect_b32 s10, s10, 0"); A("s_cselect_b32 s57, 1280, 0")
        else:
            A("s_cmp_lg_u32 s43, 31"); A("s_cbranch_scc1 L_aux_done")
        A.vm = []
        for i in range(3):
            for sl in range(SPW):
                v = BUF + (i * SPW + sl) * 4
                if i == 2 and sl == 0: A("s_mov_b32 exec_hi, 0")
                if sl == 0: so = "0"
                else:
                    A(f"s_mov_b32 s45, {sl*SB}"); so = "s45"
                if sl16:
                    A.issue(("g", i, sl), f"buffer_load_dwordx2 v[{v}:{v+1}], v7, s[8:11], {so} offen offset:{i*512} sc1")
                else:
                    A.issue(("g", i, sl), f"buffer_load_dwordx4 v[{v}:{v+3}], v4, s[8:11], {so} offen offset:{i*1024} sc1")
        A("s_mov_b32 exec_hi, -1")
        A(f"s_mul_i32 s43, {widx}, 2560"); A("v_add_u32 v6, s43, v4")
        LF = L_F if tail2 else L_OUTP
        for i in range(3):
            A.wait(("g", i, SPW - 1))
            v = BUF + i * SPW * 4
            if sl16:
                for sl in range(SPW):
                    q = v + 4 * sl
                    A(f"v_lshlrev_b32 v{q+2}, 16, v{q+1}"); A(f"v_and_b32 v{q+3}, 0xffff0000, v{q+1}")
                    A(f"v_and_b32 v{q+1}, 0xffff0000, v{q}"); A(f"v_lshlrev_b32 v{q}, 16, v{q}")
            n = SPW
            stride = 4
            while n > 1:
                for p in range(n // 2):
                    for k in range(4):
                        A(f"v_add_f32 v{v+2*p*stride+k}, v{v+2*p*stride+k}, v{v+(2*p+1)*stride+k}")
                n //= 2; stride *= 2
            if i == 2: A("s_mov_b32 exec_hi, 0")
            A(f"ds_write_b128 v6, v[{v}:{v+3}] offset:{LF + i*1024}")
        A("s_mov_b32 exec_hi, -1")
        A("s_waitcnt lgkmcnt(0)")
        P.stamp()
        A("s_barrier")
        A("s_cmp_lt_u32 s3, 4"); A("s_cbranch_scc1 L_aux_done")
        A("s_lshl_b32 s43, s42, 6"); A("v_add_u32 v4, s43, v0")
        A("v_cmp_gt_u32 vcc, 160, v4")
        A("v_lshlrev_b32 v5, 3, v4")
        A("v_lshlrev_b32 v4, 4, v4")
        A("s_and_saveexec_b64 s[46:47], vcc")
        A("s_cbranch_execz L_aux_done")
        for w in range(NG): A(f"ds_read_b128 v[{BUF+4*w}:{BUF+3+4*w}], v4 offset:{LF + w*2560}")
        A("s_mul_i32 s6, s4, 1280")
        srd(A, 8, 36, 37, 6, "s57" if warm else 1280)
        A("s_waitcnt lgkmcnt(0)")
        n = NG; stride = 4
        while n > 1:
            for p in range(n // 2):
                for k in range(4):
                    A(f"v_add_f32 v{BUF+2*p*stride+k}, v{BUF+2*p*stride+k}, v{BUF+(2*p+1)*stride+k}")
            n //= 2; stride *= 2
        for k in range(2):
            A(f"v_lshlrev_b32 v76, 16, v{XB+2+k}"); A(f"v_and_b32 v77, 0xffff0000, v{XB+2+k}")
            A(f"v_add_f32 v{BUF+2*k}, v{BUF+2*k}, v76"); A(f"v_add_f32 v{BUF+1+2*k}, v{BUF+1+2*k}, v77")
            A(f"v_lshlrev_b32 v76, 16, v{XB+k}"); A(f"v_and_b32 v77, 0xffff0000, v{XB+k}")
            A(f"v_add_f32 v{BUF+2*k}, v{BUF+2*k}, v76"); A(f"v_add_f32 v{BUF+1+2*k}, v{BUF+1+2*k}, v77")
        A(f"v_cvt_pk_bf16_f32 v72, v{BUF}, v{BUF+1}"); A(f"v_cvt_pk_bf16_f32 v73, v{BUF+2}, v{BUF+3}")
        A("buffer_store_dwordx2 v[72:73], v5, s[8:11], 0 offen")
    A.label("L_aux_done")
    P.stamp()
    if prof and tail2:
        A("s_cmp_lt_u32 s3, 4"); A("s_cbranch_scc1 L_end")
    P.flush()
    A.label("L_end")
    A("s_endpgm")
    out += A.L
    kernels = [(kname, 256, 102)]
    if not fused:
        B = Asm()
        out.append(".globl reduce_kernel"); out.append(".p2align 8"); out.append(".type reduce_kernel,@function")
        B.label("reduce_kernel")
        B("s_cmp_ge_u32 s2, 160"); B("s_cbranch_scc1 R_end")
        B("s_load_dwordx2 s[4:5], s[0:1], 0")
        B("s_load_dwordx4 s[8:11], s[0:1], 72")
        B("s_load_dwordx2 s[6:7], s[0:1], 96")
        B("s_mul_hi_u32 s12, s2, 0xccccccd")
        B("s_mul_i32 s13, s12, 20"); B("s_sub_u32 s13, s2, s13")
        B("v_and_b32 v1, 7, v0"); B("v_lshrrev_b32 v2, 3, v0")
        B("v_mul_u32_u24 v3, 10240, v2"); B("v_lshl_add_u32 v3, v1, 4, v3")
        B("s_lshl_b32 s14, s13, 7"); B("v_add_u32 v3, s14, v3")
        B("s_mul_i32 s15, s12, 81920")
        B("s_waitcnt lgkmcnt(0)")
        B("s_add_u32 s16, s6, s15"); B("s_addc_u32 s17, s7, 0"); B("s_mov_b32 s18, 81920"); B("s_mov_b32 s19, 0x20000")
        B("s_mov_b32 s20, 2560"); B("s_mov_b32 s21, 5120"); B("s_mov_b32 s22, 7680")
        B("buffer_load_dwordx4 v[4:7], v3, s[16:19], 0 offen")
        B("buffer_load_dwordx4 v[8:11], v3, s[16:19], s20 offen")
        B("buffer_load_dwordx4 v[12:15], v3, s[16:19], s21 offen")
        B("buffer_load_dwordx4 v[16:19], v3, s[16:19], s22 offen")
        B("s_mul_i32 s15, s12, 1280"); B("s_lshl_b32 s14, s13, 6")
        B("v_lshlrev_b32 v20, 3, v1"); B("v_add_u32 v20, s14, v20")
        B("s_add_u32 s24, s4, s15"); B("s_addc_u32 s25, s5, 0"); B("s_mov_b32 s26, 1280"); B("s_mov_b32 s27, 0x20000")
        B("s_mov_b32 s28, s8"); B("s_mov_b32 s29, s9"); B("s_mov_b32 s30, 1280"); B("s_mov_b32 s31, 0x20000")
        B("s_add_u32 s32, s10, s15"); B("s_addc_u32 s33, s11, 0"); B("s_mov_b32 s34, 1280"); B("s_mov_b32 s35, 0x20000")
        B("buffer_load_dwordx2 v[22:23], v20, s[24:27], 0 offen")
        B("buffer_load_dwordx2 v[24:25], v20, s[28:31], 0 offen")
        B("s_waitcnt vmcnt(2)")
        for k in range(4):
            B(f"v_add_f32 v{4+k}, v{4+k}, v{8+k}"); B(f"v_add_f32 v{12+k}, v{12+k}, v{16+k}"); B(f"v_add_f32 v{4+k}, v{4+k}, v{12+k}")
        B.nop(2)
        for k in range(4): B(f"v_add_f32_dpp v{4+k}, v{4+k}, v{4+k} row_ror:8 row_mask:0xf bank_mask:0xf")
        for sw in ("v_permlane16_swap_b32", "v_permlane32_swap_b32"):
            for k in range(4): B(f"v_mov_b32 v{8+k}, v{4+k}")
            B.nop(2)
            for k in range(4): B(f"{sw} v{4+k}, v{8+k}")
            B.nop(1)
            for k in range(4): B(f"v_add_f32 v{4+k}, v{4+k}, v{8+k}")
        B("s_waitcnt vmcnt(0)")
        for k in range(2):
            B(f"v_lshlrev_b32 v8, 16, v{22+k}"); B(f"v_and_b32 v9, 0xffff0000, v{22+k}")
            B(f"v_lshlrev_b32 v10, 16, v{24+k}"); B(f"v_and_b32 v11, 0xffff0000, v{24+k}")
            B(f"v_add_f32 v{4+2*k}, v{4+2*k}, v10"); B(f"v_add_f32 v{5+2*k}, v{5+2*k}, v11")
            B(f"v_add_f32 v{4+2*k}, v{4+2*k}, v8"); B(f"v_add_f32 v{5+2*k}, v{5+2*k}, v9")
        B("v_cvt_pk_bf16_f32 v4, v4, v5"); B("v_cvt_pk_bf16_f32 v5, v6, v7")
        B("v_cmp_gt_u32 vcc, 8, v0"); B("s_and_saveexec_b64 s[36:37], vcc")
        B("buffer_store_dwordx2 v[4:5], v20, s[32:35], 0 offen")
        B.label("R_end"); B("s_endpgm")
        out += B.L
        kernels.append(("reduce_kernel", 32, 48))
    out.append('.section .rodata,"a"')
    for kn, nv, ns in kernels:
        out += [".p2align 6", f".amdhsa_kernel {kn}", f"  .amdhsa_next_free_vgpr {nv}", f"  .amdhsa_next_free_sgpr {ns}",
                f"  .amdhsa_accum_offset {nv}", "  .amdhsa_group_segment_fixed_size 0", "  .amdhsa_kernarg_size 104",
                "  .amdhsa_user_sgpr_count 2", "  .amdhsa_user_sgpr_kernarg_segment_ptr 1", "  .amdhsa_system_sgpr_workgroup_id_x 1",
                "  .amdhsa_float_denorm_mode_32 3", ".end_amdhsa_kernel"]
    return "\n".join(out) + "\n"

if __name__ == "__main__":
    kw = eval("dict(" + (sys.argv[2] if len(sys.argv) > 2 else "") + ")")
    open(sys.argv[1], "w").write(gen(**kw))
```

```python
import struct, sys

NAME = "parallel_sum__gqa_block_cached__mixer_channel_mlp__decode"
HEADER = open("cdna_kernels/" + NAME + ".s.ref").read().split("; Override launch geometry")[0]

def f2u(x): return struct.unpack("<I", struct.pack("<f", x))[0]
SCALE = f2u(128 ** -0.5)
LOG2E = f2u(1.4426950408889634)
INV640 = f2u(1.0 / 640)
EPS = f2u(1e-5)

L_XN = 0
L_Y = 5120
L_QP = 6400
L_T = 8448
L_HV = 8960
L_OP = 9216
L_ML = 11264
L_OUTP = 11520
L_FLAG = 21760
L_PROG = 22528
L_MODE = 22544
L_F = 22784
LDS_BYTES = 22784 + 8 * 2560 + 1024

DOC = """; One workgroup per (batch b, head h); 8 waves: waves 0-3 stream the K/V cache, waves 4-7 do everything else.
;  streaming waves: 1-KiB non-temporal loads, 5 in flight per wave.  K phase: S = K q through 16x16x32 MFMAs whose B operand
;    is q placed in two columns per 8-key tile (64 scores per register); scores are rounded like the reference (bf16, *Dh^-0.5,
;    bf16).  True per-wave max, p = exp(s - max) in bf16.  V phase: O += p V through MFMAs with a one-hot-times-p A operand.
;  aux waves: LayerNorm, q = LN(x) Wq[:, h] (K-split over 4 waves, LDS reduce), MLP hidden units 64h..64h+63 (h < 27) of
;    batch b, prefetch of Wo[h], flash-style combine of the 4 wave partials, out-projection, float atomics into a per-batch
;    accumulator row in d_ws (zeroed by this launch); the last workgroup of a batch adds x + b2 and writes d_out.
;  d_debug words of batch b: +4 count of zeroed accumulator slices, +8 count of workgroups whose adds are complete.
;  Load balance (speed hint only, never affects results): aux wave 3 publishes this workgroup's progress on a per-XCD board in
;    d_ws and switches the streaming waves to a 7-deep window (VCC) while they lag behind the other CUs of the XCD.""".split("\n")

class Asm:
    def __init__(self):
        self.L = []
        self.vm = []
        self.landed = set()
        self.nlabel = 0
    def __call__(self, s): self.L.append("    " + s)
    def label(self, s): self.L.append(s + ":")
    def c(self, s): self.L.append("    ; " + s)
    def issue(self, tag, ins):
        self(ins); self.vm.append(tag)
        assert len(self.vm) <= 63, "too many outstanding vmem ops"
    def wait(self, tag):
        if tag not in self.vm: return
        i = self.vm.index(tag)
        n = len(self.vm) - 1 - i
        self(f"s_waitcnt vmcnt({n})")
        self.vm = self.vm[i + 1:]
    def waitall(self):
        if self.vm: self("s_waitcnt vmcnt(0)")
        self.vm = []
    def nop(self, n):
        while n > 0:
            k = min(n, 16); self(f"s_nop {k-1}"); n -= k

def allreduce(A, op, t, u):
    for ror in (8, 4, 2, 1):
        A.nop(2)
        A(f"v_{op}_f32_dpp v{t}, v{t}, v{t} row_ror:{ror} row_mask:0xf bank_mask:0xf")
    for sw in ("v_permlane16_swap_b32", "v_permlane32_swap_b32"):
        A(f"v_mov_b32 v{u}, v{t}")
        A.nop(2)
        A(f"{sw} v{t}, v{u}")
        A.nop(1)
        A(f"v_{op}_f32 v{t}, v{t}, v{u}")

def bf16r(A, d, s):
    A(f"v_cvt_pk_bf16_f32 v{d}, v{s}, v{s}")
    A(f"v_and_b32 v{d}, 0xffff0000, v{d}")

def layernorm(A, X, F, T, OUT):
    if isinstance(T, int): T = (T, T+1, T+2, T+3)
    for k in range(5):
        A(f"v_lshlrev_b32 v{F+2*k}, 16, v{X+k}")
        A(f"v_and_b32 v{F+2*k+1}, 0xffff0000, v{X+k}")
    t, u, m, r = T
    A(f"v_add_f32 v{t}, v{F}, v{F+1}")
    for k in range(2, 10): A(f"v_add_f32 v{t}, v{t}, v{F+k}")
    allreduce(A, "add", t, u)
    A(f"v_mul_f32 v{m}, {INV640:#x}, v{t}")
    A(f"v_sub_f32 v{u}, v{F}, v{m}")
    A(f"v_mul_f32 v{t}, v{u}, v{u}")
    for k in range(1, 10):
        A(f"v_sub_f32 v{u}, v{F+k}, v{m}")
        A(f"v_fmac_f32 v{t}, v{u}, v{u}")
    allreduce(A, "add", t, u)
    A(f"v_mul_f32 v{t}, {INV640:#x}, v{t}")
    bf16r(A, t, t)
    A(f"v_add_f32 v{t}, {EPS:#x}, v{t}")
    bf16r(A, t, t)
    A(f"v_sqrt_f32 v{t}, v{t}")
    A.nop(1)
    bf16r(A, t, t)
    A(f"v_rcp_f32 v{r}, v{t}")
    bf16r(A, m, m)
    for k in range(5):
        A(f"v_sub_f32 v{F+2*k}, v{F+2*k}, v{m}")
        A(f"v_sub_f32 v{F+2*k+1}, v{F+2*k+1}, v{m}")
        A(f"v_cvt_pk_bf16_f32 v{u}, v{F+2*k}, v{F+2*k+1}")
        A(f"v_lshlrev_b32 v{F+2*k}, 16, v{u}")
        A(f"v_and_b32 v{F+2*k+1}, 0xffff0000, v{u}")
        A(f"v_mul_f32 v{F+2*k}, v{F+2*k}, v{r}")
        A(f"v_mul_f32 v{F+2*k+1}, v{F+2*k+1}, v{r}")
        A(f"v_cvt_pk_bf16_f32 v{OUT+k}, v{F+2*k}, v{F+2*k+1}")

def srd(A, d, lo, hi, off_s, size):
    if off_s is None:
        A(f"s_mov_b32 s{d}, s{lo}"); A(f"s_mov_b32 s{d+1}, s{hi}")
    else:
        A(f"s_add_u32 s{d}, s{lo}, s{off_s}"); A(f"s_addc_u32 s{d+1}, s{hi}, 0")
    A(f"s_mov_b32 s{d+2}, {size}")
    A(f"s_mov_b32 s{d+3}, 0x20000")

class Prof:
    def __init__(self, A, on, reg): self.A, self.on, self.reg, self.n = A, on, reg, 0
    def stamp(self):
        if not self.on: return
        A = self.A
        A("s_memrealtime s[92:93]"); A("s_waitcnt lgkmcnt(0)")
        A(f"v_writelane_b32 v{self.reg}, s92, {self.n}"); self.n += 1
    def flush(self):
        if not self.on: return
        A = self.A
        A("s_getreg_b32 s92, hwreg(HW_REG_HW_ID)"); A(f"v_writelane_b32 v{self.reg}, s92, 62")
        A("s_mov_b64 exec, -1")
        A("s_lshl_b32 s94, s2, 3"); A("s_add_u32 s94, s94, s3"); A("s_lshl_b32 s94, s94, 8"); A("s_add_u32 s94, s94, 0x2000000")
        A(f"v_lshlrev_b32 v1, 2, v0"); A("v_add_u32 v1, s94, v1")
        A(f"global_store_dword v1, v{self.reg}, s[40:41]")

def gen(N=5, C=8, S0=24, R=32, catch=2, Ntail=None, tail_from=None, NA=4, wpol="", kvpol="nt", prof=0, fused=0, prio=1, hmap=1, nomlp=0, nowo=0, NW=8, diag=0, nostream=0, WQ0=16, NQ=0, bar0=0, K0=5, dyn=0, NH=8, dyn_from=32, CK0=4, CKS=4, TH=(128,192,232), BO=(1,2,3), CKEXIT=30, sleep=3, even_boost=(16,20), T2=720, TK=226, TV=217, MARG=0, wmask=0, rotm=0, CV=None, tail2=0, rg=32, sl16=0, warm=0, earlyml=1, rotx=0, ktest=0, fin1=1, swapkv=0, zlate=0, NBE=3, LK=26, BS0=16, kboost=(), tlbtest=0, dry=0, THON=32, THOFF=8, PEXIT=120, res=8, glob=0, GK=3, thr=0, THL=48, THLO=16, dbgspan=0):
    A = Asm()
    P = Prof(A, prof, 63)
    kname = NAME + "_kernel"
    out = []
    out.append(HEADER.rstrip("\n"))
    lds_bytes = LDS_BYTES if (tail2 or dry or fused == 1) else 22784
    out += DOC
    if fused:
        out.append(f"; @launch grid=(256,1,1) block=(512,1,1) lds={lds_bytes}")
    else:
        out.append(f"; @launch kernel={kname} grid=(256,1,1) block=(512,1,1) lds={lds_bytes}")
        out.append(f"; @launch kernel=reduce_kernel grid=(160,1,1) block=(64,1,1) lds=0")
    out.append('.amdgcn_target "amdgcn-amd-amdhsa--gfx950"')
    out.append(".text"); out.append(f".globl {kname}"); out.append(".p2align 8"); out.append(f".type {kname},@function")
    A.label(kname)
    A("s_cmp_ge_u32 s2, 256"); A("s_cbranch_scc1 L_end")
    A("s_load_dwordx16 s[16:31], s[0:1], 0")
    A("s_load_dwordx8 s[32:39], s[0:1], 64")
    A("s_load_dwordx2 s[40:41], s[0:1], 96")
    A("v_lshrrev_b32 v1, 6, v0")
    A("v_and_b32 v0, 63, v0")
    A("v_readfirstlane_b32 s3, v1")
    A("v_and_b32 v2, 15, v0")
    A("v_lshrrev_b32 v3, 4, v0")
    if hmap == 0:
        A("s_lshr_b32 s4, s2, 5")
        A("s_and_b32 s5, s2, 31")
    else:
        A("s_and_b32 s5, s2, 7"); A("s_lshl_b32 s5, s5, 2"); A("s_bfe_u32 s4, s2, 0x20003"); A("s_add_u32 s5, s5, s4")
        A("s_lshr_b32 s4, s2, 5")
    A("s_lshl_b32 s66, s4, 5"); A("s_add_u32 s66, s66, s5")
    if prof: A("v_mov_b32 v63, 0")
    A("s_cmp_ge_u32 s3, 4"); A("s_cbranch_scc1 L_aux")
    vK, vV = 4, 5
    MASK = 8
    AT = 12
    D = 20
    O = 28
    S = 32
    TM = 48
    BQ = 64
    RING = 128
    assert R * 4 + RING <= 256
    if prio: A(f"s_setprio {prio}")
    A("v_bfe_u32 v6, v2, 1, 1"); A("v_lshlrev_b32 v6, 10, v6")
    A("v_lshrrev_b32 v7, 2, v2"); A("v_lshl_add_u32 v6, v7, 8, v6")
    A("v_and_b32 v7, 1, v2"); A("v_lshl_add_u32 v6, v7, 6, v6")
    A(f"v_lshl_add_u32 v{vK}, v3, 4, v6")
    A(f"v_lshlrev_b32 v{vV}, 4, v0")
    if ktest == 1: A(f"v_lshlrev_b32 v{vK}, 4, v0")
    if ktest == 2:
        A("v_bfe_u32 v6, v0, 2, 2"); A("v_lshlrev_b32 v6, 8, v6"); A("v_lshl_add_u32 v6, v3, 6, v6"); A("v_and_b32 v7, 3, v0")
        A(f"v_lshl_add_u32 v{vK}, v7, 4, v6")
    A("s_lshl_b32 s6, s66, 20"); A("s_lshr_b32 s7, s66, 12")
    if CV is None: CV = C
    A(f"s_mul_i32 s42, s3, {C*1024}")
    if rotx:
        rotm = 1
        if rotx == 2: A("s_lshr_b32 s45, s2, 5"); A("s_lshl_b32 s45, s45, 2")
        if rotx == 3: A("s_lshr_b32 s45, s2, 5"); A("s_lshl_b32 s45, s45, 2"); A("s_add_u32 s45, s45, s2")
        if rotx == 5: A("s_and_b32 s45, s2, 7"); A("s_lshl_b32 s45, s45, 2")
        if rotx == 6: A("s_lshr_b32 s45, s2, 3")
        if rotx == 7: A("s_and_b32 s45, s2, 7")
        if rotx == 8: A("s_lshr_b32 s45, s2, 3"); A("s_and_b32 s45, s45, 3"); A("s_lshl_b32 s45, s45, 3")
        A(f"s_and_b32 s45, s45, {1024 // rg - 1}"); A(f"s_mul_i32 s45, s45, {rg*1024}")
        A("s_add_u32 s42, s42, s45")
    elif rotm:
        A(f"s_mul_i32 s45, s2, {rotm}"); A(f"s_and_b32 s45, s45, {1024 // rg - 1}"); A(f"s_mul_i32 s45, s45, {rg*1024}")
        A("s_add_u32 s42, s42, s45")
    A("s_waitcnt lgkmcnt(0)")
    kp, vp = (20, 18) if swapkv else (18, 20)
    A(f"s_add_u32 s8, s{kp}, s6"); A(f"s_addc_u32 s9, s{kp+1}, s7"); A("s_mov_b32 s10, 0x100000"); A("s_mov_b32 s11, 0x20000")
    A(f"s_add_u32 s12, s{vp}, s6"); A(f"s_addc_u32 s13, s{vp+1}, s7"); A("s_mov_b32 s14, 0x100000"); A("s_mov_b32 s15, 0x20000")
    P.stamp()
    if dyn == 4: A("s_memrealtime s[70:71]")
    cur_page = [None]
    def kv_load(n):
        isv = n >= 256; m = n % 256
        vi, wi = m // C, m % C
        byte = vi * 4 * C * 1024 + (wi // 2) * 2048 + ((wi % 2) * (1024 if (isv or ktest) else 128))
        page, imm = byte // 4096 * 4096, byte % 4096
        if cur_page[0] != page:
            A(f"s_add_u32 s43, s42, {page}"); cur_page[0] = page
            if rotm: A("s_and_b32 s43, s43, 0xfffff")
            if thr and n >= dyn_from - 8: A("s_cmp_eq_u32 s67, 2")
        v = RING + (n % R) * 4
        A.issue(("kv", n), f"buffer_load_dwordx4 v[{v}:{v+3}], v{vV if isv else vK}, s[{'12:15' if isv else '8:11'}], s43 offen offset:{imm} {kvpol}")
    def win(n):
        if Ntail is not None and n >= tail_from: return Ntail
        if dyn and n >= dyn_from: return NH
        return N
    issued = [0]
    def pace():
        n = issued[0]
        if n >= 512: return False
        w = win(n)
        if Ntail is not None and n >= tail_from:
            if n - Ntail >= 0: A.wait(("kv", n - Ntail))
        elif dyn and n >= dyn_from:
            lab = f"Lw{n}"
            if thr:
                A(f"s_cbranch_scc0 Lt{n}"); A(f"s_waitcnt vmcnt({N-2})"); A.label(f"Lt{n}")
            A(f"s_cbranch_vccnz {lab}"); A(f"s_waitcnt vmcnt({N-1})"); A.label(lab)
            A.wait(("kv", n - NH))
        elif n - w >= 0: A.wait(("kv", n - w))
        kv_load(n); issued[0] += 1
        if diag == 5 and n < 44: P.stamp()
        return True
    if nostream:
        A("s_barrier"); A("s_barrier"); A("s_endpgm")
    for _ in range(K0 if bar0 else N): pace()
    A("v_and_b32 v6, 1, v2"); A("v_lshlrev_b32 v6, 4, v6")
    A("v_mov_b32 v7, 0xffff"); A("v_lshlrev_b32 v7, v6, v7")
    A("v_bfe_u32 v6, v2, 1, 2")
    for r in range(4):
        A(f"v_cmp_eq_u32 vcc, {r}, v6"); A.nop(2); A(f"v_cndmask_b32 v{MASK+r}, 0, v7, vcc")
    A("v_lshrrev_b32 v6, 1, v2")
    for t in range(8): A(f"v_cmp_eq_u32 s[{48+2*t}:{49+2*t}], {t}, v6")
    A("v_and_b32 v6, 1, v2"); A("v_cmp_eq_u32 s[64:65], 0, v6")
    A(f"v_lshl_add_u32 v6, v6, 2, v3"); A(f"v_lshlrev_b32 v6, 5, v6")
    if bar0:
        A("s_barrier")
        P.stamp()
    while issued[0] < S0:
        pace()
        if diag == 3: P.stamp()
    P.stamp()
    A("s_barrier")
    P.stamp()
    for a in range(4):
        for half in range(2):
            for q in range(2):
                v = BQ + a * 16 + half * 8 + q * 4
                A(f"ds_read_b128 v[{v}:{v+3}], v6 offset:{L_QP + a*512 + half*256 + q*16}")
    if issued[0] < R: pace()
    A("s_waitcnt lgkmcnt(0)")
    for k in range(16):
        A(f"v_add_f32 v{TM-16+k}, v{BQ+k}, v{BQ+16+k}")
        A(f"v_add_f32 v{BQ+32+k}, v{BQ+32+k}, v{BQ+48+k}")
    if issued[0] < R: pace()
    for k in range(16):
        A(f"v_add_f32 v{S+k}, v{S+k}, v{BQ+32+k}")
    for k in range(8):
        A(f"v_cvt_pk_bf16_f32 v{TM+k}, v{S+2*k}, v{S+2*k+1}")
    if issued[0] < R: pace()
    for t in range(8):
        for k in range(8):
            A(f"v_cndmask_b32 v{BQ+t*8+k}, 0, v{TM+k}, s[{48+2*t}:{49+2*t}]")
        if t % 2 == 1 and issued[0] < R: pace()
    P.stamp()
    if dyn:
        A("s_mov_b64 vcc, 0")
        if dyn == 5:
            A(f"s_lshr_b32 s67, {wmask}, s3"); A("s_bitcmp1_b32 s67, 0"); A("s_cselect_b64 vcc, -1, 0")
        A("s_lshl_b32 s67, s3, 2"); A(f"v_mov_b32 v{TM+12}, s67"); A(f"v_mov_b32 v{TM+14}, 0")
        if thr: A("s_mov_b32 s67, 0"); A("s_cmp_eq_u32 s67, 2")
    deferred = []
    unit = [0]
    def run_deferred(force=False):
        k = 0
        while k < len(deferred):
            if force or deferred[k][0] <= unit[0]:
                deferred.pop(k)[1]()
            else: k += 1
    def merge(t16):
        d = D + (t16 % 2) * 4
        a, b = TM + 8, TM + 9
        A(f"v_cndmask_b32 v{a}, v{d+3}, v{d}, s[64:65]")
        A(f"v_cndmask_b32 v{b}, v{d+1}, v{d+2}, s[64:65]")
        A.nop(2)
        A(f"v_add_f32_dpp v{a}, v{b}, v{a} quad_perm:[1,0,3,2] row_mask:0xf bank_mask:0xf")
        bf16r(A, a, a)
        A(f"v_mul_f32 v{a}, {SCALE:#x}, v{a}")
        bf16r(A, S + t16, a)
    def hooks(step, cc):
        if not dyn or dyn == 5: return
        if dyn == 8:
            if cc % res == 0:
                A(f"v_mov_b32 v{TM+11}, {step*4 + cc//4}")
                A(f"ds_write_b32 v{TM+12}, v{TM+11} offset:{L_PROG}")
            if cc % 8 == 2: A(f"ds_read_b32 v{TM+13}, v{TM+14} offset:{L_MODE}")
            if cc % 8 == 6:
                if even_boost[0] <= step < even_boost[1]:
                    A("s_waitcnt lgkmcnt(0)"); A(f"v_readfirstlane_b32 s67, v{TM+13}")
                    A("s_getreg_b32 s73, hwreg(HW_REG_XCC_ID)"); A("s_andn2_b32 s73, 1, s73")
                    if not thr: A("s_or_b32 s67, s67, s73")
                    if thr: A("s_cmp_lg_u32 s73, 0"); A("s_cselect_b32 s67, 1, s67")
                    A("s_cmp_eq_u32 s67, 1" if thr else "s_cmp_lg_u32 s67, 0"); A("s_cselect_b64 vcc, -1, 0")
                else:
                    A("s_waitcnt lgkmcnt(0)"); A(f"v_readfirstlane_b32 s67, v{TM+13}")
                    A("s_cmp_eq_u32 s67, 1" if thr else "s_cmp_lg_u32 s67, 0"); A("s_cselect_b64 vcc, -1, 0")
                if thr: A("s_cmp_eq_u32 s67, 2")
            return
        if dyn == 4:
            if cc == 2: A("s_memrealtime s[68:69]")
            if cc == 6 and step >= 2:
                tref = T2 + (min(step, 16) - 2) * TK + max(step - 16, 0) * TV + MARG
                A("s_waitcnt lgkmcnt(0)"); A("s_sub_u32 s68, s68, s70")
                A(f"s_cmp_gt_u32 s68, {tref}"); A("s_cselect_b64 vcc, -1, 0")
            return
        if cc == 2 and dyn == 7 and step == BS0 - 1:
            A(f"ds_read_b32 v{TM+13}, v{TM+14} offset:{L_MODE}")
        if cc == 2 and dyn not in (2, 6, 7):
            A(f"v_mov_b32 v{TM+11}, {step}")
            A(f"ds_write_b32 v{TM+12}, v{TM+11} offset:{L_PROG}")
            if dyn == 3: A(f"ds_read_b32 v{TM+13}, v{TM+14} offset:{L_MODE}")
        if cc == 6:
            if dyn == 3:
                A("s_waitcnt lgkmcnt(0)"); A(f"v_readfirstlane_b32 s67, v{TM+13}")
                A("s_cmp_lg_u32 s67, 0"); A("s_cselect_b64 vcc, -1, 0")
            elif dyn == 2:
                if step == even_boost[0]: A("s_bitcmp0_b32 s2, 0"); A("s_cselect_b64 vcc, -1, 0")
                if step == even_boost[1]: A("s_mov_b64 vcc, 0")
            elif dyn == 7:
                if step == BS0 - 1:
                    A("s_waitcnt lgkmcnt(0)"); A(f"v_readfirstlane_b32 s72, v{TM+13}")
                if BS0 <= step <= BS0 + 8:
                    A(f"s_cmp_gt_u32 s72, {step - BS0}"); A("s_cselect_b64 vcc, -1, 0")
            elif dyn == 6:
                if step in kboost: A("s_mov_b64 vcc, -1")
                elif even_boost[0] <= step < even_boost[1]:
                    A("s_getreg_b32 s67, hwreg(HW_REG_XCC_ID)"); A("s_bitcmp0_b32 s67, 0"); A("s_cselect_b64 vcc, -1, 0")
                elif (step - 1) in kboost or step == even_boost[1]: A("s_mov_b64 vcc, 0")
    def k_consume(c):
        hooks(c // 16, c % 16)
        if diag == 4 and c % 32 == 0 and c: P.stamp()
        t16, tt, half = c // 16, (c % 16) // 2, c % 2
        d = D + (t16 % 2) * 4
        v = RING + (c % R) * 4
        A.wait(("kv", c))
        b = BQ + tt * 8 + half * 4
        cs = "0" if c % 16 == 0 else f"v[{d}:{d+3}]"
        A(f"v_mfma_f32_16x16x32_bf16 v[{d}:{d+3}], v[{v}:{v+3}], v[{b}:{b+3}], {cs}")
        if c % 16 == 15: deferred.append((unit[0] + 9, lambda t=t16: merge(t)))
    def pexp(t16):
        a = TM + 10
        A(f"v_sub_f32 v{a}, v{S+t16}, v{TM}")
        A(f"v_mul_f32 v{a}, {LOG2E:#x}, v{a}")
        A(f"v_exp_f32 v{a}, v{a}")
        A.nop(1)
        A(f"v_add_f32 v{TM+1}, v{TM+1}, v{a}")
        A(f"v_cvt_pk_bf16_f32 v{S+t16}, v{a}, v{a}")
    def abuild(c):
        at = AT + (c % 2) * 4
        for r in range(4):
            A(f"v_and_b32_dpp v{at+r}, v{S + c//16}, v{MASK+r} row_newbcast:{c%16} row_mask:0xf bank_mask:0xf")
    def v_consume(c):
        hooks(16 + c // 16, c % 16)
        if diag == 4 and c % 64 == 0 and c: P.stamp()
        at = AT + (c % 2) * 4
        v = RING + ((256 + c) % R) * 4
        if c + 1 < 256: abuild(c + 1)
        else: A.nop(2)
        A.wait(("kv", 256 + c))
        cs = "0" if c == 0 else f"v[{O}:{O+3}]"
        A(f"v_mfma_f32_16x16x32_bf16 v[{O}:{O+3}], v[{at}:{at+3}], v[{v}:{v+3}], {cs}")
        if c % 16 == 4 and c // 16 + 1 < 16: pexp(c // 16 + 1)
        if c == 236 and earlyml:
            allreduce(A, "add", TM + 1, TM + 2)
            A("s_lshl_b32 s44, s3, 3"); A("v_mov_b32 v7, s44")
            A(f"v_mov_b32 v{TM+2}, v{TM}"); A(f"v_mov_b32 v{TM+3}, v{TM+1}")
            A("s_mov_b64 exec, 1")
            A(f"ds_write_b64 v7, v[{TM+2}:{TM+3}] offset:{L_ML}")
            A("s_mov_b64 exec, -1")
            A("v_lshlrev_b32 v6, 5, v2"); A("v_lshl_add_u32 v6, v3, 4, v6")
            A("s_lshl_b32 s44, s3, 9"); A("v_add_u32 v6, s44, v6")
            if thr: A("s_cmp_eq_u32 s67, 2")
    c = 0
    while c < 256:
        can_issue = issued[0] < 512 and issued[0] - R < c
        if can_issue: pace()
        lag = issued[0] - win(max(issued[0]-1,0)) - c
        k = catch if lag > 1 else 1
        for _ in range(k):
            if c < 256:
                k_consume(c); c += 1
                unit[0] += 1; run_deferred()
    A.nop(8)
    run_deferred(force=True)
    P.stamp()
    def pace_ok():
        if issued[0] < 512 and issued[0] - R < 256: pace()
    A(f"v_max3_f32 v{TM}, v{S}, v{S+1}, v{S+2}")
    for k in range(3, 15, 2): A(f"v_max3_f32 v{TM}, v{TM}, v{S+k}, v{S+k+1}")
    A(f"v_max_f32 v{TM}, v{TM}, v{S+15}")
    pace_ok()
    allreduce(A, "max", TM, TM + 2)
    pace_ok()
    A(f"v_mov_b32 v{TM+1}, 0")
    pexp(0)
    A.nop(2)
    abuild(0)
    P.stamp()
    c = 0
    while c < 256:
        can_issue = issued[0] < 512 and issued[0] - R < 256 + c
        if can_issue: pace()
        while Ntail is not None and tail_from <= issued[0] < 512 and issued[0] - (256 + c) < Ntail and issued[0] - R < 256 + c: pace()
        lag = issued[0] - win(max(issued[0]-1,0)) - (256 + c)
        k = catch if (lag > 1 or issued[0] >= 512) else 1
        for _ in range(k):
            if c < 256:
                v_consume(c); c += 1
    P.stamp()
    if not earlyml:
        allreduce(A, "add", TM + 1, TM + 2)
        A("v_lshlrev_b32 v6, 5, v2"); A("v_lshl_add_u32 v6, v3, 4, v6")
        A("s_lshl_b32 s44, s3, 9"); A("v_add_u32 v6, s44, v6")
        A("s_lshl_b32 s44, s3, 3"); A("v_mov_b32 v7, s44")
        A(f"v_mov_b32 v{TM+2}, v{TM}"); A(f"v_mov_b32 v{TM+3}, v{TM+1}")
        assert (TM + 2) % 2 == 0
        A("s_mov_b32 exec_hi, 0")
        A(f"ds_write_b128 v6, v[{O}:{O+3}] offset:{L_OP}")
        A("s_mov_b32 exec_lo, 1")
        A(f"ds_write_b64 v7, v[{TM+2}:{TM+3}] offset:{L_ML}")
    else:
        A("s_mov_b32 exec_hi, 0")
        A.nop(7)
        A(f"ds_write_b128 v6, v[{O}:{O+3}] offset:{L_OP}")
    A("s_waitcnt lgkmcnt(0)")
    A("s_barrier")
    P.stamp()
    if tail2:
        A("s_mov_b64 exec, -1")
        P.flush()
        A("s_branch L_b3")
    else:
        P.flush()
        A("s_endpgm")
    A.vm = []
    P = Prof(A, prof, 63)
    A.label("L_aux")
    if dbgspan: A("s_memrealtime s[90:91]")
    if dyn == 7: A("s_memrealtime s[74:75]")
    SEL = 8
    AT = 16
    DO = 24
    DQ = 44
    X = 48
    F = 53
    T = 4
    PP = 64
    BUF = 96
    A("s_sub_u32 s42, s3, 4")
    A("s_mul_i32 s43, s42, 160"); A("v_mul_u32_u24 v4, 40, v3"); A("v_add_u32 v4, s43, v4")
    A("v_lshlrev_b32 v4, 13, v4"); A("v_lshl_add_u32 v4, v2, 4, v4")
    A("v_lshlrev_b32 v5, 2, v0")
    A("s_mul_i32 s6, s4, 1280"); A("s_lshl_b32 s7, s5, 8")
    A("s_sub_u32 s44, 5242880, s7")
    A("s_waitcnt lgkmcnt(0)")
    if dyn == 7:
        A("s_cmp_lg_u32 s42, 1"); A("s_cbranch_scc1 L_nostart")
        A("s_cmp_ge_u32 s2, 8"); A("s_cbranch_scc1 L_nostart")
        A("s_or_b32 s76, s74, 1"); A("v_mov_b32 v6, s76"); A("s_lshl_b32 s76, s2, 5"); A("v_mov_b32 v7, s76")
        A("s_mov_b64 exec, 1")
        A("global_store_dword v7, v6, s[38:39] offset:12 sc1")
        A("s_mov_b64 exec, -1")
        A.label("L_nostart")
    srd(A, 8, 16, 17, 6, 1280)
    srd(A, 12, 22, 23, 7, "s44")
    P.stamp()
    for k in range(5):
        A.issue(("x", k), f"buffer_load_dword v{X+k}, v5, s[8:11], 0 offen offset:{k*256}")
    A("s_lshl_b32 s45, s4, 15")
    def wq_load(j):
        v = BUF + 4 * j
        if NQ and j >= NQ: A.wait(("wq", j - NQ))
        A.issue(("wq", j), f"buffer_load_dwordx4 v[{v}:{v+3}], v4, s[12:15], s45 offen {wpol}")
        if j < 39:
            A("s_add_u32 s45, s45, 8192"); A(f"s_cmp_eq_u32 s45, {40*8192}"); A("s_cselect_b32 s45, 0, s45")
    if bar0 == 2: WQ0 = 40
    for j in range(WQ0): wq_load(j)
    if bar0 == 2: A("s_barrier")
    A("v_and_b32 v6, 1, v2")
    A("v_cmp_eq_u32 vcc, 0, v6")
    A("v_mov_b32 v60, 0x01000c0c"); A("v_mov_b32 v61, 0x0c0c0100")
    A("v_cndmask_b32 v60, v60, v61, vcc")
    A("v_mov_b32 v6, 0x03020c0c"); A("v_mov_b32 v61, 0x0c0c0302")
    A("v_cndmask_b32 v61, v6, v61, vcc")
    A("v_bfe_u32 v6, v2, 1, 2"); A("v_mov_b32 v7, 0x0c0c0c0c")
    for r in range(4):
        A(f"v_cmp_eq_u32 vcc, {r}, v6"); A.nop(2)
        A(f"v_cndmask_b32 v{SEL+r}, v7, v60, vcc"); A(f"v_cndmask_b32 v{SEL+4+r}, v7, v61, vcc")
    for k in range(20): A(f"v_mov_b32 v{DO+k}, 0")
    A.wait(("x", 4))
    P.stamp()
    LN = Asm(); layernorm(LN, X, F, (84, 85, 86, 87), X)
    rem = list(range(WQ0, 40)); step = max(1, len(LN.L) // (len(rem) + 1))
    for i, ins in enumerate(LN.L):
        A.L.append(ins)
        if rem and i % step == step - 1: wq_load(rem.pop(0))
    for j in rem: wq_load(j)
    if bar0 == 1: A("s_barrier")
    A("s_mul_i32 s43, s42, 1280")
    A("v_lshlrev_b32 v5, 2, v0"); A("v_add_u32 v5, s43, v5")
    for k in range(5): A(f"ds_write_b32 v5, v{X+k} offset:{L_XN + 256*k}")
    A("s_mul_i32 s43, s42, 1600"); A("v_mul_u32_u24 v5, 80, v3"); A("v_add_u32 v5, s43, v5")
    A("s_lshl_b32 s46, s4, 3")
    A("s_waitcnt lgkmcnt(0)")
    for k in range(10):
        A(f"v_add_u32 v6, s46, v5")
        A(f"ds_read_b64 v[{PP+2*k}:{PP+2*k+1}], v6 offset:{L_XN}")
        A("s_add_u32 s46, s46, 8"); A("s_cmp_eq_u32 s46, 80"); A("s_cselect_b32 s46, 0, s46")
    A("s_waitcnt lgkmcnt(0)")
    P.stamp()
    def abuild_p(preg, par, st):
        at = AT + st * 4
        for r in range(4): A(f"v_perm_b32 v{at+r}, v{preg}, v{preg}, v{SEL + par*4 + r}")
    abuild_p(PP, 0, 0)
    for j in range(40):
        if j + 1 < 40: abuild_p(PP + (j + 1) // 2, (j + 1) % 2, (j + 1) % 2)
        else: A.nop(2)
        A.wait(("wq", j))
        at = AT + (j % 2) * 4; v = BUF + 4 * j
        cs = "0" if j == 0 else f"v[{DQ}:{DQ+3}]"
        A(f"v_mfma_f32_16x16x32_bf16 v[{DQ}:{DQ+3}], v[{at}:{at+3}], v[{v}:{v+3}], {cs}")
    A("v_lshlrev_b32 v6, 5, v2"); A("v_lshl_add_u32 v6, v3, 4, v6")
    A("s_lshl_b32 s43, s42, 9"); A("v_add_u32 v7, s43, v6")
    A.nop(6)
    A("s_mov_b32 exec_hi, 0")
    A(f"ds_write_b128 v7, v[{DQ}:{DQ+3}] offset:{L_QP}")
    A("s_mov_b32 exec_hi, -1")
    if dyn:
        A("v_lshlrev_b32 v6, 2, v0"); A("v_mov_b32 v7, 0")
        A("s_mov_b64 exec, 0xff")
        A(f"ds_write_b32 v6, v7 offset:{L_PROG}")
        A("s_mov_b64 exec, -1")
    A("s_waitcnt lgkmcnt(0)")
    P.stamp()
    A("s_barrier")
    A("s_cmp_lg_u32 s42, 0"); A("s_cbranch_scc1 L_wo")
    A("s_cmp_ge_u32 s5, %d" % (0 if nomlp else 27)); A("s_cbranch_scc1 L_wo")
    layernorm(A, X, F, T, X)
    A("v_lshlrev_b32 v4, 2, v0")
    for k in range(5): A(f"ds_write_b32 v4, v{X+k} offset:{L_Y + 256*k}")
    A("s_lshl_b32 s6, s5, 7")
    A(f"s_sub_u32 s44, {640*3456}, s6")
    srd(A, 8, 28, 29, 6, "s44")
    srd(A, 12, 30, 31, 6, 128)
    A("v_lshlrev_b32 v5, 1, v0")
    A.issue(("b1", 0), f"buffer_load_ushort v{F}, v5, s[12:15], 0 offen")
    A("v_lshrrev_b32 v5, 3, v2"); A("v_lshl_add_u32 v5, v3, 1, v5")
    A("v_mul_u32_u24 v6, 160, v5")
    A(f"s_mov_b32 s45, {(1 if tlbtest & 1 else 80)*3456}"); A("v_mul_lo_u32 v5, s45, v5")
    A("v_and_b32 v7, 7, v2"); A("v_lshl_add_u32 v5, v7, 4, v5")
    A("s_waitcnt lgkmcnt(0)")
    PY = BUF
    for k in range(10): A(f"ds_read_b128 v[{PY+4*k}:{PY+4*k+3}], v6 offset:{L_Y + 16*k}")
    RB, RN = BUF + 40, 30
    def w1_load(j):
        v = RB + (j % RN) * 4
        A(f"s_mov_b32 s45, {j*3456*(8 if tlbtest & 1 else 1)}")
        A.issue(("w1", j), f"buffer_load_dwordx4 v[{v}:{v+3}], v5, s[8:11], s45 offen {wpol}")
    for j in range(NW): w1_load(j)
    A("s_waitcnt lgkmcnt(0)")
    abuild_p(PY, 0, 0)
    for j in range(80):
        if j + 1 < 80: abuild_p(PY + (j + 1) // 2, (j + 1) % 2, (j + 1) % 2)
        else: A.nop(2)
        A.wait(("w1", j))
        at = AT + (j % 2) * 4; v = RB + (j % RN) * 4
        cs = "0" if j == 0 else f"v[{DQ}:{DQ+3}]"
        A(f"v_mfma_f32_16x16x32_bf16 v[{DQ}:{DQ+3}], v[{at}:{at+3}], v[{v}:{v+3}], {cs}")
        if j + NW < 80: w1_load(j + NW)
    A("s_mul_i32 s6, s5, 81920")
    A(f"s_sub_u32 s44, {1728*1280}, s6")
    srd(A, 8, 32, 33, 6, "s44")
    A("v_mul_u32_u24 v5, 20480, v3"); A("v_lshl_add_u32 v5, v2, 4, v5")
    def w2_load(n):
        jj, cb = n // 5, n % 5
        v = RB + (n % RN) * 4
        if cb == 0: A(f"s_mov_b32 s45, {jj*1280}")
        A.issue(("w2", n), f"buffer_load_dwordx4 v[{v}:{v+3}], v5, s[8:11], s45 offen offset:{cb*256} {wpol}")
    for n in range(10): w2_load(n)
    A("v_lshrrev_b32 v6, 1, v3"); A("v_lshrrev_b32 v7, 3, v2")
    A("v_cmp_eq_u32 vcc, v6, v7")
    A("v_lshlrev_b32 v6, 8, v6"); A("v_and_b32 v7, 7, v2"); A("v_lshl_add_u32 v6, v7, 5, v6")
    A("v_and_b32 v7, 1, v3"); A("v_lshl_add_u32 v6, v7, 4, v6")
    A("s_and_saveexec_b64 s[46:47], vcc")
    A(f"ds_write_b128 v6, v[{DQ}:{DQ+3}] offset:{L_T}")
    A("s_mov_b64 exec, s[46:47]")
    A("v_lshlrev_b32 v6, 2, v0")
    A("s_waitcnt lgkmcnt(0)")
    A(f"ds_read_b32 v{F+1}, v6 offset:{L_T}"); A(f"ds_read_b32 v{F+2}, v6 offset:{L_T+256}")
    A("s_waitcnt lgkmcnt(0)")
    A(f"v_add_f32 v{F+1}, v{F+1}, v{F+2}")
    bf16r(A, F + 1, F + 1)
    A.wait(("b1", 0))
    A(f"v_lshlrev_b32 v{F}, 16, v{F}")
    A(f"v_add_f32 v{F+1}, v{F+1}, v{F}")
    bf16r(A, F + 1, F + 1)
    x_, u_, e_ = F + 1, F + 2, F + 3
    A(f"v_mul_f32 v{u_}, v{x_}, v{x_}"); A(f"v_mul_f32 v{u_}, v{u_}, v{x_}")
    A(f"v_mov_b32 v{e_}, {f2u(0.044715):#x}"); A(f"v_fma_f32 v{u_}, v{u_}, v{e_}, v{x_}")
    A(f"v_mul_f32 v{u_}, {f2u(-2*0.7978845608028654*1.4426950408889634):#x}, v{u_}")
    A(f"v_exp_f32 v{u_}, v{u_}"); A.nop(1)
    A(f"v_add_f32 v{u_}, 1.0, v{u_}"); A(f"v_rcp_f32 v{u_}, v{u_}"); A.nop(1)
    A(f"v_mul_f32 v{u_}, v{x_}, v{u_}")
    A(f"v_cvt_pk_bf16_f32 v{u_}, v{u_}, v{u_}")
    A("v_lshlrev_b32 v6, 1, v0")
    A(f"ds_write_b16 v6, v{u_} offset:{L_HV}")
    A("v_lshlrev_b32 v6, 5, v3")
    A("s_waitcnt lgkmcnt(0)")
    for k in range(2): A(f"ds_read_b128 v[{PP+4*k}:{PP+4*k+3}], v6 offset:{L_HV + 16*k}")
    A("s_waitcnt lgkmcnt(0)")
    abuild_p(PP, 0, 0)
    nl = 10
    for jj in range(16):
        if jj + 1 < 16: abuild_p(PP + (jj + 1) // 2, (jj + 1) % 2, (jj + 1) % 2)
        else: A.nop(2)
        at = AT + (jj % 2) * 4
        for cb in range(5):
            n = jj * 5 + cb
            A.wait(("w2", n))
            v = RB + (n % RN) * 4; d = DO + 4 * cb
            A(f"v_mfma_f32_16x16x32_bf16 v[{d}:{d+3}], v[{at}:{at+3}], v[{v}:{v+3}], v[{d}:{d+3}]")
            if nl < 80: w2_load(nl); nl += 1
    A.waitall()
    A.label("L_wo")
    A.vm = []
    def zero_init():
        A("s_cmp_lg_u32 s42, 1"); A("s_cbranch_scc1 L_zero_done")
        A("s_mul_i32 s6, s4, 2560"); A("s_mul_i32 s43, s5, 80"); A("s_add_u32 s6, s6, s43"); A("s_add_u32 s6, s6, 0x100000")
        srd(A, 8, 40, 41, 6, 80)
        A("v_lshlrev_b32 v6, 2, v0"); A("v_mov_b32 v7, 0")
        A("buffer_store_dword v7, v6, s[8:11], 0 offen sc1")
        A("s_lshl_b32 s6, s4, 5"); A("v_mov_b32 v6, s6"); A("v_mov_b32 v7, 1")
        A("s_waitcnt vmcnt(0)")
        A("s_mov_b64 exec, 1")
        A("global_atomic_add v6, v7, s[38:39] offset:4")
        A("s_mov_b64 exec, -1")
        A.label("L_zero_done")
    if fused == 3 and not zlate: zero_init()
    if dyn == 8:
        A("s_getreg_b32 s76, hwreg(HW_REG_XCC_ID)"); A("s_and_b32 s76, s76, 7"); A("s_lshl_b32 s76, s76, 8"); A("s_add_u32 s76, s76, 0x200000")
        A("s_getreg_b32 s77, hwreg(HW_REG_HW_ID)"); A("s_bfe_u32 s78, s77, 0x2000d"); A("s_bfe_u32 s77, s77, 0x40008")
        A("s_lshl_b32 s78, s78, 4"); A("s_add_u32 s77, s77, s78"); A("s_lshl_b32 s77, s77, 2"); A("s_add_u32 s77, s77, s76")
        A("s_cmp_lg_u32 s42, 3"); A("s_cbranch_scc1 L_slot_done")
        A("v_lshlrev_b32 v6, 2, v0"); A("v_add_u32 v6, s76, v6"); A("v_bfrev_b32 v7, 1")
        A("global_store_dword v6, v7, s[40:41]")
        if glob:
            A("s_cmp_ge_u32 s2, 8"); A("s_cbranch_scc1 L_slot_done")
            A("v_lshlrev_b32 v6, 2, v0"); A("v_add_u32 v6, 0x201000, v6")
            A("s_mov_b64 exec, 0xff")
            A("global_store_dword v6, v7, s[40:41] sc1")
            A("s_mov_b64 exec, -1")
        A.label("L_slot_done")
    A("s_mul_i32 s6, s5, 163840")
    srd(A, 8, 24, 25, 6, 163840)
    A("s_lshl_b32 s43, s42, 5"); A("v_lshlrev_b32 v5, 3, v3"); A("v_add_u32 v5, s43, v5")
    A("v_mul_u32_u24 v5, 1280, v5"); A("v_lshl_add_u32 v5, v2, 4, v5")
    for n in range(0 if nowo else 40):
        jj, cb = n // 5, n % 5
        v = BUF + 4 * n
        if cb == 0: A(f"s_mov_b32 s45, {jj*1280}")
        if n >= NA: A.wait(("wo", n - NA))
        A.issue(("wo", n), f"buffer_load_dwordx4 v[{v}:{v+3}], v5, s[8:11], s45 offen offset:{cb*256} {wpol}")
    if dyn == 3:
        A("s_cmp_lg_u32 s42, 3"); A("s_cbranch_scc1 L_ctrl_done")
        A.waitall() if False else None
        A(f"s_mov_b32 s50, {CK0}"); A("s_mov_b32 s51, 16"); A("s_mov_b32 s52, 0"); A("s_mov_b32 s53, 0")
        A("v_mov_b32 v6, 0"); A("s_mov_b64 exec, 1")
        A.label("L_ctrl")
        A(f"ds_read_b32 v5, v6 offset:{L_PROG}")
        A("s_waitcnt lgkmcnt(0)")
        A("v_readfirstlane_b32 s54, v5")
        A(f"s_cmp_ge_u32 s54, {CKEXIT}"); A("s_cbranch_scc1 L_ctrl_exit")
        A("s_cmp_eq_u32 s52, 0"); A("s_cbranch_scc1 L_ctrl_a")
        A("s_cmp_lt_u32 s54, s53"); A("s_cbranch_scc1 L_ctrl_a")
        A("s_mov_b32 s52, 0"); A("v_mov_b32 v5, 0"); A(f"ds_write_b32 v6, v5 offset:{L_MODE}")
        A.label("L_ctrl_a")
        A("s_cmp_lt_u32 s54, s50"); A("s_cbranch_scc1 L_ctrl_sleep")
        A("v_mov_b32 v7, 1"); A("v_mov_b32 v4, s51")
        A("global_atomic_add v5, v4, v7, s[38:39] sc0")
        A("s_waitcnt vmcnt(0)")
        A("v_readfirstlane_b32 s55, v5")
        A(f"s_add_u32 s50, s50, {CKS}"); A("s_add_u32 s51, s51, 32")
        A("s_mov_b32 s56, 0")
        for th, bo in zip(TH, BO):
            A(f"s_cmp_ge_u32 s55, {th}"); A(f"s_cselect_b32 s56, {bo}, s56")
        A("s_cmp_eq_u32 s56, 0"); A("s_cbranch_scc1 L_ctrl_sleep")
        A(f"ds_read_b32 v5, v6 offset:{L_PROG}")
        A("s_waitcnt lgkmcnt(0)")
        A("v_readfirstlane_b32 s54, v5")
        A("s_add_u32 s53, s54, s56"); A("s_add_u32 s53, s53, 1")
        A("s_mov_b32 s52, 1"); A("v_mov_b32 v5, 1"); A(f"ds_write_b32 v6, v5 offset:{L_MODE}")
        A.label("L_ctrl_sleep")
        A(f"s_sleep {sleep}")
        A("s_branch L_ctrl")
        A.label("L_ctrl_exit")
        A("s_mov_b64 exec, -1")
        A.label("L_ctrl_done")
    if dyn == 7:
        A("s_cmp_lg_u32 s42, 3"); A("s_cbranch_scc1 L_nb_done")
        A("v_lshlrev_b32 v6, 5, v0")
        A("s_mov_b64 exec, 0xff")
        A("global_load_dword v7, v6, s[38:39] offset:12 sc1")
        A("s_waitcnt vmcnt(0)")
        A("s_mov_b32 s76, 0")
        for i in range(8):
            A(f"v_readlane_b32 s77, v7, {i}")
            A("s_sub_u32 s78, s74, s77"); A("s_cmp_lt_u32 s78, 300"); A("s_cselect_b32 s78, s78, 0")
            A("s_cmp_eq_u32 s77, 0"); A("s_cselect_b32 s78, 0, s78")
            A("s_max_u32 s76, s76, s78")
        A(f"s_mul_i32 s76, s76, {LK}"); A("s_add_u32 s76, s76, 512"); A("s_lshr_b32 s76, s76, 10")
        A("s_getreg_b32 s77, hwreg(HW_REG_XCC_ID)"); A("s_bitcmp0_b32 s77, 0"); A(f"s_cselect_b32 s77, {NBE}, 0")
        A("s_add_u32 s76, s76, s77"); A("s_min_u32 s76, s76, 8")
        A("s_mov_b64 exec, 1")
        A("v_mov_b32 v6, 0"); A("v_mov_b32 v7, s76")
        A(f"ds_write_b32 v6, v7 offset:{L_MODE}")
        A("s_mov_b64 exec, -1")
        A.label("L_nb_done")
    if dyn == 8:
        A("s_cmp_lg_u32 s42, 3"); A("s_cbranch_scc1 L_c8_done")
        A("v_mov_b32 v6, 0"); A("v_mov_b32 v4, s77")
        A("v_lshlrev_b32 v5, 2, v0"); A("v_add_u32 v5, s76, v5")
        A("s_mov_b32 s78, -1"); A("s_mov_b32 s79, 0")
        if glob:
            A("s_mov_b32 s86, 0"); A("s_mov_b32 s87, 0")
            A("s_getreg_b32 s88, hwreg(HW_REG_XCC_ID)"); A("s_and_b32 s88, s88, 7"); A("s_lshl_b32 s88, s88, 2"); A("s_add_u32 s88, s88, 0x201000")
            A("v_mov_b32 v74, s88")
            A("v_and_b32 v75, 7, v0"); A("v_lshlrev_b32 v75, 2, v75"); A("v_add_u32 v75, 0x201000, v75")
        A.label("L_c8")
        A(f"ds_read_b32 v7, v6 offset:{L_PROG}")
        A("s_waitcnt lgkmcnt(0)")
        A("v_readfirstlane_b32 s80, v7")
        A(f"s_cmp_ge_u32 s80, {PEXIT}"); A("s_cbranch_scc1 L_c8_exit")
        A("s_cmp_eq_u32 s80, s78"); A("s_cbranch_scc1 L_c8_sleep")
        A("s_mov_b32 s78, s80")
        A("s_mov_b64 exec, 1")
        A("global_store_dword v4, v7, s[40:41]")
        A("s_mov_b64 exec, -1")
        A("global_load_dword v72, v5, s[40:41] sc1")
        A("s_waitcnt vmcnt(0)")
        A("v_cmp_gt_i32 vcc, 0, v72")
        A("v_sub_u32 v72, v72, v7")
        A("v_med3_i32 v72, v72, -8, 8")
        A("v_cndmask_b32 v72, v72, v6, vcc")
        for ror in (8, 4, 2, 1):
            A.nop(2); A(f"v_add_u32_dpp v72, v72, v72 row_ror:{ror} row_mask:0xf bank_mask:0xf")
        A.nop(1)
        A("v_readlane_b32 s81, v72, 0"); A("v_readlane_b32 s82, v72, 16"); A("v_readlane_b32 s84, v72, 32"); A("v_readlane_b32 s85, v72, 48")
        A("s_add_i32 s81, s81, s82"); A("s_add_i32 s84, s84, s85"); A("s_add_i32 s81, s81, s84")
        if glob:
            A("s_lshl_b32 s84, s80, 5"); A("s_add_i32 s84, s84, s81")
            A("s_cmp_ge_u32 s2, 8"); A("s_cbranch_scc1 L_c8_nopub")
            A("v_mov_b32 v76, s84")
            A("s_mov_b64 exec, 1")
            A("global_store_dword v74, v76, s[40:41] sc1")
            A("s_mov_b64 exec, -1")
            A.label("L_c8_nopub")
            A("s_add_u32 s87, s87, 1"); A(f"s_and_b32 s85, s87, {GK}"); A("s_cmp_lg_u32 s85, 0"); A("s_cbranch_scc1 L_c8_nobias")
            A("global_load_dword v76, v75, s[40:41] sc1")
            A("s_waitcnt vmcnt(0)")
            A("v_cmp_gt_i32 vcc, 0, v76")
            A("v_subrev_u32 v76, s84, v76")
            A("v_mov_b32 v77, 0xffffff80"); A("v_mov_b32 v78, 128")
            A("v_med3_i32 v76, v76, v77, v78")
            A("v_cndmask_b32 v76, v76, v6, vcc")
            for ror in (4, 2, 1):
                A.nop(2); A(f"v_add_u32_dpp v76, v76, v76 row_ror:{ror} row_mask:0xf bank_mask:0xf")
            A.nop(1)
            A("v_readlane_b32 s86, v76, 0"); A("s_ashr_i32 s86, s86, 3")
            A.label("L_c8_nobias")
            A("s_add_i32 s81, s81, s86")
        A("s_mov_b32 s83, s79")
        if not thr:
            A(f"s_cmp_ge_i32 s81, {THON}"); A("s_cselect_b32 s83, 1, s83")
            A(f"s_cmp_le_i32 s81, {THOFF}"); A("s_cselect_b32 s83, 0, s83")
        else:
            A(f"s_cmp_ge_i32 s81, {-THLO}"); A("s_cselect_b32 s84, 1, 0")
            A(f"s_cmp_le_i32 s81, {THOFF}"); A("s_cselect_b32 s85, s84, 0")
            A("s_cmp_eq_u32 s85, 1"); A("s_cselect_b32 s83, 0, s83")
            A(f"s_cmp_ge_i32 s81, {THON}"); A("s_cselect_b32 s83, 1, s83")
            A(f"s_cmp_le_i32 s81, {-THL}"); A("s_cselect_b32 s83, 2, s83")
        A("s_cmp_eq_u32 s83, s79"); A("s_cbranch_scc1 L_c8_sleep")
        A("s_mov_b32 s79, s83"); A("v_mov_b32 v73, s83")
        A(f"ds_write_b32 v6, v73 offset:{L_MODE}")
        A.label("L_c8_sleep")
        A("s_sleep 2")
        A("s_branch L_c8")
        A.label("L_c8_exit")
        A("s_mov_b64 exec, -1")
        A.label("L_c8_done")
    if fused == 3 and zlate: zero_init()
    if fused == 3:
        A("s_lshl_b32 s6, s4, 5"); A("v_mov_b32 v90, s6"); A("v_mov_b32 v91, 1")
        A("s_cmp_lg_u32 s42, 0"); A("s_cbranch_scc1 L_zchk_done")
        A.label("L_zchk")
        A("s_mov_b64 exec, 1")
        A("global_load_dword v89, v90, s[38:39] offset:4 sc1")
        A("s_waitcnt vmcnt(0)")
        A("v_readfirstlane_b32 s51, v89")
        A("s_mov_b64 exec, -1")
        A("s_cmp_ge_u32 s51, 32"); A("s_cbranch_scc1 L_zchk_done")
        A("s_sleep 8")
        A("s_branch L_zchk")
        A.label("L_zchk_done")
        A.vm = []
        A.vm.append("pending")
    XB = 60
    XB = 92
    XP = [92, 94, 88]; BP = [44, 46, 60]
    if fused == 3 and fin1:
        A("v_lshlrev_b32 v4, 3, v0")
        A("s_mul_i32 s6, s4, 1280")
        srd(A, 12, 16, 17, 6, 1280)
        srd(A, 68, 34, 35, None, 1280)
        for i in range(3):
            A.issue(("xf", i), f"buffer_load_dwordx2 v[{XP[i]}:{XP[i]+1}], v4, s[12:15], 0 offen offset:{i*512}")
            A.issue(("bf", i), f"buffer_load_dwordx2 v[{BP[i]}:{BP[i]+1}], v4, s[68:71], 0 offen offset:{i*512}")
    elif fused:
        A("s_lshl_b32 s43, s42, 6"); A("v_add_u32 v4, s43, v0"); A("v_lshlrev_b32 v4, 3, v4")
        A("s_mul_i32 s6, s4, 1280")
        srd(A, 12, 16, 17, 6, 1280)
        A.issue(("xf", 0), f"buffer_load_dwordx2 v[{XB}:{XB+1}], v4, s[12:15], 0 offen")
        srd(A, 68, 34, 35, None, 1280)
        A.issue(("xf", 1), f"buffer_load_dwordx2 v[{XB+2}:{XB+3}], v4, s[68:71], 0 offen")
    A("v_lshlrev_b32 v4, 5, v3"); A("s_lshl_b32 s43, s42, 7"); A("v_add_u32 v4, s43, v4")
    A("v_mov_b32 v5, 0")
    A.waitall()
    if dry:
        A("s_mul_i32 s43, s42, 5120"); A("v_lshlrev_b32 v6, 4, v0"); A("v_add_u32 v6, s43, v6")
        for cb in range(5): A(f"ds_write_b128 v6, v[{DO+4*cb}:{DO+4*cb+3}] offset:{L_F + cb*1024}")
        A("s_waitcnt lgkmcnt(0)")
        A("s_mov_b32 s58, 0")
        A("s_branch L_proj")
        A.label("L_proj_back")
        A("s_mul_i32 s43, s42, 5120"); A("v_lshlrev_b32 v6, 4, v0"); A("v_add_u32 v6, s43, v6")
        for cb in range(5): A(f"ds_read_b128 v[{DO+4*cb}:{DO+4*cb+3}], v6 offset:{L_F + cb*1024}")
        A("v_lshlrev_b32 v4, 5, v3"); A("s_lshl_b32 s43, s42, 7"); A("v_add_u32 v4, s43, v4")
        A("v_mov_b32 v5, 0")
        A("s_mov_b32 s58, 1")
        A("s_waitcnt lgkmcnt(0)")
    P.stamp()
    A("s_barrier")
    P.stamp()
    if dry: A.label("L_proj")
    if fused == 2:
        A("s_cmp_lg_u32 s42, 0"); A("s_cbranch_scc1 L_noticket")
        A("s_lshl_b32 s6, s4, 5"); A("v_mov_b32 v90, s6"); A("v_mov_b32 v91, 1")
        A("s_mov_b64 exec, 1")
        A("global_atomic_add v88, v90, v91, s[38:39] sc0")
        A("global_load_dword v89, v90, s[38:39] offset:4 sc1")
        A("s_mov_b64 exec, -1")
        A.label("L_noticket")
    ML = PP
    OV = PP + 8
    A(f"ds_read_b128 v[{ML}:{ML+3}], v5 offset:{L_ML}"); A(f"ds_read_b128 v[{ML+4}:{ML+7}], v5 offset:{L_ML+16}")
    OVR = [72, 80, 48, 16]
    for w in range(4):
        for q in range(2):
            v = OVR[w] + 4 * q
            A(f"ds_read_b128 v[{v}:{v+3}], v4 offset:{L_OP + w*512 + q*16}")
    A("s_waitcnt lgkmcnt(8)")
    A(f"v_max3_f32 v6, v{ML}, v{ML+2}, v{ML+4}"); A(f"v_max_f32 v6, v6, v{ML+6}")
    for w in range(4):
        A(f"v_sub_f32 v{ML+2*w}, v{ML+2*w}, v6"); A(f"v_mul_f32 v{ML+2*w}, {LOG2E:#x}, v{ML+2*w}"); A(f"v_exp_f32 v{ML+2*w}, v{ML+2*w}")
    A.nop(1)
    A(f"v_mul_f32 v7, v{ML}, v{ML+1}")
    for w in range(1, 4): A(f"v_fmac_f32 v7, v{ML+2*w}, v{ML+2*w+1}")
    A("v_rcp_f32 v7, v7"); A.nop(1)
    A("s_waitcnt lgkmcnt(0)")
    for k in range(8):
        A(f"v_mul_f32 v{OVR[0]+k}, v{OVR[0]+k}, v{ML}")
        for w in range(1, 4): A(f"v_fmac_f32 v{OVR[0]+k}, v{OVR[w]+k}, v{ML+2*w}")
        A(f"v_mul_f32 v{OVR[0]+k}, v{OVR[0]+k}, v7")
    PO = 56
    for k in range(4): A(f"v_cvt_pk_bf16_f32 v{PO+k}, v{OVR[0]+2*k}, v{OVR[0]+2*k+1}")
    abuild_p(PO, 0, 0)
    for jj in range(8):
        if jj + 1 < 8: abuild_p(PO + (jj + 1) // 2, (jj + 1) % 2, (jj + 1) % 2)
        else: A.nop(2)
        at = AT + (jj % 2) * 4
        if jj == 0: A.nop(2)
        for cb in range(5):
            v = BUF + 4 * (jj * 5 + cb); d = DO + 4 * cb
            A(f"v_mfma_f32_16x16x32_bf16 v[{d}:{d+3}], v[{at}:{at+3}], v[{v}:{v+3}], v[{d}:{d+3}]")
    A("v_lshlrev_b32 v6, 5, v2"); A("v_lshl_add_u32 v6, v3, 4, v6")
    A("s_mul_i32 s43, s42, 2560"); A("v_add_u32 v6, s43, v6")
    A.nop(4)
    A("s_mov_b32 exec_hi, 0")
    for cb in range(5):
        A(f"ds_write_b128 v6, v[{DO+4*cb}:{DO+4*cb+3}] offset:{L_OUTP + cb*512}")
    A("s_mov_b32 exec_hi, -1")
    if fused == 3:
        A("s_mul_i32 s6, s4, 2560"); A("s_add_u32 s6, s6, 0x100000")
        srd(A, 8, 40, 41, 6, 2560)
    if fused == 2:
        A("s_mul_i32 s6, s4, 2560"); A("s_add_u32 s6, s6, 0x100000")
        srd(A, 8, 40, 41, 6, 2560)
        A("s_cmp_lg_u32 s42, 0"); A("s_cbranch_scc1 L_tk_done")
        A("s_waitcnt vmcnt(0)")
        A("v_readfirstlane_b32 s50, v88"); A("v_readfirstlane_b32 s51, v89")
        A("s_cmp_lg_u32 s50, 0"); A("s_cbranch_scc1 L_tk_spin")
        for k in range(4): A(f"v_mov_b32 v{72+k}, 0")
        A("v_lshlrev_b32 v7, 4, v0")
        for i in range(3): A(f"buffer_store_dwordx4 v[72:75], v7, s[8:11], 0 offen offset:{i*1024} sc1")
        A("s_waitcnt vmcnt(0)")
        A("s_mov_b64 exec, 1")
        A("global_store_dword v90, v91, s[38:39] offset:4 sc1")
        A("s_mov_b64 exec, -1")
        A("s_branch L_tk_done")
        A.label("L_tk_spin")
        A("s_cmp_lg_u32 s51, 0"); A("s_cbranch_scc1 L_tk_done")
        A("s_mov_b64 exec, 1")
        A("global_load_dword v89, v90, s[38:39] offset:4 sc1")
        A("s_waitcnt vmcnt(0)")
        A("v_readfirstlane_b32 s51, v89")
        A("s_mov_b64 exec, -1")
        A("s_branch L_tk_spin")
        A.label("L_tk_done")
    A("s_waitcnt lgkmcnt(0)")
    if dry:
        A("s_cmp_eq_u32 s58, 0"); A("s_cbranch_scc1 L_proj_back")
    P.stamp()
    A.label("L_b3")
    A("s_barrier")
    if not fused:
        A("s_lshl_b32 s43, s42, 6"); A("v_add_u32 v4, s43, v0")
        A("v_cmp_gt_u32 vcc, 160, v4")
        A("v_lshlrev_b32 v4, 4, v4")
        A("s_and_saveexec_b64 s[46:47], vcc")
        A("s_cbranch_execz L_aux_done")
        for w in range(4): A(f"ds_read_b128 v[{72+4*w}:{75+4*w}], v4 offset:{L_OUTP + w*2560}")
        A("s_mul_i32 s6, s66, 2560")
        srd(A, 8, 40, 41, 6, 2560)
        A("s_waitcnt lgkmcnt(0)")
        for k in range(4):
            A(f"v_add_f32 v{72+k}, v{72+k}, v{76+k}"); A(f"v_add_f32 v{80+k}, v{80+k}, v{84+k}"); A(f"v_add_f32 v{72+k}, v{72+k}, v{80+k}")
        A("buffer_store_dwordx4 v[72:75], v4, s[8:11], 0 offen")
    elif fused in (2, 3):
        A("s_mul_i32 s43, s42, 640"); A("v_lshlrev_b32 v4, 2, v0"); A("v_add_u32 v4, s43, v4")
        for i in range(3):
            for w in range(4):
                A(f"ds_read_b32 v{72+4*i+w}, v4 offset:{L_OUTP + w*2560 + i*256}")
        for i in range(3):
            A(f"s_waitcnt lgkmcnt({8-4*i})")
            v = 72 + 4 * i
            A(f"v_add_f32 v{v}, v{v}, v{v+1}"); A(f"v_add_f32 v{v+2}, v{v+2}, v{v+3}"); A(f"v_add_f32 v{v}, v{v}, v{v+2}")
            if i == 2: A("s_mov_b32 exec_hi, 0")
            A(f"buffer_atomic_add_f32 v{v}, v4, s[8:11], 0 offen offset:{i*256}")
        A("s_mov_b32 exec_hi, -1")
        A("s_waitcnt vmcnt(0)")
        P.stamp()
        A("s_barrier")
        if fused == 3 and fin1:
            A("s_cmp_lg_u32 s42, 0"); A("s_cbranch_scc1 L_aux_done")
            A("v_lshlrev_b32 v4, 4, v0"); A("v_lshlrev_b32 v7, 3, v0")
            A("s_mul_i32 s6, s4, 1280")
            srd(A, 12, 36, 37, 6, 1280)
            A("s_mov_b64 exec, 1")
            A("global_atomic_add v5, v90, v91, s[38:39] offset:8 sc0")
            A("s_waitcnt vmcnt(0)")
            A("v_readfirstlane_b32 s43, v5")
            A("s_mov_b64 exec, -1")
            P.stamp()
            A("s_cmp_lg_u32 s43, 31"); A("s_cbranch_scc1 L_aux_done")
            for i in range(3): A(f"buffer_load_dwordx4 v[{72+4*i}:{75+4*i}], v4, s[8:11], 0 offen offset:{i*1024} sc1")
            for i in range(3):
                A(f"s_waitcnt vmcnt({2-i})" if i == 0 else f"s_waitcnt vmcnt({2-i+0})")
                v = 72 + 4 * i
                for k in range(2):
                    A(f"v_lshlrev_b32 v84, 16, v{BP[i]+k}"); A(f"v_and_b32 v85, 0xffff0000, v{BP[i]+k}")
                    A(f"v_add_f32 v{v+2*k}, v{v+2*k}, v84"); A(f"v_add_f32 v{v+1+2*k}, v{v+1+2*k}, v85")
                    A(f"v_lshlrev_b32 v84, 16, v{XP[i]+k}"); A(f"v_and_b32 v85, 0xffff0000, v{XP[i]+k}")
                    A(f"v_add_f32 v{v+2*k}, v{v+2*k}, v84"); A(f"v_add_f32 v{v+1+2*k}, v{v+1+2*k}, v85")
                A(f"v_cvt_pk_bf16_f32 v{v}, v{v}, v{v+1}"); A(f"v_cvt_pk_bf16_f32 v{v+1}, v{v+2}, v{v+3}")
            if dbgspan:
                A("s_memrealtime s[94:95]"); A("s_waitcnt lgkmcnt(0)"); A("s_sub_u32 s94, s94, s90")
                A("v_mov_b32 v6, s94"); A("s_mov_b64 exec, 1")
                A("global_store_dword v90, v6, s[38:39] offset:12"); A("s_mov_b64 exec, -1")
            for i in range(3): A(f"buffer_store_dwordx2 v[{72+4*i}:{73+4*i}], v7, s[12:15], 0 offen offset:{i*512}")
        else:
            A("s_cmp_lg_u32 s42, 0"); A("s_cbranch_scc1 L_wait_flag")
            A("s_mov_b64 exec, 1")
            A("global_atomic_add v5, v90, v91, s[38:39] offset:8 sc0")
            A("s_waitcnt vmcnt(0)")
            A("v_mov_b32 v6, 0")
            A(f"ds_write_b32 v6, v5 offset:{L_FLAG}")
            A("s_mov_b64 exec, -1")
            A("s_waitcnt lgkmcnt(0)")
            A.label("L_wait_flag")
            P.stamp()
            A("s_barrier")
            A("v_mov_b32 v6, 0")
            A(f"ds_read_b32 v5, v6 offset:{L_FLAG}")
            A("s_lshl_b32 s43, s42, 6"); A("v_add_u32 v4, s43, v0")
            A("v_lshlrev_b32 v7, 3, v4"); A("v_lshlrev_b32 v4, 4, v4")
            A("s_mul_i32 s6, s4, 1280")
            srd(A, 12, 36, 37, 6, 1280)
            A("s_waitcnt lgkmcnt(0)")
            A("v_readfirstlane_b32 s43, v5")
            A("s_cmp_lg_u32 s43, 31"); A("s_cbranch_scc1 L_aux_done")
            A("s_cmp_ge_u32 s42, 3"); A("s_cbranch_scc1 L_aux_done")
            A("buffer_load_dwordx4 v[72:75], v4, s[8:11], 0 offen sc1")
            A("s_waitcnt vmcnt(0)")
            for k in range(2):
                A(f"v_lshlrev_b32 v76, 16, v{XB+2+k}"); A(f"v_and_b32 v77, 0xffff0000, v{XB+2+k}")
                A(f"v_add_f32 v{72+2*k}, v{72+2*k}, v76"); A(f"v_add_f32 v{73+2*k}, v{73+2*k}, v77")
                A(f"v_lshlrev_b32 v76, 16, v{XB+k}"); A(f"v_and_b32 v77, 0xffff0000, v{XB+k}")
                A(f"v_add_f32 v{72+2*k}, v{72+2*k}, v76"); A(f"v_add_f32 v{73+2*k}, v{73+2*k}, v77")
            A("v_cvt_pk_bf16_f32 v72, v72, v73"); A("v_cvt_pk_bf16_f32 v73, v74, v75")
            A("buffer_store_dwordx2 v[72:73], v7, s[12:15], 0 offen")
    else:
        NG = 8 if tail2 else 4
        SPW = 32 // NG
        widx = "s3" if tail2 else "s42"
        A("v_lshlrev_b32 v4, 4, v0")
        A("s_cmp_lg_u32 s3, 4"); A("s_cbranch_scc1 L_wait_flag")
        for i in range(3):
            for w in range(4):
                v = BUF + 16 * i + 4 * w
                A(f"ds_read_b128 v[{v}:{v+3}], v4 offset:{L_OUTP + w*2560 + i*1024}")
        SB = 1280 if sl16 else 2560
        A(f"s_mul_i32 s6, s66, {SB}")
        srd(A, 8, 40, 41, 6, SB)
        if sl16: A("v_lshlrev_b32 v5, 3, v0")
        for i in range(3):
            A(f"s_waitcnt lgkmcnt({8-4*i})")
            v = BUF + 16 * i
            for k in range(4):
                A(f"v_add_f32 v{v+k}, v{v+k}, v{v+4+k}"); A(f"v_add_f32 v{v+8+k}, v{v+8+k}, v{v+12+k}"); A(f"v_add_f32 v{v+k}, v{v+k}, v{v+8+k}")
            if sl16:
                A(f"v_cvt_pk_bf16_f32 v{v+4}, v{v}, v{v+1}"); A(f"v_cvt_pk_bf16_f32 v{v+5}, v{v+2}, v{v+3}")
                A(f"buffer_store_dwordx2 v[{v+4}:{v+5}], v5, s[8:11], 0 offen offset:{i*512} sc1")
            else:
                A(f"buffer_store_dwordx4 v[{v}:{v+3}], v4, s[8:11], 0 offen offset:{i*1024} sc1")
        A("s_lshl_b32 s6, s4, 5")
        A("v_mov_b32 v6, s6"); A("v_mov_b32 v7, 1")
        A("s_waitcnt vmcnt(0)")
        P.stamp()
        A("s_mov_b64 s[46:47], exec"); A("s_mov_b64 exec, 1")
        A("global_atomic_add v5, v6, v7, s[38:39] sc0")
        A("s_waitcnt vmcnt(0)")
        A("v_mov_b32 v6, 0")
        A(f"ds_write_b32 v6, v5 offset:{L_FLAG}")
        A("s_mov_b64 exec, s[46:47]")
        A("s_waitcnt lgkmcnt(0)")
        A.label("L_wait_flag")
        P.stamp()
        A("s_barrier")
        A("v_mov_b32 v6, 0")
        A(f"ds_read_b32 v5, v6 offset:{L_FLAG}")
        A(f"s_mul_i32 s6, s4, {32*SB}"); A(f"s_mul_i32 s43, {widx}, {SPW*SB}"); A("s_add_u32 s6, s6, s43")
        srd(A, 8, 40, 41, 6, SPW * SB)
        if sl16: A("v_lshlrev_b32 v7, 3, v0")
        A("s_waitcnt lgkmcnt(0)")
        A("v_readfirstlane_b32 s43, v5")
        if warm:
            A("s_cmp_eq_u32 s43, 31"); A("s_cselect_b32 s10, s10, 0"); A("s_cselect_b32 s57, 1280, 0")
        else:
            A("s_cmp_lg_u32 s43, 31"); A("s_cbranch_scc1 L_aux_done")
        A.vm = []
        for i in range(3):
            for sl in range(SPW):
                v = BUF + (i * SPW + sl) * 4
                if i == 2 and sl == 0: A("s_mov_b32 exec_hi, 0")
                if sl == 0: so = "0"
                else:
                    A(f"s_mov_b32 s45, {sl*SB}"); so = "s45"
                if sl16:
                    A.issue(("g", i, sl), f"buffer_load_dwordx2 v[{v}:{v+1}], v7, s[8:11], {so} offen offset:{i*512} sc1")
                else:
                    A.issue(("g", i, sl), f"buffer_load_dwordx4 v[{v}:{v+3}], v4, s[8:11], {so} offen offset:{i*1024} sc1")
        A("s_mov_b32 exec_hi, -1")
        A(f"s_mul_i32 s43, {widx}, 2560"); A("v_add_u32 v6, s43, v4")
        LF = L_F if tail2 else L_OUTP
        for i in range(3):
            A.wait(("g", i, SPW - 1))
            v = BUF + i * SPW * 4
            if sl16:
                for sl in range(SPW):
                    q = v + 4 * sl
                    A(f"v_lshlrev_b32 v{q+2}, 16, v{q+1}"); A(f"v_and_b32 v{q+3}, 0xffff0000, v{q+1}")
                    A(f"v_and_b32 v{q+1}, 0xffff0000, v{q}"); A(f"v_lshlrev_b32 v{q}, 16, v{q}")
            n = SPW
            stride = 4
            while n > 1:
                for p in range(n // 2):
                    for k in range(4):
                        A(f"v_add_f32 v{v+2*p*stride+k}, v{v+2*p*stride+k}, v{v+(2*p+1)*stride+k}")
                n //= 2; stride *= 2
            if i == 2: A("s_mov_b32 exec_hi, 0")
            A(f"ds_write_b128 v6, v[{v}:{v+3}] offset:{LF + i*1024}")
        A("s_mov_b32 exec_hi, -1")
        A("s_waitcnt lgkmcnt(0)")
        P.stamp()
        A("s_barrier")
        A("s_cmp_lt_u32 s3, 4"); A("s_cbranch_scc1 L_aux_done")
        A("s_lshl_b32 s43, s42, 6"); A("v_add_u32 v4, s43, v0")
        A("v_cmp_gt_u32 vcc, 160, v4")
        A("v_lshlrev_b32 v5, 3, v4")
        A("v_lshlrev_b32 v4, 4, v4")
        A("s_and_saveexec_b64 s[46:47], vcc")
        A("s_cbranch_execz L_aux_done")
        for w in range(NG): A(f"ds_read_b128 v[{BUF+4*w}:{BUF+3+4*w}], v4 offset:{LF + w*2560}")
        A("s_mul_i32 s6, s4, 1280")
        srd(A, 8, 36, 37, 6, "s57" if warm else 1280)
        A("s_waitcnt lgkmcnt(0)")
        n = NG; stride = 4
        while n > 1:
            for p in range(n // 2):
                for k in range(4):
                    A(f"v_add_f32 v{BUF+2*p*stride+k}, v{BUF+2*p*stride+k}, v{BUF+(2*p+1)*stride+k}")
            n //= 2; stride *= 2
        for k in range(2):
            A(f"v_lshlrev_b32 v76, 16, v{XB+2+k}"); A(f"v_and_b32 v77, 0xffff0000, v{XB+2+k}")
            A(f"v_add_f32 v{BUF+2*k}, v{BUF+2*k}, v76"); A(f"v_add_f32 v{BUF+1+2*k}, v{BUF+1+2*k}, v77")
            A(f"v_lshlrev_b32 v76, 16, v{XB+k}"); A(f"v_and_b32 v77, 0xffff0000, v{XB+k}")
            A(f"v_add_f32 v{BUF+2*k}, v{BUF+2*k}, v76"); A(f"v_add_f32 v{BUF+1+2*k}, v{BUF+1+2*k}, v77")
        A(f"v_cvt_pk_bf16_f32 v72, v{BUF}, v{BUF+1}"); A(f"v_cvt_pk_bf16_f32 v73, v{BUF+2}, v{BUF+3}")
        A("buffer_store_dwordx2 v[72:73], v5, s[8:11], 0 offen")
    A.label("L_aux_done")
    P.stamp()
    if prof and tail2:
        A("s_cmp_lt_u32 s3, 4"); A("s_cbranch_scc1 L_end")
    P.flush()
    A.label("L_end")
    A("s_endpgm")
    out += A.L
    kernels = [(kname, 256, 102)]
    if not fused:
        B = Asm()
        out.append(".globl reduce_kernel"); out.append(".p2align 8"); out.append(".type reduce_kernel,@function")
        B.label("reduce_kernel")
        B("s_cmp_ge_u32 s2, 160"); B("s_cbranch_scc1 R_end")
        B("s_load_dwordx2 s[4:5], s[0:1], 0")
        B("s_load_dwordx4 s[8:11], s[0:1], 72")
        B("s_load_dwordx2 s[6:7], s[0:1], 96")
        B("s_mul_hi_u32 s12, s2, 0xccccccd")
        B("s_mul_i32 s13, s12, 20"); B("s_sub_u32 s13, s2, s13")
        B("v_and_b32 v1, 7, v0"); B("v_lshrrev_b32 v2, 3, v0")
        B("v_mul_u32_u24 v3, 10240, v2"); B("v_lshl_add_u32 v3, v1, 4, v3")
        B("s_lshl_b32 s14, s13, 7"); B("v_add_u32 v3, s14, v3")
        B("s_mul_i32 s15, s12, 81920")
        B("s_waitcnt lgkmcnt(0)")
        B("s_add_u32 s16, s6, s15"); B("s_addc_u32 s17, s7, 0"); B("s_mov_b32 s18, 81920"); B("s_mov_b32 s19, 0x20000")
        B("s_mov_b32 s20, 2560"); B("s_mov_b32 s21, 5120"); B("s_mov_b32 s22, 7680")
        B("buffer_load_dwordx4 v[4:7], v3, s[16:19], 0 offen")
        B("buffer_load_dwordx4 v[8:11], v3, s[16:19], s20 offen")
        B("buffer_load_dwordx4 v[12:15], v3, s[16:19], s21 offen")
        B("buffer_load_dwordx4 v[16:19], v3, s[16:19], s22 offen")
        B("s_mul_i32 s15, s12, 1280"); B("s_lshl_b32 s14, s13, 6")
        B("v_lshlrev_b32 v20, 3, v1"); B("v_add_u32 v20, s14, v20")
        B("s_add_u32 s24, s4, s15"); B("s_addc_u32 s25, s5, 0"); B("s_mov_b32 s26, 1280"); B("s_mov_b32 s27, 0x20000")
        B("s_mov_b32 s28, s8"); B("s_mov_b32 s29, s9"); B("s_mov_b32 s30, 1280"); B("s_mov_b32 s31, 0x20000")
        B("s_add_u32 s32, s10, s15"); B("s_addc_u32 s33, s11, 0"); B("s_mov_b32 s34, 1280"); B("s_mov_b32 s35, 0x20000")
        B("buffer_load_dwordx2 v[22:23], v20, s[24:27], 0 offen")
        B("buffer_load_dwordx2 v[24:25], v20, s[28:31], 0 offen")
        B("s_waitcnt vmcnt(2)")
        for k in range(4):
            B(f"v_add_f32 v{4+k}, v{4+k}, v{8+k}"); B(f"v_add_f32 v{12+k}, v{12+k}, v{16+k}"); B(f"v_add_f32 v{4+k}, v{4+k}, v{12+k}")
        B.nop(2)
        for k in range(4): B(f"v_add_f32_dpp v{4+k}, v{4+k}, v{4+k} row_ror:8 row_mask:0xf bank_mask:0xf")
        for sw in ("v_permlane16_swap_b32", "v_permlane32_swap_b32"):
            for k in range(4): B(f"v_mov_b32 v{8+k}, v{4+k}")
            B.nop(2)
            for k in range(4): B(f"{sw} v{4+k}, v{8+k}")
            B.nop(1)
            for k in range(4): B(f"v_add_f32 v{4+k}, v{4+k}, v{8+k}")
        B("s_waitcnt vmcnt(0)")
        for k in range(2):
            B(f"v_lshlrev_b32 v8, 16, v{22+k}"); B(f"v_and_b32 v9, 0xffff0000, v{22+k}")
            B(f"v_lshlrev_b32 v10, 16, v{24+k}"); B(f"v_and_b32 v11, 0xffff0000, v{24+k}")
            B(f"v_add_f32 v{4+2*k}, v{4+2*k}, v10"); B(f"v_add_f32 v{5+2*k}, v{5+2*k}, v11")
            B(f"v_add_f32 v{4+2*k}, v{4+2*k}, v8"); B(f"v_add_f32 v{5+2*k}, v{5+2*k}, v9")
        B("v_cvt_pk_bf16_f32 v4, v4, v5"); B("v_cvt_pk_bf16_f32 v5, v6, v7")
        B("v_cmp_gt_u32 vcc, 8, v0"); B("s_and_saveexec_b64 s[36:37], vcc")
        B("buffer_store_dwordx2 v[4:5], v20, s[32:35], 0 offen")
        B.label("R_end"); B("s_endpgm")
        out += B.L
        kernels.append(("reduce_kernel", 32, 48))
    out.append('.section .rodata,"a"')
    for kn, nv, ns in kernels:
        out += [".p2align 6", f".amdhsa_kernel {kn}", f"  .amdhsa_next_free_vgpr {nv}", f"  .amdhsa_next_free_sgpr {ns}",
                f"  .amdhsa_accum_offset {nv}", "  .amdhsa_group_segment_fixed_size 0", "  .amdhsa_kernarg_size 104",
                "  .amdhsa_user_sgpr_count 2", "  .amdhsa_user_sgpr_kernarg_segment_ptr 1", "  .amdhsa_system_sgpr_workgroup_id_x 1",
                "  .amdhsa_float_denorm_mode_32 3", ".end_amdhsa_kernel"]
    return "\n".join(out) + "\n"

if __name__ == "__main__":
    kw = eval("dict(" + (sys.argv[2] if len(sys.argv) > 2 else "") + ")")
    open(sys.argv[1], "w").write(gen(**kw))
```

```python
import struct, sys

NAME = "parallel_sum__gqa_block_cached__mixer_channel_mlp__decode"
HEADER = open("cdna_kernels/" + NAME + ".s.ref").read().split("; Override launch geometry")[0]

def f2u(x): return struct.unpack("<I", struct.pack("<f", x))[0]
SCALE = f2u(128 ** -0.5)
LOG2E = f2u(1.4426950408889634)
INV640 = f2u(1.0 / 640)
EPS = f2u(1e-5)

L_XN = 0
L_Y = 5120
L_QP = 6400
L_T = 8448
L_HV = 8960
L_OP = 9216
L_ML = 11264
L_OUTP = 11520
L_FLAG = 21760
L_PROG = 22528
L_MODE = 22544
L_F = 22784
LDS_BYTES = 22784 + 8 * 2560 + 1024

DOC = """; One workgroup per (batch b, head h); 8 waves: waves 0-3 stream the K/V cache, waves 4-7 do everything else.
;  streaming waves: 1-KiB non-temporal loads, 5 in flight per wave.  K phase: S = K q through 16x16x32 MFMAs whose B operand
;    is q placed in two columns per 8-key tile (64 scores per register); scores are rounded like the reference (bf16, *Dh^-0.5,
;    bf16).  True per-wave max, p = exp(s - max) in bf16.  V phase: O += p V through MFMAs with a one-hot-times-p A operand.
;  aux waves: LayerNorm, q = LN(x) Wq[:, h] (K-split over 4 waves, LDS reduce), MLP hidden units 64h..64h+63 (h < 27) of
;    batch b, prefetch of Wo[h], flash-style combine of the 4 wave partials, out-projection, float atomics into a per-batch
;    accumulator row in d_ws (zeroed by this launch); the last workgroup of a batch adds x + b2 and writes d_out.
;  d_debug words of batch b: +4 count of zeroed accumulator slices, +8 count of workgroups whose adds are complete.
;  Load balance (speed hint only, never affects results): aux wave 3 publishes this workgroup's progress on a per-XCD board in
;    d_ws and switches the streaming waves to a 7-deep window (VCC) while they lag behind the other CUs of the XCD.""".split("\n")

class Asm:
    def __init__(self):
        self.L = []
        self.vm = []
        self.landed = set()
        self.nlabel = 0
    def __call__(self, s): self.L.append("    " + s)
    def label(self, s): self.L.append(s + ":")
    def c(self, s): self.L.append("    ; " + s)
    def issue(self, tag, ins):
        self(ins); self.vm.append(tag)
        assert len(self.vm) <= 63, "too many outstanding vmem ops"
    def wait(self, tag):
        if tag not in self.vm: return
        i = self.vm.index(tag)
        n = len(self.vm) - 1 - i
        self(f"s_waitcnt vmcnt({n})")
        self.vm = self.vm[i + 1:]
    def waitall(self):
        if self.vm: self("s_waitcnt vmcnt(0)")
        self.vm = []
    def nop(self, n):
        while n > 0:
            k = min(n, 16); self(f"s_nop {k-1}"); n -= k

def allreduce(A, op, t, u):
    for ror in (8, 4, 2, 1):
        A.nop(2)
        A(f"v_{op}_f32_dpp v{t}, v{t}, v{t} row_ror:{ror} row_mask:0xf bank_mask:0xf")
    for sw in ("v_permlane16_swap_b32", "v_permlane32_swap_b32"):
        A(f"v_mov_b32 v{u}, v{t}")
        A.nop(2)
        A(f"{sw} v{t}, v{u}")
        A.nop(1)
        A(f"v_{op}_f32 v{t}, v{t}, v{u}")

def bf16r(A, d, s):
    A(f"v_cvt_pk_bf16_f32 v{d}, v{s}, v{s}")
    A(f"v_and_b32 v{d}, 0xffff0000, v{d}")

def layernorm(A, X, F, T, OUT):
    if isinstance(T, int): T = (T, T+1, T+2, T+3)
    for k in range(5):
        A(f"v_lshlrev_b32 v{F+2*k}, 16, v{X+k}")
        A(f"v_and_b32 v{F+2*k+1}, 0xffff0000, v{X+k}")
    t, u, m, r = T
    A(f"v_add_f32 v{t}, v{F}, v{F+1}")
    for k in range(2, 10): A(f"v_add_f32 v{t}, v{t}, v{F+k}")
    allreduce(A, "add", t, u)
    A(f"v_mul_f32 v{m}, {INV640:#x}, v{t}")
    A(f"v_sub_f32 v{u}, v{F}, v{m}")
    A(f"v_mul_f32 v{t}, v{u}, v{u}")
    for k in range(1, 10):
        A(f"v_sub_f32 v{u}, v{F+k}, v{m}")
        A(f"v_fmac_f32 v{t}, v{u}, v{u}")
    allreduce(A, "add", t, u)
    A(f"v_mul_f32 v{t}, {INV640:#x}, v{t}")
    bf16r(A, t, t)
    A(f"v_add_f32 v{t}, {EPS:#x}, v{t}")
    bf16r(A, t, t)
    A(f"v_sqrt_f32 v{t}, v{t}")
    A.nop(1)
    bf16r(A, t, t)
    A(f"v_rcp_f32 v{r}, v{t}")
    bf16r(A, m, m)
    for k in range(5):
        A(f"v_sub_f32 v{F+2*k}, v{F+2*k}, v{m}")
        A(f"v_sub_f32 v{F+2*k+1}, v{F+2*k+1}, v{m}")
        A(f"v_cvt_pk_bf16_f32 v{u}, v{F+2*k}, v{F+2*k+1}")
        A(f"v_lshlrev_b32 v{F+2*k}, 16, v{u}")
        A(f"v_and_b32 v{F+2*k+1}, 0xffff0000, v{u}")
        A(f"v_mul_f32 v{F+2*k}, v{F+2*k}, v{r}")
        A(f"v_mul_f32 v{F+2*k+1}, v{F+2*k+1}, v{r}")
        A(f"v_cvt_pk_bf16_f32 v{OUT+k}, v{F+2*k}, v{F+2*k+1}")

def srd(A, d, lo, hi, off_s, size):
    if off_s is None:
        A(f"s_mov_b32 s{d}, s{lo}"); A(f"s_mov_b32 s{d+1}, s{hi}")
    else:
        A(f"s_add_u32 s{d}, s{lo}, s{off_s}"); A(f"s_addc_u32 s{d+1}, s{hi}, 0")
    A(f"s_mov_b32 s{d+2}, {size}")
    A(f"s_mov_b32 s{d+3}, 0x20000")

class Prof:
    def __init__(self, A, on, reg): self.A, self.on, self.reg, self.n = A, on, reg, 0
    def stamp(self):
        if not self.on: return
        A = self.A
        A("s_memrealtime s[92:93]"); A("s_waitcnt lgkmcnt(0)")
        A(f"v_writelane_b32 v{self.reg}, s92, {self.n}"); self.n += 1
    def flush(self):
        if not self.on: return
        A = self.A
        A("s_getreg_b32 s92, hwreg(HW_REG_HW_ID)"); A(f"v_writelane_b32 v{self.reg}, s92, 62")
        A("s_mov_b64 exec, -1")
        A("s_lshl_b32 s94, s2, 3"); A("s_add_u32 s94, s94, s3"); A("s_lshl_b32 s94, s94, 8"); A("s_add_u32 s94, s94, 0x2000000")
        A(f"v_lshlrev_b32 v1, 2, v0"); A("v_add_u32 v1, s94, v1")
        A(f"global_store_dword v1, v{self.reg}, s[40:41]")

def gen(N=5, C=8, S0=24, R=32, catch=2, Ntail=None, tail_from=None, NA=4, wpol="", kvpol="nt", prof=0, fused=0, prio=1, hmap=1, nomlp=0, nowo=0, NW=8, diag=0, nostream=0, WQ0=16, NQ=0, bar0=0, K0=5, dyn=0, NH=8, dyn_from=32, CK0=4, CKS=4, TH=(128,192,232), BO=(1,2,3), CKEXIT=30, sleep=3, even_boost=(16,20), T2=720, TK=226, TV=217, MARG=0, wmask=0, rotm=0, CV=None, tail2=0, rg=32, sl16=0, warm=0, earlyml=1, rotx=0, ktest=0, fin1=1, swapkv=0, zlate=0, NBE=3, LK=26, BS0=16, kboost=(), tlbtest=0, dry=0, THON=32, THOFF=8, PEXIT=120, res=8, glob=0, GK=3, thr=0, THL=48, THLO=16, dbgspan=0):
    A = Asm()
    P = Prof(A, prof, 63)
    kname = NAME + "_kernel"
    out = []
    out.append(HEADER.rstrip("\n"))
    lds_bytes = LDS_BYTES if (tail2 or dry or fused == 1) else 22784
    out += DOC
    if fused:
        out.append(f"; @launch grid=(256,1,1) block=(512,1,1) lds={lds_bytes}")
    else:
        out.append(f"; @launch kernel={kname} grid=(256,1,1) block=(512,1,1) lds={lds_bytes}")
        out.append(f"; @launch kernel=reduce_kernel grid=(160,1,1) block=(64,1,1) lds=0")
    out.append('.amdgcn_target "amdgcn-amd-amdhsa--gfx950"')
    out.append(".text"); out.append(f".globl {kname}"); out.append(".p2align 8"); out.append(f".type {kname},@function")
    A.label(kname)
    A("s_cmp_ge_u32 s2, 256"); A("s_cbranch_scc1 L_end")
    A("s_load_dwordx16 s[16:31], s[0:1], 0")
    A("s_load_dwordx8 s[32:39], s[0:1], 64")
    A("s_load_dwordx2 s[40:41], s[0:1], 96")
    A("v_lshrrev_b32 v1, 6, v0")
    A("v_and_b32 v0, 63, v0")
    A("v_readfirstlane_b32 s3, v1")
    A("v_and_b32 v2, 15, v0")
    A("v_lshrrev_b32 v3, 4, v0")
    if hmap == 0:
        A("s_lshr_b32 s4, s2, 5")
        A("s_and_b32 s5, s2, 31")
    else:
        A("s_and_b32 s5, s2, 7"); A("s_lshl_b32 s5, s5, 2"); A("s_bfe_u32 s4, s2, 0x20003"); A("s_add_u32 s5, s5, s4")
        A("s_lshr_b32 s4, s2, 5")
    A("s_lshl_b32 s66, s4, 5"); A("s_add_u32 s66, s66, s5")
    if prof: A("v_mov_b32 v63, 0")
    A("s_cmp_ge_u32 s3, 4"); A("s_cbranch_scc1 L_aux")
    vK, vV = 4, 5
    MASK = 8
    AT = 12
    D = 20
    O = 28
    S = 32
    TM = 48
    BQ = 64
    RING = 128
    assert R * 4 + RING <= 256
    if prio: A(f"s_setprio {prio}")
    A("v_bfe_u32 v6, v2, 1, 1"); A("v_lshlrev_b32 v6, 10, v6")
    A("v_lshrrev_b32 v7, 2, v2"); A("v_lshl_add_u32 v6, v7, 8, v6")
    A("v_and_b32 v7, 1, v2"); A("v_lshl_add_u32 v6, v7, 6, v6")
    A(f"v_lshl_add_u32 v{vK}, v3, 4, v6")
    A(f"v_lshlrev_b32 v{vV}, 4, v0")
    if ktest == 1: A(f"v_lshlrev_b32 v{vK}, 4, v0")
    if ktest == 2:
        A("v_bfe_u32 v6, v0, 2, 2"); A("v_lshlrev_b32 v6, 8, v6"); A("v_lshl_add_u32 v6, v3, 6, v6"); A("v_and_b32 v7, 3, v0")
        A(f"v_lshl_add_u32 v{vK}, v7, 4, v6")
    A("s_lshl_b32 s6, s66, 20"); A("s_lshr_b32 s7, s66, 12")
    if CV is None: CV = C
    A(f"s_mul_i32 s42, s3, {C*1024}")
    if rotx:
        rotm = 1
        if rotx == 2: A("s_lshr_b32 s45, s2, 5"); A("s_lshl_b32 s45, s45, 2")
        if rotx == 3: A("s_lshr_b32 s45, s2, 5"); A("s_lshl_b32 s45, s45, 2"); A("s_add_u32 s45, s45, s2")
        if rotx == 5: A("s_and_b32 s45, s2, 7"); A("s_lshl_b32 s45, s45, 2")
        if rotx == 6: A("s_lshr_b32 s45, s2, 3")
        if rotx == 7: A("s_and_b32 s45, s2, 7")
        if rotx == 8: A("s_lshr_b32 s45, s2, 3"); A("s_and_b32 s45, s45, 3"); A("s_lshl_b32 s45, s45, 3")
        A(f"s_and_b32 s45, s45, {1024 // rg - 1}"); A(f"s_mul_i32 s45, s45, {rg*1024}")
        A("s_add_u32 s42, s42, s45")
    elif rotm:
        A(f"s_mul_i32 s45, s2, {rotm}"); A(f"s_and_b32 s45, s45, {1024 // rg - 1}"); A(f"s_mul_i32 s45, s45, {rg*1024}")
        A("s_add_u32 s42, s42, s45")
    A("s_waitcnt lgkmcnt(0)")
    kp, vp = (20, 18) if swapkv else (18, 20)
    A(f"s_add_u32 s8, s{kp}, s6"); A(f"s_addc_u32 s9, s{kp+1}, s7"); A("s_mov_b32 s10, 0x100000"); A("s_mov_b32 s11, 0x20000")
    A(f"s_add_u32 s12, s{vp}, s6"); A(f"s_addc_u32 s13, s{vp+1}, s7"); A("s_mov_b32 s14, 0x100000"); A("s_mov_b32 s15, 0x20000")
    P.stamp()
    if dyn == 4: A("s_memrealtime s[70:71]")
    cur_page = [None]
    def kv_load(n):
        isv = n >= 256; m = n % 256
        vi, wi = m // C, m % C
        byte = vi * 4 * C * 1024 + (wi // 2) * 2048 + ((wi % 2) * (1024 if (isv or ktest) else 128))
        page, imm = byte // 4096 * 4096, byte % 4096
        if cur_page[0] != page:
            A(f"s_add_u32 s43, s42, {page}"); cur_page[0] = page
            if rotm: A("s_and_b32 s43, s43, 0xfffff")
            if thr and n >= dyn_from - 8: A("s_cmp_eq_u32 s67, 2")
        v = RING + (n % R) * 4
        A.issue(("kv", n), f"buffer_load_dwordx4 v[{v}:{v+3}], v{vV if isv else vK}, s[{'12:15' if isv else '8:11'}], s43 offen offset:{imm} {kvpol}")
    def win(n):
        if Ntail is not None and n >= tail_from: return Ntail
        if dyn and n >= dyn_from: return NH
        return N
    issued = [0]
    def pace():
        n = issued[0]
        if n >= 512: return False
        w = win(n)
        if Ntail is not None and n >= tail_from:
            if n - Ntail >= 0: A.wait(("kv", n - Ntail))
        elif dyn and n >= dyn_from:
            lab = f"Lw{n}"
            if thr:
                A(f"s_cbranch_scc0 Lt{n}"); A(f"s_waitcnt vmcnt({N-2})"); A.label(f"Lt{n}")
            A(f"s_cbranch_vccnz {lab}"); A(f"s_waitcnt vmcnt({N-1})"); A.label(lab)
            A.wait(("kv", n - NH))
        elif n - w >= 0: A.wait(("kv", n - w))
        kv_load(n); issued[0] += 1
        if diag == 5 and n < 44: P.stamp()
        return True
    if nostream:
        A("s_barrier"); A("s_barrier"); A("s_endpgm")
    for _ in range(K0 if bar0 else N): pace()
    A("v_and_b32 v6, 1, v2"); A("v_lshlrev_b32 v6, 4, v6")
    A("v_mov_b32 v7, 0xffff"); A("v_lshlrev_b32 v7, v6, v7")
    A("v_bfe_u32 v6, v2, 1, 2")
    for r in range(4):
        A(f"v_cmp_eq_u32 vcc, {r}, v6"); A.nop(2); A(f"v_cndmask_b32 v{MASK+r}, 0, v7, vcc")
    A("v_lshrrev_b32 v6, 1, v2")
    for t in range(8): A(f"v_cmp_eq_u32 s[{48+2*t}:{49+2*t}], {t}, v6")
    A("v_and_b32 v6, 1, v2"); A("v_cmp_eq_u32 s[64:65], 0, v6")
    A(f"v_lshl_add_u32 v6, v6, 2, v3"); A(f"v_lshlrev_b32 v6, 5, v6")
    if bar0:
        A("s_barrier")
        P.stamp()
    while issued[0] < S0:
        pace()
        if diag == 3: P.stamp()
    P.stamp()
    A("s_barrier")
    P.stamp()
    for a in range(4):
        for half in range(2):
            for q in range(2):
                v = BQ + a * 16 + half * 8 + q * 4
                A(f"ds_read_b128 v[{v}:{v+3}], v6 offset:{L_QP + a*512 + half*256 + q*16}")
    if issued[0] < R: pace()
    A("s_waitcnt lgkmcnt(0)")
    for k in range(16):
        A(f"v_add_f32 v{TM-16+k}, v{BQ+k}, v{BQ+16+k}")
        A(f"v_add_f32 v{BQ+32+k}, v{BQ+32+k}, v{BQ+48+k}")
    if issued[0] < R: pace()
    for k in range(16):
        A(f"v_add_f32 v{S+k}, v{S+k}, v{BQ+32+k}")
    for k in range(8):
        A(f"v_cvt_pk_bf16_f32 v{TM+k}, v{S+2*k}, v{S+2*k+1}")
    if issued[0] < R: pace()
    for t in range(8):
        for k in range(8):
            A(f"v_cndmask_b32 v{BQ+t*8+k}, 0, v{TM+k}, s[{48+2*t}:{49+2*t}]")
        if t % 2 == 1 and issued[0] < R: pace()
    P.stamp()
    if dyn:
        A("s_mov_b64 vcc, 0")
        if dyn == 5:
            A(f"s_lshr_b32 s67, {wmask}, s3"); A("s_bitcmp1_b32 s67, 0"); A("s_cselect_b64 vcc, -1, 0")
        A("s_lshl_b32 s67, s3, 2"); A(f"v_mov_b32 v{TM+12}, s67"); A(f"v_mov_b32 v{TM+14}, 0")
        if thr: A("s_mov_b32 s67, 0"); A("s_cmp_eq_u32 s67, 2")
    deferred = []
    unit = [0]
    def run_deferred(force=False):
        k = 0
        while k < len(deferred):
            if force or deferred[k][0] <= unit[0]:
                deferred.pop(k)[1]()
            else: k += 1
    def merge(t16):
        d = D + (t16 % 2) * 4
        a, b = TM + 8, TM + 9
        A(f"v_cndmask_b32 v{a}, v{d+3}, v{d}, s[64:65]")
        A(f"v_cndmask_b32 v{b}, v{d+1}, v{d+2}, s[64:65]")
        A.nop(2)
        A(f"v_add_f32_dpp v{a}, v{b}, v{a} quad_perm:[1,0,3,2] row_mask:0xf bank_mask:0xf")
        bf16r(A, a, a)
        A(f"v_mul_f32 v{a}, {SCALE:#x}, v{a}")
        bf16r(A, S + t16, a)
    def hooks(step, cc):
        if not dyn or dyn == 5: return
        if dyn == 8:
            if cc % res == 0:
                A(f"v_mov_b32 v{TM+11}, {step*4 + cc//4}")
                A(f"ds_write_b32 v{TM+12}, v{TM+11} offset:{L_PROG}")
            if cc % 8 == 2: A(f"ds_read_b32 v{TM+13}, v{TM+14} offset:{L_MODE}")
            if cc % 8 == 6:
                if even_boost[0] <= step < even_boost[1]:
                    A("s_waitcnt lgkmcnt(0)"); A(f"v_readfirstlane_b32 s67, v{TM+13}")
                    A("s_getreg_b32 s73, hwreg(HW_REG_XCC_ID)"); A("s_andn2_b32 s73, 1, s73")
                    if not thr: A("s_or_b32 s67, s67, s73")
                    if thr: A("s_cmp_lg_u32 s73, 0"); A("s_cselect_b32 s67, 1, s67")
                    A("s_cmp_eq_u32 s67, 1" if thr else "s_cmp_lg_u32 s67, 0"); A("s_cselect_b64 vcc, -1, 0")
                else:
                    A("s_waitcnt lgkmcnt(0)"); A(f"v_readfirstlane_b32 s67, v{TM+13}")
                    A("s_cmp_eq_u32 s67, 1" if thr else "s_cmp_lg_u32 s67, 0"); A("s_cselect_b64 vcc, -1, 0")
                if thr: A("s_cmp_eq_u32 s67, 2")
            return
        if dyn == 4:
            if cc == 2: A("s_memrealtime s[68:69]")
            if cc == 6 and step >= 2:
                tref = T2 + (min(step, 16) - 2) * TK + max(step - 16, 0) * TV + MARG
                A("s_waitcnt lgkmcnt(0)"); A("s_sub_u32 s68, s68, s70")
                A(f"s_cmp_gt_u32 s68, {tref}"); A("s_cselect_b64 vcc, -1, 0")
            return
        if cc == 2 and dyn == 7 and step == BS0 - 1:
            A(f"ds_read_b32 v{TM+13}, v{TM+14} offset:{L_MODE}")
        if cc == 2 and dyn not in (2, 6, 7):
            A(f"v_mov_b32 v{TM+11}, {step}")
            A(f"ds_write_b32 v{TM+12}, v{TM+11} offset:{L_PROG}")
            if dyn == 3: A(f"ds_read_b32 v{TM+13}, v{TM+14} offset:{L_MODE}")
        if cc == 6:
            if dyn == 3:
                A("s_waitcnt lgkmcnt(0)"); A(f"v_readfirstlane_b32 s67, v{TM+13}")
                A("s_cmp_lg_u32 s67, 0"); A("s_cselect_b64 vcc, -1, 0")
            elif dyn == 2:
                if step == even_boost[0]: A("s_bitcmp0_b32 s2, 0"); A("s_cselect_b64 vcc, -1, 0")
                if step == even_boost[1]: A("s_mov_b64 vcc, 0")
            elif dyn == 7:
                if step == BS0 - 1:
                    A("s_waitcnt lgkmcnt(0)"); A(f"v_readfirstlane_b32 s72, v{TM+13}")
                if BS0 <= step <= BS0 + 8:
                    A(f"s_cmp_gt_u32 s72, {step - BS0}"); A("s_cselect_b64 vcc, -1, 0")
            elif dyn == 6:
                if step in kboost: A("s_mov_b64 vcc, -1")
                elif even_boost[0] <= step < even_boost[1]:
                    A("s_getreg_b32 s67, hwreg(HW_REG_XCC_ID)"); A("s_bitcmp0_b32 s67, 0"); A("s_cselect_b64 vcc, -1, 0")
                elif (step - 1) in kboost or step == even_boost[1]: A("s_mov_b64 vcc, 0")
    def k_consume(c):
        hooks(c // 16, c % 16)
        if diag == 4 and c % 32 == 0 and c: P.stamp()
        t16, tt, half = c // 16, (c % 16) // 2, c % 2
        d = D + (t16 % 2) * 4
        v = RING + (c % R) * 4
        A.wait(("kv", c))
        b = BQ + tt * 8 + half * 4
        cs = "0" if c % 16 == 0 else f"v[{d}:{d+3}]"
        A(f"v_mfma_f32_16x16x32_bf16 v[{d}:{d+3}], v[{v}:{v+3}], v[{b}:{b+3}], {cs}")
        if c % 16 == 15: deferred.append((unit[0] + 9, lambda t=t16: merge(t)))
    def pexp(t16):
        a = TM + 10
        A(f"v_sub_f32 v{a}, v{S+t16}, v{TM}")
        A(f"v_mul_f32 v{a}, {LOG2E:#x}, v{a}")
        A(f"v_exp_f32 v{a}, v{a}")
        A.nop(1)
        A(f"v_add_f32 v{TM+1}, v{TM+1}, v{a}")
        A(f"v_cvt_pk_bf16_f32 v{S+t16}, v{a}, v{a}")
    def abuild(c):
        at = AT + (c % 2) * 4
        for r in range(4):
            A(f"v_and_b32_dpp v{at+r}, v{S + c//16}, v{MASK+r} row_newbcast:{c%16} row_mask:0xf bank_mask:0xf")
    def v_consume(c):
        hooks(16 + c // 16, c % 16)
        if diag == 4 and c % 64 == 0 and c: P.stamp()
        at = AT + (c % 2) * 4
        v = RING + ((256 + c) % R) * 4
        if c + 1 < 256: abuild(c + 1)
        else: A.nop(2)
        A.wait(("kv", 256 + c))
        cs = "0" if c == 0 else f"v[{O}:{O+3}]"
        A(f"v_mfma_f32_16x16x32_bf16 v[{O}:{O+3}], v[{at}:{at+3}], v[{v}:{v+3}], {cs}")
        if c % 16 == 4 and c // 16 + 1 < 16: pexp(c // 16 + 1)
        if c == 236 and earlyml:
            allreduce(A, "add", TM + 1, TM + 2)
            A("s_lshl_b32 s44, s3, 3"); A("v_mov_b32 v7, s44")
            A(f"v_mov_b32 v{TM+2}, v{TM}"); A(f"v_mov_b32 v{TM+3}, v{TM+1}")
            A("s_mov_b64 exec, 1")
            A(f"ds_write_b64 v7, v[{TM+2}:{TM+3}] offset:{L_ML}")
            A("s_mov_b64 exec, -1")
            A("v_lshlrev_b32 v6, 5, v2"); A("v_lshl_add_u32 v6, v3, 4, v6")
            A("s_lshl_b32 s44, s3, 9"); A("v_add_u32 v6, s44, v6")
            if thr: A("s_cmp_eq_u32 s67, 2")
    c = 0
    while c < 256:
        can_issue = issued[0] < 512 and issued[0] - R < c
        if can_issue: pace()
        lag = issued[0] - win(max(issued[0]-1,0)) - c
        k = catch if lag > 1 else 1
        for _ in range(k):
            if c < 256:
                k_consume(c); c += 1
                unit[0] += 1; run_deferred()
    A.nop(8)
    run_deferred(force=True)
    P.stamp()
    def pace_ok():
        if issued[0] < 512 and issued[0] - R < 256: pace()
    A(f"v_max3_f32 v{TM}, v{S}, v{S+1}, v{S+2}")
    for k in range(3, 15, 2): A(f"v_max3_f32 v{TM}, v{TM}, v{S+k}, v{S+k+1}")
    A(f"v_max_f32 v{TM}, v{TM}, v{S+15}")
    pace_ok()
    allreduce(A, "max", TM, TM + 2)
    pace_ok()
    A(f"v_mov_b32 v{TM+1}, 0")
    pexp(0)
    A.nop(2)
    abuild(0)
    P.stamp()
    c = 0
    while c < 256:
        can_issue = issued[0] < 512 and issued[0] - R < 256 + c
        if can_issue: pace()
        while Ntail is not None and tail_from <= issued[0] < 512 and issued[0] - (256 + c) < Ntail and issued[0] - R < 256 + c: pace()
        lag = issued[0] - win(max(issued[0]-1,0)) - (256 + c)
        k = catch if (lag > 1 or issued[0] >= 512) else 1
        for _ in range(k):
            if c < 256:
                v_consume(c); c += 1
    P.stamp()
    if not earlyml:
        allreduce(A, "add", TM + 1, TM + 2)
        A("v_lshlrev_b32 v6, 5, v2"); A("v_lshl_add_u32 v6, v3, 4, v6")
        A("s_lshl_b32 s44, s3, 9"); A("v_add_u32 v6, s44, v6")
        A("s_lshl_b32 s44, s3, 3"); A("v_mov_b32 v7, s44")
        A(f"v_mov_b32 v{TM+2}, v{TM}"); A(f"v_mov_b32 v{TM+3}, v{TM+1}")
        assert (TM + 2) % 2 == 0
        A("s_mov_b32 exec_hi, 0")
        A(f"ds_write_b128 v6, v[{O}:{O+3}] offset:{L_OP}")
        A("s_mov_b32 exec_lo, 1")
        A(f"ds_write_b64 v7, v[{TM+2}:{TM+3}] offset:{L_ML}")
    else:
        A("s_mov_b32 exec_hi, 0")
        A.nop(7)
        A(f"ds_write_b128 v6, v[{O}:{O+3}] offset:{L_OP}")
    A("s_waitcnt lgkmcnt(0)")
    A("s_barrier")
    P.stamp()
    if tail2:
        A("s_mov_b64 exec, -1")
        P.flush()
        A("s_branch L_b3")
    else:
        P.flush()
        A("s_endpgm")
    A.vm = []
    P = Prof(A, prof, 63)
    A.label("L_aux")
    if dbgspan: A("s_memrealtime s[90:91]")
    if dyn == 7: A("s_memrealtime s[74:75]")
    SEL = 8
    AT = 16
    DO = 24
    DQ = 44
    X = 48
    F = 53
    T = 4
    PP = 64
    BUF = 96
    A("s_sub_u32 s42, s3, 4")
    A("s_mul_i32 s43, s42, 160"); A("v_mul_u32_u24 v4, 40, v3"); A("v_add_u32 v4, s43, v4")
    A("v_lshlrev_b32 v4, 13, v4"); A("v_lshl_add_u32 v4, v2, 4, v4")
    A("v_lshlrev_b32 v5, 2, v0")
    A("s_mul_i32 s6, s4, 1280"); A("s_lshl_b32 s7, s5, 8")
    A("s_sub_u32 s44, 5242880, s7")
    A("s_waitcnt lgkmcnt(0)")
    if dyn == 7:
        A("s_cmp_lg_u32 s42, 1"); A("s_cbranch_scc1 L_nostart")
        A("s_cmp_ge_u32 s2, 8"); A("s_cbranch_scc1 L_nostart")
        A("s_or_b32 s76, s74, 1"); A("v_mov_b32 v6, s76"); A("s_lshl_b32 s76, s2, 5"); A("v_mov_b32 v7, s76")
        A("s_mov_b64 exec, 1")
        A("global_store_dword v7, v6, s[38:39] offset:12 sc1")
        A("s_mov_b64 exec, -1")
        A.label("L_nostart")
    srd(A, 8, 16, 17, 6, 1280)
    srd(A, 12, 22, 23, 7, "s44")
    P.stamp()
    A("v_lshlrev_b32 v6, 3, v0")
    A.issue(("x", 0), f"buffer_load_dwordx2 v[{X}:{X+1}], v6, s[8:11], 0 offen")
    A.issue(("x", 1), f"buffer_load_dwordx2 v[{X+2}:{X+3}], v6, s[8:11], 0 offen offset:512")
    A.issue(("x", 4), f"buffer_load_dword v{X+4}, v5, s[8:11], 0 offen offset:1024")
    A("s_lshl_b32 s45, s4, 15")
    def wq_load(j):
        v = BUF + 4 * j
        if NQ and j >= NQ: A.wait(("wq", j - NQ))
        A.issue(("wq", j), f"buffer_load_dwordx4 v[{v}:{v+3}], v4, s[12:15], s45 offen {wpol}")
        if j < 39:
            A("s_add_u32 s45, s45, 8192"); A(f"s_cmp_eq_u32 s45, {40*8192}"); A("s_cselect_b32 s45, 0, s45")
    if bar0 == 2: WQ0 = 40
    for j in range(WQ0): wq_load(j)
    if bar0 == 2: A("s_barrier")
    A("v_and_b32 v6, 1, v2")
    A("v_cmp_eq_u32 vcc, 0, v6")
    A("v_mov_b32 v60, 0x01000c0c"); A("v_mov_b32 v61, 0x0c0c0100")
    A("v_cndmask_b32 v60, v60, v61, vcc")
    A("v_mov_b32 v6, 0x03020c0c"); A("v_mov_b32 v61, 0x0c0c0302")
    A("v_cndmask_b32 v61, v6, v61, vcc")
    A("v_bfe_u32 v6, v2, 1, 2"); A("v_mov_b32 v7, 0x0c0c0c0c")
    for r in range(4):
        A(f"v_cmp_eq_u32 vcc, {r}, v6"); A.nop(2)
        A(f"v_cndmask_b32 v{SEL+r}, v7, v60, vcc"); A(f"v_cndmask_b32 v{SEL+4+r}, v7, v61, vcc")
    for k in range(20): A(f"v_mov_b32 v{DO+k}, 0")
    A.wait(("x", 4))
    P.stamp()
    LN = Asm(); layernorm(LN, X, F, (84, 85, 86, 87), X)
    rem = list(range(WQ0, 40)); step = max(1, len(LN.L) // (len(rem) + 1))
    for i, ins in enumerate(LN.L):
        A.L.append(ins)
        if rem and i % step == step - 1: wq_load(rem.pop(0))
    for j in rem: wq_load(j)
    if bar0 == 1: A("s_barrier")
    A("s_mul_i32 s43, s42, 1280")
    A("v_lshlrev_b32 v5, 2, v0"); A("v_add_u32 v5, s43, v5")
    A("v_lshlrev_b32 v6, 3, v0"); A("v_add_u32 v6, s43, v6")
    A(f"ds_write_b64 v6, v[{X}:{X+1}] offset:{L_XN}"); A(f"ds_write_b64 v6, v[{X+2}:{X+3}] offset:{L_XN + 512}")
    A(f"ds_write_b32 v5, v{X+4} offset:{L_XN + 1024}")
    A("s_mul_i32 s43, s42, 1600"); A("v_mul_u32_u24 v5, 80, v3"); A("v_add_u32 v5, s43, v5")
    A("s_lshl_b32 s46, s4, 3")
    A("s_waitcnt lgkmcnt(0)")
    for k in range(10):
        A(f"v_add_u32 v6, s46, v5")
        A(f"ds_read_b64 v[{PP+2*k}:{PP+2*k+1}], v6 offset:{L_XN}")
        A("s_add_u32 s46, s46, 8"); A("s_cmp_eq_u32 s46, 80"); A("s_cselect_b32 s46, 0, s46")
    A("s_waitcnt lgkmcnt(0)")
    P.stamp()
    def abuild_p(preg, par, st):
        at = AT + st * 4
        for r in range(4): A(f"v_perm_b32 v{at+r}, v{preg}, v{preg}, v{SEL + par*4 + r}")
    abuild_p(PP, 0, 0)
    for j in range(40):
        if j + 1 < 40: abuild_p(PP + (j + 1) // 2, (j + 1) % 2, (j + 1) % 2)
        else: A.nop(2)
        A.wait(("wq", j))
        at = AT + (j % 2) * 4; v = BUF + 4 * j
        cs = "0" if j == 0 else f"v[{DQ}:{DQ+3}]"
        A(f"v_mfma_f32_16x16x32_bf16 v[{DQ}:{DQ+3}], v[{at}:{at+3}], v[{v}:{v+3}], {cs}")
    A("v_lshlrev_b32 v6, 5, v2"); A("v_lshl_add_u32 v6, v3, 4, v6")
    A("s_lshl_b32 s43, s42, 9"); A("v_add_u32 v7, s43, v6")
    A.nop(6)
    A("s_mov_b32 exec_hi, 0")
    A(f"ds_write_b128 v7, v[{DQ}:{DQ+3}] offset:{L_QP}")
    A("s_mov_b32 exec_hi, -1")
    if dyn:
        A("v_lshlrev_b32 v6, 2, v0"); A("v_mov_b32 v7, 0")
        A("s_mov_b64 exec, 0xff")
        A(f"ds_write_b32 v6, v7 offset:{L_PROG}")
        A("s_mov_b64 exec, -1")
    A("s_waitcnt lgkmcnt(0)")
    P.stamp()
    A("s_barrier")
    A("s_cmp_lg_u32 s42, 0"); A("s_cbranch_scc1 L_wo")
    A("s_cmp_ge_u32 s5, %d" % (0 if nomlp else 27)); A("s_cbranch_scc1 L_wo")
    layernorm(A, X, F, T, X)
    A("v_lshlrev_b32 v4, 2, v0"); A("v_lshlrev_b32 v5, 3, v0")
    A(f"ds_write_b64 v5, v[{X}:{X+1}] offset:{L_Y}"); A(f"ds_write_b64 v5, v[{X+2}:{X+3}] offset:{L_Y + 512}")
    A(f"ds_write_b32 v4, v{X+4} offset:{L_Y + 1024}")
    A("s_lshl_b32 s6, s5, 7")
    A(f"s_sub_u32 s44, {640*3456}, s6")
    srd(A, 8, 28, 29, 6, "s44")
    srd(A, 12, 30, 31, 6, 128)
    A("v_lshlrev_b32 v5, 1, v0")
    A.issue(("b1", 0), f"buffer_load_ushort v{F}, v5, s[12:15], 0 offen")
    A("v_lshrrev_b32 v5, 3, v2"); A("v_lshl_add_u32 v5, v3, 1, v5")
    A("v_mul_u32_u24 v6, 160, v5")
    A(f"s_mov_b32 s45, {(1 if tlbtest & 1 else 80)*3456}"); A("v_mul_lo_u32 v5, s45, v5")
    A("v_and_b32 v7, 7, v2"); A("v_lshl_add_u32 v5, v7, 4, v5")
    A("s_waitcnt lgkmcnt(0)")
    PY = BUF
    for k in range(10): A(f"ds_read_b128 v[{PY+4*k}:{PY+4*k+3}], v6 offset:{L_Y + 16*k}")
    RB, RN = BUF + 40, 30
    def w1_load(j):
        v = RB + (j % RN) * 4
        A(f"s_mov_b32 s45, {j*3456*(8 if tlbtest & 1 else 1)}")
        A.issue(("w1", j), f"buffer_load_dwordx4 v[{v}:{v+3}], v5, s[8:11], s45 offen {wpol}")
    for j in range(NW): w1_load(j)
    A("s_waitcnt lgkmcnt(0)")
    abuild_p(PY, 0, 0)
    for j in range(80):
        if j + 1 < 80: abuild_p(PY + (j + 1) // 2, (j + 1) % 2, (j + 1) % 2)
        else: A.nop(2)
        A.wait(("w1", j))
        at = AT + (j % 2) * 4; v = RB + (j % RN) * 4
        cs = "0" if j == 0 else f"v[{DQ}:{DQ+3}]"
        A(f"v_mfma_f32_16x16x32_bf16 v[{DQ}:{DQ+3}], v[{at}:{at+3}], v[{v}:{v+3}], {cs}")
        if j + NW < 80: w1_load(j + NW)
    A("s_mul_i32 s6, s5, 81920")
    A(f"s_sub_u32 s44, {1728*1280}, s6")
    srd(A, 8, 32, 33, 6, "s44")
    A("v_mul_u32_u24 v5, 20480, v3"); A("v_lshl_add_u32 v5, v2, 4, v5")
    def w2_load(n):
        jj, cb = n // 5, n % 5
        v = RB + (n % RN) * 4
        if cb == 0: A(f"s_mov_b32 s45, {jj*1280}")
        A.issue(("w2", n), f"buffer_load_dwordx4 v[{v}:{v+3}], v5, s[8:11], s45 offen offset:{cb*256} {wpol}")
    for n in range(10): w2_load(n)
    A("v_lshrrev_b32 v6, 1, v3"); A("v_lshrrev_b32 v7, 3, v2")
    A("v_cmp_eq_u32 vcc, v6, v7")
    A("v_lshlrev_b32 v6, 8, v6"); A("v_and_b32 v7, 7, v2"); A("v_lshl_add_u32 v6, v7, 5, v6")
    A("v_and_b32 v7, 1, v3"); A("v_lshl_add_u32 v6, v7, 4, v6")
    A("s_and_saveexec_b64 s[46:47], vcc")
    A(f"ds_write_b128 v6, v[{DQ}:{DQ+3}] offset:{L_T}")
    A("s_mov_b64 exec, s[46:47]")
    A("v_lshlrev_b32 v6, 2, v0")
    A("s_waitcnt lgkmcnt(0)")
    A(f"ds_read_b32 v{F+1}, v6 offset:{L_T}"); A(f"ds_read_b32 v{F+2}, v6 offset:{L_T+256}")
    A("s_waitcnt lgkmcnt(0)")
    A(f"v_add_f32 v{F+1}, v{F+1}, v{F+2}")
    bf16r(A, F + 1, F + 1)
    A.wait(("b1", 0))
    A(f"v_lshlrev_b32 v{F}, 16, v{F}")
    A(f"v_add_f32 v{F+1}, v{F+1}, v{F}")
    bf16r(A, F + 1, F + 1)
    x_, u_, e_ = F + 1, F + 2, F + 3
    A(f"v_mul_f32 v{u_}, v{x_}, v{x_}"); A(f"v_mul_f32 v{u_}, v{u_}, v{x_}")
    A(f"v_mov_b32 v{e_}, {f2u(0.044715):#x}"); A(f"v_fma_f32 v{u_}, v{u_}, v{e_}, v{x_}")
    A(f"v_mul_f32 v{u_}, {f2u(-2*0.7978845608028654*1.4426950408889634):#x}, v{u_}")
    A(f"v_exp_f32 v{u_}, v{u_}"); A.nop(1)
    A(f"v_add_f32 v{u_}, 1.0, v{u_}"); A(f"v_rcp_f32 v{u_}, v{u_}"); A.nop(1)
    A(f"v_mul_f32 v{u_}, v{x_}, v{u_}")
    A(f"v_cvt_pk_bf16_f32 v{u_}, v{u_}, v{u_}")
    A("v_lshlrev_b32 v6, 1, v0")
    A(f"ds_write_b16 v6, v{u_} offset:{L_HV}")
    A("v_lshlrev_b32 v6, 5, v3")
    A("s_waitcnt lgkmcnt(0)")
    for k in range(2): A(f"ds_read_b128 v[{PP+4*k}:{PP+4*k+3}], v6 offset:{L_HV + 16*k}")
    A("s_waitcnt lgkmcnt(0)")
    abuild_p(PP, 0, 0)
    nl = 10
    for jj in range(16):
        if jj + 1 < 16: abuild_p(PP + (jj + 1) // 2, (jj + 1) % 2, (jj + 1) % 2)
        else: A.nop(2)
        at = AT + (jj % 2) * 4
        for cb in range(5):
            n = jj * 5 + cb
            A.wait(("w2", n))
            v = RB + (n % RN) * 4; d = DO + 4 * cb
            A(f"v_mfma_f32_16x16x32_bf16 v[{d}:{d+3}], v[{at}:{at+3}], v[{v}:{v+3}], v[{d}:{d+3}]")
            if nl < 80: w2_load(nl); nl += 1
    A.waitall()
    A.label("L_wo")
    A.vm = []
    def zero_init():
        A("s_cmp_lg_u32 s42, 1"); A("s_cbranch_scc1 L_zero_done")
        A("s_mul_i32 s6, s4, 2560"); A("s_mul_i32 s43, s5, 80"); A("s_add_u32 s6, s6, s43"); A("s_add_u32 s6, s6, 0x100000")
        srd(A, 8, 40, 41, 6, 80)
        A("v_lshlrev_b32 v6, 2, v0"); A("v_mov_b32 v7, 0")
        A("buffer_store_dword v7, v6, s[8:11], 0 offen sc1")
        A("s_lshl_b32 s6, s4, 5"); A("v_mov_b32 v6, s6"); A("v_mov_b32 v7, 1")
        A("s_waitcnt vmcnt(0)")
        A("s_mov_b64 exec, 1")
        A("global_atomic_add v6, v7, s[38:39] offset:4")
        A("s_mov_b64 exec, -1")
        A.label("L_zero_done")
    if fused == 3 and not zlate: zero_init()
    if dyn == 8:
        A("s_getreg_b32 s76, hwreg(HW_REG_XCC_ID)"); A("s_and_b32 s76, s76, 7"); A("s_lshl_b32 s76, s76, 8"); A("s_add_u32 s76, s76, 0x200000")
        A("s_getreg_b32 s77, hwreg(HW_REG_HW_ID)"); A("s_bfe_u32 s78, s77, 0x2000d"); A("s_bfe_u32 s77, s77, 0x40008")
        A("s_lshl_b32 s78, s78, 4"); A("s_add_u32 s77, s77, s78"); A("s_lshl_b32 s77, s77, 2"); A("s_add_u32 s77, s77, s76")
        A("s_cmp_lg_u32 s42, 3"); A("s_cbranch_scc1 L_slot_done")
        A("v_lshlrev_b32 v6, 2, v0"); A("v_add_u32 v6, s76, v6"); A("v_bfrev_b32 v7, 1")
        A("global_store_dword v6, v7, s[40:41]")
        if glob:
            A("s_cmp_ge_u32 s2, 8"); A("s_cbranch_scc1 L_slot_done")
            A("v_lshlrev_b32 v6, 2, v0"); A("v_add_u32 v6, 0x201000, v6")
            A("s_mov_b64 exec, 0xff")
            A("global_store_dword v6, v7, s[40:41] sc1")
            A("s_mov_b64 exec, -1")
        A.label("L_slot_done")
    A("s_mul_i32 s6, s5, 163840")
    srd(A, 8, 24, 25, 6, 163840)
    A("s_lshl_b32 s43, s42, 5"); A("v_lshlrev_b32 v5, 3, v3"); A("v_add_u32 v5, s43, v5")
    A("v_mul_u32_u24 v5, 1280, v5"); A("v_lshl_add_u32 v5, v2, 4, v5")
    for n in range(0 if nowo else 40):
        jj, cb = n // 5, n % 5
        v = BUF + 4 * n
        if cb == 0: A(f"s_mov_b32 s45, {jj*1280}")
        if n >= NA: A.wait(("wo", n - NA))
        A.issue(("wo", n), f"buffer_load_dwordx4 v[{v}:{v+3}], v5, s[8:11], s45 offen offset:{cb*256} {wpol}")
    if dyn == 3:
        A("s_cmp_lg_u32 s42, 3"); A("s_cbranch_scc1 L_ctrl_done")
        A.waitall() if False else None
        A(f"s_mov_b32 s50, {CK0}"); A("s_mov_b32 s51, 16"); A("s_mov_b32 s52, 0"); A("s_mov_b32 s53, 0")
        A("v_mov_b32 v6, 0"); A("s_mov_b64 exec, 1")
        A.label("L_ctrl")
        A(f"ds_read_b32 v5, v6 offset:{L_PROG}")
        A("s_waitcnt lgkmcnt(0)")
        A("v_readfirstlane_b32 s54, v5")
        A(f"s_cmp_ge_u32 s54, {CKEXIT}"); A("s_cbranch_scc1 L_ctrl_exit")
        A("s_cmp_eq_u32 s52, 0"); A("s_cbranch_scc1 L_ctrl_a")
        A("s_cmp_lt_u32 s54, s53"); A("s_cbranch_scc1 L_ctrl_a")
        A("s_mov_b32 s52, 0"); A("v_mov_b32 v5, 0"); A(f"ds_write_b32 v6, v5 offset:{L_MODE}")
        A.label("L_ctrl_a")
        A("s_cmp_lt_u32 s54, s50"); A("s_cbranch_scc1 L_ctrl_sleep")
        A("v_mov_b32 v7, 1"); A("v_mov_b32 v4, s51")
        A("global_atomic_add v5, v4, v7, s[38:39] sc0")
        A("s_waitcnt vmcnt(0)")
        A("v_readfirstlane_b32 s55, v5")
        A(f"s_add_u32 s50, s50, {CKS}"); A("s_add_u32 s51, s51, 32")
        A("s_mov_b32 s56, 0")
        for th, bo in zip(TH, BO):
            A(f"s_cmp_ge_u32 s55, {th}"); A(f"s_cselect_b32 s56, {bo}, s56")
        A("s_cmp_eq_u32 s56, 0"); A("s_cbranch_scc1 L_ctrl_sleep")
        A(f"ds_read_b32 v5, v6 offset:{L_PROG}")
        A("s_waitcnt lgkmcnt(0)")
        A("v_readfirstlane_b32 s54, v5")
        A("s_add_u32 s53, s54, s56"); A("s_add_u32 s53, s53, 1")
        A("s_mov_b32 s52, 1"); A("v_mov_b32 v5, 1"); A(f"ds_write_b32 v6, v5 offset:{L_MODE}")
        A.label("L_ctrl_sleep")
        A(f"s_sleep {sleep}")
        A("s_branch L_ctrl")
        A.label("L_ctrl_exit")
        A("s_mov_b64 exec, -1")
        A.label("L_ctrl_done")
    if dyn == 7:
        A("s_cmp_lg_u32 s42, 3"); A("s_cbranch_scc1 L_nb_done")
        A("v_lshlrev_b32 v6, 5, v0")
        A("s_mov_b64 exec, 0xff")
        A("global_load_dword v7, v6, s[38:39] offset:12 sc1")
        A("s_waitcnt vmcnt(0)")
        A("s_mov_b32 s76, 0")
        for i in range(8):
            A(f"v_readlane_b32 s77, v7, {i}")
            A("s_sub_u32 s78, s74, s77"); A("s_cmp_lt_u32 s78, 300"); A("s_cselect_b32 s78, s78, 0")
            A("s_cmp_eq_u32 s77, 0"); A("s_cselect_b32 s78, 0, s78")
            A("s_max_u32 s76, s76, s78")
        A(f"s_mul_i32 s76, s76, {LK}"); A("s_add_u32 s76, s76, 512"); A("s_lshr_b32 s76, s76, 10")
        A("s_getreg_b32 s77, hwreg(HW_REG_XCC_ID)"); A("s_bitcmp0_b32 s77, 0"); A(f"s_cselect_b32 s77, {NBE}, 0")
        A("s_add_u32 s76, s76, s77"); A("s_min_u32 s76, s76, 8")
        A("s_mov_b64 exec, 1")
        A("v_mov_b32 v6, 0"); A("v_mov_b32 v7, s76")
        A(f"ds_write_b32 v6, v7 offset:{L_MODE}")
        A("s_mov_b64 exec, -1")
        A.label("L_nb_done")
    if dyn == 8:
        A("s_cmp_lg_u32 s42, 3"); A("s_cbranch_scc1 L_c8_done")
        A("v_mov_b32 v6, 0"); A("v_mov_b32 v4, s77")
        A("v_lshlrev_b32 v5, 2, v0"); A("v_add_u32 v5, s76, v5")
        A("s_mov_b32 s78, -1"); A("s_mov_b32 s79, 0")
        if glob:
            A("s_mov_b32 s86, 0"); A("s_mov_b32 s87, 0")
            A("s_getreg_b32 s88, hwreg(HW_REG_XCC_ID)"); A("s_and_b32 s88, s88, 7"); A("s_lshl_b32 s88, s88, 2"); A("s_add_u32 s88, s88, 0x201000")
            A("v_mov_b32 v74, s88")
            A("v_and_b32 v75, 7, v0"); A("v_lshlrev_b32 v75, 2, v75"); A("v_add_u32 v75, 0x201000, v75")
        A.label("L_c8")
        A(f"ds_read_b32 v7, v6 offset:{L_PROG}")
        A("s_waitcnt lgkmcnt(0)")
        A("v_readfirstlane_b32 s80, v7")
        A(f"s_cmp_ge_u32 s80, {PEXIT}"); A("s_cbranch_scc1 L_c8_exit")
        A("s_cmp_eq_u32 s80, s78"); A("s_cbranch_scc1 L_c8_sleep")
        A("s_mov_b32 s78, s80")
        A("s_mov_b64 exec, 1")
        A("global_store_dword v4, v7, s[40:41]")
        A("s_mov_b64 exec, -1")
        A("global_load_dword v72, v5, s[40:41] sc1")
        A("s_waitcnt vmcnt(0)")
        A("v_cmp_gt_i32 vcc, 0, v72")
        A("v_sub_u32 v72, v72, v7")
        A("v_med3_i32 v72, v72, -8, 8")
        A("v_cndmask_b32 v72, v72, v6, vcc")
        for ror in (8, 4, 2, 1):
            A.nop(2); A(f"v_add_u32_dpp v72, v72, v72 row_ror:{ror} row_mask:0xf bank_mask:0xf")
        A.nop(1)
        A("v_readlane_b32 s81, v72, 0"); A("v_readlane_b32 s82, v72, 16"); A("v_readlane_b32 s84, v72, 32"); A("v_readlane_b32 s85, v72, 48")
        A("s_add_i32 s81, s81, s82"); A("s_add_i32 s84, s84, s85"); A("s_add_i32 s81, s81, s84")
        if glob:
            A("s_lshl_b32 s84, s80, 5"); A("s_add_i32 s84, s84, s81")
            A("s_cmp_ge_u32 s2, 8"); A("s_cbranch_scc1 L_c8_nopub")
            A("v_mov_b32 v76, s84")
            A("s_mov_b64 exec, 1")
            A("global_store_dword v74, v76, s[40:41] sc1")
            A("s_mov_b64 exec, -1")
            A.label("L_c8_nopub")
            A("s_add_u32 s87, s87, 1"); A(f"s_and_b32 s85, s87, {GK}"); A("s_cmp_lg_u32 s85, 0"); A("s_cbranch_scc1 L_c8_nobias")
            A("global_load_dword v76, v75, s[40:41] sc1")
            A("s_waitcnt vmcnt(0)")
            A("v_cmp_gt_i32 vcc, 0, v76")
            A("v_subrev_u32 v76, s84, v76")
            A("v_mov_b32 v77, 0xffffff80"); A("v_mov_b32 v78, 128")
            A("v_med3_i32 v76, v76, v77, v78")
            A("v_cndmask_b32 v76, v76, v6, vcc")
            for ror in (4, 2, 1):
                A.nop(2); A(f"v_add_u32_dpp v76, v76, v76 row_ror:{ror} row_mask:0xf bank_mask:0xf")
            A.nop(1)
            A("v_readlane_b32 s86, v76, 0"); A("s_ashr_i32 s86, s86, 3")
            A.label("L_c8_nobias")
            A("s_add_i32 s81, s81, s86")
        A("s_mov_b32 s83, s79")
        if not thr:
            A(f"s_cmp_ge_i32 s81, {THON}"); A("s_cselect_b32 s83, 1, s83")
            A(f"s_cmp_le_i32 s81, {THOFF}"); A("s_cselect_b32 s83, 0, s83")
        else:
            A(f"s_cmp_ge_i32 s81, {-THLO}"); A("s_cselect_b32 s84, 1, 0")
            A(f"s_cmp_le_i32 s81, {THOFF}"); A("s_cselect_b32 s85, s84, 0")
            A("s_cmp_eq_u32 s85, 1"); A("s_cselect_b32 s83, 0, s83")
            A(f"s_cmp_ge_i32 s81, {THON}"); A("s_cselect_b32 s83, 1, s83")
            A(f"s_cmp_le_i32 s81, {-THL}"); A("s_cselect_b32 s83, 2, s83")
        A("s_cmp_eq_u32 s83, s79"); A("s_cbranch_scc1 L_c8_sleep")
        A("s_mov_b32 s79, s83"); A("v_mov_b32 v73, s83")
        A(f"ds_write_b32 v6, v73 offset:{L_MODE}")
        A.label("L_c8_sleep")
        A("s_sleep 2")
        A("s_branch L_c8")
        A.label("L_c8_exit")
        A("s_mov_b64 exec, -1")
        A.label("L_c8_done")
    if fused == 3 and zlate: zero_init()
    if fused == 3:
        A("s_lshl_b32 s6, s4, 5"); A("v_mov_b32 v90, s6"); A("v_mov_b32 v91, 1")
        A("s_cmp_lg_u32 s42, 0"); A("s_cbranch_scc1 L_zchk_done")
        A.label("L_zchk")
        A("s_mov_b64 exec, 1")
        A("global_load_dword v89, v90, s[38:39] offset:4 sc1")
        A("s_waitcnt vmcnt(0)")
        A("v_readfirstlane_b32 s51, v89")
        A("s_mov_b64 exec, -1")
        A("s_cmp_ge_u32 s51, 32"); A("s_cbranch_scc1 L_zchk_done")
        A("s_sleep 8")
        A("s_branch L_zchk")
        A.label("L_zchk_done")
        A.vm = []
        A.vm.append("pending")
    XB = 60
    XB = 92
    XP = [92, 94, 88]; BP = [44, 46, 60]
    if fused == 3 and fin1:
        A("v_lshlrev_b32 v4, 3, v0")
        A("s_mul_i32 s6, s4, 1280")
        srd(A, 12, 16, 17, 6, 1280)
        srd(A, 68, 34, 35, None, 1280)
        for i in range(3):
            A.issue(("xf", i), f"buffer_load_dwordx2 v[{XP[i]}:{XP[i]+1}], v4, s[12:15], 0 offen offset:{i*512}")
            A.issue(("bf", i), f"buffer_load_dwordx2 v[{BP[i]}:{BP[i]+1}], v4, s[68:71], 0 offen offset:{i*512}")
    elif fused:
        A("s_lshl_b32 s43, s42, 6"); A("v_add_u32 v4, s43, v0"); A("v_lshlrev_b32 v4, 3, v4")
        A("s_mul_i32 s6, s4, 1280")
        srd(A, 12, 16, 17, 6, 1280)
        A.issue(("xf", 0), f"buffer_load_dwordx2 v[{XB}:{XB+1}], v4, s[12:15], 0 offen")
        srd(A, 68, 34, 35, None, 1280)
        A.issue(("xf", 1), f"buffer_load_dwordx2 v[{XB+2}:{XB+3}], v4, s[68:71], 0 offen")
    A("v_lshlrev_b32 v4, 5, v3"); A("s_lshl_b32 s43, s42, 7"); A("v_add_u32 v4, s43, v4")
    A("v_mov_b32 v5, 0")
    A.waitall()
    if dry:
        A("s_mul_i32 s43, s42, 5120"); A("v_lshlrev_b32 v6, 4, v0"); A("v_add_u32 v6, s43, v6")
        for cb in range(5): A(f"ds_write_b128 v6, v[{DO+4*cb}:{DO+4*cb+3}] offset:{L_F + cb*1024}")
        A("s_waitcnt lgkmcnt(0)")
        A("s_mov_b32 s58, 0")
        A("s_branch L_proj")
        A.label("L_proj_back")
        A("s_mul_i32 s43, s42, 5120"); A("v_lshlrev_b32 v6, 4, v0"); A("v_add_u32 v6, s43, v6")
        for cb in range(5): A(f"ds_read_b128 v[{DO+4*cb}:{DO+4*cb+3}], v6 offset:{L_F + cb*1024}")
        A("v_lshlrev_b32 v4, 5, v3"); A("s_lshl_b32 s43, s42, 7"); A("v_add_u32 v4, s43, v4")
        A("v_mov_b32 v5, 0")
        A("s_mov_b32 s58, 1")
        A("s_waitcnt lgkmcnt(0)")
    P.stamp()
    A("s_barrier")
    P.stamp()
    if dry: A.label("L_proj")
    if fused == 2:
        A("s_cmp_lg_u32 s42, 0"); A("s_cbranch_scc1 L_noticket")
        A("s_lshl_b32 s6, s4, 5"); A("v_mov_b32 v90, s6"); A("v_mov_b32 v91, 1")
        A("s_mov_b64 exec, 1")
        A("global_atomic_add v88, v90, v91, s[38:39] sc0")
        A("global_load_dword v89, v90, s[38:39] offset:4 sc1")
        A("s_mov_b64 exec, -1")
        A.label("L_noticket")
    ML = PP
    OV = PP + 8
    A(f"ds_read_b128 v[{ML}:{ML+3}], v5 offset:{L_ML}"); A(f"ds_read_b128 v[{ML+4}:{ML+7}], v5 offset:{L_ML+16}")
    OVR = [72, 80, 48, 16]
    for w in range(4):
        for q in range(2):
            v = OVR[w] + 4 * q
            A(f"ds_read_b128 v[{v}:{v+3}], v4 offset:{L_OP + w*512 + q*16}")
    A("s_waitcnt lgkmcnt(8)")
    A(f"v_max3_f32 v6, v{ML}, v{ML+2}, v{ML+4}"); A(f"v_max_f32 v6, v6, v{ML+6}")
    for w in range(4):
        A(f"v_sub_f32 v{ML+2*w}, v{ML+2*w}, v6"); A(f"v_mul_f32 v{ML+2*w}, {LOG2E:#x}, v{ML+2*w}"); A(f"v_exp_f32 v{ML+2*w}, v{ML+2*w}")
    A.nop(1)
    A(f"v_mul_f32 v7, v{ML}, v{ML+1}")
    for w in range(1, 4): A(f"v_fmac_f32 v7, v{ML+2*w}, v{ML+2*w+1}")
    A("v_rcp_f32 v7, v7"); A.nop(1)
    A("s_waitcnt lgkmcnt(0)")
    for k in range(8):
        A(f"v_mul_f32 v{OVR[0]+k}, v{OVR[0]+k}, v{ML}")
        for w in range(1, 4): A(f"v_fmac_f32 v{OVR[0]+k}, v{OVR[w]+k}, v{ML+2*w}")
        A(f"v_mul_f32 v{OVR[0]+k}, v{OVR[0]+k}, v7")
    PO = 56
    for k in range(4): A(f"v_cvt_pk_bf16_f32 v{PO+k}, v{OVR[0]+2*k}, v{OVR[0]+2*k+1}")
    abuild_p(PO, 0, 0)
    for jj in range(8):
        if jj + 1 < 8: abuild_p(PO + (jj + 1) // 2, (jj + 1) % 2, (jj + 1) % 2)
        else: A.nop(2)
        at = AT + (jj % 2) * 4
        if jj == 0: A.nop(2)
        for cb in range(5):
            v = BUF + 4 * (jj * 5 + cb); d = DO + 4 * cb
            A(f"v_mfma_f32_16x16x32_bf16 v[{d}:{d+3}], v[{at}:{at+3}], v[{v}:{v+3}], v[{d}:{d+3}]")
    A("v_lshlrev_b32 v6, 5, v2"); A("v_lshl_add_u32 v6, v3, 4, v6")
    A("s_mul_i32 s43, s42, 2560"); A("v_add_u32 v6, s43, v6")
    A.nop(4)
    A("s_mov_b32 exec_hi, 0")
    for cb in range(5):
        A(f"ds_write_b128 v6, v[{DO+4*cb}:{DO+4*cb+3}] offset:{L_OUTP + cb*512}")
    A("s_mov_b32 exec_hi, -1")
    if fused == 3:
        A("s_mul_i32 s6, s4, 2560"); A("s_add_u32 s6, s6, 0x100000")
        srd(A, 8, 40, 41, 6, 2560)
    if fused == 2:
        A("s_mul_i32 s6, s4, 2560"); A("s_add_u32 s6, s6, 0x100000")
        srd(A, 8, 40, 41, 6, 2560)
        A("s_cmp_lg_u32 s42, 0"); A("s_cbranch_scc1 L_tk_done")
        A("s_waitcnt vmcnt(0)")
        A("v_readfirstlane_b32 s50, v88"); A("v_readfirstlane_b32 s51, v89")
        A("s_cmp_lg_u32 s50, 0"); A("s_cbranch_scc1 L_tk_spin")
        for k in range(4): A(f"v_mov_b32 v{72+k}, 0")
        A("v_lshlrev_b32 v7, 4, v0")
        for i in range(3): A(f"buffer_store_dwordx4 v[72:75], v7, s[8:11], 0 offen offset:{i*1024} sc1")
        A("s_waitcnt vmcnt(0)")
        A("s_mov_b64 exec, 1")
        A("global_store_dword v90, v91, s[38:39] offset:4 sc1")
        A("s_mov_b64 exec, -1")
        A("s_branch L_tk_done")
        A.label("L_tk_spin")
        A("s_cmp_lg_u32 s51, 0"); A("s_cbranch_scc1 L_tk_done")
        A("s_mov_b64 exec, 1")
        A("global_load_dword v89, v90, s[38:39] offset:4 sc1")
        A("s_waitcnt vmcnt(0)")
        A("v_readfirstlane_b32 s51, v89")
        A("s_mov_b64 exec, -1")
        A("s_branch L_tk_spin")
        A.label("L_tk_done")
    A("s_waitcnt lgkmcnt(0)")
    if dry:
        A("s_cmp_eq_u32 s58, 0"); A("s_cbranch_scc1 L_proj_back")
    P.stamp()
    A.label("L_b3")
    A("s_barrier")
    if not fused:
        A("s_lshl_b32 s43, s42, 6"); A("v_add_u32 v4, s43, v0")
        A("v_cmp_gt_u32 vcc, 160, v4")
        A("v_lshlrev_b32 v4, 4, v4")
        A("s_and_saveexec_b64 s[46:47], vcc")
        A("s_cbranch_execz L_aux_done")
        for w in range(4): A(f"ds_read_b128 v[{72+4*w}:{75+4*w}], v4 offset:{L_OUTP + w*2560}")
        A("s_mul_i32 s6, s66, 2560")
        srd(A, 8, 40, 41, 6, 2560)
        A("s_waitcnt lgkmcnt(0)")
        for k in range(4):
            A(f"v_add_f32 v{72+k}, v{72+k}, v{76+k}"); A(f"v_add_f32 v{80+k}, v{80+k}, v{84+k}"); A(f"v_add_f32 v{72+k}, v{72+k}, v{80+k}")
        A("buffer_store_dwordx4 v[72:75], v4, s[8:11], 0 offen")
    elif fused in (2, 3):
        A("s_mul_i32 s43, s42, 640"); A("v_lshlrev_b32 v4, 2, v0"); A("v_add_u32 v4, s43, v4")
        for i in range(3):
            for w in range(4):
                A(f"ds_read_b32 v{72+4*i+w}, v4 offset:{L_OUTP + w*2560 + i*256}")
        for i in range(3):
            A(f"s_waitcnt lgkmcnt({8-4*i})")
            v = 72 + 4 * i
            A(f"v_add_f32 v{v}, v{v}, v{v+1}"); A(f"v_add_f32 v{v+2}, v{v+2}, v{v+3}"); A(f"v_add_f32 v{v}, v{v}, v{v+2}")
            if i == 2: A("s_mov_b32 exec_hi, 0")
            A(f"buffer_atomic_add_f32 v{v}, v4, s[8:11], 0 offen offset:{i*256}")
        A("s_mov_b32 exec_hi, -1")
        if fused == 3 and fin1:
            for i in range(3):
                for k in range(2):
                    d = BUF + 4 * i + 2 * k
                    A(f"v_lshlrev_b32 v{d}, 16, v{BP[i]+k}"); A(f"v_and_b32 v{d+1}, 0xffff0000, v{BP[i]+k}")
                    A(f"v_lshlrev_b32 v84, 16, v{XP[i]+k}"); A(f"v_and_b32 v85, 0xffff0000, v{XP[i]+k}")
                    A(f"v_add_f32 v{d}, v{d}, v84"); A(f"v_add_f32 v{d+1}, v{d+1}, v85")
            A("v_lshlrev_b32 v4, 4, v0"); A("v_lshlrev_b32 v7, 3, v0")
            A("s_mul_i32 s6, s4, 1280")
            srd(A, 12, 36, 37, 6, 1280)
        A("s_waitcnt vmcnt(0)")
        P.stamp()
        A("s_barrier")
        if fused == 3 and fin1:
            A("s_cmp_lg_u32 s42, 0"); A("s_cbranch_scc1 L_aux_done")
            A("s_mov_b64 exec, 1")
            A("global_atomic_add v5, v90, v91, s[38:39] offset:8 sc0")
            A("s_waitcnt vmcnt(0)")
            A("v_readfirstlane_b32 s43, v5")
            A("s_mov_b64 exec, -1")
            P.stamp()
            A("s_cmp_lg_u32 s43, 31"); A("s_cbranch_scc1 L_aux_done")
            for i in range(3): A(f"buffer_load_dwordx4 v[{72+4*i}:{75+4*i}], v4, s[8:11], 0 offen offset:{i*1024} sc1")
            for i in range(3):
                A(f"s_waitcnt vmcnt({2-i})" if i == 0 else f"s_waitcnt vmcnt({2-i+0})")
                v = 72 + 4 * i
                for k in range(4): A(f"v_add_f32 v{v+k}, v{v+k}, v{BUF+4*i+k}")
                A(f"v_cvt_pk_bf16_f32 v{v}, v{v}, v{v+1}"); A(f"v_cvt_pk_bf16_f32 v{v+1}, v{v+2}, v{v+3}")
            if dbgspan:
                A("s_memrealtime s[94:95]"); A("s_waitcnt lgkmcnt(0)"); A("s_sub_u32 s94, s94, s90")
                A("v_mov_b32 v6, s94"); A("s_mov_b64 exec, 1")
                A("global_store_dword v90, v6, s[38:39] offset:12"); A("s_mov_b64 exec, -1")
            for i in range(3): A(f"buffer_store_dwordx2 v[{72+4*i}:{73+4*i}], v7, s[12:15], 0 offen offset:{i*512}")
        else:
            A("s_cmp_lg_u32 s42, 0"); A("s_cbranch_scc1 L_wait_flag")
            A("s_mov_b64 exec, 1")
            A("global_atomic_add v5, v90, v91, s[38:39] offset:8 sc0")
            A("s_waitcnt vmcnt(0)")
            A("v_mov_b32 v6, 0")
            A(f"ds_write_b32 v6, v5 offset:{L_FLAG}")
            A("s_mov_b64 exec, -1")
            A("s_waitcnt lgkmcnt(0)")
            A.label("L_wait_flag")
            P.stamp()
            A("s_barrier")
            A("v_mov_b32 v6, 0")
            A(f"ds_read_b32 v5, v6 offset:{L_FLAG}")
            A("s_lshl_b32 s43, s42, 6"); A("v_add_u32 v4, s43, v0")
            A("v_lshlrev_b32 v7, 3, v4"); A("v_lshlrev_b32 v4, 4, v4")
            A("s_mul_i32 s6, s4, 1280")
            srd(A, 12, 36, 37, 6, 1280)
            A("s_waitcnt lgkmcnt(0)")
            A("v_readfirstlane_b32 s43, v5")
            A("s_cmp_lg_u32 s43, 31"); A("s_cbranch_scc1 L_aux_done")
            A("s_cmp_ge_u32 s42, 3"); A("s_cbranch_scc1 L_aux_done")
            A("buffer_load_dwordx4 v[72:75], v4, s[8:11], 0 offen sc1")
            A("s_waitcnt vmcnt(0)")
            for k in range(2):
                A(f"v_lshlrev_b32 v76, 16, v{XB+2+k}"); A(f"v_and_b32 v77, 0xffff0000, v{XB+2+k}")
                A(f"v_add_f32 v{72+2*k}, v{72+2*k}, v76"); A(f"v_add_f32 v{73+2*k}, v{73+2*k}, v77")
                A(f"v_lshlrev_b32 v76, 16, v{XB+k}"); A(f"v_and_b32 v77, 0xffff0000, v{XB+k}")
                A(f"v_add_f32 v{72+2*k}, v{72+2*k}, v76"); A(f"v_add_f32 v{73+2*k}, v{73+2*k}, v77")
            A("v_cvt_pk_bf16_f32 v72, v72, v73"); A("v_cvt_pk_bf16_f32 v73, v74, v75")
            A("buffer_store_dwordx2 v[72:73], v7, s[12:15], 0 offen")
    else:
        NG = 8 if tail2 else 4
        SPW = 32 // NG
        widx = "s3" if tail2 else "s42"
        A("v_lshlrev_b32 v4, 4, v0")
        A("s_cmp_lg_u32 s3, 4"); A("s_cbranch_scc1 L_wait_flag")
        for i in range(3):
            for w in range(4):
                v = BUF + 16 * i + 4 * w
                A(f"ds_read_b128 v[{v}:{v+3}], v4 offset:{L_OUTP + w*2560 + i*1024}")
        SB = 1280 if sl16 else 2560
        A(f"s_mul_i32 s6, s66, {SB}")
        srd(A, 8, 40, 41, 6, SB)
        if sl16: A("v_lshlrev_b32 v5, 3, v0")
        for i in range(3):
            A(f"s_waitcnt lgkmcnt({8-4*i})")
            v = BUF + 16 * i
            for k in range(4):
                A(f"v_add_f32 v{v+k}, v{v+k}, v{v+4+k}"); A(f"v_add_f32 v{v+8+k}, v{v+8+k}, v{v+12+k}"); A(f"v_add_f32 v{v+k}, v{v+k}, v{v+8+k}")
            if sl16:
                A(f"v_cvt_pk_bf16_f32 v{v+4}, v{v}, v{v+1}"); A(f"v_cvt_pk_bf16_f32 v{v+5}, v{v+2}, v{v+3}")
                A(f"buffer_store_dwordx2 v[{v+4}:{v+5}], v5, s[8:11], 0 offen offset:{i*512} sc1")
            else:
                A(f"buffer_store_dwordx4 v[{v}:{v+3}], v4, s[8:11], 0 offen offset:{i*1024} sc1")
        A("s_lshl_b32 s6, s4, 5")
        A("v_mov_b32 v6, s6"); A("v_mov_b32 v7, 1")
        A("s_waitcnt vmcnt(0)")
        P.stamp()
        A("s_mov_b64 s[46:47], exec"); A("s_mov_b64 exec, 1")
        A("global_atomic_add v5, v6, v7, s[38:39] sc0")
        A("s_waitcnt vmcnt(0)")
        A("v_mov_b32 v6, 0")
        A(f"ds_write_b32 v6, v5 offset:{L_FLAG}")
        A("s_mov_b64 exec, s[46:47]")
        A("s_waitcnt lgkmcnt(0)")
        A.label("L_wait_flag")
        P.stamp()
        A("s_barrier")
        A("v_mov_b32 v6, 0")
        A(f"ds_read_b32 v5, v6 offset:{L_FLAG}")
        A(f"s_mul_i32 s6, s4, {32*SB}"); A(f"s_mul_i32 s43, {widx}, {SPW*SB}"); A("s_add_u32 s6, s6, s43")
        srd(A, 8, 40, 41, 6, SPW * SB)
        if sl16: A("v_lshlrev_b32 v7, 3, v0")
        A("s_waitcnt lgkmcnt(0)")
        A("v_readfirstlane_b32 s43, v5")
        if warm:
            A("s_cmp_eq_u32 s43, 31"); A("s_cselect_b32 s10, s10, 0"); A("s_cselect_b32 s57, 1280, 0")
        else:
            A("s_cmp_lg_u32 s43, 31"); A("s_cbranch_scc1 L_aux_done")
        A.vm = []
        for i in range(3):
            for sl in range(SPW):
                v = BUF + (i * SPW + sl) * 4
                if i == 2 and sl == 0: A("s_mov_b32 exec_hi, 0")
                if sl == 0: so = "0"
                else:
                    A(f"s_mov_b32 s45, {sl*SB}"); so = "s45"
                if sl16:
                    A.issue(("g", i, sl), f"buffer_load_dwordx2 v[{v}:{v+1}], v7, s[8:11], {so} offen offset:{i*512} sc1")
                else:
                    A.issue(("g", i, sl), f"buffer_load_dwordx4 v[{v}:{v+3}], v4, s[8:11], {so} offen offset:{i*1024} sc1")
        A("s_mov_b32 exec_hi, -1")
        A(f"s_mul_i32 s43, {widx}, 2560"); A("v_add_u32 v6, s43, v4")
        LF = L_F if tail2 else L_OUTP
        for i in range(3):
            A.wait(("g", i, SPW - 1))
            v = BUF + i * SPW * 4
            if sl16:
                for sl in range(SPW):
                    q = v + 4 * sl
                    A(f"v_lshlrev_b32 v{q+2}, 16, v{q+1}"); A(f"v_and_b32 v{q+3}, 0xffff0000, v{q+1}")
                    A(f"v_and_b32 v{q+1}, 0xffff0000, v{q}"); A(f"v_lshlrev_b32 v{q}, 16, v{q}")
            n = SPW
            stride = 4
            while n > 1:
                for p in range(n // 2):
                    for k in range(4):
                        A(f"v_add_f32 v{v+2*p*stride+k}, v{v+2*p*stride+k}, v{v+(2*p+1)*stride+k}")
                n //= 2; stride *= 2
            if i == 2: A("s_mov_b32 exec_hi, 0")
            A(f"ds_write_b128 v6, v[{v}:{v+3}] offset:{LF + i*1024}")
        A("s_mov_b32 exec_hi, -1")
        A("s_waitcnt lgkmcnt(0)")
        P.stamp()
        A("s_barrier")
        A("s_cmp_lt_u32 s3, 4"); A("s_cbranch_scc1 L_aux_done")
        A("s_lshl_b32 s43, s42, 6"); A("v_add_u32 v4, s43, v0")
        A("v_cmp_gt_u32 vcc, 160, v4")
        A("v_lshlrev_b32 v5, 3, v4")
        A("v_lshlrev_b32 v4, 4, v4")
        A("s_and_saveexec_b64 s[46:47], vcc")
        A("s_cbranch_execz L_aux_done")
        for w in range(NG): A(f"ds_read_b128 v[{BUF+4*w}:{BUF+3+4*w}], v4 offset:{LF + w*2560}")
        A("s_mul_i32 s6, s4, 1280")
        srd(A, 8, 36, 37, 6, "s57" if warm else 1280)
        A("s_waitcnt lgkmcnt(0)")
        n = NG; stride = 4
        while n > 1:
            for p in range(n // 2):
                for k in range(4):
                    A(f"v_add_f32 v{BUF+2*p*stride+k}, v{BUF+2*p*stride+k}, v{BUF+(2*p+1)*stride+k}")
            n //= 2; stride *= 2
        for k in range(2):
            A(f"v_lshlrev_b32 v76, 16, v{XB+2+k}"); A(f"v_and_b32 v77, 0xffff0000, v{XB+2+k}")
            A(f"v_add_f32 v{BUF+2*k}, v{BUF+2*k}, v76"); A(f"v_add_f32 v{BUF+1+2*k}, v{BUF+1+2*k}, v77")
            A(f"v_lshlrev_b32 v76, 16, v{XB+k}"); A(f"v_and_b32 v77, 0xffff0000, v{XB+k}")
            A(f"v_add_f32 v{BUF+2*k}, v{BUF+2*k}, v76"); A(f"v_add_f32 v{BUF+1+2*k}, v{BUF+1+2*k}, v77")
        A(f"v_cvt_pk_bf16_f32 v72, v{BUF}, v{BUF+1}"); A(f"v_cvt_pk_bf16_f32 v73, v{BUF+2}, v{BUF+3}")
        A("buffer_store_dwordx2 v[72:73], v5, s[8:11], 0 offen")
    A.label("L_aux_done")
    P.stamp()
    if prof and tail2:
        A("s_cmp_lt_u32 s3, 4"); A("s_cbranch_scc1 L_end")
    P.flush()
    A.label("L_end")
    A("s_endpgm")
    out += A.L
    kernels = [(kname, 256, 102)]
    if not fused:
        B = Asm()
        out.append(".globl reduce_kernel"); out.append(".p2align 8"); out.append(".type reduce_kernel,@function")
        B.label("reduce_kernel")
        B("s_cmp_ge_u32 s2, 160"); B("s_cbranch_scc1 R_end")
        B("s_load_dwordx2 s[4:5], s[0:1], 0")
        B("s_load_dwordx4 s[8:11], s[0:1], 72")
        B("s_load_dwordx2 s[6:7], s[0:1], 96")
        B("s_mul_hi_u32 s12, s2, 0xccccccd")
        B("s_mul_i32 s13, s12, 20"); B("s_sub_u32 s13, s2, s13")
        B("v_and_b32 v1, 7, v0"); B("v_lshrrev_b32 v2, 3, v0")
        B("v_mul_u32_u24 v3, 10240, v2"); B("v_lshl_add_u32 v3, v1, 4, v3")
        B("s_lshl_b32 s14, s13, 7"); B("v_add_u32 v3, s14, v3")
        B("s_mul_i32 s15, s12, 81920")
        B("s_waitcnt lgkmcnt(0)")
        B("s_add_u32 s16, s6, s15"); B("s_addc_u32 s17, s7, 0"); B("s_mov_b32 s18, 81920"); B("s_mov_b32 s19, 0x20000")
        B("s_mov_b32 s20, 2560"); B("s_mov_b32 s21, 5120"); B("s_mov_b32 s22, 7680")
        B("buffer_load_dwordx4 v[4:7], v3, s[16:19], 0 offen")
        B("buffer_load_dwordx4 v[8:11], v3, s[16:19], s20 offen")
        B("buffer_load_dwordx4 v[12:15], v3, s[16:19], s21 offen")
        B("buffer_load_dwordx4 v[16:19], v3, s[16:19], s22 offen")
        B("s_mul_i32 s15, s12, 1280"); B("s_lshl_b32 s14, s13, 6")
        B("v_lshlrev_b32 v20, 3, v1"); B("v_add_u32 v20, s14, v20")
        B("s_add_u32 s24, s4, s15"); B("s_addc_u32 s25, s5, 0"); B("s_mov_b32 s26, 1280"); B("s_mov_b32 s27, 0x20000")
        B("s_mov_b32 s28, s8"); B("s_mov_b32 s29, s9"); B("s_mov_b32 s30, 1280"); B("s_mov_b32 s31, 0x20000")
        B("s_add_u32 s32, s10, s15"); B("s_addc_u32 s33, s11, 0"); B("s_mov_b32 s34, 1280"); B("s_mov_b32 s35, 0x20000")
        B("buffer_load_dwordx2 v[22:23], v20, s[24:27], 0 offen")
        B("buffer_load_dwordx2 v[24:25], v20, s[28:31], 0 offen")
        B("s_waitcnt vmcnt(2)")
        for k in range(4):
            B(f"v_add_f32 v{4+k}, v{4+k}, v{8+k}"); B(f"v_add_f32 v{12+k}, v{12+k}, v{16+k}"); B(f"v_add_f32 v{4+k}, v{4+k}, v{12+k}")
        B.nop(2)
        for k in range(4): B(f"v_add_f32_dpp v{4+k}, v{4+k}, v{4+k} row_ror:8 row_mask:0xf bank_mask:0xf")
        for sw in ("v_permlane16_swap_b32", "v_permlane32_swap_b32"):
            for k in range(4): B(f"v_mov_b32 v{8+k}, v{4+k}")
            B.nop(2)
            for k in range(4): B(f"{sw} v{4+k}, v{8+k}")
            B.nop(1)
            for k in range(4): B(f"v_add_f32 v{4+k}, v{4+k}, v{8+k}")
        B("s_waitcnt vmcnt(0)")
        for k in range(2):
            B(f"v_lshlrev_b32 v8, 16, v{22+k}"); B(f"v_and_b32 v9, 0xffff0000, v{22+k}")
            B(f"v_lshlrev_b32 v10, 16, v{24+k}"); B(f"v_and_b32 v11, 0xffff0000, v{24+k}")
            B(f"v_add_f32 v{4+2*k}, v{4+2*k}, v10"); B(f"v_add_f32 v{5+2*k}, v{5+2*k}, v11")
            B(f"v_add_f32 v{4+2*k}, v{4+2*k}, v8"); B(f"v_add_f32 v{5+2*k}, v{5+2*k}, v9")
        B("v_cvt_pk_bf16_f32 v4, v4, v5"); B("v_cvt_pk_bf16_f32 v5, v6, v7")
        B("v_cmp_gt_u32 vcc, 8, v0"); B("s_and_saveexec_b64 s[36:37], vcc")
        B("buffer_store_dwordx2 v[4:5], v20, s[32:35], 0 offen")
        B.label("R_end"); B("s_endpgm")
        out += B.L
        kernels.append(("reduce_kernel", 32, 48))
    out.append('.section .rodata,"a"')
    for kn, nv, ns in kernels:
        out += [".p2align 6", f".amdhsa_kernel {kn}", f"  .amdhsa_next_free_vgpr {nv}", f"  .amdhsa_next_free_sgpr {ns}",
                f"  .amdhsa_accum_offset {nv}", "  .amdhsa_group_segment_fixed_size 0", "  .amdhsa_kernarg_size 104",
                "  .amdhsa_user_sgpr_count 2", "  .amdhsa_user_sgpr_kernarg_segment_ptr 1", "  .amdhsa_system_sgpr_workgroup_id_x 1",
                "  .amdhsa_float_denorm_mode_32 3", ".end_amdhsa_kernel"]
    return "\n".join(out) + "\n"

if __name__ == "__main__":
    kw = eval("dict(" + (sys.argv[2] if len(sys.argv) > 2 else "") + ")")
    open(sys.argv[1], "w").write(gen(**kw))
```
